```python
import torch

def _softmax(x, axis=-1):
    return torch.softmax(x, dim=axis)
def _gelu(x):
    return torch.nn.functional.gelu(x, approximate="tanh")
def _silu(x):
    return torch.nn.functional.silu(x)
def _sigmoid(x):
    return torch.sigmoid(x)
def _layernorm(x, axis=-1, eps=1e-5):
    m = x.mean(dim=axis, keepdim=True)
    v = x.var(dim=axis, keepdim=True, unbiased=False)
    return (x - m) / torch.sqrt(v + eps)
def _scatter_add(tgt, idx, src, axis=0):
    return tgt.clone().index_add_(axis, idx, src)
def _segment_sum(src, seg, n):
    out = torch.zeros((n,) + src.shape[1:], dtype=src.dtype)
    return out.index_add_(0, seg, src)
def _pad(x, pw):
    flat = tuple(v for pair in reversed(pw) for v in pair)
    return torch.nn.functional.pad(x, flat)

kernel_name = 'sequential_preLN__sliding_local_dilated__geglu_ffn__prompt'

def setup_inputs():

    _w = (lambda a: (lambda t: t.to(torch.bfloat16) if t.is_floating_point() else t)(torch.as_tensor(a)))
    def _A_setup():
        B, S, D = 1, 2048, 576
        return {
            "x": _w((lambda *s: torch.randn(*s, dtype=torch.bfloat16) * 0.05)(B, S, D)),
            "wqkv": _w((lambda *s: torch.randn(*s, dtype=torch.bfloat16) * 0.05)(D, 3 * D)),
            "wo": _w((lambda *s: torch.randn(*s, dtype=torch.bfloat16) * 0.05)(D, D)),
        }
    _A_in = _A_setup()

    def _B_setup():
        B, S, D, F = 1, 2048, 576, 4608
        return {
            "x": _w((lambda *s: torch.randn(*s, dtype=torch.bfloat16) * 0.05)(B, S, D)),
            "w_gate": _w((lambda *s: torch.randn(*s, dtype=torch.bfloat16) * 0.05)(D, F)),
            "w_up": _w((lambda *s: torch.randn(*s, dtype=torch.bfloat16) * 0.05)(D, F)),
            "w_down": _w((lambda *s: torch.randn(*s, dtype=torch.bfloat16) * 0.05)(F, D)),
        }
    _B_in = _B_setup()

    return {
        "A_x": _A_in["x"],
        "A_wqkv": _A_in["wqkv"],
        "A_wo": _A_in["wo"],
        "B_x": _B_in["x"],
        "B_w_gate": _B_in["w_gate"],
        "B_w_up": _B_in["w_up"],
        "B_w_down": _B_in["w_down"],
    }

def reference(A_x, A_wqkv, A_wo, B_x, B_w_gate, B_w_up, B_w_down):
    def _A_ref(x, wqkv, wo):
        B, S, D = x.shape
        H = 32; Dh = D // H
        W, dil = 8, 2
        qkv = (lambda x, *d: x.permute(*d))((x @ wqkv).reshape(B, S, 3, H, Dh), 2, 0, 3, 1, 4)
        q, k, v = qkv[0], qkv[1], qkv[2]
        scale = Dh ** -0.5
        pos = torch.arange(S)
        off = torch.arange(W) * dil
        idx = pos[:, None] - off[None, :]
        mask = idx >= 0
        idx_c = torch.where(mask, idx, 0).reshape(-1)
        kg = k[:, :, idx_c, :].reshape(B, H, S, W, Dh)
        vg = v[:, :, idx_c, :].reshape(B, H, S, W, Dh)
        logits = torch.einsum("bhsd,bhswd->bhsw", q, kg) * scale
        logits = torch.where(mask[None, None, :, :], logits, -1e9)
        attn = _softmax(logits, axis=-1)
        o = torch.einsum("bhsw,bhswd->bhsd", attn, vg)
        return (lambda x, *d: x.permute(*d))(o, 0, 2, 1, 3).reshape(B, S, D) @ wo

    def _B_ref(x, w_gate, w_up, w_down):
        return (_gelu(x @ w_gate) * (x @ w_up)) @ w_down

    x = A_x
    h = x + _A_ref(_layernorm(x, axis=-1), A_wqkv, A_wo)
    h2 = h + _B_ref(_layernorm(h, axis=-1), B_w_gate, B_w_up, B_w_down)
    return h2
```

```python
import sys, struct

S, D, F = 2048, 576, 4608
O_OFF = 0x0000000
H_OFF = 0x0400000
ST_OFF = 0x0800000
CP_OFF = 0x0820000
CS_OFF = 0x0860000
ACT_OFF = 0x1000000
PART_OFF = 0x3000000


def f2u(x):
    return struct.unpack("<I", struct.pack("<f", x))[0]


class K:
    def __init__(s, name):
        s.name = name
        s.L = []
        s.lq = []
        s.vq = []
        s.nlab = 0

    def e(s, t):
        s.L.append("    " + t)

    def c(s, t):
        s.L.append("    ; " + t)

    def label(s, n):
        s.L.append(n + ":")

    def newlab(s, base):
        s.nlab += 1
        return "L_%s_%s_%d" % (s.name, base, s.nlab)

    def lds(s, t, tag=None):
        s.e(t)
        s.lq.append(tag)

    def vm(s, t, tag=None):
        s.e(t)
        s.vq.append(tag)

    def _need(s, q, tag):
        idx = -1
        for i, x in enumerate(q):
            if x == tag:
                idx = i
        return idx

    def wait_lds(s, tag):
        idx = s._need(s.lq, tag)
        if idx < 0:
            return
        n = len(s.lq) - idx - 1
        n = min(n, 15)
        s.e("s_waitcnt lgkmcnt(%d)" % n)
        s.lq = s.lq[len(s.lq) - n:] if n else []

    def wait_vm(s, tag):
        idx = s._need(s.vq, tag)
        if idx < 0:
            return
        n = len(s.vq) - idx - 1
        n = min(n, 63)
        s.e("s_waitcnt vmcnt(%d)" % n)
        s.vq = s.vq[len(s.vq) - n:] if n else []

    def wait_all(s):
        s.e("s_waitcnt vmcnt(0) lgkmcnt(0)")
        s.lq = []
        s.vq = []

    def wait_lds_all(s):
        s.e("s_waitcnt lgkmcnt(0)")
        s.lq = []

    def wait_vm_all(s):
        s.e("s_waitcnt vmcnt(0)")
        s.vq = []


def vr(b, n):
    return "v[%d:%d]" % (b, b + n - 1)


def sr(b, n):
    return "s[%d:%d]" % (b, b + n - 1)


P_X, P_WQKV, P_WO, P_BX, P_WG, P_WU, P_WD, P_OUT, P_DBG, P_WS = 16, 18, 20, 22, 24, 26, 28, 30, 32, 34


def header(k, nwg):
    k.e("s_cmp_ge_u32 s2, %d" % nwg)
    k.e("s_cbranch_scc1 L_%s_end" % k.name)
    k.e("s_load_dwordx16 s[16:31], s[0:1], 0")
    k.e("s_load_dwordx4 s[32:35], s[0:1], 64")
    k.e("v_lshrrev_b32 v1, 6, v0")
    k.e("v_and_b32 v0, 63, v0")
    k.e("s_nop 0")
    k.e("v_readfirstlane_b32 s4, v1")
    k.e("s_waitcnt lgkmcnt(0)")


def srd(k, d, ptr, off, nbytes):
    if off:
        k.e("s_add_u32 s%d, s%d, 0x%x" % (d, ptr, off))
        k.e("s_addc_u32 s%d, s%d, 0" % (d + 1, ptr + 1))
    else:
        k.e("s_mov_b32 s%d, s%d" % (d, ptr))
        k.e("s_mov_b32 s%d, s%d" % (d + 1, ptr + 1))
    k.e("s_mov_b32 s%d, 0x%x" % (d + 2, nbytes))
    k.e("s_mov_b32 s%d, 0x00020000" % (d + 3))


def footer(k):
    k.label("L_%s_end" % k.name)
    k.e("s_endpgm")


def swap23_lane_rowpos(k, vdst, vlane, vt, vt2):
    k.e("v_lshrrev_b32 v%d, 5, v%d" % (vt, vlane))
    k.e("v_lshlrev_b32 v%d, 4, v%d" % (vdst, vt))
    k.e("v_bfe_u32 v%d, v%d, 4, 1" % (vt, vlane))
    k.e("v_lshlrev_b32 v%d, 2, v%d" % (vt, vt))
    k.e("v_add_u32 v%d, v%d, v%d" % (vdst, vdst, vt))
    k.e("v_bfe_u32 v%d, v%d, 2, 2" % (vt2, vlane))
    k.e("v_add_u32 v%d, v%d, v%d" % (vdst, vdst, vt2))


def swap23(k, vdst, vp, vt, vt2):
    k.e("v_and_b32 v%d, 0x33, v%d" % (vdst, vp))
    k.e("v_bfe_u32 v%d, v%d, 2, 1" % (vt, vp))
    k.e("v_lshlrev_b32 v%d, 3, v%d" % (vt, vt))
    k.e("v_bfe_u32 v%d, v%d, 3, 1" % (vt2, vp))
    k.e("v_lshlrev_b32 v%d, 2, v%d" % (vt2, vt2))
    k.e("v_or3_b32 v%d, v%d, v%d, v%d" % (vdst, vdst, vt, vt2))


def gemm_core(k, nst, nbuf, MI, acc, afr, bring, PD, a_rd, b_rd, dma, zero_init):
    NJ = 9
    RB = len(bring)
    nm = MI * NJ

    def rdB(t):
        st, nj = divmod(t, NJ)
        if st >= nst:
            return []
        slot = bring[t % RB]
        out = []
        for j in range(2):
            v, off = b_rd(st % nbuf, nj, j)
            out.append(("ds_read_b64_tr_b16 %s, v%d offset:%d" % (vr(slot + 2 * j, 2), v, off), ("B", t)))
        return out

    def rdA(st, i):
        if st >= nst:
            return []
        v, off = a_rd(st % nbuf, i)
        return [("ds_read_b128 %s, v%d offset:%d" % (vr(afr[st % 2][i], 4), v, off), ("A", st))]

    k.wait_vm(("dma", 0))
    k.e("s_barrier")
    for i in range(MI):
        for (t, tag) in rdA(0, i):
            k.lds(t, tag)
    for t in range(PD):
        for (x, tag) in rdB(t):
            k.lds(x, tag)
    for s in range(nst):
        k.c("---- step %d" % s)
        groups = []
        if s + 1 < nst:
            k.wait_vm(("dma", s + 1))
            k.e("s_barrier")
            if s + nbuf - 1 < nst:
                groups = dma(s + nbuf - 1)
        ev = {}

        def add(idx, fn):
            ev.setdefault(min(idx, nm - 1), []).append(fn)
        for nj in range(NJ):
            t = s * NJ + nj
            add(nj * MI, (lambda tt: (lambda: [k.lds(x, tag) for (x, tag) in rdB(tt)]))(t + PD))
        for i in range(MI):
            add((2 + i) * MI + min(1, MI - 1), (lambda ii: (lambda: [k.lds(x, tag) for (x, tag) in rdA(s + 1, ii)]))(i))
        for gi, g in enumerate(groups):
            def mk(g):
                def f():
                    for (x, tag) in g:
                        if tag is None:
                            k.e(x)
                        else:
                            k.vm(x, tag)
                return f
            add(gi * MI + min(2, MI - 1), mk(g))
        for nj in range(NJ):
            t = s * NJ + nj
            if nj == 0:
                k.wait_lds(("A", s))
            k.wait_lds(("B", t))
            for i in range(MI):
                a = acc(i, nj)
                cc = "0" if (zero_init and s == 0) else vr(a, 4)
                k.e("v_mfma_f32_16x16x32_bf16 %s, %s, %s, %s" % (vr(a, 4), vr(bring[t % RB], 4), vr(afr[s % 2][i], 4), cc))
                for fn in ev.get(nj * MI + i, []):
                    fn()


def issue_groups(k, groups):
    for g in groups:
        for (x, tag) in g:
            if tag is None:
                k.e(x)
            else:
                k.vm(x, tag)


def gen_k3():
    k = K("ffn1")
    SB = 34816
    NBUF = 4
    header(k, 256)
    SA, SBd, SST, SCS, SO = 36, 40, 44, 48, 52
    sKA, sKB, sMA, sMB = 56, 57, 58, 59
    k.e("s_and_b32 s60, s2, 7")
    k.e("s_lshr_b32 s61, s2, 3")
    k.e("s_and_b32 s62, s61, 3")
    k.e("s_lshl_b32 s60, s60, 2")
    k.e("s_add_u32 s60, s60, s62")
    k.e("s_lshr_b32 s61, s61, 2")
    k.e("s_lshl_b32 s7, s61, 8")
    k.e("s_mul_i32 s8, s60, 144")
    k.e("s_lshr_b32 s5, s4, 1")
    k.e("s_and_b32 s6, s4, 1")
    srd(k, SA, P_WS, H_OFF, S * D * 2)
    k.e("s_cmp_lt_u32 s4, 4")
    k.e("s_cselect_b32 s%d, s%d, s%d" % (SBd, P_WG, P_WU))
    k.e("s_cselect_b32 s%d, s%d, s%d" % (SBd + 1, P_WG + 1, P_WU + 1))
    k.e("s_mov_b32 s%d, 0x%x" % (SBd + 2, D * F * 2))
    k.e("s_mov_b32 s%d, 0x00020000" % (SBd + 3))
    srd(k, SST, P_WS, ST_OFF, S * 32)
    srd(k, SCS, P_WS, CS_OFF, 2 * F * 4)
    srd(k, SO, P_WS, ACT_OFF, S * F * 2)
    vOA0, vOA1, vOB = 2, 3, 4
    vAlo, vAhi, vB = 8, 10, 12
    vR = 96
    ACC = 112
    afr = [[48 + 4 * i for i in range(4)], [64 + 4 * i for i in range(4)]]
    bring = [80, 84, 88, 92]
    acc = lambda i, nj: ACC + (i * 9 + nj) * 4
    k.e("v_and_b32 v16, 15, v0")
    k.e("v_lshrrev_b32 v17, 4, v0")
    k.e("s_lshl_b32 s60, s5, 6")
    k.e("s_add_u32 s60, s60, s7")
    k.e("v_add_u32 v18, s60, v16")
    k.e("v_lshlrev_b32 v18, 5, v18")
    k.e("s_lshl_b32 s61, s6, 10")
    k.e("v_add_u32 v19, s61, v18")
    k.e("v_subrev_u32 v20, s61, v18")
    for i in range(4):
        base = 19 if i < 2 else 20
        for h in range(2):
            k.vm("buffer_load_dwordx4 %s, v%d, %s, 0 offen offset:%d" % (vr(ACC + i * 8 + h * 4, 4), base, sr(SST, 4), i * 512 + h * 16), "st")
    k.e("s_mul_i32 s60, s6, 4608")
    k.e("s_add_u32 s60, s60, s8")
    k.e("v_lshlrev_b32 v18, 2, v17")
    k.e("v_add_u32 v18, s60, v18")
    k.e("v_lshlrev_b32 v18, 2, v18")
    CSR = 48
    for nj in range(9):
        k.vm("buffer_load_dwordx4 %s, v18, %s, 0 offen offset:%d" % (vr(CSR + nj * 4, 4), sr(SCS, 4), nj * 64), "cs")
    k.e("s_lshl_b32 s60, s4, 5")
    k.e("s_add_u32 s60, s60, s7")
    k.e("v_add_u32 v18, s60, v16")
    k.e("s_movk_i32 s61, 1152")
    k.e("v_mul_lo_u32 v18, v18, s61")
    k.e("v_lshlrev_b32 v19, 4, v17")
    k.e("v_add_u32 v%d, v18, v19" % vOA0)
    k.e("v_add_u32 v%d, %d, v%d" % (vOA1, 16 * 1152, vOA0))
    k.e("s_and_b32 s60, s4, 3")
    k.e("s_mul_i32 s60, s60, 144")
    k.e("s_lshl_b32 s62, s8, 1")
    k.e("s_movk_i32 s61, 3641")
    k.e("s_movk_i32 s63, 9216")
    for i in range(3):
        k.e("v_add_u32 v18, s60, v0")
        if i:
            k.e("v_add_u32 v18, %d, v18" % (64 * i))
        k.e("v_mul_lo_u32 v19, v18, s61")
        k.e("v_lshrrev_b32 v19, 16, v19")
        k.e("v_mul_u32_u24 v20, 18, v19")
        k.e("v_sub_u32 v18, v18, v20")
        swap23(k, 20, 19, 21, 22)
        k.e("v_mul_lo_u32 v20, v20, s63")
        k.e("v_lshlrev_b32 v18, 4, v18")
        k.e("v_add3_u32 v%d, v20, v18, s62" % (vOB + i))
    k.e("s_mov_b32 s%d, 0" % sKA)
    k.e("s_mov_b32 s%d, 0" % sKB)
    k.e("s_lshl_b32 s%d, s4, 11" % sMA)
    k.e("s_mul_i32 s%d, s4, 2304" % sMB)
    k.e("s_add_u32 s%d, s%d, 16384" % (sMB, sMB))

    def dma(st):
        b = (st % NBUF) * SB
        tag = ("dma", st)
        g = []
        for i in range(2):
            g.append([("s_add_u32 m0, s%d, %d" % (sMA, b + i * 1024), None), ("s_nop 0", None),
                      ("buffer_load_dwordx4 v%d, %s, s%d offen lds" % (vOA0 + i, sr(SA, 4), sKA), tag)])
        for i in range(3):
            x = [("s_add_u32 m0, s%d, %d" % (sMB, b + i * 1024), None)]
            if i == 2:
                x.append(("s_mov_b64 exec, 0xffff", None))
            else:
                x.append(("s_nop 0", None))
            x.append(("buffer_load_dwordx4 v%d, %s, s%d offen lds" % (vOB + i, sr(SBd, 4), sKB), tag))
            if i == 2:
                x.append(("s_mov_b64 exec, -1", None))
                x.append(("s_add_u32 s%d, s%d, 64" % (sKA, sKA), None))
                x.append(("s_add_u32 s%d, s%d, %d" % (sKB, sKB, 32 * 9216), None))
            g.append(x)
        return g
    for st in range(NBUF - 1):
        issue_groups(k, dma(st))
    k.e("s_lshl_b32 s60, s5, 12")
    k.e("s_lshl_b32 s61, s6, 11")
    k.e("v_lshlrev_b32 v18, 4, v0")
    k.e("v_add_u32 v18, s60, v18")
    k.e("v_add_u32 v%d, s61, v18" % vAlo)
    k.e("v_subrev_u32 v%d, s61, v18" % vAhi)
    k.e("v_add_u32 v%d, %d, v%d" % (vAlo + 1, 2 * SB, vAlo))
    k.e("v_add_u32 v%d, %d, v%d" % (vAhi + 1, 2 * SB, vAhi))
    swap23_lane_rowpos(k, 18, 0, 19, 20)
    k.e("v_mul_u32_u24 v18, 288, v18")
    k.e("v_and_b32 v19, 3, v0")
    k.e("v_lshlrev_b32 v19, 3, v19")
    k.e("s_mul_i32 s60, s6, 9216")
    k.e("s_add_u32 s60, s60, 16384")
    k.e("v_add3_u32 v%d, v18, v19, s60" % vB)
    k.e("v_add_u32 v%d, %d, v%d" % (vB + 1, 2 * SB, vB))
    k.wait_vm("cs")
    k.e("s_mov_b32 s60, 0x%x" % f2u(1.0 / 576.0))
    k.e("s_mov_b32 s61, 0x%x" % f2u(1e-5))
    vM = 100
    for i in range(4):
        b = ACC + i * 8
        k.e("v_add_f32 v18, v%d, v%d" % (b, b + 2))
        k.e("v_add_f32 v19, v%d, v%d" % (b + 4, b + 6))
        k.e("v_add_f32 v20, v%d, v%d" % (b + 1, b + 3))
        k.e("v_add_f32 v21, v%d, v%d" % (b + 5, b + 7))
        k.e("v_add_f32 v18, v18, v19")
        k.e("v_add_f32 v20, v20, v21")
        k.e("v_mul_f32 v18, s60, v18")
        k.e("v_mul_f32 v20, s60, v20")
        k.e("v_fma_f32 v20, -v18, v18, v20")
        k.e("v_max_f32 v20, 0, v20")
        k.e("v_add_f32 v20, s61, v20")
        k.e("v_rsq_f32 v%d, v20" % (vR + i))
        k.e("v_sub_f32 v%d, 0, v18" % (vM + i))
    for i in range(4):
        for nj in range(9):
            for r in range(4):
                k.e("v_mul_f32 v%d, v%d, v%d" % (acc(i, nj) + r, vM + i, CSR + nj * 4 + r))
    k.e("s_nop 1")

    def a_rd(buf, i):
        v = (vAlo if i < 2 else vAhi) + (buf >> 1)
        return v, (buf & 1) * SB + i * 1024

    def b_rd(buf, nj, j):
        return vB + (buf >> 1), (buf & 1) * SB + j * 2304 + nj * 32
    gemm_core(k, 18, NBUF, 4, acc, afr, bring, 2, a_rd, b_rd, dma, False)
    k.c("---- epilogue")
    k.e("s_nop 7")
    k.e("s_nop 7")
    k.e("s_barrier")
    k.e("s_mul_i32 s60, s4, 18432")
    k.e("s_xor_b32 s61, s4, 1")
    k.e("s_mul_i32 s61, s61, 18432")
    k.e("v_lshlrev_b32 v18, 4, v0")
    k.e("v_add_u32 v19, s60, v18")
    k.e("v_add_u32 v20, s61, v18")
    for i in range(2, 4):
        for nj in range(9):
            k.lds("ds_write_b128 v19, %s offset:%d" % (vr(acc(i, nj), 4), ((i - 2) * 9 + nj) * 1024))
    k.wait_lds_all()
    k.e("s_barrier")
    for i in range(2, 4):
        for nj in range(9):
            k.lds("ds_read_b128 %s, v20 offset:%d" % (vr(acc(i, nj), 4), ((i - 2) * 9 + nj) * 1024), ("x", i, nj))
    k.e("s_lshl_b32 s60, s5, 6")
    k.e("s_add_u32 s60, s60, s7")
    k.e("s_lshl_b32 s61, s6, 5")
    k.e("s_add_u32 s60, s60, s61")
    k.e("v_add_u32 v18, s60, v16")
    k.e("s_movk_i32 s63, 9216")
    k.e("v_mul_lo_u32 v18, v18, s63")
    k.e("v_lshlrev_b32 v19, 3, v17")
    k.e("s_lshl_b32 s62, s8, 1")
    k.e("v_add3_u32 v21, v18, v19, s62")
    k.e("v_add_u32 v22, %d, v21" % (16 * 9216))
    c1 = -2.0 * 0.7978845608028654 * 1.4426950408889634
    k.e("s_mov_b32 s60, 0x%x" % f2u(c1 * 0.044715))
    k.e("v_mov_b32 v23, 0x%x" % f2u(c1))
    lab_up = k.newlab("up")
    lab_done = k.newlab("done")
    k.e("s_cmp_eq_u32 s6, 1")
    k.e("s_cbranch_scc1 %s" % lab_up)
    saved = list(k.lq)
    for role in range(2):
        if role == 1:
            k.e("s_branch %s" % lab_done)
            k.label(lab_up)
            k.lq = list(saved)
        for i in range(2):
            for nj in range(9):
                own = acc(i, nj)
                rcv = acc(i + 2, nj)
                gsrc, usrc = (own, rcv) if role == 0 else (rcv, own)
                k.wait_lds(("x", i + 2, nj))
                T = 24
                for r in range(4):
                    k.e("v_mul_f32 v%d, v%d, v%d" % (T + r, gsrc + r, vR + i))
                for r in range(4):
                    k.e("v_mul_f32 v%d, v%d, v%d" % (T + 4 + r, T + r, T + r))
                for r in range(4):
                    k.e("v_fma_f32 v%d, v%d, s60, v23" % (T + 4 + r, T + 4 + r))
                for r in range(4):
                    k.e("v_mul_f32 v%d, v%d, v%d" % (T + 4 + r, T + 4 + r, T + r))
                for r in range(4):
                    k.e("v_exp_f32 v%d, v%d" % (T + 4 + r, T + 4 + r))
                for r in range(4):
                    k.e("v_mul_f32 v%d, v%d, v%d" % (T + 8 + r, usrc + r, vR + i))
                for r in range(4):
                    k.e("v_add_f32 v%d, 1.0, v%d" % (T + 4 + r, T + 4 + r))
                for r in range(4):
                    k.e("v_rcp_f32 v%d, v%d" % (T + 4 + r, T + 4 + r))
                for r in range(4):
                    k.e("v_mul_f32 v%d, v%d, v%d" % (T + 8 + r, T + 8 + r, T + r))
                for r in range(4):
                    k.e("v_mul_f32 v%d, v%d, v%d" % (T + 8 + r, T + 8 + r, T + 4 + r))
                P = own
                k.e("v_cvt_pk_bf16_f32 v%d, v%d, v%d" % (P, T + 8, T + 9))
                k.e("v_cvt_pk_bf16_f32 v%d, v%d, v%d" % (P + 1, T + 10, T + 11))
                k.vm("buffer_store_dwordx2 %s, v%d, %s, 0 offen offset:%d" % (vr(P, 2), 21 + i, sr(SO, 4), nj * 32))
    k.label(lab_done)
    footer(k)
    return k, 256


def gen_k4():
    k = K("ffn2")
    SB = 34816
    NBUF = 4
    header(k, 256)
    SA, SBd, SO = 36, 40, 52
    sKA, sKB, sMA, sMB = 56, 57, 58, 59
    k.e("s_and_b32 s9, s2, 3")
    k.e("s_bfe_u32 s60, s2, 0x10002")
    k.e("s_lshr_b32 s61, s2, 3")
    k.e("s_lshr_b32 s62, s61, 2")
    k.e("s_lshl_b32 s60, s60, 3")
    k.e("s_add_u32 s60, s60, s62")
    k.e("s_lshl_b32 s7, s60, 7")
    k.e("s_and_b32 s61, s61, 3")
    k.e("s_mul_i32 s8, s61, 144")
    k.e("s_lshr_b32 s5, s4, 1")
    k.e("s_and_b32 s6, s4, 1")
    srd(k, SA, P_WS, ACT_OFF, S * F * 2)
    srd(k, SBd, P_WD, 0, F * D * 2)
    srd(k, SO, P_WS, PART_OFF, 4 * S * D * 4)
    vOA, vOB = 2, 8
    vAlo, vAhi, vB = 24, 26, 28
    ACC = 112
    afr = [[48 + 4 * i for i in range(4)], [64 + 4 * i for i in range(4)]]
    bring = [80, 84, 88, 92]
    acc = lambda i, nj: ACC + (i * 9 + nj) * 4
    k.e("v_and_b32 v16, 15, v0")
    k.e("v_lshrrev_b32 v17, 4, v0")
    k.e("s_lshl_b32 s60, s4, 5")
    k.e("s_add_u32 s60, s60, s7")
    k.e("v_add_u32 v18, s60, v16")
    k.e("s_movk_i32 s63, 9216")
    k.e("v_mul_lo_u32 v18, v18, s63")
    k.e("v_lshlrev_b32 v19, 4, v17")
    k.e("s_mul_i32 s61, s9, 2304")
    k.e("v_add3_u32 v%d, v18, v19, s61" % vOA)
    k.e("v_add_u32 v%d, 64, v%d" % (vOA + 1, vOA))
    k.e("v_add_u32 v%d, %d, v%d" % (vOA + 2, 16 * 9216, vOA))
    k.e("v_add_u32 v%d, %d, v%d" % (vOA + 3, 16 * 9216 + 64, vOA))
    k.e("s_mul_i32 s60, s4, 288")
    k.e("s_lshl_b32 s62, s8, 1")
    k.e("s_mul_i32 s61, s9, 1152 * 1152")
    k.e("s_add_u32 s62, s62, s61")
    k.e("s_movk_i32 s61, 3641")
    k.e("s_movk_i32 s63, 1152")
    for i in range(5):
        k.e("v_add_u32 v18, s60, v0")
        if i:
            k.e("v_add_u32 v18, %d, v18" % (64 * i))
        k.e("v_mul_lo_u32 v19, v18, s61")
        k.e("v_lshrrev_b32 v19, 16, v19")
        k.e("v_mul_u32_u24 v20, 18, v19")
        k.e("v_sub_u32 v18, v18, v20")
        swap23(k, 20, 19, 21, 22)
        k.e("v_mul_lo_u32 v20, v20, s63")
        k.e("v_lshlrev_b32 v18, 4, v18")
        k.e("v_add3_u32 v%d, v20, v18, s62" % (vOB + i))
    k.e("s_mov_b32 s%d, 0" % sKA)
    k.e("s_mov_b32 s%d, 0" % sKB)
    k.e("s_lshl_b32 s%d, s4, 12" % sMA)
    k.e("s_mul_i32 s%d, s4, 4608" % sMB)
    k.e("s_add_u32 s%d, s%d, 16384" % (sMB, sMB))

    def dma(st):
        b = (st % NBUF) * SB
        tag = ("dma", st)
        g = []
        for i in range(4):
            g.append([("s_add_u32 m0, s%d, %d" % (sMA, b + i * 1024), None), ("s_nop 0", None),
                      ("buffer_load_dwordx4 v%d, %s, s%d offen lds" % (vOA + i, sr(SA, 4), sKA), tag)])
        for i in range(5):
            x = [("s_add_u32 m0, s%d, %d" % (sMB, b + i * 1024), None)]
            if i == 4:
                x.append(("s_mov_b32 exec_hi, 0", None))
            else:
                x.append(("s_nop 0", None))
            x.append(("buffer_load_dwordx4 v%d, %s, s%d offen lds" % (vOB + i, sr(SBd, 4), sKB), tag))
            if i == 4:
                x.append(("s_mov_b64 exec, -1", None))
                x.append(("s_add_u32 s%d, s%d, 128" % (sKA, sKA), None))
                x.append(("s_add_u32 s%d, s%d, %d" % (sKB, sKB, 64 * 1152), None))
            g.append(x)
        return g
    for st in range(NBUF - 1):
        issue_groups(k, dma(st))
    k.e("s_lshl_b32 s60, s5, 13")
    k.e("s_lshl_b32 s61, s6, 10")
    k.e("s_add_u32 s60, s60, s61")
    k.e("s_lshl_b32 s61, s6, 12")
    k.e("v_lshlrev_b32 v18, 4, v0")
    k.e("v_add_u32 v18, s60, v18")
    k.e("v_add_u32 v%d, s61, v18" % vAlo)
    k.e("v_subrev_u32 v%d, s61, v18" % vAhi)
    k.e("v_add_u32 v%d, %d, v%d" % (vAlo + 1, 2 * SB, vAlo))
    k.e("v_add_u32 v%d, %d, v%d" % (vAhi + 1, 2 * SB, vAhi))
    swap23_lane_rowpos(k, 18, 0, 19, 20)
    k.e("v_mul_u32_u24 v18, 288, v18")
    k.e("v_and_b32 v19, 3, v0")
    k.e("v_lshlrev_b32 v19, 3, v19")
    k.e("s_mul_i32 s60, s6, 9216")
    k.e("s_add_u32 s60, s60, 16384")
    k.e("v_add3_u32 v%d, v18, v19, s60" % vB)
    k.e("v_add_u32 v%d, %d, v%d" % (vB + 1, 2 * SB, vB))

    def a_rd(buf, i):
        v = (vAlo if i < 2 else vAhi) + (buf >> 1)
        return v, (buf & 1) * SB + i * 2048

    def b_rd(buf, nj, j):
        return vB + (buf >> 1), (buf & 1) * SB + j * 2304 + nj * 32
    gemm_core(k, 18, NBUF, 4, acc, afr, bring, 2, a_rd, b_rd, dma, True)
    k.c("---- epilogue")
    k.e("s_nop 7")
    k.e("s_nop 7")
    k.e("s_barrier")
    k.e("s_mul_i32 s60, s4, 18432")
    k.e("s_xor_b32 s61, s4, 1")
    k.e("s_mul_i32 s61, s61, 18432")
    k.e("v_lshlrev_b32 v18, 4, v0")
    k.e("v_add_u32 v19, s60, v18")
    k.e("v_add_u32 v20, s61, v18")
    for i in range(2, 4):
        for nj in range(9):
            k.lds("ds_write_b128 v19, %s offset:%d" % (vr(acc(i, nj), 4), ((i - 2) * 9 + nj) * 1024))
    k.wait_lds_all()
    k.e("s_barrier")
    for i in range(2, 4):
        for nj in range(9):
            k.lds("ds_read_b128 %s, v20 offset:%d" % (vr(acc(i, nj), 4), ((i - 2) * 9 + nj) * 1024), ("x", i, nj))
    k.e("s_lshl_b32 s60, s5, 6")
    k.e("s_add_u32 s60, s60, s7")
    k.e("s_lshl_b32 s61, s6, 5")
    k.e("s_add_u32 s60, s60, s61")
    k.e("s_lshl_b32 s61, s9, 11")
    k.e("s_add_u32 s60, s60, s61")
    k.e("v_add_u32 v18, s60, v16")
    k.e("s_movk_i32 s63, 2304")
    k.e("v_mul_lo_u32 v18, v18, s63")
    k.e("v_lshlrev_b32 v19, 4, v17")
    k.e("s_lshl_b32 s62, s8, 2")
    k.e("v_add3_u32 v21, v18, v19, s62")
    k.e("v_add_u32 v22, %d, v21" % (16 * 2304))
    for i in range(2):
        for nj in range(9):
            k.wait_lds(("x", i + 2, nj))
            for r in range(4):
                k.e("v_add_f32 v%d, v%d, v%d" % (acc(i, nj) + r, acc(i, nj) + r, acc(i + 2, nj) + r))
            k.vm("buffer_store_dwordx4 %s, v%d, %s, 0 offen offset:%d" % (vr(acc(i, nj), 4), 21 + i, sr(SO, 4), nj * 64))
    footer(k)
    return k, 256


def gen_k5():
    k = K("red")
    nwg = S * D // 8 // 256
    k.e("s_cmp_ge_u32 s2, %d" % nwg)
    k.e("s_cbranch_scc1 L_%s_end" % k.name)
    k.e("s_load_dwordx16 s[16:31], s[0:1], 0")
    k.e("s_load_dwordx4 s[32:35], s[0:1], 64")
    k.e("s_lshl_b32 s3, s2, 8")
    k.e("v_add_u32 v1, s3, v0")
    k.e("v_lshlrev_b32 v2, 4, v1")
    k.e("v_lshlrev_b32 v3, 5, v1")
    k.e("s_waitcnt lgkmcnt(0)")
    srd(k, 36, P_WS, H_OFF, S * D * 2)
    srd(k, 40, P_WS, PART_OFF, 4 * S * D * 4)
    srd(k, 44, P_OUT, 0, S * D * 2)
    k.e("buffer_load_dwordx4 v[4:7], v2, s[36:39], 0 offen")
    for p in range(4):
        k.e("s_mov_b32 s48, 0x%x" % (p * S * D * 4))
        k.e("buffer_load_dwordx4 %s, v3, s[40:43], s48 offen" % vr(8 + p * 8, 4))
        k.e("buffer_load_dwordx4 %s, v3, s[40:43], s48 offen offset:16" % vr(12 + p * 8, 4))
    k.e("s_waitcnt vmcnt(0)")
    for r in range(8):
        k.e("v_add_f32 v%d, v%d, v%d" % (8 + r, 8 + r, 16 + r))
        k.e("v_add_f32 v%d, v%d, v%d" % (24 + r, 24 + r, 32 + r))
    for r in range(8):
        k.e("v_add_f32 v%d, v%d, v%d" % (8 + r, 8 + r, 24 + r))
    for d in range(4):
        k.e("v_lshlrev_b32 v40, 16, v%d" % (4 + d))
        k.e("v_and_b32 v41, 0xffff0000, v%d" % (4 + d))
        k.e("v_add_f32 v%d, v%d, v40" % (8 + 2 * d, 8 + 2 * d))
        k.e("v_add_f32 v%d, v%d, v41" % (9 + 2 * d, 9 + 2 * d))
    for d in range(4):
        k.e("v_cvt_pk_bf16_f32 v%d, v%d, v%d" % (4 + d, 8 + 2 * d, 9 + 2 * d))
    k.e("buffer_store_dwordx4 v[4:7], v2, s[44:47], 0 offen")
    footer(k)
    return k, nwg


def gen_k2():
    k = K("wo")
    SB = 4096 + 18432
    NBUF = 7
    header(k, 256)
    SA, SBd, SX, SH, SST, SCP, SCS = 36, 40, 44, 48, 52, 64, 68
    sKA, sKB, sMA, sMB = 56, 57, 58, 59
    k.e("s_and_b32 s9, s2, 3")
    k.e("s_lshr_b32 s60, s2, 2")
    k.e("s_lshl_b32 s7, s60, 5")
    k.e("s_mul_i32 s8, s9, 144")
    k.e("s_lshr_b32 s5, s4, 1")
    k.e("s_and_b32 s6, s4, 1")
    srd(k, SA, P_WS, O_OFF, S * D * 2)
    srd(k, SBd, P_WO, 0, D * D * 2)
    srd(k, SX, P_X, 0, S * D * 2)
    srd(k, SH, P_WS, H_OFF, S * D * 2)
    srd(k, SST, P_WS, ST_OFF, S * 32)
    srd(k, SCP, P_WS, CP_OFF, 4 * 2 * F * 4)
    srd(k, SCS, P_WS, CS_OFF, 2 * F * 4)
    vOA, vOB = 2, 8
    vA, vB = 24, 28
    ACC = 112
    afr = [[48], [52]]
    bring = [56, 60, 64, 68, 72, 76]
    acc = lambda i, nj: ACC + nj * 4
    XR = 80
    CPR = 100
    k.e("v_and_b32 v16, 15, v0")
    k.e("v_lshrrev_b32 v17, 4, v0")
    k.e("s_mul_i32 s60, s2, 36")
    k.e("v_add_u32 v18, s60, v0")
    k.e("v_lshlrev_b32 v30, 2, v18")
    for p in range(4):
        k.e("s_mov_b32 s61, 0x%x" % (p * 2 * F * 4))
        k.vm("buffer_load_dword v%d, v30, %s, s61 offen" % (CPR + p, sr(SCP, 4)), "cp")
    k.e("s_lshl_b32 s60, s5, 4")
    k.e("s_add_u32 s60, s60, s7")
    k.e("v_add_u32 v31, s60, v16")
    k.e("s_movk_i32 s63, 1152")
    k.e("v_mul_lo_u32 v18, v31, s63")
    k.e("v_lshlrev_b32 v19, 3, v17")
    k.e("s_lshl_b32 s62, s8, 1")
    k.e("v_add3_u32 v32, v18, v19, s62")
    for nj in range(9):
        k.vm("buffer_load_dwordx2 %s, v32, %s, 0 offen offset:%d" % (vr(XR + 2 * nj, 2), sr(SX, 4), nj * 32), "x")
    k.e("s_lshl_b32 s60, s5, 4")
    k.e("s_add_u32 s60, s60, s7")
    k.e("v_add_u32 v18, s60, v16")
    k.e("v_mul_lo_u32 v18, v18, s63")
    k.e("v_lshlrev_b32 v19, 4, v17")
    k.e("s_lshl_b32 s61, s6, 6")
    k.e("v_add3_u32 v%d, v18, v19, s61" % vOA)
    k.e("s_mul_i32 s60, s4, 288")
    k.e("s_lshl_b32 s62, s8, 1")
    k.e("s_movk_i32 s61, 3641")
    for i in range(5):
        k.e("v_add_u32 v18, s60, v0")
        if i:
            k.e("v_add_u32 v18, %d, v18" % (64 * i))
        k.e("v_mul_lo_u32 v19, v18, s61")
        k.e("v_lshrrev_b32 v19, 16, v19")
        k.e("v_mul_u32_u24 v20, 18, v19")
        k.e("v_sub_u32 v18, v18, v20")
        swap23(k, 20, 19, 21, 22)
        k.e("v_mul_lo_u32 v20, v20, s63")
        k.e("v_lshlrev_b32 v18, 4, v18")
        k.e("v_add3_u32 v%d, v20, v18, s62" % (vOB + i))
    k.e("s_mov_b32 s%d, 0" % sKA)
    k.e("s_mov_b32 s%d, 0" % sKB)
    k.e("s_lshl_b32 s%d, s4, 10" % sMA)
    k.e("s_mul_i32 s%d, s4, 4608" % sMB)
    k.e("s_add_u32 s%d, s%d, 4096" % (sMB, sMB))

    def dma(st):
        b = (st % NBUF) * SB
        tag = ("dma", st)
        g = [[("s_add_u32 m0, s%d, %d" % (sMA, b), None), ("s_nop 0", None),
              ("buffer_load_dwordx4 v%d, %s, s%d offen lds" % (vOA, sr(SA, 4), sKA), tag)]]
        for i in range(5):
            x = [("s_add_u32 m0, s%d, %d" % (sMB, b + i * 1024), None)]
            if i == 4:
                x.append(("s_mov_b32 exec_hi, 0", None))
            else:
                x.append(("s_nop 0", None))
            x.append(("buffer_load_dwordx4 v%d, %s, s%d offen lds" % (vOB + i, sr(SBd, 4), sKB), tag))
            if i == 4:
                x.append(("s_mov_b64 exec, -1", None))
                x.append(("s_add_u32 s%d, s%d, 128" % (sKA, sKA), None))
                x.append(("s_add_u32 s%d, s%d, %d" % (sKB, sKB, 64 * 1152), None))
            g.append(x)
        return g
    for st in range(NBUF - 1):
        issue_groups(k, dma(st))
    k.e("v_lshlrev_b32 v18, 4, v0")
    k.e("v_add_u32 v%d, s%d, v18" % (vA, sMA))
    for q in range(1, 4):
        k.e("v_add_u32 v%d, %d, v%d" % (vA + q, 2 * SB * q, vA))
    swap23_lane_rowpos(k, 18, 0, 19, 20)
    k.e("v_mul_u32_u24 v18, 288, v18")
    k.e("v_and_b32 v19, 3, v0")
    k.e("v_lshlrev_b32 v19, 3, v19")
    k.e("s_mul_i32 s60, s6, 9216")
    k.e("s_add_u32 s60, s60, 4096")
    k.e("v_add3_u32 v33, v18, v19, s60")
    vB = 33
    for q in range(1, 4):
        k.e("v_add_u32 v%d, %d, v%d" % (vB + q, 2 * SB * q, vB))

    def a_rd(buf, i):
        return vA + (buf >> 1), (buf & 1) * SB

    def b_rd(buf, nj, j):
        return vB + (buf >> 1), (buf & 1) * SB + j * 2304 + nj * 32
    gemm_core(k, 9, NBUF, 1, acc, afr, bring, 4, a_rd, b_rd, dma, True)
    k.c("---- epilogue")
    k.e("s_nop 7")
    k.e("s_nop 7")
    k.e("s_barrier")
    k.wait_vm("x")
    k.e("v_add_f32 v%d, v%d, v%d" % (CPR, CPR, CPR + 1))
    k.e("v_add_f32 v%d, v%d, v%d" % (CPR + 2, CPR + 2, CPR + 3))
    k.e("v_add_f32 v%d, v%d, v%d" % (CPR, CPR, CPR + 2))
    k.e("s_mov_b32 exec_lo, -1")
    k.e("s_mov_b32 exec_hi, 0xf")
    k.vm("buffer_store_dword v%d, v30, %s, 0 offen" % (CPR, sr(SCS, 4)))
    k.e("s_mov_b64 exec, -1")
    k.e("s_mul_i32 s60, s5, 9216")
    k.e("v_lshlrev_b32 v18, 4, v0")
    k.e("v_add_u32 v19, s60, v18")
    lab_recv = k.newlab("recv")
    k.e("s_cmp_eq_u32 s6, 0")
    k.e("s_cbranch_scc1 %s" % lab_recv)
    for nj in range(9):
        k.lds("ds_write_b128 v19, %s offset:%d" % (vr(acc(0, nj), 4), nj * 1024))
    k.wait_lds_all()
    k.e("s_barrier")
    k.e("s_branch L_%s_end" % k.name)
    k.label(lab_recv)
    k.e("s_barrier")
    R = 48
    RX = 148
    for nj in range(9):
        k.lds("ds_read_b128 %s, v19 offset:%d" % (vr(RX + nj * 4, 4), nj * 1024), ("x", nj))
    k.e("v_mov_b32 v40, 0")
    k.e("v_mov_b32 v41, 0")
    for nj in range(9):
        k.wait_lds(("x", nj))
        a = acc(0, nj)
        for r in range(4):
            k.e("v_add_f32 v%d, v%d, v%d" % (a + r, a + r, RX + nj * 4 + r))
        for d in range(2):
            k.e("v_lshlrev_b32 v42, 16, v%d" % (XR + 2 * nj + d))
            k.e("v_and_b32 v43, 0xffff0000, v%d" % (XR + 2 * nj + d))
            k.e("v_add_f32 v%d, v%d, v42" % (a + 2 * d, a + 2 * d))
            k.e("v_add_f32 v%d, v%d, v43" % (a + 2 * d + 1, a + 2 * d + 1))
        k.e("v_cvt_pk_bf16_f32 v%d, v%d, v%d" % (XR + 2 * nj, a, a + 1))
        k.e("v_cvt_pk_bf16_f32 v%d, v%d, v%d" % (XR + 2 * nj + 1, a + 2, a + 3))
        k.vm("buffer_store_dwordx2 %s, v32, %s, 0 offen offset:%d" % (vr(XR + 2 * nj, 2), sr(SH, 4), nj * 32))
        for d in range(2):
            k.e("v_lshlrev_b32 v42, 16, v%d" % (XR + 2 * nj + d))
            k.e("v_and_b32 v43, 0xffff0000, v%d" % (XR + 2 * nj + d))
            k.e("v_add_f32 v40, v40, v42")
            k.e("v_fmac_f32 v41, v42, v42")
            k.e("v_add_f32 v40, v40, v43")
            k.e("v_fmac_f32 v41, v43, v43")
    k.e("v_xor_b32 v44, 16, v0")
    k.e("v_lshlrev_b32 v44, 2, v44")
    k.e("v_xor_b32 v45, 32, v0")
    k.e("v_lshlrev_b32 v45, 2, v45")
    for a in (44, 45):
        k.e("ds_bpermute_b32 v42, v%d, v40" % a)
        k.e("ds_bpermute_b32 v43, v%d, v41" % a)
        k.e("s_waitcnt lgkmcnt(0)")
        k.e("v_add_f32 v40, v40, v42")
        k.e("v_add_f32 v41, v41, v43")
    k.e("v_lshlrev_b32 v42, 5, v31")
    k.e("s_lshl_b32 s60, s9, 3")
    k.e("v_add_u32 v42, s60, v42")
    k.e("s_mov_b64 exec, 0xffff")
    k.e("buffer_store_dwordx2 v[40:41], v42, %s, 0 offen" % sr(SST, 4))
    footer(k)
    return k, 256


def gen_k1():
    k = K("qkv")
    AREG = 5 * 18 * 1024
    SB = 15360
    NBUF = 4
    QP = 976
    header(k, 256)
    SX, SW, SO, SG, SCP = 36, 40, 44, 48, 52
    sKB, sMB = 57, 59
    k.e("s_and_b32 s9, s2, 7")
    k.e("s_lshr_b32 s10, s2, 3")
    srd(k, SX, P_X, 0, S * D * 2)
    srd(k, SW, P_WQKV, 0, D * 3 * D * 2)
    srd(k, SO, P_WS, O_OFF, S * D * 2)
    srd(k, SCP, P_WS, CP_OFF, 4 * 2 * F * 4)
    vOB = 2
    k.e("v_and_b32 v16, 15, v0")
    k.e("v_lshrrev_b32 v17, 4, v0")
    k.e("s_mul_i32 s60, s4, 120")
    k.e("s_mul_i32 s62, s9, 144")
    k.e("s_mov_b32 s61, 6554")
    k.e("s_movk_i32 s63, 3456")
    for i in range(2):
        k.e("v_add_u32 v18, s60, v0")
        if i:
            k.e("v_add_u32 v18, 64, v18")
        k.e("v_mul_lo_u32 v19, v18, s61")
        k.e("v_lshrrev_b32 v19, 16, v19")
        k.e("v_mul_u32_u24 v20, 10, v19")
        k.e("v_sub_u32 v18, v18, v20")
        k.e("v_lshrrev_b32 v23, 5, v19")
        k.e("v_and_b32 v19, 31, v19")
        swap23(k, 20, 19, 21, 22)
        k.e("v_mul_lo_u32 v20, v20, s63")
        k.e("v_lshlrev_b32 v18, 4, v18")
        k.e("v_mul_u32_u24 v23, 1152, v23")
        k.e("v_add3_u32 v20, v20, v18, v23")
        k.e("v_add_u32 v%d, s62, v20" % (vOB + i))
    k.e("s_mov_b32 s%d, 0" % sKB)
    k.e("s_mul_i32 s%d, s4, 1920" % sMB)
    k.e("s_add_u32 s%d, s%d, %d" % (sMB, sMB, AREG))

    def dma(st):
        b = (st % NBUF) * SB
        tag = ("dma", st)
        g = []
        g.append([("s_add_u32 m0, s%d, %d" % (sMB, b), None), ("s_nop 0", None),
                  ("buffer_load_dwordx4 v%d, %s, s%d offen lds" % (vOB, sr(SW, 4), sKB), tag)])
        g.append([("s_add_u32 m0, s%d, %d" % (sMB, b + 1024), None), ("s_mov_b32 exec_hi, 0x00ffffff", None),
                  ("buffer_load_dwordx4 v%d, %s, s%d offen lds" % (vOB + 1, sr(SW, 4), sKB), tag),
                  ("s_mov_b32 exec_hi, -1", None),
                  ("s_add_u32 s%d, s%d, %d" % (sKB, sKB, 32 * 3456), None)])
        return g
    lab_cs = k.newlab("cs")
    lab_join = k.newlab("join")
    k.e("s_cmp_ge_u32 s4, 5")
    k.e("s_cbranch_scc1 %s" % lab_cs)
    X = 32
    k.e("s_lshl_b32 s60, s10, 6")
    k.e("s_lshl_b32 s61, s4, 4")
    k.e("s_add_u32 s60, s60, s61")
    k.e("s_sub_u32 s60, s60, 16")
    k.e("v_lshrrev_b32 v18, 2, v0")
    k.e("v_add_u32 v18, s60, v18")
    k.e("s_movk_i32 s63, 1152")
    k.e("v_mul_lo_u32 v18, v18, s63")
    k.e("v_and_b32 v19, 3, v0")
    k.e("v_lshlrev_b32 v20, 4, v19")
    k.e("v_add_u32 v18, v18, v20")
    for c in range(18):
        k.vm("buffer_load_dwordx4 %s, v18, %s, 0 offen offset:%d" % (vr(X + 4 * c, 4), sr(SX, 4), c * 64), ("x", c))
    for st in range(NBUF - 1):
        issue_groups(k, dma(st))
    k.e("v_mov_b32 v24, 0x3f803f80")
    k.e("v_mov_b32 v20, 0")
    k.e("v_mov_b32 v21, 0")
    k.e("v_mov_b32 v22, 0")
    k.e("v_mov_b32 v23, 0")
    for c in range(18):
        k.wait_vm(("x", c))
        for d in range(4):
            x = X + 4 * c + d
            k.e("v_dot2_f32_bf16 v%d, v%d, v24, v%d" % (20 + (d & 1), x, 20 + (d & 1)))
            k.e("v_dot2_f32_bf16 v%d, v%d, v%d, v%d" % (22 + (d & 1), x, x, 22 + (d & 1)))
    k.e("s_nop 3")
    k.e("v_add_f32 v20, v20, v21")
    k.e("v_add_f32 v22, v22, v23")
    k.e("s_nop 1")
    k.e("v_add_f32 v20, v20, v20 quad_perm:[1,0,3,2] row_mask:0xf bank_mask:0xf")
    k.e("v_add_f32 v22, v22, v22 quad_perm:[1,0,3,2] row_mask:0xf bank_mask:0xf")
    k.e("s_nop 1")
    k.e("v_add_f32 v20, v20, v20 quad_perm:[2,3,0,1] row_mask:0xf bank_mask:0xf")
    k.e("v_add_f32 v22, v22, v22 quad_perm:[2,3,0,1] row_mask:0xf bank_mask:0xf")
    k.e("s_mov_b32 s60, 0x%x" % f2u(1.0 / 576.0))
    k.e("s_mov_b32 s61, 0x%x" % f2u(1e-5))
    k.e("v_mul_f32 v20, s60, v20")
    k.e("v_mul_f32 v22, s60, v22")
    k.e("v_fma_f32 v22, -v20, v20, v22")
    k.e("v_max_f32 v22, 0, v22")
    k.e("v_add_f32 v22, s61, v22")
    k.e("v_rsq_f32 v22, v22")
    k.e("s_nop 0")
    k.e("v_mul_f32 v20, v20, v22")
    k.e("v_sub_f32 v20, 0, v20")
    k.e("v_lshrrev_b32 v18, 2, v0")
    k.e("v_lshlrev_b32 v19, 4, v19")
    k.e("v_add_u32 v18, v18, v19")
    k.e("v_lshlrev_b32 v18, 4, v18")
    k.e("s_mul_i32 s60, s4, 18432")
    k.e("v_add_u32 v18, s60, v18")
    for c in range(18):
        for d in range(4):
            x = X + 4 * c + d
            k.e("v_lshlrev_b32 v26, 16, v%d" % x)
            k.e("v_and_b32 v27, 0xffff0000, v%d" % x)
            k.e("v_fma_f32 v26, v26, v22, v20")
            k.e("v_fma_f32 v27, v27, v22, v20")
            k.e("v_cvt_pk_bf16_f32 v%d, v26, v27" % x)
        k.lds("ds_write_b128 v18, %s offset:%d" % (vr(X + 4 * c, 4), c * 1024))
    k.e("s_branch %s" % lab_join)
    k.label(lab_cs)
    k.lq, k.vq = [], []
    for st in range(NBUF - 1):
        issue_groups(k, dma(st))
    k.e("s_mul_i32 s60, s2, 3")
    k.e("s_add_u32 s60, s60, s4")
    k.e("s_sub_u32 s60, s60, 5")
    k.e("s_cmp_ge_u32 s60, 576")
    k.e("s_cbranch_scc1 %s" % lab_join)
    k.e("s_mul_i32 s61, s60, 7282")
    k.e("s_lshr_b32 s61, s61, 20")
    k.e("s_mul_i32 s62, s61, 144")
    k.e("s_sub_u32 s62, s60, s62")
    k.e("s_cmp_lt_u32 s62, 72")
    k.e("s_cselect_b32 s%d, s%d, s%d" % (SG, P_WG, P_WU))
    k.e("s_cselect_b32 s%d, s%d, s%d" % (SG + 1, P_WG + 1, P_WU + 1))
    k.e("s_cselect_b32 s63, 0, 72")
    k.e("s_mov_b32 s%d, 0x%x" % (SG + 2, D * F * 2))
    k.e("s_mov_b32 s%d, 0x00020000" % (SG + 3))
    k.e("s_sub_u32 s63, s62, s63")
    k.e("s_lshl_b32 s63, s63, 7")
    k.e("s_mul_i32 s64, s61, 144 * 9216")
    k.e("s_add_u32 s63, s63, s64")
    k.e("v_lshrrev_b32 v18, 3, v0")
    k.e("s_movk_i32 s64, 9216")
    k.e("v_mul_lo_u32 v18, v18, s64")
    k.e("v_and_b32 v19, 7, v0")
    k.e("v_lshlrev_b32 v20, 4, v19")
    k.e("v_add3_u32 v18, v18, v20, s63")
    k.e("s_mov_b32 s64, 0")
    for i in range(18):
        k.vm("buffer_load_dwordx4 %s, v18, %s, s64 offen" % (vr(X + 4 * i, 4), sr(SG, 4)), ("g", i))
        k.e("s_add_u32 s64, s64, %d" % (8 * 9216))
    for r in range(8):
        k.e("v_mov_b32 v%d, 0" % (20 + r))
    for i in range(18):
        k.wait_vm(("g", i))
        for d in range(4):
            x = X + 4 * i + d
            k.e("v_lshlrev_b32 v28, 16, v%d" % x)
            k.e("v_and_b32 v29, 0xffff0000, v%d" % x)
            k.e("v_add_f32 v%d, v%d, v28" % (20 + 2 * d, 20 + 2 * d))
            k.e("v_add_f32 v%d, v%d, v29" % (21 + 2 * d, 21 + 2 * d))
    for m in (8, 16, 32):
        k.e("v_xor_b32 v28, %d, v0" % m)
        k.e("v_lshlrev_b32 v28, 2, v28")
        for r in range(8):
            k.e("ds_bpermute_b32 v%d, v28, v%d" % (X + r, 20 + r))
        k.e("s_waitcnt lgkmcnt(0)")
        for r in range(8):
            k.e("v_add_f32 v%d, v%d, v%d" % (20 + r, 20 + r, X + r))
    k.e("s_mul_i32 s63, s61, %d" % (2 * F * 4))
    k.e("s_lshl_b32 s64, s62, 8")
    k.e("s_add_u32 s63, s63, s64")
    k.e("v_lshlrev_b32 v18, 5, v19")
    k.e("v_add_u32 v18, s63, v18")
    k.e("s_mov_b64 exec, 0xff")
    k.e("buffer_store_dwordx4 v[20:23], v18, %s, 0 offen" % sr(SCP, 4))
    k.e("buffer_store_dwordx4 v[24:27], v18, %s, 0 offen offset:16" % sr(SCP, 4))
    k.e("s_mov_b64 exec, -1")
    k.label(lab_join)
    k.wait_all()
    k.e("s_barrier")
    k.e("s_cmp_lt_u32 s4, 5")
    k.e("s_cbranch_scc0 L_qkv_qslots")
    k.e("s_lshl_b32 s60, s4, 5")
    k.e("s_add_u32 s11, s60, 5120")
    k.e("s_add_u32 s12, s60, 10240")
    k.e("s_branch L_qkv_slots_done")
    k.label("L_qkv_qslots")
    k.e("s_sub_u32 s60, s4, 5")
    k.e("s_lshl_b32 s11, s60, 6")
    k.e("s_add_u32 s12, s11, 32")
    k.e("s_min_u32 s12, s12, 128")
    k.label("L_qkv_slots_done")
    swap23_lane_rowpos(k, 18, 0, 19, 20)
    k.e("v_mul_u32_u24 v18, 160, v18")
    k.e("v_and_b32 v19, 3, v0")
    k.e("v_lshlrev_b32 v19, 3, v19")
    k.e("v_add_u32 v18, v18, v19")
    k.e("v_add_u32 v18, %d, v18" % AREG)
    k.e("v_add_u32 v4, s11, v18")
    k.e("v_add_u32 v5, s12, v18")
    k.e("v_lshlrev_b32 v6, 4, v0")
    k.e("v_add_u32 v7, %d, v6" % (3 * 18432))
    ACC = 32
    acc = lambda sl, mi: ACC + (sl * 5 + mi) * 4
    AF = [[72 + 4 * mi for mi in range(5)], [92 + 4 * mi for mi in range(5)]]
    BF = [[112, 116], [120, 124]]

    def rd(s):
        for mi in range(5):
            v, off = (6, mi * 18432 + s * 1024) if mi < 3 else (7, (mi - 3) * 18432 + s * 1024)
            k.lds("ds_read_b128 %s, v%d offset:%d" % (vr(AF[s % 2][mi], 4), v, off), ("f", s))
        for sl in range(2):
            for j in range(2):
                k.lds("ds_read_b64_tr_b16 %s, v%d offset:%d" % (vr(BF[s % 2][sl] + 2 * j, 2), 4 + sl, (s % NBUF) * SB + j * 1280), ("f", s))
    rd(0)
    for s in range(18):
        k.c("---- step %d" % s)
        if s + 1 < 18:
            k.wait_vm(("dma", s + 1))
            k.e("s_barrier")
            if s + 3 < 18:
                issue_groups(k, dma(s + 3))
            rd(s + 1)
        k.wait_lds(("f", s))
        for sl in range(2):
            for mi in range(5):
                a = acc(sl, mi)
                cc = "0" if s == 0 else vr(a, 4)
                k.e("v_mfma_f32_16x16x32_bf16 %s, %s, %s, %s" % (vr(a, 4), vr(BF[s % 2][sl], 4), vr(AF[s % 2][mi], 4), cc))
    k.e("s_nop 7")
    k.e("s_nop 7")
    k.e("s_barrier")
    for sl, sreg in ((0, 11), (1, 12)):
        k.e("s_cmp_ge_u32 s%d, 10240" % sreg)
        k.e("s_cselect_b32 s60, 10240 - 320, 0")
        k.e("s_cmp_ge_u32 s%d, 5120" % sreg)
        k.e("s_cselect_b32 s61, 5120 - 160, 0")
        k.e("s_max_u32 s60, s60, s61")
        k.e("s_sub_u32 s60, s%d, s60" % sreg)
        k.e("s_lshl_b32 s60, s60, 1")
        k.e("v_mul_u32_u24 v18, %d, v16" % QP)
        k.e("v_lshlrev_b32 v19, 4, v17")
        k.e("v_add3_u32 v%d, v18, v19, s60" % (8 + sl))
    for sl in range(2):
        for mi in range(5):
            a = acc(sl, mi)
            k.e("v_cvt_pk_bf16_f32 v18, v%d, v%d" % (a, a + 1))
            k.e("v_cvt_pk_bf16_f32 v19, v%d, v%d" % (a + 2, a + 3))
            k.e("v_lshlrev_b32 v%d, 16, v18" % a)
            k.e("v_and_b32 v%d, 0xffff0000, v18" % (a + 1))
            k.e("v_lshlrev_b32 v%d, 16, v19" % (a + 2))
            k.e("v_and_b32 v%d, 0xffff0000, v19" % (a + 3))
            k.lds("ds_write_b128 v%d, %s offset:%d" % (8 + sl, vr(a, 4), mi * 16 * QP))
    k.wait_lds_all()
    k.e("s_barrier")
    k.e("s_cmp_ge_u32 s4, 4")
    k.e("s_cbranch_scc1 L_%s_end" % k.name)
    k.e("v_lshrrev_b32 v18, 2, v0")
    k.e("s_lshl_b32 s60, s4, 4")
    k.e("v_add_u32 v18, s60, v18")
    k.e("v_and_b32 v19, 3, v0")
    k.e("v_mul_u32_u24 v20, %d, v18" % QP)
    k.e("v_mul_u32_u24 v21, 72, v19")
    k.e("v_add_u32 v20, v20, v21")
    Q = 32
    KV = 52
    L = 96
    O = 104
    for d in range(9):
        k.lds("ds_read_b64 %s, v20 offset:%d" % (vr(Q + 2 * d, 2), 16 * QP + d * 8), "q")

    def rdkv(j, col, buf, tag):
        for d in range(9):
            k.lds("ds_read_b64 %s, v20 offset:%d" % (vr(KV + buf * 18 + 2 * d, 2), (16 - 2 * j) * QP + col + d * 8), tag)
    rdkv(0, 320, 0, ("k", 0))
    for j in range(8):
        if j + 1 < 8:
            rdkv(j + 1, 320, (j + 1) & 1, ("k", j + 1))
        else:
            rdkv(0, 640, (j + 1) & 1, ("v", 0))
        k.wait_lds(("k", j))
        b = KV + (j & 1) * 18
        k.e("v_mul_f32 v%d, v%d, v%d" % (L + j, Q, b))
        for d in range(1, 18):
            k.e("v_fmac_f32 v%d, v%d, v%d" % (L + j, Q + d, b + d))
    k.e("s_mov_b32 s60, 0x%x" % f2u(18 ** -0.5))
    k.e("s_lshl_b32 s61, s10, 6")
    k.e("v_add_u32 v22, s61, v18")
    k.e("v_mov_b32 v23, 0x%x" % f2u(-1e9))
    for j in range(8):
        k.e("v_mul_f32 v%d, s60, v%d" % (L + j, L + j))
    for j in range(1, 8):
        k.e("v_cmp_le_u32 vcc, %d, v22" % (2 * j))
        k.e("s_nop 1")
        k.e("v_cndmask_b32 v%d, v23, v%d, vcc" % (L + j, L + j))
    k.e("v_max3_f32 v24, v%d, v%d, v%d" % (L, L + 1, L + 2))
    k.e("v_max3_f32 v24, v24, v%d, v%d" % (L + 3, L + 4))
    k.e("v_max3_f32 v24, v24, v%d, v%d" % (L + 5, L + 6))
    k.e("v_max_f32 v24, v24, v%d" % (L + 7))
    k.e("s_mov_b32 s60, 0x%x" % f2u(1.4426950408889634))
    for j in range(8):
        k.e("v_sub_f32 v%d, v%d, v24" % (L + j, L + j))
    for j in range(8):
        k.e("v_mul_f32 v%d, s60, v%d" % (L + j, L + j))
    for j in range(8):
        k.e("v_exp_f32 v%d, v%d" % (L + j, L + j))
    k.e("s_nop 0")
    k.e("v_add_f32 v24, v%d, v%d" % (L, L + 1))
    for j in range(2, 8):
        k.e("v_add_f32 v24, v24, v%d" % (L + j))
    k.e("v_rcp_f32 v24, v24")
    k.e("s_nop 0")
    for j in range(8):
        k.e("v_mul_f32 v%d, v%d, v24" % (L + j, L + j))
    for j in range(8):
        if j + 1 < 8:
            rdkv(j + 1, 640, (j + 1) & 1, ("v", j + 1))
        k.wait_lds(("v", j))
        b = KV + (j & 1) * 18
        for d in range(18):
            if j == 0:
                k.e("v_mul_f32 v%d, v%d, v%d" % (O + d, L, b + d))
            else:
                k.e("v_fmac_f32 v%d, v%d, v%d" % (O + d, L + j, b + d))
    for d in range(9):
        k.e("v_cvt_pk_bf16_f32 v%d, v%d, v%d" % (Q + d, O + 2 * d, O + 2 * d + 1))
    k.e("s_movk_i32 s63, 1152")
    k.e("v_mul_lo_u32 v22, v22, s63")
    k.e("v_mul_u32_u24 v21, 36, v19")
    k.e("s_mul_i32 s60, s9, 144")
    k.e("v_add3_u32 v22, v22, v21, s60")
    k.e("buffer_store_dwordx4 %s, v22, %s, 0 offen" % (vr(Q, 4), sr(SO, 4)))
    k.e("buffer_store_dwordx4 %s, v22, %s, 0 offen offset:16" % (vr(Q + 4, 4), sr(SO, 4)))
    k.e("buffer_store_dword v%d, v22, %s, 0 offen offset:32" % (Q + 8, sr(SO, 4)))
    footer(k)
    return k, 256


def main():
    ks = [
        (gen_k1, 512, 92160 + 4 * 15360, 128),
        (gen_k2, 256, 7 * 22528, 192),
        (gen_k3, 512, 8 * 18432, 256),
        (gen_k4, 256, 4 * 34816, 256),
        (gen_k5, 256, 0, 48),
    ]
    hdr = open("sequential_preLN__sliding_local_dilated__geglu_ffn__prompt.s.ref").read().split("\n")
    out = []
    for line in hdr:
        if line.startswith("; Override") or line.startswith("; grid=") or line.startswith("; @launch"):
            continue
        if not line.startswith(";"):
            break
        out.append(line)
    body = []
    desc = []
    for fn, block, lds, nv in ks:
        k, nwg = fn()
        name = k.name + "_kernel"
        out.append("; @launch kernel=%s grid=(%d,1,1) block=(%d,1,1) lds=%d" % (name, nwg, block, lds))
        body += [".globl %s" % name, ".p2align 8", ".type %s,@function" % name, "%s:" % name] + k.L
        desc += [".p2align 6", ".amdhsa_kernel %s" % name,
                 "  .amdhsa_next_free_vgpr %d" % nv, "  .amdhsa_next_free_sgpr 102",
                 "  .amdhsa_accum_offset %d" % nv,
                 "  .amdhsa_group_segment_fixed_size 0", "  .amdhsa_kernarg_size 80",
                 "  .amdhsa_user_sgpr_count 2", "  .amdhsa_user_sgpr_kernarg_segment_ptr 1",
                 "  .amdhsa_system_sgpr_workgroup_id_x 1", ".end_amdhsa_kernel"]
    out += ['.amdgcn_target "amdgcn-amd-amdhsa--gfx950"', ".text"] + body + ['.section .rodata,"a"'] + desc
    path = sys.argv[1] if len(sys.argv) > 1 else "sequential_preLN__sliding_local_dilated__geglu_ffn__prompt.s"
    open(path, "w").write("\n".join(out) + "\n")


main()
```

```python
import sys, struct

S, D, F = 2048, 576, 4608
O_OFF = 0x0000000
H_OFF = 0x0400000
ST_OFF = 0x0800000
CP_OFF = 0x0A00000
CS_OFF = 0x0860000
FLG_OFF = 0x0880000
ACT_OFF = 0x1000000
PART_OFF = 0x3000000


def f2u(x):
    return struct.unpack("<I", struct.pack("<f", x))[0]


EXP = __import__("os").environ.get("EXP", "")


class K:
    def __init__(s, name):
        s.name = name
        s.L = []
        s.lq = []
        s.vq = []
        s.nlab = 0

    def e(s, t):
        if "nomfma" in EXP and t.startswith("v_mfma"):
            return
        if "noldsrd" in EXP and (t.startswith("ds_read_b128") or t.startswith("ds_read_b64_tr")):
            return
        if "nodma" in EXP and t.endswith(" lds"):
            return
        s.L.append("    " + t)

    def c(s, t):
        s.L.append("    ; " + t)

    def label(s, n):
        s.L.append(n + ":")

    def newlab(s, base):
        s.nlab += 1
        return "L_%s_%s_%d" % (s.name, base, s.nlab)

    def lds(s, t, tag=None):
        s.e(t)
        s.lq.append(tag)

    def vm(s, t, tag=None):
        s.e(t)
        s.vq.append(tag)

    def _need(s, q, tag):
        idx = -1
        for i, x in enumerate(q):
            if x == tag:
                idx = i
        return idx

    def wait_lds(s, tag):
        idx = s._need(s.lq, tag)
        if idx < 0:
            return
        n = len(s.lq) - idx - 1
        n = min(n, 15)
        s.e("s_waitcnt lgkmcnt(%d)" % n)
        s.lq = s.lq[len(s.lq) - n:] if n else []

    def wait_vm(s, tag):
        idx = s._need(s.vq, tag)
        if idx < 0:
            return
        n = len(s.vq) - idx - 1
        n = min(n, 63)
        s.e("s_waitcnt vmcnt(%d)" % n)
        s.vq = s.vq[len(s.vq) - n:] if n else []

    def wait_all(s):
        s.e("s_waitcnt vmcnt(0) lgkmcnt(0)")
        s.lq = []
        s.vq = []

    def wait_lds_all(s):
        s.e("s_waitcnt lgkmcnt(0)")
        s.lq = []

    def wait_vm_all(s):
        s.e("s_waitcnt vmcnt(0)")
        s.vq = []


STAMP = int(__import__("os").environ.get("STAMP", "0"))


def stamp(k, idx):
    if STAMP:
        k.e("s_memtime s[%d:%d]" % (70 + 2 * idx, 71 + 2 * idx))
        if idx in (0, 3):
            k.e("s_memrealtime s[%d:%d]" % (78 + (2 if idx else 0), 79 + (2 if idx else 0)))
        k.e("s_waitcnt lgkmcnt(0)")
        k.lq = []


def stamp_flush(k, n):
    if STAMP:
        lab = k.newlab("nost")
        k.e("s_and_b32 s90, s2, 127")
        k.e("s_cmp_lg_u32 s90, 5")
        k.e("s_cbranch_scc1 %s" % lab)
        k.e("s_cmp_lg_u32 s4, 0")
        k.e("s_cbranch_scc1 %s" % lab)
        srd(k, 92, P_WS, 0x900000 + 512 * ["qkv", "wo", "ffn1", "ffn2"].index(k.name), 256)
        k.e("s_lshr_b32 s90, s2, 7")
        k.e("s_lshl_b32 s90, s90, 6")
        k.e("v_mov_b32 v1, s90")
        k.e("s_mov_b64 exec, 1")
        for i in range(n):
            k.e("v_mov_b32 v2, s%d" % (70 + 2 * i))
            k.e("buffer_store_dword v2, v1, s[92:95], 0 offen offset:%d" % (4 * i))
        k.label(lab)


def vr(b, n):
    return "v[%d:%d]" % (b, b + n - 1)


def sr(b, n):
    return "s[%d:%d]" % (b, b + n - 1)


P_X, P_WQKV, P_WO, P_BX, P_WG, P_WU, P_WD, P_OUT, P_DBG, P_WS = 16, 18, 20, 22, 24, 26, 28, 30, 32, 34


def header(k, nwg):
    k.e("s_cmp_ge_u32 s2, %d" % nwg)
    k.e("s_cbranch_scc1 L_%s_end" % k.name)
    k.e("s_load_dwordx16 s[16:31], s[0:1], 0")
    k.e("s_load_dwordx4 s[32:35], s[0:1], 64")
    k.e("v_lshrrev_b32 v1, 6, v0")
    k.e("v_and_b32 v0, 63, v0")
    k.e("s_nop 0")
    k.e("v_readfirstlane_b32 s4, v1")
    k.e("s_waitcnt lgkmcnt(0)")


def srd(k, d, ptr, off, nbytes):
    if off:
        k.e("s_add_u32 s%d, s%d, 0x%x" % (d, ptr, off))
        k.e("s_addc_u32 s%d, s%d, 0" % (d + 1, ptr + 1))
    else:
        k.e("s_mov_b32 s%d, s%d" % (d, ptr))
        k.e("s_mov_b32 s%d, s%d" % (d + 1, ptr + 1))
    k.e("s_mov_b32 s%d, 0x%x" % (d + 2, nbytes))
    k.e("s_mov_b32 s%d, 0x00020000" % (d + 3))


def footer(k):
    k.label("L_%s_end" % k.name)
    k.e("s_endpgm")


def swap23_lane_rowpos(k, vdst, vlane, vt, vt2):
    k.e("v_lshrrev_b32 v%d, 5, v%d" % (vt, vlane))
    k.e("v_lshlrev_b32 v%d, 4, v%d" % (vdst, vt))
    k.e("v_bfe_u32 v%d, v%d, 4, 1" % (vt, vlane))
    k.e("v_lshlrev_b32 v%d, 2, v%d" % (vt, vt))
    k.e("v_add_u32 v%d, v%d, v%d" % (vdst, vdst, vt))
    k.e("v_bfe_u32 v%d, v%d, 2, 2" % (vt2, vlane))
    k.e("v_add_u32 v%d, v%d, v%d" % (vdst, vdst, vt2))


def swap23(k, vdst, vp, vt, vt2):
    k.e("v_and_b32 v%d, 0x33, v%d" % (vdst, vp))
    k.e("v_bfe_u32 v%d, v%d, 2, 1" % (vt, vp))
    k.e("v_lshlrev_b32 v%d, 3, v%d" % (vt, vt))
    k.e("v_bfe_u32 v%d, v%d, 3, 1" % (vt2, vp))
    k.e("v_lshlrev_b32 v%d, 2, v%d" % (vt2, vt2))
    k.e("v_or3_b32 v%d, v%d, v%d, v%d" % (vdst, vdst, vt, vt2))


def gemm_core(k, nst, nbuf, MI, acc, afr, bring, PD, a_rd, b_rd, dma, zero_init, NJ=9, sub=1):
    RB = len(bring)
    nm = MI * NJ
    nsteps = nst * sub

    def rdB(t):
        sp, nj = divmod(t, NJ)
        if sp >= nsteps:
            return []
        st, kk = divmod(sp, sub)
        slot = bring[t % RB]
        out = []
        for j in range(2):
            v, off = b_rd(st % nbuf, nj, j, kk) if sub > 1 else b_rd(st % nbuf, nj, j)
            out.append(("ds_read_b64_tr_b16 %s, v%d offset:%d" % (vr(slot + 2 * j, 2), v, off), ("B", t)))
        return out

    def rdA(sp, i):
        if sp >= nsteps:
            return []
        st, kk = divmod(sp, sub)
        v, off = a_rd(st % nbuf, i, kk) if sub > 1 else a_rd(st % nbuf, i)
        return [("ds_read_b128 %s, v%d offset:%d" % (vr(afr[sp % 2][i], 4), v, off), ("A", sp))]

    k.wait_vm(("dma", 0))
    k.e("s_barrier")
    for i in range(MI):
        for (t, tag) in rdA(0, i):
            k.lds(t, tag)
    for t in range(PD):
        for (x, tag) in rdB(t):
            k.lds(x, tag)
    for s in range(nsteps):
        k.c("---- step %d" % s)
        groups = []
        st = s // sub
        if (s + 1) % sub == 0 and st + 1 < nst:
            k.wait_vm(("dma", st + 1))
            k.e("s_barrier")
            if st + nbuf - 1 < nst:
                groups = dma(st + nbuf - 1)
        ev = {}

        def add(idx, fn):
            ev.setdefault(min(idx, nm - 1), []).append(fn)
        for nj in range(NJ):
            t = s * NJ + nj
            add(nj * MI, (lambda tt: (lambda: [k.lds(x, tag) for (x, tag) in rdB(tt)]))(t + PD))
        for i in range(MI):
            add((2 + i) * MI + min(1, MI - 1), (lambda ii: (lambda: [k.lds(x, tag) for (x, tag) in rdA(s + 1, ii)]))(i))
        for gi, g in enumerate(groups):
            def mk(g):
                def f():
                    for (x, tag) in g:
                        if tag is None:
                            k.e(x)
                        else:
                            k.vm(x, tag)
                return f
            add(gi * MI + min(2, MI - 1), mk(g))
        for nj in range(NJ):
            t = s * NJ + nj
            if nj == 0:
                k.wait_lds(("A", s))
            k.wait_lds(("B", t))
            for i in range(MI):
                a = acc(i, nj)
                cc = "0" if (zero_init and s == 0) else vr(a, 4)
                k.e("v_mfma_f32_16x16x32_bf16 %s, %s, %s, %s" % (vr(a, 4), vr(bring[t % RB], 4), vr(afr[s % 2][i], 4), cc))
                for fn in ev.get(nj * MI + i, []):
                    fn()


def fl_lane(k, vdst, vt):
    k.e("v_lshrrev_b32 v%d, 1, v17" % vt)
    k.e("v_lshlrev_b32 v%d, 8, v%d" % (vdst, vt))
    k.e("v_lshlrev_b32 v%d, 4, v16" % vt)
    k.e("v_add_u32 v%d, v%d, v%d" % (vdst, vdst, vt))
    k.e("v_and_b32 v%d, 1, v17" % vt)
    k.e("v_lshlrev_b32 v%d, 3, v%d" % (vt, vt))
    k.e("v_add_u32 v%d, v%d, v%d" % (vdst, vdst, vt))


def b_dma_addr(k, vdst, sL0, iofs, NL, spitch, scol, reg_row=0, reg_col=0):
    k.e("v_lshrrev_b32 v18, 3, v0")
    k.e("v_add_u32 v18, s%d, v18" % sL0)
    if iofs:
        k.e("v_add_u32 v18, %d, v18" % iofs)
    if NL == 3:
        k.e("v_mul_u32_u24 v19, 21846, v18")
        k.e("v_lshrrev_b32 v19, 16, v19")
        k.e("v_mul_u32_u24 v20, 3, v19")
        k.e("v_sub_u32 v18, v18, v20")
    else:
        k.e("v_lshrrev_b32 v19, 1, v18")
        k.e("v_xor_b32 v18, v18, v19")
        k.e("v_and_b32 v18, 1, v18")
    k.e("v_lshlrev_b32 v18, 7, v18")
    k.e("v_bfe_u32 v20, v19, 1, 2")
    k.e("v_bfe_u32 v21, v0, 1, 2")
    k.e("v_xor_b32 v20, v20, v21")
    k.e("v_lshlrev_b32 v20, 5, v20")
    k.e("v_and_b32 v21, 1, v0")
    k.e("v_lshlrev_b32 v21, 4, v21")
    k.e("v_add3_u32 v18, v18, v20, v21")
    k.e("v_lshrrev_b32 v23, 5, v19")
    k.e("v_and_b32 v19, 31, v19")
    swap23(k, 20, 19, 21, 22)
    if reg_row:
        k.e("v_mul_u32_u24 v21, %d, v23" % reg_row)
        k.e("v_add_u32 v20, v20, v21")
    k.e("v_mul_lo_u32 v20, v20, s%d" % spitch)
    if reg_col:
        k.e("v_mul_u32_u24 v23, %d, v23" % reg_col)
        k.e("v_add_u32 v18, v18, v23")
    k.e("v_add3_u32 v%d, v20, v18, s%d" % (vdst, scol))


def b_rd_addr3(k, vq, sn0p, sbase):
    swap23_lane_rowpos(k, 18, 0, 19, 20)
    k.e("v_bfe_u32 v19, v18, 1, 2")
    k.e("v_mul_u32_u24 v18, 384, v18")
    k.e("v_and_b32 v20, 3, v0")
    k.e("v_lshlrev_b32 v20, 3, v20")
    k.e("v_add3_u32 v18, v18, v20, s%d" % sbase)
    for q in range(4):
        k.e("s_add_u32 s60, s%d, %d" % (sn0p, q))
        k.e("s_and_b32 s61, s60, 3")
        k.e("s_lshr_b32 s60, s60, 2")
        k.e("s_lshl_b32 s60, s60, 7")
        k.e("v_xor_b32 v20, s61, v19")
        k.e("v_lshlrev_b32 v20, 5, v20")
        k.e("v_add3_u32 v%d, v18, v20, s60" % (vq + q))


def issue_groups(k, groups):
    for g in groups:
        for (x, tag) in g:
            if tag is None:
                k.e(x)
            else:
                k.vm(x, tag)


def gen_k3():
    k = K("ffn1")
    SB = 40960
    NBUF = 4
    header(k, 256)
    stamp(k, 0)
    SA, SBd, SST, SCS, SO = 36, 40, 44, 48, 52
    sKA, sKB, sMA, sMB = 56, 57, 58, 59
    k.e("s_and_b32 s60, s2, 7")
    k.e("s_lshr_b32 s61, s2, 3")
    k.e("s_and_b32 s62, s61, 3")
    k.e("s_lshl_b32 s60, s60, 2")
    k.e("s_add_u32 s9, s60, s62")
    k.e("s_lshr_b32 s61, s61, 2")
    k.e("s_lshl_b32 s7, s61, 8")
    k.e("s_mul_i32 s8, s9, 144")
    k.e("s_and_b32 s5, s4, 3")
    k.e("s_lshr_b32 s6, s4, 2")
    srd(k, SA, P_WS, H_OFF, S * D * 2)
    k.e("s_cmp_lt_u32 s4, 4")
    k.e("s_cselect_b32 s%d, s%d, s%d" % (SBd, P_WG, P_WU))
    k.e("s_cselect_b32 s%d, s%d, s%d" % (SBd + 1, P_WG + 1, P_WU + 1))
    k.e("s_mov_b32 s%d, 0x%x" % (SBd + 2, D * F * 2))
    k.e("s_mov_b32 s%d, 0x00020000" % (SBd + 3))
    srd(k, SST, P_WS, ST_OFF, S * 32)
    srd(k, SCS, P_WS, CS_OFF, 2 * F * 4)
    srd(k, SO, P_WS, ACT_OFF, S * F * 2)
    srd(k, 64, P_WS, FLG_OFF, 256 * 128)
    k.e("s_lshl_b32 s60, s2, 7")
    k.e("v_mov_b32 v1, s60")
    for r in range(4):
        k.e("v_mov_b32 v%d, 0" % (20 + r))
    k.e("s_mov_b64 exec, 1")
    k.vm("buffer_store_dwordx4 v[20:23], v1, s[64:67], 0 offen")
    k.e("s_mov_b64 exec, -1")
    k.e("s_nop 1")
    vOA0, vOA1, vOB = 2, 3, 4
    vA, vB = 8, 24
    vR, vM = 40, 44
    ACC = 96
    afr = [[48 + 4 * i for i in range(4)], [64 + 4 * i for i in range(4)]]
    bring = [80, 84, 88, 92]
    k.e("v_and_b32 v16, 15, v0")
    k.e("v_lshrrev_b32 v17, 4, v0")
    k.e("s_lshl_b32 s60, s5, 6")
    k.e("s_add_u32 s60, s60, s7")
    k.e("v_add_u32 v18, s60, v16")
    k.e("v_lshlrev_b32 v18, 5, v18")
    for i in range(4):
        for h in range(2):
            k.vm("buffer_load_dwordx4 %s, v18, %s, 0 offen offset:%d" % (vr(ACC + i * 8 + h * 4, 4), sr(SST, 4), i * 512 + h * 16), "st")
    k.e("s_mul_i32 s60, s6, 80")
    k.e("s_add_u32 s60, s60, s8")
    k.e("v_lshlrev_b32 v18, 2, v17")
    k.e("v_add_u32 v18, s60, v18")
    k.e("v_lshlrev_b32 v18, 2, v18")
    k.e("s_movk_i32 s61, 18432")
    CSR = 48
    for f in range(5):
        k.vm("buffer_load_dwordx4 %s, v18, %s, 0 offen offset:%d" % (vr(CSR + f * 8, 4), sr(SCS, 4), f * 64), "cs")
        k.vm("buffer_load_dwordx4 %s, v18, %s, s61 offen offset:%d" % (vr(CSR + f * 8 + 4, 4), sr(SCS, 4), f * 64), "cs")
    k.e("s_lshr_b32 s60, s7, 4")
    k.e("s_lshl_b32 s61, s4, 1")
    k.e("s_add_u32 s60, s60, s61")
    k.e("s_mul_i32 s60, s60, 18432")
    k.e("v_lshlrev_b32 v19, 4, v0")
    k.e("v_add_u32 v%d, s60, v19" % vOA0)
    k.e("v_add_u32 v%d, 18432, v%d" % (vOA1, vOA0))
    k.e("s_and_b32 s60, s4, 3")
    k.e("s_mul_i32 s68, s60, 24")
    k.e("s_lshl_b32 s62, s8, 1")
    k.e("s_and_b32 s62, s62, 0xffffff80")
    k.e("s_movk_i32 s63, 9216")
    for i in range(3):
        b_dma_addr(k, vOB + i, 68, 8 * i, 3, 63, 62)
    k.e("s_mov_b32 s%d, 0" % sKA)
    k.e("s_mov_b32 s%d, 0" % sKB)
    k.e("s_lshl_b32 s%d, s4, 11" % sMA)
    k.e("s_mul_i32 s%d, s4, 3072" % sMB)
    k.e("s_add_u32 s%d, s%d, 16384" % (sMB, sMB))

    def dma(st):
        b = (st % NBUF) * SB
        tag = ("dma", st)
        g = []
        for i in range(2):
            g.append([("s_add_u32 m0, s%d, %d" % (sMA, b + i * 1024), None), ("s_nop 0", None),
                      ("buffer_load_dwordx4 v%d, %s, s%d offen lds" % (vOA0 + i, sr(SA, 4), sKA), tag)])
        for i in range(3):
            x = [("s_add_u32 m0, s%d, %d" % (sMB, b + i * 1024), None), ("s_nop 0", None)]
            x.append(("buffer_load_dwordx4 v%d, %s, s%d offen lds" % (vOB + i, sr(SBd, 4), sKB), tag))
            if i == 2:
                x.append(("s_add_u32 s%d, s%d, 1024" % (sKA, sKA), None))
                x.append(("s_add_u32 s%d, s%d, %d" % (sKB, sKB, 32 * 9216), None))
            g.append(x)
        return g
    for st in range(NBUF - 1):
        issue_groups(k, dma(st))
    k.e("s_lshl_b32 s60, s5, 12")
    k.e("v_lshlrev_b32 v18, 4, v0")
    k.e("v_add_u32 v%d, s60, v18" % vA)
    for b_ in range(1, 4):
        k.e("v_add_u32 v%d, %d, v%d" % (vA + b_, b_ * SB, vA))
    k.e("s_bfe_u32 s62, s8, 0x20004")
    k.e("s_mul_i32 s63, s6, 5")
    k.e("s_add_u32 s62, s62, s63")
    k.e("s_movk_i32 s63, 16384")
    b_rd_addr3(k, vB, 62, 63)
    for b_ in range(1, 4):
        for q in range(4):
            k.e("v_add_u32 v%d, %d, v%d" % (vB + 4 * b_ + q, b_ * SB, vB + q))
    fl_lane(k, 12, 18)
    k.e("s_lshr_b32 s60, s7, 4")
    k.e("s_lshl_b32 s61, s5, 2")
    k.e("s_add_u32 s60, s60, s61")
    k.e("s_mul_i32 s60, s60, 147456")
    k.e("s_mul_i32 s61, s9, 9")
    k.e("s_mul_i32 s62, s6, 5")
    k.e("s_add_u32 s61, s61, s62")
    k.e("s_lshl_b32 s61, s61, 9")
    k.e("s_add_u32 s60, s60, s61")
    k.e("v_add_u32 v12, s60, v12")
    k.wait_vm("cs")
    k.e("s_mov_b32 s60, 0x%x" % f2u(1.0 / 576.0))
    k.e("s_mov_b32 s61, 0x%x" % f2u(1e-5))
    for i in range(4):
        b = ACC + i * 8
        k.e("v_add_f32 v18, v%d, v%d" % (b, b + 2))
        k.e("v_add_f32 v19, v%d, v%d" % (b + 4, b + 6))
        k.e("v_add_f32 v20, v%d, v%d" % (b + 1, b + 3))
        k.e("v_add_f32 v21, v%d, v%d" % (b + 5, b + 7))
        k.e("v_add_f32 v18, v18, v19")
        k.e("v_add_f32 v20, v20, v21")
        k.e("v_mul_f32 v18, s60, v18")
        k.e("v_mul_f32 v20, s60, v20")
        k.e("v_fma_f32 v20, -v18, v18, v20")
        k.e("v_max_f32 v20, 0, v20")
        k.e("v_add_f32 v20, s61, v20")
        k.e("v_rsq_f32 v%d, v20" % (vR + i))
        k.e("v_sub_f32 v%d, 0, v18" % (vM + i))
    lab1 = k.newlab("wn1")
    lab_done = k.newlab("done")
    k.e("s_cmp_eq_u32 s6, 1")
    k.e("s_cbranch_scc1 %s" % lab1)
    st_l, st_v = list(k.lq), list(k.vq)
    c1 = -2.0 * 0.7978845608028654 * 1.4426950408889634
    for wn in range(2):
        NF = 5 if wn == 0 else 4
        NJ = 2 * NF
        if wn == 1:
            k.e("s_branch %s" % lab_done)
            k.label(lab1)
            k.lq, k.vq = list(st_l), list(st_v)
        acc = lambda i, c: ACC + (i * NJ + c) * 4
        for i in range(4):
            for c in range(NJ):
                for r in range(4):
                    k.e("v_mul_f32 v%d, v%d, v%d" % (acc(i, c) + r, vM + i, CSR + c * 4 + r))
        k.e("s_nop 1")

        def a_rd(buf, i):
            return vA + buf, i * 1024

        def b_rd(buf, c, j):
            f = c >> 1
            return vB + 4 * buf + (f & 3), (c & 1) * 12288 + j * 3072 + (f >> 2) * 128
        if wn == 0:
            stamp(k, 1)
        gemm_core(k, 18, NBUF, 4, acc, afr, bring, 2, a_rd, b_rd, dma, False, NJ=NJ)
        if wn == 0:
            stamp(k, 2)
        k.c("---- epilogue")
        k.e("v_mov_b32 v20, 1.0")
        k.e("v_mov_b32 v21, 1.0")
        k.e("s_mov_b32 s60, 0x%x" % f2u(c1))
        k.e("s_mov_b32 s61, 0x%x" % f2u(c1 * 0.044715))
        k.e("s_mov_b32 s62, 0")
        k.e("s_nop 7")
        for i in range(4):
            k.e("v_mul_f32 v22, s60, v%d" % (vR + i))
            k.e("v_mul_f32 v26, v%d, v%d" % (vR + i, vR + i))
            k.e("v_mul_f32 v24, s61, v%d" % (vR + i))
            k.e("v_mul_f32 v24, v24, v26")
            k.e("v_mov_b32 v23, v22")
            k.e("v_mov_b32 v25, v24")
            k.e("v_mov_b32 v27, v26")
            for f in range(NF):
                G, U = acc(i, 2 * f), acc(i, 2 * f + 1)
                T, P = 28, 32
                for h in range(2):
                    k.e("v_pk_mul_f32 %s, %s, %s" % (vr(T + 2 * h, 2), vr(G + 2 * h, 2), vr(G + 2 * h, 2)))
                for h in range(2):
                    k.e("v_pk_fma_f32 %s, %s, v[24:25], v[22:23]" % (vr(T + 2 * h, 2), vr(T + 2 * h, 2)))
                for h in range(2):
                    k.e("v_pk_mul_f32 %s, %s, %s" % (vr(T + 2 * h, 2), vr(T + 2 * h, 2), vr(G + 2 * h, 2)))
                for r in range(4):
                    k.e("v_exp_f32 v%d, v%d" % (T + r, T + r))
                for h in range(2):
                    k.e("v_pk_mul_f32 %s, %s, %s" % (vr(P + 2 * h, 2), vr(G + 2 * h, 2), vr(U + 2 * h, 2)))
                for h in range(2):
                    k.e("v_pk_add_f32 %s, %s, v[20:21]" % (vr(T + 2 * h, 2), vr(T + 2 * h, 2)))
                for r in range(4):
                    k.e("v_rcp_f32 v%d, v%d" % (T + r, T + r))
                for h in range(2):
                    k.e("v_pk_mul_f32 %s, %s, v[26:27]" % (vr(P + 2 * h, 2), vr(P + 2 * h, 2)))
                for h in range(2):
                    k.e("v_pk_mul_f32 %s, %s, %s" % (vr(P + 2 * h, 2), vr(P + 2 * h, 2), vr(T + 2 * h, 2)))
                k.e("v_cvt_pk_bf16_f32 v%d, v%d, v%d" % (G, P, P + 1))
                k.e("v_cvt_pk_bf16_f32 v%d, v%d, v%d" % (G + 1, P + 2, P + 3))
                k.vm("buffer_store_dwordx2 %s, v12, %s, s62 offen offset:%d" % (vr(G, 2), sr(SO, 4), f * 512))
            k.e("s_add_u32 s62, s62, 147456")
    k.label(lab_done)
    stamp(k, 3)
    stamp_flush(k, 6)
    footer(k)
    return k, 256


def gen_k4():
    k = K("ffn2")
    SB = 40960
    NBUF = 4
    header(k, 256)
    stamp(k, 0)
    SA, SBd, SP, SO, SH, SD = 36, 40, 44, 48, 52, 64
    sKA, sKB, sMA, sMB = 56, 57, 58, 59
    k.e("s_and_b32 s9, s2, 3")
    k.e("s_bfe_u32 s60, s2, 0x10002")
    k.e("s_lshr_b32 s61, s2, 3")
    k.e("s_lshr_b32 s62, s61, 2")
    k.e("s_lshl_b32 s60, s60, 3")
    k.e("s_add_u32 s60, s60, s62")
    k.e("s_lshl_b32 s7, s60, 7")
    k.e("s_and_b32 s61, s61, 3")
    k.e("s_mul_i32 s8, s61, 144")
    k.e("s_lshl_b32 s10, s60, 2")
    k.e("s_add_u32 s10, s10, s61")
    k.e("s_and_b32 s11, s4, 3")
    k.e("s_lshr_b32 s5, s11, 1")
    k.e("s_and_b32 s6, s11, 1")
    k.e("v_and_b32 v16, 15, v0")
    k.e("v_lshrrev_b32 v17, 4, v0")
    lab_comp = k.newlab("comp")
    k.e("s_cmp_lt_u32 s4, 4")
    k.e("s_cbranch_scc1 %s" % lab_comp)
    srd(k, SA, P_WS, ACT_OFF, S * F * 2)
    srd(k, SBd, P_WD, 0, F * D * 2)
    vOA, vOB = 2, 8
    k.e("s_lshr_b32 s60, s7, 4")
    k.e("s_lshl_b32 s61, s11, 1")
    k.e("s_add_u32 s60, s60, s61")
    k.e("s_mul_i32 s60, s60, 147456")
    k.e("s_mul_i32 s61, s9, 36864")
    k.e("s_add_u32 s60, s60, s61")
    k.e("v_lshlrev_b32 v19, 4, v0")
    k.e("v_add_u32 v%d, s60, v19" % vOA)
    k.e("v_add_u32 v%d, 1024, v%d" % (vOA + 1, vOA))
    k.e("v_add_u32 v%d, %d, v%d" % (vOA + 2, 147456, vOA))
    k.e("v_add_u32 v%d, %d, v%d" % (vOA + 3, 147456 + 1024, vOA))
    k.e("s_mul_i32 s64, s11, 48")
    k.e("s_lshl_b32 s62, s8, 1")
    k.e("s_and_b32 s62, s62, 0xffffff80")
    k.e("s_mul_i32 s61, s9, 1152 * 1152")
    k.e("s_add_u32 s62, s62, s61")
    k.e("s_movk_i32 s63, 1152")
    for i in range(6):
        b_dma_addr(k, vOB + i, 64, 8 * i, 3, 63, 62, reg_row=32)
    k.e("s_mov_b32 s%d, 0" % sKA)
    k.e("s_mov_b32 s%d, 0" % sKB)
    k.e("s_lshl_b32 s%d, s11, 12" % sMA)
    k.e("s_mul_i32 s%d, s11, 6144" % sMB)
    k.e("s_add_u32 s%d, s%d, 16384" % (sMB, sMB))

    def dma(st):
        b = (st % NBUF) * SB
        tag = ("dma", st)
        g = []
        for i in range(4):
            g.append([("s_add_u32 m0, s%d, %d" % (sMA, b + i * 1024), None), ("s_nop 0", None),
                      ("buffer_load_dwordx4 v%d, %s, s%d offen lds" % (vOA + i, sr(SA, 4), sKA), tag)])
        for i in range(6):
            x = [("s_add_u32 m0, s%d, %d" % (sMB, b + i * 1024), None), ("s_nop 0", None)]
            x.append(("buffer_load_dwordx4 v%d, %s, s%d offen lds" % (vOB + i, sr(SBd, 4), sKB), tag))
            if i == 5:
                x.append(("s_add_u32 s%d, s%d, 2048" % (sKA, sKA), None))
                x.append(("s_add_u32 s%d, s%d, %d" % (sKB, sKB, 64 * 1152), None))
            g.append(x)
        return g
    for st in range(NBUF - 1):
        issue_groups(k, dma(st))
    k.wait_vm(("dma", 0))
    k.e("s_barrier")
    for s_ in range(17):
        k.wait_vm(("dma", s_ + 1))
        k.e("s_barrier")
        if s_ + NBUF - 1 < 18:
            issue_groups(k, dma(s_ + NBUF - 1))
    k.e("s_endpgm")
    k.label(lab_comp)
    k.lq, k.vq = [], []
    srd(k, SP, P_WS, PART_OFF, 64 * 16 * 18432)
    srd(k, SO, P_OUT, 0, S * D * 2)
    srd(k, SH, P_WS, H_OFF, S * D * 2)
    srd(k, SD, P_WS, FLG_OFF, 256 * 128)
    vA, vB = 2, 24
    ACC = 112
    afr = [[48, 52], [56, 60]]
    bring = [64 + 4 * q for q in range(8)]
    acc = lambda i, nj: ACC + (i * 9 + nj) * 4
    k.e("s_lshl_b32 s60, s4, 12")
    k.e("v_lshlrev_b32 v18, 4, v0")
    k.e("v_add_u32 v%d, s60, v18" % vA)
    for b_ in range(1, 4):
        k.e("v_add_u32 v%d, %d, v%d" % (vA + b_, b_ * SB, vA))
    k.e("s_bfe_u32 s62, s8, 0x20004")
    k.e("s_movk_i32 s63, 16384")
    b_rd_addr3(k, vB, 62, 63)
    for b_ in range(1, 4):
        for q in range(4):
            k.e("v_add_u32 v%d, %d, v%d" % (vB + 4 * b_ + q, b_ * SB, vB + q))

    def a_rd(buf, i, kk):
        return vA + buf, i * 2048 + kk * 1024

    def b_rd(buf, nj, j, kk):
        return vB + 4 * buf + (nj & 3), kk * 12288 + j * 3072 + (nj >> 2) * 128
    gemm_core(k, 18, NBUF, 2, acc, afr, bring, 6, a_rd, b_rd, lambda st: [], True, sub=2)
    stamp(k, 1)
    k.c("---- epilogue: cross-workgroup reduction")
    k.e("v_lshlrev_b32 v18, 4, v0")
    k.e("s_lshl_b32 s60, s10, 2")
    k.e("s_add_u32 s60, s60, s9")
    k.e("s_lshl_b32 s60, s60, 2")
    k.e("s_add_u32 s60, s60, s4")
    k.e("s_mul_i32 s60, s60, 18432")
    k.e("v_add_u32 v21, s60, v18")
    k.e("s_lshl_b32 s60, s10, 2")
    k.e("s_add_u32 s61, s60, s4")
    k.e("s_lshl_b32 s61, s61, 7")
    k.e("s_lshl_b32 s62, s9, 2")
    k.e("s_add_u32 s61, s61, s62")
    k.e("v_mov_b32 v23, s61")
    k.e("s_add_u32 s60, s60, s9")
    k.e("s_lshl_b32 s60, s60, 7")
    k.e("v_mov_b32 v26, s60")
    k.e("v_mov_b32 v24, 1")
    k.e("s_nop 7")
    k.e("s_barrier")
    lab_own = k.newlab("own")
    lab_j = k.newlab("j")
    k.e("s_cmp_eq_u32 s4, s9")
    k.e("s_cbranch_scc1 %s" % lab_own)
    for t in range(18):
        sreg = "0"
        off = t * 1024
        if off >= 4096:
            k.e("s_movk_i32 s61, %d" % (off & ~4095))
            sreg = "s61"
        k.e("buffer_store_dwordx4 %s, v21, %s, %s offen offset:%d sc1" % (vr(ACC + 4 * t, 4), sr(SP, 4), sreg, off & 4095))
    k.e("s_barrier")
    k.e("s_branch %s" % lab_j)
    k.label(lab_own)
    for t in range(18):
        k.e("ds_write_b128 v18, %s offset:%d" % (vr(ACC + 4 * t, 4), t * 1024))
    k.e("s_waitcnt lgkmcnt(0)")
    k.e("s_barrier")
    k.e("s_branch L_%s_end" % k.name)
    k.label(lab_j)
    k.e("s_sub_u32 s62, s4, s9")
    k.e("s_sub_u32 s62, s62, 1")
    k.e("s_and_b32 s62, s62, 3")
    k.e("s_mul_i32 s63, s62, 6144")
    k.e("v_add_u32 v22, s63, v18")
    OWN = 48
    for t in range(6):
        k.lds("ds_read_b128 %s, v22 offset:%d" % (vr(OWN + 4 * t, 4), t * 1024), "own")
    k.e("s_lshl_b32 s60, s9, 5")
    k.e("s_add_u32 s60, s60, s7")
    k.e("v_add_u32 v19, s60, v16")
    k.e("v_mul_u32_u24 v19, 1152, v19")
    k.e("v_lshlrev_b32 v20, 3, v17")
    k.e("s_lshl_b32 s60, s8, 1")
    k.e("v_add3_u32 v19, v19, v20, s60")
    fl_lane(k, 44, 45)
    k.e("s_lshr_b32 s60, s7, 4")
    k.e("s_lshl_b32 s61, s9, 1")
    k.e("s_add_u32 s60, s60, s61")
    k.e("s_mul_i32 s60, s60, 18432")
    k.e("s_lshl_b32 s61, s8, 5")
    k.e("s_add_u32 s60, s60, s61")
    k.e("v_add_u32 v44, s60, v44")
    k.e("s_waitcnt vmcnt(0)")
    k.e("s_mov_b64 exec, 1")
    k.e("buffer_store_dword v24, v23, %s, 0 offen sc1" % sr(SD, 4))
    k.e("s_mov_b64 exec, -1")
    k.e("s_mul_i32 s62, s62, 6")
    HR = 96
    for t in range(6):
        k.e("s_add_u32 s60, s62, %d" % t)
        k.e("s_cmp_ge_u32 s60, 9")
        k.e("s_cselect_b32 s61, %d, 0" % (16 * 1152 - 9 * 32))
        k.e("s_cselect_b32 s69, %d, 0" % (18432 - 9 * 512))
        k.e("s_lshl_b32 s68, s60, 9")
        k.e("s_add_u32 s68, s68, s69")
        k.e("s_lshl_b32 s60, s60, 5")
        k.e("s_add_u32 s%d, s60, s61" % (84 + t))
        k.e("buffer_load_dwordx2 %s, v44, %s, s68 offen" % (vr(HR + 2 * t, 2), sr(SH, 4)))
    stamp(k, 2)
    lab_poll = k.newlab("poll")
    lab_go = k.newlab("go")
    k.label(lab_poll)
    k.e("buffer_load_dwordx4 v[28:31], v26, %s, 0 offen sc1" % sr(SD, 4))
    k.e("s_waitcnt vmcnt(0)")
    k.e("v_add_u32 v28, v28, v29")
    k.e("v_add3_u32 v28, v28, v30, v31")
    k.e("s_nop 0")
    k.e("v_readfirstlane_b32 s61, v28")
    k.e("s_cmp_ge_u32 s61, 3")
    k.e("s_cbranch_scc1 %s" % lab_go)
    k.e("s_sleep 1")
    k.e("s_branch %s" % lab_poll)
    k.label(lab_go)
    if STAMP:
        k.e("s_memtime s[82:83]")
        k.e("s_waitcnt lgkmcnt(0)")
        k.lq = []
    k.e("s_lshl_b32 s60, s10, 4")
    k.e("s_add_u32 s60, s60, s9")
    k.e("s_mul_i32 s60, s60, 18432")
    k.e("s_add_u32 s60, s60, s63")
    k.e("v_add_u32 v21, s60, v18")
    k.vq = []
    for o in range(1, 4):
        k.e("s_add_u32 s61, s9, %d" % o)
        k.e("s_and_b32 s61, s61, 3")
        k.e("s_mul_i32 s61, s61, %d" % (4 * 18432))
        k.e("s_add_u32 s63, s61, 4096")
        for t in range(6):
            k.vm("buffer_load_dwordx4 %s, v21, %s, s%d offen offset:%d sc1" % (vr(ACC + 24 * (o - 1) + 4 * t, 4), sr(SP, 4), 61 if t < 4 else 63, (t & 3) * 1024), ("p", o, t))
    k.wait_lds("own")
    for t in range(6):
        a = OWN + 4 * t
        for d in range(2):
            k.e("v_lshlrev_b32 v42, 16, v%d" % (HR + 2 * t + d))
            k.e("v_and_b32 v43, 0xffff0000, v%d" % (HR + 2 * t + d))
            k.e("v_add_f32 v%d, v%d, v42" % (a + 2 * d, a + 2 * d))
            k.e("v_add_f32 v%d, v%d, v43" % (a + 2 * d + 1, a + 2 * d + 1))
    for o in range(1, 4):
        for t in range(6):
            a = OWN + 4 * t
            k.wait_vm(("p", o, t))
            for r in range(4):
                k.e("v_add_f32 v%d, v%d, v%d" % (a + r, a + r, ACC + 24 * (o - 1) + 4 * t + r))
            if o == 3:
                k.e("v_cvt_pk_bf16_f32 v%d, v%d, v%d" % (HR + 2 * t, a, a + 1))
                k.e("v_cvt_pk_bf16_f32 v%d, v%d, v%d" % (HR + 1 + 2 * t, a + 2, a + 3))
                k.vm("buffer_store_dwordx2 %s, v19, %s, s%d offen" % (vr(HR + 2 * t, 2), sr(SO, 4), 84 + t))
    stamp(k, 3)
    stamp_flush(k, 7)
    footer(k)
    return k, 256


def gen_k5():
    k = K("red")
    nwg = S * D // 8 // 256
    k.e("s_cmp_ge_u32 s2, %d" % nwg)
    k.e("s_cbranch_scc1 L_%s_end" % k.name)
    k.e("s_load_dwordx16 s[16:31], s[0:1], 0")
    k.e("s_load_dwordx4 s[32:35], s[0:1], 64")
    k.e("s_lshl_b32 s3, s2, 8")
    k.e("v_add_u32 v1, s3, v0")
    k.e("v_lshlrev_b32 v2, 4, v1")
    k.e("v_lshlrev_b32 v3, 5, v1")
    k.e("s_waitcnt lgkmcnt(0)")
    srd(k, 36, P_WS, H_OFF, S * D * 2)
    srd(k, 40, P_WS, PART_OFF, 4 * S * D * 4)
    srd(k, 44, P_OUT, 0, S * D * 2)
    k.e("buffer_load_dwordx4 v[4:7], v2, s[36:39], 0 offen")
    for p in range(4):
        k.e("s_mov_b32 s48, 0x%x" % (p * S * D * 4))
        k.e("buffer_load_dwordx4 %s, v3, s[40:43], s48 offen" % vr(8 + p * 8, 4))
        k.e("buffer_load_dwordx4 %s, v3, s[40:43], s48 offen offset:16" % vr(12 + p * 8, 4))
    k.e("s_waitcnt vmcnt(0)")
    for r in range(8):
        k.e("v_add_f32 v%d, v%d, v%d" % (8 + r, 8 + r, 16 + r))
        k.e("v_add_f32 v%d, v%d, v%d" % (24 + r, 24 + r, 32 + r))
    for r in range(8):
        k.e("v_add_f32 v%d, v%d, v%d" % (8 + r, 8 + r, 24 + r))
    for d in range(4):
        k.e("v_lshlrev_b32 v40, 16, v%d" % (4 + d))
        k.e("v_and_b32 v41, 0xffff0000, v%d" % (4 + d))
        k.e("v_add_f32 v%d, v%d, v40" % (8 + 2 * d, 8 + 2 * d))
        k.e("v_add_f32 v%d, v%d, v41" % (9 + 2 * d, 9 + 2 * d))
    for d in range(4):
        k.e("v_cvt_pk_bf16_f32 v%d, v%d, v%d" % (4 + d, 8 + 2 * d, 9 + 2 * d))
    k.e("buffer_store_dwordx4 v[4:7], v2, s[44:47], 0 offen")
    footer(k)
    return k, nwg


def gen_k2():
    k = K("wo")
    SB = 4096 + 24576
    NBUF = 5
    header(k, 256)
    stamp(k, 0)
    SA, SBd, SX, SH, SST, SCP, SCS = 36, 40, 44, 48, 52, 64, 96
    sKA, sKB, sMA, sMB = 56, 57, 58, 59
    k.e("s_and_b32 s9, s2, 3")
    k.e("s_lshr_b32 s60, s2, 2")
    k.e("s_lshl_b32 s7, s60, 5")
    k.e("s_mul_i32 s8, s9, 144")
    k.e("s_lshr_b32 s5, s4, 1")
    k.e("s_and_b32 s6, s4, 1")
    srd(k, SA, P_WS, O_OFF, S * D * 2)
    srd(k, SBd, P_WO, 0, D * D * 2)
    srd(k, SX, P_X, 0, S * D * 2)
    srd(k, SH, P_WS, H_OFF, S * D * 2)
    srd(k, SST, P_WS, ST_OFF, S * 32)
    srd(k, SCP, P_WS, CP_OFF, 32 * 2 * F * 4)
    srd(k, SCS, P_WS, CS_OFF, 2 * F * 4)
    vOA, vOB = 2, 8
    vA, vB = 24, 28
    ACC = 112
    afr = [[48], [52]]
    bring = [56, 60, 64, 68, 72, 76]
    acc = lambda i, nj: ACC + nj * 4
    XR = 80
    CPR = 184
    k.e("v_and_b32 v16, 15, v0")
    k.e("v_lshrrev_b32 v17, 4, v0")
    k.e("s_mul_i32 s60, s2, 36")
    k.e("v_add_u32 v18, s60, v0")
    k.e("v_lshlrev_b32 v30, 2, v18")
    for p in range(32):
        k.e("s_mov_b32 s61, 0x%x" % (p * 2 * F * 4))
        k.vm("buffer_load_dword v%d, v30, %s, s61 offen" % (CPR + p, sr(SCP, 4)), "cp")
    k.e("s_lshl_b32 s60, s5, 4")
    k.e("s_add_u32 s60, s60, s7")
    k.e("v_add_u32 v31, s60, v16")
    k.e("s_movk_i32 s63, 1152")
    k.e("v_mul_lo_u32 v18, v31, s63")
    k.e("v_lshlrev_b32 v19, 3, v17")
    k.e("s_lshl_b32 s62, s8, 1")
    k.e("v_add3_u32 v32, v18, v19, s62")
    for nj in range(9):
        k.vm("buffer_load_dwordx2 %s, v32, %s, 0 offen offset:%d" % (vr(XR + 2 * nj, 2), sr(SX, 4), nj * 32), "x")
    k.e("s_lshr_b32 s60, s7, 4")
    k.e("s_add_u32 s60, s60, s5")
    k.e("s_mul_i32 s60, s60, 18432")
    k.e("s_lshl_b32 s61, s6, 10")
    k.e("s_add_u32 s61, s60, s61")
    k.e("v_lshlrev_b32 v19, 4, v0")
    k.e("v_add_u32 v%d, s61, v19" % vOA)
    fl_lane(k, 37, 18)
    k.e("s_lshl_b32 s61, s8, 5")
    k.e("s_add_u32 s60, s60, s61")
    k.e("v_add_u32 v37, s60, v37")
    k.e("s_mul_i32 s69, s4, 48")
    k.e("s_lshl_b32 s62, s8, 1")
    k.e("s_and_b32 s62, s62, 0xffffff80")
    k.e("s_movk_i32 s63, 1152")
    for i in range(6):
        b_dma_addr(k, vOB + i, 69, 8 * i, 3, 63, 62, reg_row=32)
    k.e("s_mov_b32 s%d, 0" % sKA)
    k.e("s_mov_b32 s%d, 0" % sKB)
    k.e("s_lshl_b32 s%d, s4, 10" % sMA)
    k.e("s_mul_i32 s%d, s4, 6144" % sMB)
    k.e("s_add_u32 s%d, s%d, 4096" % (sMB, sMB))

    def dma(st):
        b = (st % NBUF) * SB
        tag = ("dma", st)
        g = [[("s_add_u32 m0, s%d, %d" % (sMA, b), None), ("s_nop 0", None),
              ("buffer_load_dwordx4 v%d, %s, s%d offen lds" % (vOA, sr(SA, 4), sKA), tag)]]
        for i in range(6):
            x = [("s_add_u32 m0, s%d, %d" % (sMB, b + i * 1024), None), ("s_nop 0", None)]
            x.append(("buffer_load_dwordx4 v%d, %s, s%d offen lds" % (vOB + i, sr(SBd, 4), sKB), tag))
            if i == 5:
                x.append(("s_add_u32 s%d, s%d, 2048" % (sKA, sKA), None))
                x.append(("s_add_u32 s%d, s%d, %d" % (sKB, sKB, 64 * 1152), None))
            g.append(x)
        return g
    for st in range(NBUF - 1):
        issue_groups(k, dma(st))
    k.e("v_lshlrev_b32 v18, 4, v0")
    k.e("v_add_u32 v%d, s%d, v18" % (vA, sMA))
    for q in range(1, 3):
        k.e("v_add_u32 v%d, %d, v%d" % (vA + q, 2 * SB * q, vA))
    vB = 100
    k.e("s_bfe_u32 s62, s8, 0x20004")
    k.e("s_mul_i32 s63, s6, 12288")
    k.e("s_add_u32 s63, s63, 4096")
    b_rd_addr3(k, vB, 62, 63)
    for b_ in range(1, 3):
        for q in range(4):
            k.e("v_add_u32 v%d, %d, v%d" % (vB + 4 * b_ + q, 2 * b_ * SB, vB + q))

    def a_rd(buf, i):
        return vA + (buf >> 1), (buf & 1) * SB

    def b_rd(buf, nj, j):
        return vB + 4 * (buf >> 1) + (nj & 3), (buf & 1) * SB + j * 3072 + (nj >> 2) * 128
    stamp(k, 1)
    gemm_core(k, 9, NBUF, 1, acc, afr, bring, 4, a_rd, b_rd, dma, True)
    stamp(k, 2)
    k.c("---- epilogue")
    k.e("s_nop 7")
    k.e("s_nop 7")
    k.e("s_barrier")
    k.wait_vm("x")
    for w_ in (16, 8, 4, 2, 1):
        for p in range(w_):
            k.e("v_add_f32 v%d, v%d, v%d" % (CPR + p, CPR + p, CPR + p + w_))
    k.e("s_mov_b32 exec_lo, -1")
    k.e("s_mov_b32 exec_hi, 0xf")
    k.vm("buffer_store_dword v%d, v30, %s, 0 offen" % (CPR, sr(SCS, 4)))
    k.e("s_mov_b64 exec, -1")
    k.e("s_mul_i32 s60, s5, 9216")
    k.e("v_lshlrev_b32 v18, 4, v0")
    k.e("v_add_u32 v19, s60, v18")
    lab_recv = k.newlab("recv")
    k.e("s_cmp_eq_u32 s6, 0")
    k.e("s_cbranch_scc1 %s" % lab_recv)
    for nj in range(9):
        k.lds("ds_write_b128 v19, %s offset:%d" % (vr(acc(0, nj), 4), nj * 1024))
    k.wait_lds_all()
    k.e("s_barrier")
    k.e("s_branch L_%s_end" % k.name)
    k.label(lab_recv)
    k.e("s_barrier")
    R = 48
    RX = 148
    for nj in range(9):
        k.lds("ds_read_b128 %s, v19 offset:%d" % (vr(RX + nj * 4, 4), nj * 1024), ("x", nj))
    k.e("v_mov_b32 v40, 0")
    k.e("v_mov_b32 v41, 0")
    for nj in range(9):
        k.wait_lds(("x", nj))
        a = acc(0, nj)
        for r in range(4):
            k.e("v_add_f32 v%d, v%d, v%d" % (a + r, a + r, RX + nj * 4 + r))
        for d in range(2):
            k.e("v_lshlrev_b32 v42, 16, v%d" % (XR + 2 * nj + d))
            k.e("v_and_b32 v43, 0xffff0000, v%d" % (XR + 2 * nj + d))
            k.e("v_add_f32 v%d, v%d, v42" % (a + 2 * d, a + 2 * d))
            k.e("v_add_f32 v%d, v%d, v43" % (a + 2 * d + 1, a + 2 * d + 1))
        k.e("v_cvt_pk_bf16_f32 v%d, v%d, v%d" % (XR + 2 * nj, a, a + 1))
        k.e("v_cvt_pk_bf16_f32 v%d, v%d, v%d" % (XR + 2 * nj + 1, a + 2, a + 3))
        if nj == 8:
            k.e("s_movk_i32 s60, 4096")
        k.vm("buffer_store_dwordx2 %s, v37, %s, %s offen offset:%d" % (vr(XR + 2 * nj, 2), sr(SH, 4), "s60" if nj == 8 else "0", (nj * 512) & 4095))
        for d in range(2):
            k.e("v_lshlrev_b32 v42, 16, v%d" % (XR + 2 * nj + d))
            k.e("v_and_b32 v43, 0xffff0000, v%d" % (XR + 2 * nj + d))
            k.e("v_add_f32 v40, v40, v42")
            k.e("v_fmac_f32 v41, v42, v42")
            k.e("v_add_f32 v40, v40, v43")
            k.e("v_fmac_f32 v41, v43, v43")
    k.e("v_xor_b32 v44, 16, v0")
    k.e("v_lshlrev_b32 v44, 2, v44")
    k.e("v_xor_b32 v45, 32, v0")
    k.e("v_lshlrev_b32 v45, 2, v45")
    for a in (44, 45):
        k.e("ds_bpermute_b32 v42, v%d, v40" % a)
        k.e("ds_bpermute_b32 v43, v%d, v41" % a)
        k.e("s_waitcnt lgkmcnt(0)")
        k.e("v_add_f32 v40, v40, v42")
        k.e("v_add_f32 v41, v41, v43")
    k.e("v_lshlrev_b32 v42, 5, v31")
    k.e("s_lshl_b32 s60, s9, 3")
    k.e("v_add_u32 v42, s60, v42")
    k.e("s_mov_b64 exec, 0xffff")
    k.e("buffer_store_dwordx2 v[40:41], v42, %s, 0 offen" % sr(SST, 4))
    k.e("s_mov_b64 exec, -1")
    stamp(k, 3)
    stamp_flush(k, 6)
    footer(k)
    return k, 256


def gen_k1():
    k = K("qkv")
    WS_, NW = 24576, 5
    XS_, NX = 10240, 3
    XB = WS_ * NW
    QP = 976
    STO = 80 * QP
    header(k, 256)
    stamp(k, 0)
    SX, SW, SO, SG, SCP = 36, 40, 44, 48, 52
    sKW, sKX, sMW, sMX = 56, 57, 58, 59
    k.e("s_and_b32 s9, s2, 7")
    k.e("s_lshr_b32 s10, s2, 3")
    srd(k, SX, P_X, 0, S * D * 2)
    srd(k, SW, P_WQKV, 0, D * 3 * D * 2)
    srd(k, SO, P_WS, O_OFF, S * D * 2)
    srd(k, SCP, P_WS, CP_OFF, 32 * 2 * F * 4)
    k.e("v_and_b32 v16, 15, v0")
    k.e("v_lshrrev_b32 v17, 4, v0")
    vO = 2
    k.e("s_mul_i32 s64, s4, 24")
    k.e("s_mul_i32 s65, s9, 144")
    k.e("s_and_b32 s62, s65, 0xffffff80")
    k.e("s_movk_i32 s63, 3456")
    for t in range(3):
        b_dma_addr(k, vO + t, 64, 8 * t, 2, 63, 62, reg_col=1152)
    k.e("s_lshl_b32 s60, s10, 6")
    k.e("s_lshl_b32 s61, s4, 4")
    k.e("s_add_u32 s60, s60, s61")
    k.e("s_sub_u32 s60, s60, 16")
    k.e("v_add_u32 v18, s60, v16")
    k.e("s_movk_i32 s63, 1152")
    k.e("v_mul_lo_u32 v18, v18, s63")
    k.e("v_lshlrev_b32 v19, 4, v17")
    k.e("v_add_u32 v%d, v18, v19" % (vO + 3))
    k.e("v_add_u32 v%d, 64, v%d" % (vO + 4, vO + 3))
    k.e("s_mov_b32 s%d, 0" % sKW)
    k.e("s_mov_b32 s%d, 0" % sKX)
    k.e("s_mul_i32 s%d, s4, 3072" % sMW)
    k.e("s_lshl_b32 s%d, s4, 11" % sMX)

    def dmaW(st):
        b = (st % NW) * WS_
        g = []
        for t in range(3):
            x = [("s_add_u32 m0, s%d, %d" % (sMW, b + t * 1024), None), ("s_nop 0", None),
                 ("buffer_load_dwordx4 v%d, %s, s%d offen lds" % (vO + t, sr(SW, 4), sKW), ("dma", st))]
            if t == 2:
                x.append(("s_add_u32 s%d, s%d, %d" % (sKW, sKW, 32 * 3456), None))
            g.append(x)
        return g

    def dmaX(xs):
        b = XB + (xs % NX) * XS_
        g = []
        for t in range(2):
            x = [("s_add_u32 m0, s%d, %d" % (sMX, b + t * 1024), None), ("s_nop 0", None),
                 ("buffer_load_dwordx4 v%d, %s, s%d offen lds" % (vO + 3 + t, sr(SX, 4), sKX), ("dma", 2 * xs))]
            if t == 1:
                x.append(("s_add_u32 s%d, s%d, 128" % (sKX, sKX), None))
            g.append(x)
        return g
    CX = 144
    lab_cs3 = k.newlab("cs3")
    k.e("s_mul_i32 s13, s2, 3")
    k.e("s_add_u32 s13, s13, s4")
    k.e("s_sub_u32 s13, s13, 5")
    k.e("s_mul_i32 s14, s13, 3641")
    k.e("s_lshr_b32 s14, s14, 16")
    k.e("s_mul_i32 s15, s14, 18")
    k.e("s_sub_u32 s15, s13, s15")
    k.e("s_lshl_b32 s60, s4, 5")
    k.e("s_add_u32 s61, s60, 160")
    k.e("s_add_u32 s62, s60, 320")
    k.e("s_sub_u32 s60, s4, 5")
    k.e("s_lshl_b32 s60, s60, 6")
    k.e("s_add_u32 s63, s60, 32")
    k.e("s_min_u32 s63, s63, 128")
    k.e("s_cmp_lt_u32 s4, 5")
    k.e("s_cselect_b32 s11, s61, s60")
    k.e("s_cselect_b32 s12, s62, s63")
    k.e("s_cselect_b32 s66, 8192, 0")
    k.e("s_cselect_b32 s67, 16384, 0")
    k.e("s_cselect_b32 s68, 160, 0")
    k.e("s_cselect_b32 s69, 320, 0")
    vB0, vB1, vA, vS = 20, 25, 30, 33
    swap23_lane_rowpos(k, 8, 0, 18, 19)
    k.e("v_bfe_u32 v9, v8, 1, 2")
    k.e("v_and_b32 v10, 1, v8")
    k.e("v_lshlrev_b32 v8, 8, v8")
    k.e("v_and_b32 v11, 3, v0")
    k.e("v_lshlrev_b32 v11, 3, v11")
    k.e("s_and_b32 s65, s65, 127")
    for (vd, sreg, sreb, ssub) in ((vB0, 11, 66, 68), (vB1, 12, 67, 69)):
        k.e("s_sub_u32 s60, s%d, s%d" % (sreg, ssub))
        k.e("s_add_u32 s60, s60, s65")
        k.e("v_add_u32 v18, s60, v11")
        k.e("v_bfe_u32 v19, v18, 7, 1")
        k.e("v_xor_b32 v19, v19, v10")
        k.e("v_lshlrev_b32 v19, 7, v19")
        k.e("v_bfe_u32 v12, v18, 5, 2")
        k.e("v_xor_b32 v12, v12, v9")
        k.e("v_lshlrev_b32 v12, 5, v12")
        k.e("v_and_b32 v18, 31, v18")
        k.e("v_add3_u32 v18, v18, v19, v12")
        k.e("v_add3_u32 v%d, v18, v8, s%d" % (vd, sreb))
    k.e("v_lshlrev_b32 v%d, 4, v0" % vA)
    k.e("v_add_u32 v%d, %d, v%d" % (vA, XB, vA))
    k.e("v_add_u32 v%d, s%d, v%d" % (vS, sMX, vA))
    for b in range(1, NW):
        for v in (vB0, vB1):
            k.e("v_add_u32 v%d, %d, v%d" % (v + b, b * WS_, v))
    for b in range(1, NX):
        for v in (vA, vS):
            k.e("v_add_u32 v%d, %d, v%d" % (v + b, b * XS_, v))
    ONES = 36
    for r in range(4):
        k.e("v_mov_b32 v%d, 0x3f803f80" % (ONES + r))
    ACC = 40
    acc = lambda sl, mi: ACC + (sl * 6 + mi) * 4
    SACC = 88
    AF = [[96 + 4 * mi for mi in range(6)], [120 + 4 * mi for mi in range(6)]]
    BF = [[216, 220], [224, 228]]
    lab_q = k.newlab("qpath")
    lab_post = k.newlab("post")
    k.e("s_cmp_ge_u32 s4, 5")
    k.e("s_cbranch_scc1 %s" % lab_q)
    for path in range(2):
        if path == 1:
            k.e("s_branch %s" % lab_post)
            k.label(lab_q)
        k.lq, k.vq = [], []
        mis = [0, 1, 2, 3, 4] if path == 0 else [1, 2, 3, 4]
        if path == 0:
            issue_groups(k, dmaX(0) + dmaW(0) + dmaW(1) + dmaX(1) + dmaW(2) + dmaW(3))
        else:
            issue_groups(k, dmaW(0) + dmaW(1) + dmaW(2) + dmaW(3))
            lab_nocs = k.newlab("nocs")
            k.e("s_cmp_ge_u32 s13, 576")
            k.e("s_cbranch_scc1 %s" % lab_nocs)
            k.e("s_cmp_lt_u32 s15, 9")
            k.e("s_cselect_b32 s%d, s%d, s%d" % (SG, P_WG, P_WU))
            k.e("s_cselect_b32 s%d, s%d, s%d" % (SG + 1, P_WG + 1, P_WU + 1))
            k.e("s_cselect_b32 s63, 0, 9")
            k.e("s_mov_b32 s%d, 0x%x" % (SG + 2, D * F * 2))
            k.e("s_mov_b32 s%d, 0x00020000" % (SG + 3))
            k.e("s_sub_u32 s63, s15, s63")
            k.e("s_lshl_b32 s63, s63, 10")
            k.e("s_mul_i32 s60, s14, 18 * 9216")
            k.e("s_add_u32 s60, s63, s60")
            k.e("v_lshlrev_b32 v18, 4, v0")
            for i in range(18):
                k.e("buffer_load_dwordx4 %s, v18, %s, s60 offen" % (vr(CX + 4 * i, 4), sr(SG, 4)))
                k.e("s_add_u32 s60, s60, 9216")
            k.label(lab_nocs)

        def rd(s):
            xs, kk = divmod(s, 2)
            for mi in mis:
                k.lds("ds_read_b128 %s, v%d offset:%d" % (vr(AF[s % 2][mi], 4), vA + xs % NX, (mi * 2 + kk) * 1024), ("f", s))
            if path == 0:
                k.lds("ds_read_b128 %s, v%d offset:%d" % (vr(AF[s % 2][5], 4), vS + xs % NX, kk * 1024), ("f", s))
            for sl in range(2):
                for j in range(2):
                    k.lds("ds_read_b64_tr_b16 %s, v%d offset:%d" % (vr(BF[s % 2][sl] + 2 * j, 2), (vB0, vB1)[sl] + s % NW, j * 2048), ("f", s))
        if path == 0:
            stamp(k, 1)
        k.wait_vm(("dma", 0))
        k.e("s_barrier")
        rd(0)
        for s in range(18):
            k.c("---- step %d" % s)
            groups = []
            if s + 1 < 18:
                k.wait_vm(("dma", s + 1))
                k.e("s_barrier")
                if path == 0 and s % 2 == 0 and s // 2 + 2 < 9:
                    groups += dmaX(s // 2 + 2)
                if s + NW - 1 < 18:
                    groups += dmaW(s + NW - 1)
                rd(s + 1)
            k.wait_lds(("f", s))
            n = 0
            for sl in range(2):
                for mi in mis + [5]:
                    a = acc(sl, mi)
                    cc = "0" if s == 0 else vr(a, 4)
                    bop = vr(AF[s % 2][mi], 4) if mi < 5 else vr(ONES, 4)
                    k.e("v_mfma_f32_16x16x32_bf16 %s, %s, %s, %s" % (vr(a, 4), vr(BF[s % 2][sl], 4), bop, cc))
                    if n < len(groups):
                        issue_groups(k, [groups[n]])
                    n += 1
            if path == 0:
                sf = vr(AF[s % 2][5], 4)
                k.e("v_mfma_f32_16x16x32_bf16 %s, %s, %s, %s" % (vr(SACC, 4), vr(ONES, 4), sf, "0" if s == 0 else vr(SACC, 4)))
                k.e("v_mfma_f32_16x16x32_bf16 %s, %s, %s, %s" % (vr(SACC + 4, 4), sf, sf, "0" if s == 0 else vr(SACC + 4, 4)))
    k.label(lab_post)
    k.lq, k.vq = [], []
    stamp(k, 2)
    k.e("s_nop 7")
    k.e("s_nop 7")
    k.e("s_barrier")
    k.e("v_and_b32 v18, 3, v0")
    k.e("v_cmp_eq_u32 vcc, 1, v18")
    k.e("v_mov_b32 v19, v%d" % (SACC + 4))
    k.e("s_nop 0")
    k.e("v_cndmask_b32 v19, v19, v%d, vcc" % (SACC + 5))
    k.e("v_cmp_eq_u32 vcc, 2, v18")
    k.e("s_nop 1")
    k.e("v_cndmask_b32 v19, v19, v%d, vcc" % (SACC + 6))
    k.e("v_cmp_eq_u32 vcc, 3, v18")
    k.e("s_nop 1")
    k.e("v_cndmask_b32 v19, v19, v%d, vcc" % (SACC + 7))
    k.e("s_mov_b32 s60, 0x%x" % f2u(1.0 / 576.0))
    k.e("s_mov_b32 s61, 0x%x" % f2u(1e-5))
    k.e("v_mul_f32 v8, s60, v%d" % SACC)
    k.e("v_mul_f32 v19, s60, v19")
    k.e("v_fma_f32 v19, -v8, v8, v19")
    k.e("v_max_f32 v19, 0, v19")
    k.e("v_add_f32 v19, s61, v19")
    k.e("v_rsq_f32 v9, v19")
    k.e("v_sub_f32 v8, 0, v8")
    k.e("v_lshrrev_b32 v18, 2, v16")
    k.e("v_cmp_eq_u32 vcc, v18, v17")
    k.e("s_lshl_b32 s60, s4, 7")
    k.e("v_lshlrev_b32 v18, 3, v16")
    k.e("v_add_u32 v18, s60, v18")
    k.e("v_add_u32 v18, %d, v18" % STO)
    k.e("s_and_saveexec_b64 s[60:61], vcc")
    k.e("ds_write_b64 v18, v[8:9]")
    k.e("s_mov_b64 exec, -1")
    k.e("s_waitcnt lgkmcnt(0)")
    k.e("s_barrier")
    k.e("v_lshlrev_b32 v18, 3, v16")
    k.e("v_add_u32 v18, %d, v18" % STO)
    for mi in range(5):
        k.lds("ds_read_b64 %s, v18 offset:%d" % (vr(96 + 2 * mi, 2), mi * 128), "st")
    for sl, sreg in ((0, 11), (1, 12)):
        k.e("s_lshl_b32 s60, s%d, 1" % sreg)
        k.e("v_mul_u32_u24 v18, %d, v16" % QP)
        k.e("v_lshlrev_b32 v19, 4, v17")
        k.e("v_add3_u32 v%d, v18, v19, s60" % (8 + sl))
    k.wait_lds("st")
    for sl in range(2):
        cw = acc(sl, 5)
        for mi in range(5):
            a = acc(sl, mi)
            for r in range(4):
                k.e("v_fma_f32 v%d, v%d, v%d, v%d" % (a + r, 96 + 2 * mi, cw + r, a + r))
            for r in range(4):
                k.e("v_mul_f32 v%d, v%d, v%d" % (a + r, 97 + 2 * mi, a + r))
            k.e("v_cvt_pk_bf16_f32 v18, v%d, v%d" % (a, a + 1))
            k.e("v_cvt_pk_bf16_f32 v19, v%d, v%d" % (a + 2, a + 3))
            k.e("v_lshlrev_b32 v%d, 16, v18" % a)
            k.e("v_and_b32 v%d, 0xffff0000, v18" % (a + 1))
            k.e("v_lshlrev_b32 v%d, 16, v19" % (a + 2))
            k.e("v_and_b32 v%d, 0xffff0000, v19" % (a + 3))
            k.lds("ds_write_b128 v%d, %s offset:%d" % (8 + sl, vr(a, 4), mi * 16 * QP))
    k.wait_lds_all()
    k.e("s_barrier")
    k.e("s_cmp_ge_u32 s4, 4")
    k.e("s_cbranch_scc1 %s" % lab_cs3)
    k.e("v_lshrrev_b32 v18, 2, v0")
    k.e("s_lshl_b32 s60, s4, 4")
    k.e("v_add_u32 v18, s60, v18")
    k.e("v_and_b32 v19, 3, v0")
    k.e("v_mul_u32_u24 v20, %d, v18" % QP)
    k.e("v_mul_u32_u24 v21, 72, v19")
    k.e("v_add_u32 v20, v20, v21")
    Q = 32
    KV = 52
    L = 108
    O = 116
    for d in range(9):
        k.lds("ds_read_b64 %s, v20 offset:%d" % (vr(Q + 2 * d, 2), 16 * QP + d * 8), "q")
    seq = [("k", j) for j in range(8)] + [("v", j) for j in range(8)]

    def rdkv(n):
        kind, j = seq[n]
        col = 320 if kind == "k" else 640
        for d in range(9):
            k.lds("ds_read_b64 %s, v20 offset:%d" % (vr(KV + (n % 3) * 18 + 2 * d, 2), (16 - 2 * j) * QP + col + d * 8), seq[n])
    rdkv(0)
    for j in range(8):
        rdkv(j + 1)
        k.wait_lds(("k", j))
        b = KV + (j % 3) * 18
        k.e("v_mul_f32 v%d, v%d, v%d" % (L + j, Q, b))
        k.e("v_mul_f32 v24, v%d, v%d" % (Q + 1, b + 1))
        for d in range(2, 18, 2):
            k.e("v_fmac_f32 v%d, v%d, v%d" % (L + j, Q + d, b + d))
            k.e("v_fmac_f32 v24, v%d, v%d" % (Q + d + 1, b + d + 1))
        k.e("v_add_f32 v%d, v%d, v24" % (L + j, L + j))
    rdkv(9)
    k.e("s_mov_b32 s60, 0x%x" % f2u(18 ** -0.5))
    k.e("s_lshl_b32 s61, s10, 6")
    k.e("v_add_u32 v22, s61, v18")
    k.e("v_mov_b32 v23, 0x%x" % f2u(-1e9))
    for j in range(8):
        k.e("v_mul_f32 v%d, s60, v%d" % (L + j, L + j))
    for j in range(1, 8):
        k.e("v_cmp_le_u32 vcc, %d, v22" % (2 * j))
        k.e("s_nop 1")
        k.e("v_cndmask_b32 v%d, v23, v%d, vcc" % (L + j, L + j))
    k.e("v_max3_f32 v24, v%d, v%d, v%d" % (L, L + 1, L + 2))
    k.e("v_max3_f32 v24, v24, v%d, v%d" % (L + 3, L + 4))
    k.e("v_max3_f32 v24, v24, v%d, v%d" % (L + 5, L + 6))
    k.e("v_max_f32 v24, v24, v%d" % (L + 7))
    k.e("s_mov_b32 s60, 0x%x" % f2u(1.4426950408889634))
    for j in range(8):
        k.e("v_sub_f32 v%d, v%d, v24" % (L + j, L + j))
    for j in range(8):
        k.e("v_mul_f32 v%d, s60, v%d" % (L + j, L + j))
    for j in range(8):
        k.e("v_exp_f32 v%d, v%d" % (L + j, L + j))
    k.e("s_nop 0")
    k.e("v_add_f32 v24, v%d, v%d" % (L, L + 1))
    for j in range(2, 8):
        k.e("v_add_f32 v24, v24, v%d" % (L + j))
    k.e("v_rcp_f32 v24, v24")
    k.e("s_nop 0")
    for j in range(8):
        k.e("v_mul_f32 v%d, v%d, v24" % (L + j, L + j))
    for j in range(8):
        if 10 + j < 16:
            rdkv(10 + j)
        k.wait_lds(("v", j))
        b = KV + ((8 + j) % 3) * 18
        for d in range(18):
            if j == 0:
                k.e("v_mul_f32 v%d, v%d, v%d" % (O + d, L, b + d))
            else:
                k.e("v_fmac_f32 v%d, v%d, v%d" % (O + d, L + j, b + d))
    for d in range(9):
        k.e("v_cvt_pk_bf16_f32 v%d, v%d, v%d" % (Q + d, O + 2 * d, O + 2 * d + 1))
    k.e("v_lshrrev_b32 v23, 4, v22")
    k.e("v_mul_u32_u24 v23, 18432, v23")
    k.e("v_and_b32 v24, 15, v22")
    k.e("v_lshlrev_b32 v24, 4, v24")
    k.e("v_add_u32 v23, v23, v24")
    k.e("v_mul_u32_u24 v21, 18, v19")
    k.e("s_mul_i32 s60, s9, 72")
    k.e("v_add_u32 v21, s60, v21")
    for d in range(9):
        k.e("v_add_u32 v24, %d, v21" % (2 * d))
        k.e("v_lshrrev_b32 v25, 3, v24")
        k.e("v_lshlrev_b32 v25, 8, v25")
        k.e("v_and_b32 v24, 7, v24")
        k.e("v_lshlrev_b32 v24, 1, v24")
        k.e("v_add3_u32 v%d, v23, v24, v25" % (KV + d))
        k.e("buffer_store_dword v%d, v%d, %s, 0 offen" % (Q + d, KV + d, sr(SO, 4)))
    stamp(k, 3)
    stamp_flush(k, 6)
    k.e("s_endpgm")
    k.label(lab_cs3)
    k.e("s_cmp_eq_u32 s4, 4")
    k.e("s_cbranch_scc1 L_%s_end" % k.name)
    k.e("s_cmp_ge_u32 s13, 576")
    k.e("s_cbranch_scc1 L_%s_end" % k.name)
    k.e("s_waitcnt vmcnt(0)")
    for r in range(8):
        k.e("v_mov_b32 v%d, 0" % (20 + r))
    for i in range(18):
        for d in range(4):
            x = CX + 4 * i + d
            k.e("v_lshlrev_b32 v28, 16, v%d" % x)
            k.e("v_and_b32 v29, 0xffff0000, v%d" % x)
            k.e("v_add_f32 v%d, v%d, v28" % (20 + 2 * d, 20 + 2 * d))
            k.e("v_add_f32 v%d, v%d, v29" % (21 + 2 * d, 21 + 2 * d))
    k.e("s_mul_i32 s63, s14, %d" % (2 * F * 4))
    k.e("s_lshl_b32 s60, s15, 11")
    k.e("s_add_u32 s63, s63, s60")
    k.e("v_lshlrev_b32 v18, 5, v0")
    k.e("v_add_u32 v18, s63, v18")
    k.e("buffer_store_dwordx4 v[20:23], v18, %s, 0 offen" % sr(SCP, 4))
    k.e("buffer_store_dwordx4 v[24:27], v18, %s, 0 offen offset:16" % sr(SCP, 4))
    footer(k)
    return k, 256


def main():
    ks = [
        (gen_k1, 512, 5 * 24576 + 3 * 10240, 232),
        (gen_k2, 256, 5 * 28672, 216),
        (gen_k3, 512, 4 * 40960, 256),
        (gen_k4, 512, 4 * 40960, 256),
    ]
    hdr = open("sequential_preLN__sliding_local_dilated__geglu_ffn__prompt.s.ref").read().split("\n")
    out = []
    for line in hdr:
        if line.startswith("; Override") or line.startswith("; grid=") or line.startswith("; @launch"):
            continue
        if not line.startswith(";"):
            break
        out.append(line)
    body = []
    desc = []
    for fn, block, lds, nv in ks:
        k, nwg = fn()
        name = k.name + "_kernel"
        out.append("; @launch kernel=%s grid=(%d,1,1) block=(%d,1,1) lds=%d" % (name, nwg, block, lds))
        body += [".globl %s" % name, ".p2align 8", ".type %s,@function" % name, "%s:" % name] + k.L
        desc += [".p2align 6", ".amdhsa_kernel %s" % name,
                 "  .amdhsa_next_free_vgpr %d" % nv, "  .amdhsa_next_free_sgpr 102",
                 "  .amdhsa_accum_offset %d" % nv,
                 "  .amdhsa_group_segment_fixed_size 0", "  .amdhsa_kernarg_size 80",
                 "  .amdhsa_user_sgpr_count 2", "  .amdhsa_user_sgpr_kernarg_segment_ptr 1",
                 "  .amdhsa_system_sgpr_workgroup_id_x 1", ".end_amdhsa_kernel"]
    out += ['.amdgcn_target "amdgcn-amd-amdhsa--gfx950"', ".text"] + body + ['.section .rodata,"a"'] + desc
    path = sys.argv[1] if len(sys.argv) > 1 else "sequential_preLN__sliding_local_dilated__geglu_ffn__prompt.s"
    open(path, "w").write("\n".join(out) + "\n")


main()
```

```python
import sys, struct

S, D, F = 2048, 576, 4608
O_OFF = 0x0000000
H_OFF = 0x0400000
ST_OFF = 0x0800000
CP_OFF = 0x0A00000
CS_OFF = 0x0860000
FLG_OFF = 0x0880000
ACT_OFF = 0x1000000
PART_OFF = 0x3000000


def f2u(x):
    return struct.unpack("<I", struct.pack("<f", x))[0]


EXP = __import__("os").environ.get("EXP", "")


class K:
    def __init__(s, name):
        s.name = name
        s.L = []
        s.lq = []
        s.vq = []
        s.nlab = 0

    def e(s, t):
        if "nomfma" in EXP and t.startswith("v_mfma"):
            return
        if "noldsrd" in EXP and (t.startswith("ds_read_b128") or t.startswith("ds_read_b64_tr")):
            return
        if "nodma" in EXP and t.endswith(" lds"):
            return
        if "nox" in EXP and t.endswith(" lds") and "s[36:39]" in t and s.name == "qkv":
            return
        if "now" in EXP and t.endswith(" lds") and "s[40:43]" in t and s.name == "qkv":
            return
        s.L.append("    " + t)

    def c(s, t):
        s.L.append("    ; " + t)

    def label(s, n):
        s.L.append(n + ":")

    def newlab(s, base):
        s.nlab += 1
        return "L_%s_%s_%d" % (s.name, base, s.nlab)

    def lds(s, t, tag=None):
        s.e(t)
        s.lq.append(tag)

    def vm(s, t, tag=None):
        s.e(t)
        s.vq.append(tag)

    def _need(s, q, tag):
        idx = -1
        for i, x in enumerate(q):
            if x == tag:
                idx = i
        return idx

    def wait_lds(s, tag):
        idx = s._need(s.lq, tag)
        if idx < 0:
            return
        n = len(s.lq) - idx - 1
        n = min(n, 15)
        s.e("s_waitcnt lgkmcnt(%d)" % n)
        s.lq = s.lq[len(s.lq) - n:] if n else []

    def wait_vm(s, tag):
        idx = s._need(s.vq, tag)
        if idx < 0:
            return
        n = len(s.vq) - idx - 1
        n = min(n, 63)
        s.e("s_waitcnt vmcnt(%d)" % n)
        s.vq = s.vq[len(s.vq) - n:] if n else []

    def wait_all(s):
        s.e("s_waitcnt vmcnt(0) lgkmcnt(0)")
        s.lq = []
        s.vq = []

    def wait_lds_all(s):
        s.e("s_waitcnt lgkmcnt(0)")
        s.lq = []

    def wait_vm_all(s):
        s.e("s_waitcnt vmcnt(0)")
        s.vq = []


STAMP = int(__import__("os").environ.get("STAMP", "0"))


def stamp(k, idx):
    if STAMP:
        k.e("s_memtime s[%d:%d]" % (70 + 2 * idx, 71 + 2 * idx))
        if idx in (0, 3):
            k.e("s_memrealtime s[%d:%d]" % (78 + (2 if idx else 0), 79 + (2 if idx else 0)))
        k.e("s_waitcnt lgkmcnt(0)")
        k.lq = []


def stamp_flush(k, n):
    if STAMP:
        lab = k.newlab("nost")
        k.e("s_and_b32 s90, s2, 127")
        k.e("s_cmp_lg_u32 s90, 5")
        k.e("s_cbranch_scc1 %s" % lab)
        k.e("s_cmp_lg_u32 s4, 0")
        k.e("s_cbranch_scc1 %s" % lab)
        srd(k, 92, P_WS, 0x900000 + 512 * getattr(k, "stamp_slot", ["qkv", "wo", "ffn"].index(k.name)), 256)
        k.e("s_lshr_b32 s90, s2, 7")
        k.e("s_lshl_b32 s90, s90, 6")
        k.e("v_mov_b32 v1, s90")
        k.e("s_mov_b64 exec, 1")
        for i in range(n):
            k.e("v_mov_b32 v2, s%d" % (70 + 2 * i))
            k.e("buffer_store_dword v2, v1, s[92:95], 0 offen offset:%d" % (4 * i))
        k.label(lab)


def vr(b, n):
    return "v[%d:%d]" % (b, b + n - 1)


def sr(b, n):
    return "s[%d:%d]" % (b, b + n - 1)


P_X, P_WQKV, P_WO, P_BX, P_WG, P_WU, P_WD, P_OUT, P_DBG, P_WS = 16, 18, 20, 22, 24, 26, 28, 30, 32, 34


def header(k, nwg):
    k.e("s_cmp_ge_u32 s2, %d" % nwg)
    k.e("s_cbranch_scc1 L_%s_end" % k.name)
    k.e("s_load_dwordx16 s[16:31], s[0:1], 0")
    k.e("s_load_dwordx4 s[32:35], s[0:1], 64")
    k.e("v_lshrrev_b32 v1, 6, v0")
    k.e("v_and_b32 v0, 63, v0")
    k.e("s_nop 0")
    k.e("v_readfirstlane_b32 s4, v1")
    k.e("s_waitcnt lgkmcnt(0)")


def srd(k, d, ptr, off, nbytes):
    if off:
        k.e("s_add_u32 s%d, s%d, 0x%x" % (d, ptr, off))
        k.e("s_addc_u32 s%d, s%d, 0" % (d + 1, ptr + 1))
    else:
        k.e("s_mov_b32 s%d, s%d" % (d, ptr))
        k.e("s_mov_b32 s%d, s%d" % (d + 1, ptr + 1))
    k.e("s_mov_b32 s%d, 0x%x" % (d + 2, nbytes))
    k.e("s_mov_b32 s%d, 0x00020000" % (d + 3))


def footer(k):
    k.label("L_%s_end" % k.name)
    k.e("s_endpgm")


def swap23_lane_rowpos(k, vdst, vlane, vt, vt2):
    k.e("v_lshrrev_b32 v%d, 5, v%d" % (vt, vlane))
    k.e("v_lshlrev_b32 v%d, 4, v%d" % (vdst, vt))
    k.e("v_bfe_u32 v%d, v%d, 4, 1" % (vt, vlane))
    k.e("v_lshlrev_b32 v%d, 2, v%d" % (vt, vt))
    k.e("v_add_u32 v%d, v%d, v%d" % (vdst, vdst, vt))
    k.e("v_bfe_u32 v%d, v%d, 2, 2" % (vt2, vlane))
    k.e("v_add_u32 v%d, v%d, v%d" % (vdst, vdst, vt2))


def swap23(k, vdst, vp, vt, vt2):
    k.e("v_and_b32 v%d, 0x33, v%d" % (vdst, vp))
    k.e("v_bfe_u32 v%d, v%d, 2, 1" % (vt, vp))
    k.e("v_lshlrev_b32 v%d, 3, v%d" % (vt, vt))
    k.e("v_bfe_u32 v%d, v%d, 3, 1" % (vt2, vp))
    k.e("v_lshlrev_b32 v%d, 2, v%d" % (vt2, vt2))
    k.e("v_or3_b32 v%d, v%d, v%d, v%d" % (vdst, vdst, vt, vt2))


def gemm_core(k, nst, nbuf, MI, acc, afr, bring, PD, a_rd, b_rd, dma, zero_init, NJ=9, sub=1):
    RB = len(bring)
    nm = MI * NJ
    nsteps = nst * sub

    def rdB(t):
        sp, nj = divmod(t, NJ)
        if sp >= nsteps:
            return []
        st, kk = divmod(sp, sub)
        slot = bring[t % RB]
        out = []
        for j in range(2):
            v, off = b_rd(st % nbuf, nj, j, kk) if sub > 1 else b_rd(st % nbuf, nj, j)
            out.append(("ds_read_b64_tr_b16 %s, v%d offset:%d" % (vr(slot + 2 * j, 2), v, off), ("B", t)))
        return out

    def rdA(sp, i):
        if sp >= nsteps:
            return []
        st, kk = divmod(sp, sub)
        v, off = a_rd(st % nbuf, i, kk) if sub > 1 else a_rd(st % nbuf, i)
        return [("ds_read_b128 %s, v%d offset:%d" % (vr(afr[sp % 2][i], 4), v, off), ("A", sp))]

    k.wait_vm(("dma", 0))
    k.e("s_barrier")
    for i in range(MI):
        for (t, tag) in rdA(0, i):
            k.lds(t, tag)
    for t in range(PD):
        for (x, tag) in rdB(t):
            k.lds(x, tag)
    for s in range(nsteps):
        k.c("---- step %d" % s)
        groups = []
        st = s // sub
        if (s + 1) % sub == 0 and st + 1 < nst:
            k.wait_vm(("dma", st + 1))
            k.e("s_barrier")
            if st + nbuf - 1 < nst:
                groups = dma(st + nbuf - 1)
        ev = {}

        def add(idx, fn):
            ev.setdefault(min(idx, nm - 1), []).append(fn)
        for nj in range(NJ):
            t = s * NJ + nj
            add(nj * MI, (lambda tt: (lambda: [k.lds(x, tag) for (x, tag) in rdB(tt)]))(t + PD))
        for i in range(MI):
            add((2 + i) * MI + min(1, MI - 1), (lambda ii: (lambda: [k.lds(x, tag) for (x, tag) in rdA(s + 1, ii)]))(i))
        for gi, g in enumerate(groups):
            def mk(g):
                def f():
                    for (x, tag) in g:
                        if tag is None:
                            k.e(x)
                        else:
                            k.vm(x, tag)
                return f
            add(gi * MI + min(2, MI - 1), mk(g))
        for nj in range(NJ):
            t = s * NJ + nj
            if nj == 0:
                k.wait_lds(("A", s))
            k.wait_lds(("B", t))
            for i in range(MI):
                a = acc(i, nj)
                cc = "0" if (zero_init and s == 0) else vr(a, 4)
                k.e("v_mfma_f32_16x16x32_bf16 %s, %s, %s, %s" % (vr(a, 4), vr(bring[t % RB], 4), vr(afr[s % 2][i], 4), cc))
                for fn in ev.get(nj * MI + i, []):
                    fn()


def fl_lane(k, vdst, vt):
    k.e("v_lshrrev_b32 v%d, 1, v17" % vt)
    k.e("v_lshlrev_b32 v%d, 8, v%d" % (vdst, vt))
    k.e("v_lshlrev_b32 v%d, 4, v16" % vt)
    k.e("v_add_u32 v%d, v%d, v%d" % (vdst, vdst, vt))
    k.e("v_and_b32 v%d, 1, v17" % vt)
    k.e("v_lshlrev_b32 v%d, 3, v%d" % (vt, vt))
    k.e("v_add_u32 v%d, v%d, v%d" % (vdst, vdst, vt))


def b_dma_addr(k, vdst, sL0, iofs, NL, spitch, scol, reg_row=0, reg_col=0):
    k.e("v_lshrrev_b32 v18, 3, v0")
    k.e("v_add_u32 v18, s%d, v18" % sL0)
    if iofs:
        k.e("v_add_u32 v18, %d, v18" % iofs)
    if NL == 3:
        k.e("v_mul_u32_u24 v19, 21846, v18")
        k.e("v_lshrrev_b32 v19, 16, v19")
        k.e("v_mul_u32_u24 v20, 3, v19")
        k.e("v_sub_u32 v18, v18, v20")
    else:
        k.e("v_lshrrev_b32 v19, 1, v18")
        k.e("v_xor_b32 v18, v18, v19")
        k.e("v_and_b32 v18, 1, v18")
    k.e("v_lshlrev_b32 v18, 7, v18")
    k.e("v_bfe_u32 v20, v19, 1, 2")
    k.e("v_bfe_u32 v21, v0, 1, 2")
    k.e("v_xor_b32 v20, v20, v21")
    k.e("v_lshlrev_b32 v20, 5, v20")
    k.e("v_and_b32 v21, 1, v0")
    k.e("v_lshlrev_b32 v21, 4, v21")
    k.e("v_add3_u32 v18, v18, v20, v21")
    k.e("v_lshrrev_b32 v23, 5, v19")
    k.e("v_and_b32 v19, 31, v19")
    swap23(k, 20, 19, 21, 22)
    if reg_row:
        k.e("v_mul_u32_u24 v21, %d, v23" % reg_row)
        k.e("v_add_u32 v20, v20, v21")
    k.e("v_mul_lo_u32 v20, v20, s%d" % spitch)
    if reg_col:
        k.e("v_mul_u32_u24 v23, %d, v23" % reg_col)
        k.e("v_add_u32 v18, v18, v23")
    k.e("v_add3_u32 v%d, v20, v18, s%d" % (vdst, scol))


def b_rd_addr3(k, vq, sn0p, sbase):
    swap23_lane_rowpos(k, 18, 0, 19, 20)
    k.e("v_bfe_u32 v19, v18, 1, 2")
    k.e("v_mul_u32_u24 v18, 384, v18")
    k.e("v_and_b32 v20, 3, v0")
    k.e("v_lshlrev_b32 v20, 3, v20")
    k.e("v_add3_u32 v18, v18, v20, s%d" % sbase)
    for q in range(4):
        k.e("s_add_u32 s60, s%d, %d" % (sn0p, q))
        k.e("s_and_b32 s61, s60, 3")
        k.e("s_lshr_b32 s60, s60, 2")
        k.e("s_lshl_b32 s60, s60, 7")
        k.e("v_xor_b32 v20, s61, v19")
        k.e("v_lshlrev_b32 v20, 5, v20")
        k.e("v_add3_u32 v%d, v18, v20, s60" % (vq + q))


def touch(k, ssrd, ptr, nbytes, nwaves_total, wpw, vtmp, vdst):
    nlines = nbytes // 128
    per = (nlines + nwaves_total - 1) // nwaves_total
    assert per <= 64
    srd(k, ssrd, ptr, 0, nbytes)
    k.e("s_mul_i32 s60, s2, %d" % wpw)
    k.e("s_add_u32 s60, s60, s4")
    k.e("s_mul_i32 s60, s60, %d" % per)
    k.e("v_add_u32 v%d, s60, v0" % vtmp)
    k.e("v_lshlrev_b32 v%d, 7, v%d" % (vtmp, vtmp))
    if per < 64:
        m = (1 << per) - 1
        k.e("s_mov_b32 exec_lo, 0x%x" % (m & 0xffffffff))
        k.e("s_mov_b32 exec_hi, 0x%x" % (m >> 32))
    k.vm("buffer_load_dword v%d, v%d, %s, 0 offen" % (vdst, vtmp, sr(ssrd, 4)), "touch")
    k.e("s_mov_b64 exec, -1")


def issue_groups(k, groups):
    for g in groups:
        for (x, tag) in g:
            if tag is None:
                k.e(x)
            else:
                k.vm(x, tag)


def gen_k3():
    k = K("ffn")
    SB = 40960
    NBUF = 4
    header(k, 256)
    stamp(k, 0)
    SA, SBd, SST, SCS, SO = 36, 40, 44, 48, 52
    sKA, sKB, sMA, sMB = 56, 57, 58, 59
    k.e("s_and_b32 s60, s2, 7")
    k.e("s_lshr_b32 s61, s2, 3")
    k.e("s_and_b32 s62, s61, 3")
    k.e("s_lshl_b32 s60, s60, 2")
    k.e("s_add_u32 s9, s60, s62")
    k.e("s_lshr_b32 s61, s61, 2")
    k.e("s_lshl_b32 s7, s61, 8")
    k.e("s_mul_i32 s8, s9, 144")
    k.e("s_and_b32 s5, s4, 3")
    k.e("s_lshr_b32 s6, s4, 2")
    srd(k, SA, P_WS, H_OFF, S * D * 2)
    k.e("s_cmp_lt_u32 s4, 4")
    k.e("s_cselect_b32 s%d, s%d, s%d" % (SBd, P_WG, P_WU))
    k.e("s_cselect_b32 s%d, s%d, s%d" % (SBd + 1, P_WG + 1, P_WU + 1))
    k.e("s_mov_b32 s%d, 0x%x" % (SBd + 2, D * F * 2))
    k.e("s_mov_b32 s%d, 0x00020000" % (SBd + 3))
    srd(k, SST, P_WS, ST_OFF, S * 32)
    srd(k, SCS, P_WS, CS_OFF, 2 * F * 4)
    srd(k, SO, P_WS, ACT_OFF, S * F * 2)
    vOA0, vOA1, vOB = 2, 3, 4
    vA, vB = 8, 24
    vR, vM = 40, 44
    ACC = 96
    afr = [[48 + 4 * i for i in range(4)], [64 + 4 * i for i in range(4)]]
    bring = [80, 84, 88, 92]
    k.e("v_and_b32 v16, 15, v0")
    k.e("v_lshrrev_b32 v17, 4, v0")
    k.e("s_lshl_b32 s60, s5, 6")
    k.e("s_add_u32 s60, s60, s7")
    k.e("v_add_u32 v18, s60, v16")
    k.e("v_lshlrev_b32 v18, 5, v18")
    for i in range(4):
        for h in range(2):
            k.vm("buffer_load_dwordx4 %s, v18, %s, 0 offen offset:%d" % (vr(ACC + i * 8 + h * 4, 4), sr(SST, 4), i * 512 + h * 16), "st")
    k.e("s_mul_i32 s60, s6, 80")
    k.e("s_add_u32 s60, s60, s8")
    k.e("v_lshlrev_b32 v18, 2, v17")
    k.e("v_add_u32 v18, s60, v18")
    k.e("v_lshlrev_b32 v18, 2, v18")
    k.e("s_movk_i32 s61, 18432")
    CSR = 48
    for f in range(5):
        k.vm("buffer_load_dwordx4 %s, v18, %s, 0 offen offset:%d" % (vr(CSR + f * 8, 4), sr(SCS, 4), f * 64), "cs")
        k.vm("buffer_load_dwordx4 %s, v18, %s, s61 offen offset:%d" % (vr(CSR + f * 8 + 4, 4), sr(SCS, 4), f * 64), "cs")
    k.e("s_lshr_b32 s60, s7, 4")
    k.e("s_lshl_b32 s61, s4, 1")
    k.e("s_add_u32 s60, s60, s61")
    k.e("s_mul_i32 s60, s60, 18432")
    k.e("v_lshlrev_b32 v19, 4, v0")
    k.e("v_add_u32 v%d, s60, v19" % vOA0)
    k.e("v_add_u32 v%d, 18432, v%d" % (vOA1, vOA0))
    k.e("s_and_b32 s60, s4, 3")
    k.e("s_mul_i32 s68, s60, 24")
    k.e("s_lshl_b32 s62, s8, 1")
    k.e("s_and_b32 s62, s62, 0xffffff80")
    k.e("s_movk_i32 s63, 9216")
    for i in range(3):
        b_dma_addr(k, vOB + i, 68, 8 * i, 3, 63, 62)
    k.e("s_mov_b32 s%d, 0" % sKA)
    k.e("s_mov_b32 s%d, 0" % sKB)
    k.e("s_lshl_b32 s%d, s4, 11" % sMA)
    k.e("s_mul_i32 s%d, s4, 3072" % sMB)
    k.e("s_add_u32 s%d, s%d, 16384" % (sMB, sMB))

    def dma(st):
        b = (st % NBUF) * SB
        tag = ("dma", st)
        g = []
        for i in range(2):
            g.append([("s_add_u32 m0, s%d, %d" % (sMA, b + i * 1024), None), ("s_nop 0", None),
                      ("buffer_load_dwordx4 v%d, %s, s%d offen lds" % (vOA0 + i, sr(SA, 4), sKA), tag)])
        for i in range(3):
            x = [("s_add_u32 m0, s%d, %d" % (sMB, b + i * 1024), None), ("s_nop 0", None)]
            x.append(("buffer_load_dwordx4 v%d, %s, s%d offen lds" % (vOB + i, sr(SBd, 4), sKB), tag))
            if i == 2:
                x.append(("s_add_u32 s%d, s%d, 1024" % (sKA, sKA), None))
                x.append(("s_add_u32 s%d, s%d, %d" % (sKB, sKB, 32 * 9216), None))
            g.append(x)
        return g
    for st in range(NBUF - 1):
        issue_groups(k, dma(st))
    touch(k, 64, P_WD, F * D * 2, 2048, 8, 18, 1)
    k.e("s_lshl_b32 s60, s5, 12")
    k.e("v_lshlrev_b32 v18, 4, v0")
    k.e("v_add_u32 v%d, s60, v18" % vA)
    for b_ in range(1, 4):
        k.e("v_add_u32 v%d, %d, v%d" % (vA + b_, b_ * SB, vA))
    k.e("s_bfe_u32 s62, s8, 0x20004")
    k.e("s_mul_i32 s63, s6, 5")
    k.e("s_add_u32 s62, s62, s63")
    k.e("s_movk_i32 s63, 16384")
    b_rd_addr3(k, vB, 62, 63)
    for b_ in range(1, 4):
        for q in range(4):
            k.e("v_add_u32 v%d, %d, v%d" % (vB + 4 * b_ + q, b_ * SB, vB + q))
    k.e("v_lshrrev_b32 v18, 1, v17")
    k.e("v_lshlrev_b32 v12, 8, v18")
    k.e("v_lshlrev_b32 v18, 4, v16")
    k.e("v_add_u32 v12, v12, v18")
    k.e("v_and_b32 v18, 1, v17")
    k.e("v_mul_u32_u24 v13, 147456, v18")
    k.e("v_add_u32 v13, v13, v12")
    k.e("v_lshlrev_b32 v18, 9, v18")
    k.e("v_add_u32 v12, v12, v18")
    k.e("s_lshr_b32 s60, s7, 4")
    k.e("s_lshl_b32 s61, s5, 2")
    k.e("s_add_u32 s60, s60, s61")
    k.e("s_mul_i32 s60, s60, 147456")
    k.e("s_mul_i32 s61, s9, 9")
    k.e("s_mul_i32 s62, s6, 5")
    k.e("s_add_u32 s61, s61, s62")
    k.e("s_lshl_b32 s61, s61, 9")
    k.e("s_add_u32 s60, s60, s61")
    k.e("v_add_u32 v12, s60, v12")
    k.e("v_add_u32 v13, s60, v13")
    k.wait_vm("cs")
    k.e("s_mov_b32 s60, 0x%x" % f2u(1.0 / 576.0))
    k.e("s_mov_b32 s61, 0x%x" % f2u(1e-5))
    for i in range(4):
        b = ACC + i * 8
        k.e("v_add_f32 v18, v%d, v%d" % (b, b + 2))
        k.e("v_add_f32 v19, v%d, v%d" % (b + 4, b + 6))
        k.e("v_add_f32 v20, v%d, v%d" % (b + 1, b + 3))
        k.e("v_add_f32 v21, v%d, v%d" % (b + 5, b + 7))
        k.e("v_add_f32 v18, v18, v19")
        k.e("v_add_f32 v20, v20, v21")
        k.e("v_mul_f32 v18, s60, v18")
        k.e("v_mul_f32 v20, s60, v20")
        k.e("v_fma_f32 v20, -v18, v18, v20")
        k.e("v_max_f32 v20, 0, v20")
        k.e("v_add_f32 v20, s61, v20")
        k.e("v_rsq_f32 v%d, v20" % (vR + i))
        k.e("v_sub_f32 v%d, 0, v18" % (vM + i))
    lab1 = k.newlab("wn1")
    lab_done = k.newlab("done")
    k.e("s_cmp_eq_u32 s6, 1")
    k.e("s_cbranch_scc1 %s" % lab1)
    st_l, st_v = list(k.lq), list(k.vq)
    c1 = -2.0 * 0.7978845608028654 * 1.4426950408889634
    for wn in range(2):
        NF = 5 if wn == 0 else 4
        NJ = 2 * NF
        if wn == 1:
            k.e("s_branch %s" % lab_done)
            k.label(lab1)
            k.lq, k.vq = list(st_l), list(st_v)
        acc = lambda i, c: ACC + (i * NJ + c) * 4
        for i in range(4):
            for c in range(NJ):
                for r in range(4):
                    k.e("v_mul_f32 v%d, v%d, v%d" % (acc(i, c) + r, vM + i, CSR + c * 4 + r))
        k.e("s_nop 1")

        def a_rd(buf, i):
            return vA + buf, i * 1024

        def b_rd(buf, c, j):
            f = c >> 1
            return vB + 4 * buf + (f & 3), (c & 1) * 12288 + j * 3072 + (f >> 2) * 128
        if wn == 0:
            stamp(k, 1)
        gemm_core(k, 18, NBUF, 4, acc, afr, bring, 2, a_rd, b_rd, dma, False, NJ=NJ)
        if wn == 0:
            stamp(k, 2)
        k.c("---- epilogue")
        k.e("v_mov_b32 v20, 1.0")
        k.e("v_mov_b32 v21, 1.0")
        k.e("s_mov_b32 s60, 0x%x" % f2u(c1))
        k.e("s_mov_b32 s61, 0x%x" % f2u(c1 * 0.044715))
        k.e("s_mov_b32 s62, 0")
        k.e("s_nop 7")
        for i in range(4):
            k.e("v_mul_f32 v22, s60, v%d" % (vR + i))
            k.e("v_mul_f32 v26, v%d, v%d" % (vR + i, vR + i))
            k.e("v_mul_f32 v24, s61, v%d" % (vR + i))
            k.e("v_mul_f32 v24, v24, v26")
            k.e("v_mov_b32 v23, v22")
            k.e("v_mov_b32 v25, v24")
            k.e("v_mov_b32 v27, v26")
            for f in range(NF):
                G, U = acc(i, 2 * f), acc(i, 2 * f + 1)
                T, P = 28, 32
                for h in range(2):
                    k.e("v_pk_mul_f32 %s, %s, %s" % (vr(T + 2 * h, 2), vr(G + 2 * h, 2), vr(G + 2 * h, 2)))
                for h in range(2):
                    k.e("v_pk_fma_f32 %s, %s, v[24:25], v[22:23]" % (vr(T + 2 * h, 2), vr(T + 2 * h, 2)))
                for h in range(2):
                    k.e("v_pk_mul_f32 %s, %s, %s" % (vr(T + 2 * h, 2), vr(T + 2 * h, 2), vr(G + 2 * h, 2)))
                for r in range(4):
                    k.e("v_exp_f32 v%d, v%d" % (T + r, T + r))
                for h in range(2):
                    k.e("v_pk_mul_f32 %s, %s, %s" % (vr(P + 2 * h, 2), vr(G + 2 * h, 2), vr(U + 2 * h, 2)))
                for h in range(2):
                    k.e("v_pk_add_f32 %s, %s, v[20:21]" % (vr(T + 2 * h, 2), vr(T + 2 * h, 2)))
                for r in range(4):
                    k.e("v_rcp_f32 v%d, v%d" % (T + r, T + r))
                for h in range(2):
                    k.e("v_pk_mul_f32 %s, %s, v[26:27]" % (vr(P + 2 * h, 2), vr(P + 2 * h, 2)))
                for h in range(2):
                    k.e("v_pk_mul_f32 %s, %s, %s" % (vr(P + 2 * h, 2), vr(P + 2 * h, 2), vr(T + 2 * h, 2)))
                if f < 4:
                    R = acc(i, 2 * (f & ~1)) + 2 * (f & 1)
                else:
                    R = acc(i & ~1, 8) + 2 * (i & 1)
                k.e("v_cvt_pk_bf16_f32 v%d, v%d, v%d" % (R, P, P + 1))
                k.e("v_cvt_pk_bf16_f32 v%d, v%d, v%d" % (R + 1, P + 2, P + 3))
                if (f < 4 and f & 1) or (f == 4 and i & 1):
                    B0 = R - 2
                    k.e("s_nop 1")
                    k.e("v_permlane16_swap_b32 v%d, v%d" % (B0, B0 + 2))
                    k.e("v_permlane16_swap_b32 v%d, v%d" % (B0 + 1, B0 + 3))
                    if f < 4:
                        k.vm("buffer_store_dwordx4 %s, v12, %s, s62 offen offset:%d sc1" % (vr(B0, 4), sr(SO, 4), (f - 1) * 512))
                    else:
                        k.e("s_sub_u32 s63, s62, 147456")
                        k.vm("buffer_store_dwordx4 %s, v13, %s, s63 offen offset:%d sc1" % (vr(B0, 4), sr(SO, 4), 4 * 512))
            k.e("s_add_u32 s62, s62, 147456")
    k.label(lab_done)
    srd(k, 64, P_WS, FLG_OFF + 32768, 1024)
    k.e("s_lshr_b32 s60, s7, 8")
    k.e("s_lshl_b32 s60, s60, 5")
    k.e("s_add_u32 s60, s60, s9")
    k.e("s_lshl_b32 s60, s60, 2")
    k.e("v_mov_b32 v1, s60")
    k.e("v_mov_b32 v2, 1")
    k.e("s_waitcnt vmcnt(0)")
    k.e("s_barrier")
    lab_nf = k.newlab("nf")
    k.e("s_cmp_lg_u32 s4, 0")
    k.e("s_cbranch_scc1 %s" % lab_nf)
    k.e("s_mov_b64 exec, 1")
    k.e("buffer_store_dword v2, v1, s[64:67], 0 offen sc1")
    k.e("s_mov_b64 exec, -1")
    k.label(lab_nf)
    k.lq, k.vq = [], []
    stamp(k, 3)
    stamp_flush(k, 6)
    k.e("s_mov_b64 exec, -1")
    return gen_k4(k)


def gen_k4(k):
    SB = 40960
    NBUF = 4
    k.stamp_slot = 3
    stamp(k, 0)
    SA, SBd, SP, SO, SH, SD = 36, 40, 44, 48, 52, 64
    sKA, sKB, sMA, sMB = 56, 57, 58, 59
    k.e("s_and_b32 s9, s2, 3")
    k.e("s_bfe_u32 s60, s2, 0x10002")
    k.e("s_lshr_b32 s61, s2, 3")
    k.e("s_lshr_b32 s62, s61, 2")
    k.e("s_lshl_b32 s60, s60, 3")
    k.e("s_add_u32 s60, s60, s62")
    k.e("s_lshl_b32 s7, s60, 7")
    k.e("s_and_b32 s61, s61, 3")
    k.e("s_mul_i32 s8, s61, 144")
    k.e("s_lshl_b32 s10, s60, 2")
    k.e("s_add_u32 s10, s10, s61")
    k.e("s_and_b32 s11, s4, 3")
    k.e("s_lshr_b32 s5, s11, 1")
    k.e("s_and_b32 s6, s11, 1")
    k.e("v_and_b32 v16, 15, v0")
    k.e("v_lshrrev_b32 v17, 4, v0")
    lab_comp = k.newlab("comp")
    k.e("s_cmp_lt_u32 s4, 4")
    k.e("s_cbranch_scc1 %s" % lab_comp)
    srd(k, SA, P_WS, ACT_OFF, S * F * 2)
    srd(k, SBd, P_WD, 0, F * D * 2)
    vOA, vOB = 2, 8
    k.e("s_lshr_b32 s60, s7, 4")
    k.e("s_lshl_b32 s61, s11, 1")
    k.e("s_add_u32 s60, s60, s61")
    k.e("s_mul_i32 s60, s60, 147456")
    k.e("s_mul_i32 s61, s9, 36864")
    k.e("s_add_u32 s60, s60, s61")
    k.e("v_lshlrev_b32 v19, 4, v0")
    k.e("v_add_u32 v%d, s60, v19" % vOA)
    k.e("v_add_u32 v%d, 1024, v%d" % (vOA + 1, vOA))
    k.e("v_add_u32 v%d, %d, v%d" % (vOA + 2, 147456, vOA))
    k.e("v_add_u32 v%d, %d, v%d" % (vOA + 3, 147456 + 1024, vOA))
    k.e("s_mul_i32 s64, s11, 48")
    k.e("s_lshl_b32 s62, s8, 1")
    k.e("s_and_b32 s62, s62, 0xffffff80")
    k.e("s_mul_i32 s61, s9, 1152 * 1152")
    k.e("s_add_u32 s62, s62, s61")
    k.e("s_movk_i32 s63, 1152")
    for i in range(6):
        b_dma_addr(k, vOB + i, 64, 8 * i, 3, 63, 62, reg_row=32)
    k.e("s_mov_b32 s%d, 0" % sKA)
    k.e("s_mov_b32 s%d, 0" % sKB)
    k.e("s_lshl_b32 s%d, s11, 12" % sMA)
    k.e("s_mul_i32 s%d, s11, 6144" % sMB)
    k.e("s_add_u32 s%d, s%d, 16384" % (sMB, sMB))

    def dmaA(st):
        b = (st % NBUF) * SB
        tag = ("dma", st)
        g = []
        for i in range(4):
            x = [("s_add_u32 m0, s%d, %d" % (sMA, b + i * 1024), None), ("s_nop 0", None),
                 ("buffer_load_dwordx4 v%d, %s, s%d offen sc1 lds" % (vOA + i, sr(SA, 4), sKA), tag)]
            if i == 3:
                x.append(("s_add_u32 s%d, s%d, 2048" % (sKA, sKA), None))
            g.append(x)
        return g

    def dmaB(st):
        b = (st % NBUF) * SB
        tag = ("dma", st)
        g = []
        for i in range(6):
            x = [("s_add_u32 m0, s%d, %d" % (sMB, b + i * 1024), None), ("s_nop 0", None)]
            x.append(("buffer_load_dwordx4 v%d, %s, s%d offen lds" % (vOB + i, sr(SBd, 4), sKB), tag))
            if i == 5:
                x.append(("s_add_u32 s%d, s%d, %d" % (sKB, sKB, 64 * 1152), None))
            g.append(x)
        return g

    def dma(st):
        return dmaA(st) + dmaB(st)
    for st in range(NBUF - 1):
        issue_groups(k, dmaB(st))
    srd(k, 84, P_WS, FLG_OFF + 32768, 1024)
    k.e("s_lshr_b32 s60, s7, 8")
    k.e("s_lshl_b32 s60, s60, 7")
    k.e("s_lshl_b32 s61, s9, 5")
    k.e("s_add_u32 s60, s60, s61")
    k.e("v_mov_b32 v20, s60")
    lab_p = k.newlab("pollA")
    lab_g = k.newlab("goA")
    k.label(lab_p)
    k.e("buffer_load_dwordx4 v[24:27], v20, s[84:87], 0 offen sc1")
    k.e("buffer_load_dwordx4 v[28:31], v20, s[84:87], 0 offen offset:16 sc1")
    k.e("s_waitcnt vmcnt(0)")
    k.e("v_add3_u32 v24, v24, v25, v26")
    k.e("v_add3_u32 v24, v24, v27, v28")
    k.e("v_add3_u32 v24, v24, v29, v30")
    k.e("v_add_u32 v24, v24, v31")
    k.e("s_nop 0")
    k.e("v_readfirstlane_b32 s61, v24")
    k.e("s_cmp_ge_u32 s61, 8")
    k.e("s_cbranch_scc1 %s" % lab_g)
    k.e("s_sleep 2")
    k.e("s_branch %s" % lab_p)
    k.label(lab_g)
    k.vq = []
    for st in range(NBUF - 1):
        issue_groups(k, dmaA(st))
    k.wait_vm(("dma", 0))
    k.e("s_barrier")
    for s_ in range(17):
        k.wait_vm(("dma", s_ + 1))
        k.e("s_barrier")
        if s_ + NBUF - 1 < 18:
            issue_groups(k, dma(s_ + NBUF - 1))
    k.e("s_endpgm")
    k.label(lab_comp)
    k.lq, k.vq = [], []
    srd(k, SP, P_WS, PART_OFF, 64 * 16 * 18432)
    srd(k, SO, P_OUT, 0, S * D * 2)
    srd(k, SH, P_WS, H_OFF, S * D * 2)
    srd(k, SD, P_WS, FLG_OFF, 256 * 128)
    vA, vB = 2, 24
    ACC = 112
    afr = [[48, 52], [56, 60]]
    bring = [64 + 4 * q for q in range(8)]
    acc = lambda i, nj: ACC + (i * 9 + nj) * 4
    k.e("s_lshl_b32 s60, s4, 12")
    k.e("v_lshlrev_b32 v18, 4, v0")
    k.e("v_add_u32 v%d, s60, v18" % vA)
    for b_ in range(1, 4):
        k.e("v_add_u32 v%d, %d, v%d" % (vA + b_, b_ * SB, vA))
    k.e("s_bfe_u32 s62, s8, 0x20004")
    k.e("s_movk_i32 s63, 16384")
    b_rd_addr3(k, vB, 62, 63)
    for b_ in range(1, 4):
        for q in range(4):
            k.e("v_add_u32 v%d, %d, v%d" % (vB + 4 * b_ + q, b_ * SB, vB + q))

    def a_rd(buf, i, kk):
        return vA + buf, i * 2048 + kk * 1024

    def b_rd(buf, nj, j, kk):
        return vB + 4 * buf + (nj & 3), kk * 12288 + j * 3072 + (nj >> 2) * 128
    gemm_core(k, 18, NBUF, 2, acc, afr, bring, 6, a_rd, b_rd, lambda st: [], True, sub=2)
    stamp(k, 1)
    k.c("---- epilogue: cross-workgroup reduction")
    k.e("v_lshlrev_b32 v18, 4, v0")
    k.e("s_lshl_b32 s60, s10, 2")
    k.e("s_add_u32 s60, s60, s9")
    k.e("s_lshl_b32 s60, s60, 2")
    k.e("s_add_u32 s60, s60, s4")
    k.e("s_mul_i32 s60, s60, 18432")
    k.e("v_add_u32 v21, s60, v18")
    k.e("s_lshl_b32 s60, s10, 2")
    k.e("s_add_u32 s61, s60, s4")
    k.e("s_lshl_b32 s61, s61, 7")
    k.e("s_lshl_b32 s62, s9, 2")
    k.e("s_add_u32 s61, s61, s62")
    k.e("v_mov_b32 v23, s61")
    k.e("s_add_u32 s60, s60, s9")
    k.e("s_lshl_b32 s60, s60, 7")
    k.e("v_mov_b32 v26, s60")
    k.e("v_mov_b32 v24, 1")
    k.e("s_nop 7")
    k.e("s_barrier")
    lab_own = k.newlab("own")
    lab_j = k.newlab("j")
    k.e("s_cmp_eq_u32 s4, s9")
    k.e("s_cbranch_scc1 %s" % lab_own)
    for t in range(18):
        sreg = "0"
        off = t * 1024
        if off >= 4096:
            k.e("s_movk_i32 s61, %d" % (off & ~4095))
            sreg = "s61"
        k.e("buffer_store_dwordx4 %s, v21, %s, %s offen offset:%d sc1" % (vr(ACC + 4 * t, 4), sr(SP, 4), sreg, off & 4095))
    k.e("s_barrier")
    k.e("s_branch %s" % lab_j)
    k.label(lab_own)
    for t in range(18):
        k.e("ds_write_b128 v18, %s offset:%d" % (vr(ACC + 4 * t, 4), t * 1024))
    k.e("s_waitcnt lgkmcnt(0)")
    k.e("s_barrier")
    k.e("s_branch L_%s_end" % k.name)
    k.label(lab_j)
    k.e("s_sub_u32 s62, s4, s9")
    k.e("s_sub_u32 s62, s62, 1")
    k.e("s_and_b32 s62, s62, 3")
    k.e("s_mul_i32 s63, s62, 6144")
    k.e("v_add_u32 v22, s63, v18")
    OWN = 48
    for t in range(6):
        k.lds("ds_read_b128 %s, v22 offset:%d" % (vr(OWN + 4 * t, 4), t * 1024), "own")
    k.e("s_lshl_b32 s60, s9, 5")
    k.e("s_add_u32 s60, s60, s7")
    k.e("v_add_u32 v19, s60, v16")
    k.e("v_mul_u32_u24 v19, 1152, v19")
    k.e("v_lshlrev_b32 v20, 3, v17")
    k.e("s_lshl_b32 s60, s8, 1")
    k.e("v_add3_u32 v19, v19, v20, s60")
    fl_lane(k, 44, 45)
    k.e("s_lshr_b32 s60, s7, 4")
    k.e("s_lshl_b32 s61, s9, 1")
    k.e("s_add_u32 s60, s60, s61")
    k.e("s_mul_i32 s60, s60, 18432")
    k.e("s_lshl_b32 s61, s8, 5")
    k.e("s_add_u32 s60, s60, s61")
    k.e("v_add_u32 v44, s60, v44")
    k.e("s_waitcnt vmcnt(0)")
    k.e("s_mov_b64 exec, 1")
    k.e("buffer_store_dword v24, v23, %s, 0 offen sc1" % sr(SD, 4))
    k.e("s_mov_b64 exec, -1")
    k.e("s_mul_i32 s62, s62, 6")
    HR = 96
    for t in range(6):
        k.e("s_add_u32 s60, s62, %d" % t)
        k.e("s_cmp_ge_u32 s60, 9")
        k.e("s_cselect_b32 s61, %d, 0" % (16 * 1152 - 9 * 32))
        k.e("s_cselect_b32 s69, %d, 0" % (18432 - 9 * 512))
        k.e("s_lshl_b32 s68, s60, 9")
        k.e("s_add_u32 s68, s68, s69")
        k.e("s_lshl_b32 s60, s60, 5")
        k.e("s_add_u32 s%d, s60, s61" % (84 + t))
        k.e("buffer_load_dwordx2 %s, v44, %s, s68 offen" % (vr(HR + 2 * t, 2), sr(SH, 4)))
    stamp(k, 2)
    lab_poll = k.newlab("poll")
    lab_go = k.newlab("go")
    k.label(lab_poll)
    k.e("buffer_load_dwordx4 v[28:31], v26, %s, 0 offen sc1" % sr(SD, 4))
    k.e("s_waitcnt vmcnt(0)")
    k.e("v_add_u32 v28, v28, v29")
    k.e("v_add3_u32 v28, v28, v30, v31")
    k.e("s_nop 0")
    k.e("v_readfirstlane_b32 s61, v28")
    k.e("s_cmp_ge_u32 s61, 3")
    k.e("s_cbranch_scc1 %s" % lab_go)
    k.e("s_sleep 1")
    k.e("s_branch %s" % lab_poll)
    k.label(lab_go)
    if STAMP:
        k.e("s_memtime s[82:83]")
        k.e("s_waitcnt lgkmcnt(0)")
        k.lq = []
    k.e("s_lshl_b32 s60, s10, 4")
    k.e("s_add_u32 s60, s60, s9")
    k.e("s_mul_i32 s60, s60, 18432")
    k.e("s_add_u32 s60, s60, s63")
    k.e("v_add_u32 v21, s60, v18")
    k.vq = []
    for o in range(1, 4):
        k.e("s_add_u32 s61, s9, %d" % o)
        k.e("s_and_b32 s61, s61, 3")
        k.e("s_mul_i32 s61, s61, %d" % (4 * 18432))
        k.e("s_add_u32 s63, s61, 4096")
        for t in range(6):
            k.vm("buffer_load_dwordx4 %s, v21, %s, s%d offen offset:%d sc1" % (vr(ACC + 24 * (o - 1) + 4 * t, 4), sr(SP, 4), 61 if t < 4 else 63, (t & 3) * 1024), ("p", o, t))
    k.wait_lds("own")
    for t in range(6):
        a = OWN + 4 * t
        for d in range(2):
            k.e("v_lshlrev_b32 v42, 16, v%d" % (HR + 2 * t + d))
            k.e("v_and_b32 v43, 0xffff0000, v%d" % (HR + 2 * t + d))
            k.e("v_add_f32 v%d, v%d, v42" % (a + 2 * d, a + 2 * d))
            k.e("v_add_f32 v%d, v%d, v43" % (a + 2 * d + 1, a + 2 * d + 1))
    for o in range(1, 4):
        for t in range(6):
            a = OWN + 4 * t
            k.wait_vm(("p", o, t))
            for r in range(4):
                k.e("v_add_f32 v%d, v%d, v%d" % (a + r, a + r, ACC + 24 * (o - 1) + 4 * t + r))
            if o == 3:
                k.e("v_cvt_pk_bf16_f32 v%d, v%d, v%d" % (HR + 2 * t, a, a + 1))
                k.e("v_cvt_pk_bf16_f32 v%d, v%d, v%d" % (HR + 1 + 2 * t, a + 2, a + 3))
                k.vm("buffer_store_dwordx2 %s, v19, %s, s%d offen" % (vr(HR + 2 * t, 2), sr(SO, 4), 84 + t))
    stamp(k, 3)
    stamp_flush(k, 7)
    footer(k)
    return k, 256


def gen_k5():
    k = K("red")
    nwg = S * D // 8 // 256
    k.e("s_cmp_ge_u32 s2, %d" % nwg)
    k.e("s_cbranch_scc1 L_%s_end" % k.name)
    k.e("s_load_dwordx16 s[16:31], s[0:1], 0")
    k.e("s_load_dwordx4 s[32:35], s[0:1], 64")
    k.e("s_lshl_b32 s3, s2, 8")
    k.e("v_add_u32 v1, s3, v0")
    k.e("v_lshlrev_b32 v2, 4, v1")
    k.e("v_lshlrev_b32 v3, 5, v1")
    k.e("s_waitcnt lgkmcnt(0)")
    srd(k, 36, P_WS, H_OFF, S * D * 2)
    srd(k, 40, P_WS, PART_OFF, 4 * S * D * 4)
    srd(k, 44, P_OUT, 0, S * D * 2)
    k.e("buffer_load_dwordx4 v[4:7], v2, s[36:39], 0 offen")
    for p in range(4):
        k.e("s_mov_b32 s48, 0x%x" % (p * S * D * 4))
        k.e("buffer_load_dwordx4 %s, v3, s[40:43], s48 offen" % vr(8 + p * 8, 4))
        k.e("buffer_load_dwordx4 %s, v3, s[40:43], s48 offen offset:16" % vr(12 + p * 8, 4))
    k.e("s_waitcnt vmcnt(0)")
    for r in range(8):
        k.e("v_add_f32 v%d, v%d, v%d" % (8 + r, 8 + r, 16 + r))
        k.e("v_add_f32 v%d, v%d, v%d" % (24 + r, 24 + r, 32 + r))
    for r in range(8):
        k.e("v_add_f32 v%d, v%d, v%d" % (8 + r, 8 + r, 24 + r))
    for d in range(4):
        k.e("v_lshlrev_b32 v40, 16, v%d" % (4 + d))
        k.e("v_and_b32 v41, 0xffff0000, v%d" % (4 + d))
        k.e("v_add_f32 v%d, v%d, v40" % (8 + 2 * d, 8 + 2 * d))
        k.e("v_add_f32 v%d, v%d, v41" % (9 + 2 * d, 9 + 2 * d))
    for d in range(4):
        k.e("v_cvt_pk_bf16_f32 v%d, v%d, v%d" % (4 + d, 8 + 2 * d, 9 + 2 * d))
    k.e("buffer_store_dwordx4 v[4:7], v2, s[44:47], 0 offen")
    footer(k)
    return k, nwg


def gen_k2():
    k = K("wo")
    SB = 4096 + 24576
    NBUF = 5
    header(k, 256)
    stamp(k, 0)
    SA, SBd, SX, SH, SST, SCP, SCS = 36, 40, 44, 48, 52, 64, 96
    sKA, sKB, sMA, sMB = 56, 57, 58, 59
    k.e("s_and_b32 s9, s2, 3")
    k.e("s_lshr_b32 s60, s2, 2")
    k.e("s_lshl_b32 s7, s60, 5")
    k.e("s_mul_i32 s8, s9, 144")
    k.e("s_lshr_b32 s5, s4, 1")
    k.e("s_and_b32 s6, s4, 1")
    srd(k, SA, P_WS, O_OFF, S * D * 2)
    srd(k, SBd, P_WO, 0, D * D * 2)
    srd(k, SX, P_X, 0, S * D * 2)
    srd(k, SH, P_WS, H_OFF, S * D * 2)
    srd(k, SST, P_WS, ST_OFF, S * 32)
    srd(k, SCP, P_WS, CP_OFF, 32 * 2 * F * 4)
    srd(k, SCS, P_WS, CS_OFF, 2 * F * 4)
    srd(k, 84, P_WS, FLG_OFF, 32768 + 1024)
    k.e("s_lshl_b32 s60, s2, 7")
    k.e("v_mov_b32 v1, s60")
    k.e("s_lshl_b32 s60, s2, 2")
    k.e("s_add_u32 s60, s60, 32768")
    k.e("v_mov_b32 v2, s60")
    for r in range(4):
        k.e("v_mov_b32 v%d, 0" % (20 + r))
    k.e("s_mov_b64 exec, 1")
    k.vm("buffer_store_dwordx4 v[20:23], v1, s[84:87], 0 offen")
    k.vm("buffer_store_dword v20, v2, s[84:87], 0 offen")
    k.e("s_mov_b64 exec, -1")
    k.e("s_nop 1")
    vOA, vOB = 2, 8
    vA, vB = 24, 28
    ACC = 112
    afr = [[48], [52]]
    bring = [56, 60, 64, 68, 72, 76]
    acc = lambda i, nj: ACC + nj * 4
    XR = 80
    CPR = 184
    k.e("v_and_b32 v16, 15, v0")
    k.e("v_lshrrev_b32 v17, 4, v0")
    k.e("s_mul_i32 s60, s2, 36")
    k.e("v_add_u32 v18, s60, v0")
    k.e("v_lshlrev_b32 v30, 2, v18")
    for p in range(32):
        k.e("s_mov_b32 s61, 0x%x" % (p * 2 * F * 4))
        k.vm("buffer_load_dword v%d, v30, %s, s61 offen" % (CPR + p, sr(SCP, 4)), "cp")
    k.e("s_lshl_b32 s60, s5, 4")
    k.e("s_add_u32 s60, s60, s7")
    k.e("v_add_u32 v31, s60, v16")
    k.e("s_movk_i32 s63, 1152")
    k.e("v_mul_lo_u32 v18, v31, s63")
    k.e("v_lshlrev_b32 v19, 3, v17")
    k.e("s_lshl_b32 s62, s8, 1")
    k.e("v_add3_u32 v32, v18, v19, s62")
    for nj in range(9):
        k.vm("buffer_load_dwordx2 %s, v32, %s, 0 offen offset:%d" % (vr(XR + 2 * nj, 2), sr(SX, 4), nj * 32), "x")
    k.e("s_lshr_b32 s60, s7, 4")
    k.e("s_add_u32 s60, s60, s5")
    k.e("s_mul_i32 s60, s60, 18432")
    k.e("s_lshl_b32 s61, s6, 10")
    k.e("s_add_u32 s61, s60, s61")
    k.e("v_lshlrev_b32 v19, 4, v0")
    k.e("v_add_u32 v%d, s61, v19" % vOA)
    fl_lane(k, 37, 18)
    k.e("s_lshl_b32 s61, s8, 5")
    k.e("s_add_u32 s60, s60, s61")
    k.e("v_add_u32 v37, s60, v37")
    k.e("s_mul_i32 s88, s4, 48")
    k.e("s_lshl_b32 s62, s8, 1")
    k.e("s_and_b32 s62, s62, 0xffffff80")
    k.e("s_movk_i32 s63, 1152")
    for i in range(6):
        b_dma_addr(k, vOB + i, 88, 8 * i, 3, 63, 62, reg_row=32)
    k.e("s_mov_b32 s%d, 0" % sKA)
    k.e("s_mov_b32 s%d, 0" % sKB)
    k.e("s_lshl_b32 s%d, s4, 10" % sMA)
    k.e("s_mul_i32 s%d, s4, 6144" % sMB)
    k.e("s_add_u32 s%d, s%d, 4096" % (sMB, sMB))

    def dma(st):
        b = (st % NBUF) * SB
        tag = ("dma", st)
        g = [[("s_add_u32 m0, s%d, %d" % (sMA, b), None), ("s_nop 0", None),
              ("buffer_load_dwordx4 v%d, %s, s%d offen lds" % (vOA, sr(SA, 4), sKA), tag)]]
        for i in range(6):
            x = [("s_add_u32 m0, s%d, %d" % (sMB, b + i * 1024), None), ("s_nop 0", None)]
            x.append(("buffer_load_dwordx4 v%d, %s, s%d offen lds" % (vOB + i, sr(SBd, 4), sKB), tag))
            if i == 5:
                x.append(("s_add_u32 s%d, s%d, 2048" % (sKA, sKA), None))
                x.append(("s_add_u32 s%d, s%d, %d" % (sKB, sKB, 64 * 1152), None))
            g.append(x)
        return g
    for st in range(NBUF - 1):
        issue_groups(k, dma(st))
    k.e("v_lshlrev_b32 v18, 4, v0")
    k.e("v_add_u32 v%d, s%d, v18" % (vA, sMA))
    for q in range(1, 3):
        k.e("v_add_u32 v%d, %d, v%d" % (vA + q, 2 * SB * q, vA))
    vB = 100
    k.e("s_bfe_u32 s62, s8, 0x20004")
    k.e("s_mul_i32 s63, s6, 12288")
    k.e("s_add_u32 s63, s63, 4096")
    b_rd_addr3(k, vB, 62, 63)
    for b_ in range(1, 3):
        for q in range(4):
            k.e("v_add_u32 v%d, %d, v%d" % (vB + 4 * b_ + q, 2 * b_ * SB, vB + q))

    def a_rd(buf, i):
        return vA + (buf >> 1), (buf & 1) * SB

    def b_rd(buf, nj, j):
        return vB + 4 * (buf >> 1) + (nj & 3), (buf & 1) * SB + j * 3072 + (nj >> 2) * 128
    stamp(k, 1)
    gemm_core(k, 9, NBUF, 1, acc, afr, bring, 4, a_rd, b_rd, dma, True)
    stamp(k, 2)
    k.c("---- epilogue")
    k.e("s_nop 7")
    k.e("s_nop 7")
    k.e("s_barrier")
    k.wait_vm("x")
    for w_ in (16, 8, 4, 2, 1):
        for p in range(w_):
            k.e("v_add_f32 v%d, v%d, v%d" % (CPR + p, CPR + p, CPR + p + w_))
    k.e("s_mov_b32 exec_lo, -1")
    k.e("s_mov_b32 exec_hi, 0xf")
    k.vm("buffer_store_dword v%d, v30, %s, 0 offen" % (CPR, sr(SCS, 4)))
    k.e("s_mov_b64 exec, -1")
    k.e("s_mul_i32 s60, s5, 9216")
    k.e("v_lshlrev_b32 v18, 4, v0")
    k.e("v_add_u32 v19, s60, v18")
    lab_recv = k.newlab("recv")
    k.e("s_cmp_eq_u32 s6, 0")
    k.e("s_cbranch_scc1 %s" % lab_recv)
    for nj in range(9):
        k.lds("ds_write_b128 v19, %s offset:%d" % (vr(acc(0, nj), 4), nj * 1024))
    k.wait_lds_all()
    k.e("s_barrier")
    k.e("s_branch L_%s_end" % k.name)
    k.label(lab_recv)
    k.e("s_barrier")
    R = 48
    RX = 148
    for nj in range(9):
        k.lds("ds_read_b128 %s, v19 offset:%d" % (vr(RX + nj * 4, 4), nj * 1024), ("x", nj))
    k.e("v_mov_b32 v40, 0")
    k.e("v_mov_b32 v41, 0")
    for nj in range(9):
        k.wait_lds(("x", nj))
        a = acc(0, nj)
        for r in range(4):
            k.e("v_add_f32 v%d, v%d, v%d" % (a + r, a + r, RX + nj * 4 + r))
        for d in range(2):
            k.e("v_lshlrev_b32 v42, 16, v%d" % (XR + 2 * nj + d))
            k.e("v_and_b32 v43, 0xffff0000, v%d" % (XR + 2 * nj + d))
            k.e("v_add_f32 v%d, v%d, v42" % (a + 2 * d, a + 2 * d))
            k.e("v_add_f32 v%d, v%d, v43" % (a + 2 * d + 1, a + 2 * d + 1))
        k.e("v_cvt_pk_bf16_f32 v%d, v%d, v%d" % (XR + 2 * nj, a, a + 1))
        k.e("v_cvt_pk_bf16_f32 v%d, v%d, v%d" % (XR + 2 * nj + 1, a + 2, a + 3))
        if nj == 8:
            k.e("s_movk_i32 s60, 4096")
        k.vm("buffer_store_dwordx2 %s, v37, %s, %s offen offset:%d" % (vr(XR + 2 * nj, 2), sr(SH, 4), "s60" if nj == 8 else "0", (nj * 512) & 4095))
        for d in range(2):
            k.e("v_lshlrev_b32 v42, 16, v%d" % (XR + 2 * nj + d))
            k.e("v_and_b32 v43, 0xffff0000, v%d" % (XR + 2 * nj + d))
            k.e("v_add_f32 v40, v40, v42")
            k.e("v_fmac_f32 v41, v42, v42")
            k.e("v_add_f32 v40, v40, v43")
            k.e("v_fmac_f32 v41, v43, v43")
    k.e("v_xor_b32 v44, 16, v0")
    k.e("v_lshlrev_b32 v44, 2, v44")
    k.e("v_xor_b32 v45, 32, v0")
    k.e("v_lshlrev_b32 v45, 2, v45")
    for a in (44, 45):
        k.e("ds_bpermute_b32 v42, v%d, v40" % a)
        k.e("ds_bpermute_b32 v43, v%d, v41" % a)
        k.e("s_waitcnt lgkmcnt(0)")
        k.e("v_add_f32 v40, v40, v42")
        k.e("v_add_f32 v41, v41, v43")
    k.e("v_lshlrev_b32 v42, 5, v31")
    k.e("s_lshl_b32 s60, s9, 3")
    k.e("v_add_u32 v42, s60, v42")
    k.e("s_mov_b64 exec, 0xffff")
    k.e("buffer_store_dwordx2 v[40:41], v42, %s, 0 offen" % sr(SST, 4))
    k.e("s_mov_b64 exec, -1")
    stamp(k, 3)
    stamp_flush(k, 6)
    footer(k)
    return k, 256


def gen_k1():
    k = K("qkv")
    WS_, NW = 24576, 5
    XS_, NX = 10240, 3
    XB = WS_ * NW
    QP = 976
    STO = 80 * QP
    header(k, 256)
    stamp(k, 0)
    SX, SW, SO, SG, SCP = 36, 40, 44, 48, 52
    sKW, sKX, sMW, sMX = 56, 57, 58, 59
    k.e("s_and_b32 s9, s2, 7")
    k.e("s_lshr_b32 s10, s2, 3")
    srd(k, SX, P_X, 0, S * D * 2)
    srd(k, SW, P_WQKV, 0, D * 3 * D * 2)
    srd(k, SO, P_WS, O_OFF, S * D * 2)
    srd(k, SCP, P_WS, CP_OFF, 32 * 2 * F * 4)
    if "notouch1" not in EXP:
        touch(k, 96, P_WQKV, D * 3 * D * 2, 2048, 8, 18, 1)
        touch(k, 96, P_X, S * D * 2, 2048, 8, 18, 1)
    k.e("v_and_b32 v16, 15, v0")
    k.e("v_lshrrev_b32 v17, 4, v0")
    vO = 2
    k.e("s_mul_i32 s64, s4, 24")
    k.e("s_mul_i32 s65, s9, 144")
    k.e("s_and_b32 s62, s65, 0xffffff80")
    k.e("s_movk_i32 s63, 3456")
    for t in range(3):
        b_dma_addr(k, vO + t, 64, 8 * t, 2, 63, 62, reg_col=1152)
    k.e("s_lshl_b32 s60, s10, 6")
    k.e("s_lshl_b32 s61, s4, 4")
    k.e("s_add_u32 s60, s60, s61")
    k.e("s_sub_u32 s60, s60, 16")
    k.e("v_add_u32 v18, s60, v16")
    k.e("s_movk_i32 s63, 1152")
    k.e("v_mul_lo_u32 v18, v18, s63")
    k.e("v_lshlrev_b32 v19, 4, v17")
    k.e("v_add_u32 v%d, v18, v19" % (vO + 3))
    k.e("v_add_u32 v%d, 64, v%d" % (vO + 4, vO + 3))
    k.e("s_mov_b32 s%d, 0" % sKW)
    k.e("s_mov_b32 s%d, 0" % sKX)
    k.e("s_mul_i32 s%d, s4, 3072" % sMW)
    k.e("s_lshl_b32 s%d, s4, 11" % sMX)

    def dmaW(st):
        b = (st % NW) * WS_
        g = []
        for t in range(3):
            x = [("s_add_u32 m0, s%d, %d" % (sMW, b + t * 1024), None), ("s_nop 0", None),
                 ("buffer_load_dwordx4 v%d, %s, s%d offen lds" % (vO + t, sr(SW, 4), sKW), ("dma", st))]
            if t == 2:
                x.append(("s_add_u32 s%d, s%d, %d" % (sKW, sKW, 32 * 3456), None))
            g.append(x)
        return g

    def dmaX(xs):
        b = XB + (xs % NX) * XS_
        g = []
        for t in range(2):
            x = [("s_add_u32 m0, s%d, %d" % (sMX, b + t * 1024), None), ("s_nop 0", None),
                 ("buffer_load_dwordx4 v%d, %s, s%d offen lds" % (vO + 3 + t, sr(SX, 4), sKX), ("dma", 2 * xs))]
            if t == 1:
                x.append(("s_add_u32 s%d, s%d, 128" % (sKX, sKX), None))
            g.append(x)
        return g
    CX = 144
    lab_cs3 = k.newlab("cs3")
    k.e("s_mul_i32 s13, s2, 3")
    k.e("s_add_u32 s13, s13, s4")
    k.e("s_sub_u32 s13, s13, 5")
    k.e("s_mul_i32 s14, s13, 3641")
    k.e("s_lshr_b32 s14, s14, 16")
    k.e("s_mul_i32 s15, s14, 18")
    k.e("s_sub_u32 s15, s13, s15")
    k.e("s_lshl_b32 s60, s4, 5")
    k.e("s_add_u32 s61, s60, 160")
    k.e("s_add_u32 s62, s60, 320")
    k.e("s_sub_u32 s60, s4, 5")
    k.e("s_lshl_b32 s60, s60, 6")
    k.e("s_add_u32 s63, s60, 32")
    k.e("s_min_u32 s63, s63, 128")
    k.e("s_cmp_lt_u32 s4, 5")
    k.e("s_cselect_b32 s11, s61, s60")
    k.e("s_cselect_b32 s12, s62, s63")
    k.e("s_cselect_b32 s66, 8192, 0")
    k.e("s_cselect_b32 s67, 16384, 0")
    k.e("s_cselect_b32 s68, 160, 0")
    k.e("s_cselect_b32 s69, 320, 0")
    vB0, vB1, vA, vS = 20, 25, 30, 33
    swap23_lane_rowpos(k, 8, 0, 18, 19)
    k.e("v_bfe_u32 v9, v8, 1, 2")
    k.e("v_and_b32 v10, 1, v8")
    k.e("v_lshlrev_b32 v8, 8, v8")
    k.e("v_and_b32 v11, 3, v0")
    k.e("v_lshlrev_b32 v11, 3, v11")
    k.e("s_and_b32 s65, s65, 127")
    for (vd, sreg, sreb, ssub) in ((vB0, 11, 66, 68), (vB1, 12, 67, 69)):
        k.e("s_sub_u32 s60, s%d, s%d" % (sreg, ssub))
        k.e("s_add_u32 s60, s60, s65")
        k.e("v_add_u32 v18, s60, v11")
        k.e("v_bfe_u32 v19, v18, 7, 1")
        k.e("v_xor_b32 v19, v19, v10")
        k.e("v_lshlrev_b32 v19, 7, v19")
        k.e("v_bfe_u32 v12, v18, 5, 2")
        k.e("v_xor_b32 v12, v12, v9")
        k.e("v_lshlrev_b32 v12, 5, v12")
        k.e("v_and_b32 v18, 31, v18")
        k.e("v_add3_u32 v18, v18, v19, v12")
        k.e("v_add3_u32 v%d, v18, v8, s%d" % (vd, sreb))
    k.e("v_lshlrev_b32 v%d, 4, v0" % vA)
    k.e("v_add_u32 v%d, %d, v%d" % (vA, XB, vA))
    k.e("v_add_u32 v%d, s%d, v%d" % (vS, sMX, vA))
    for b in range(1, NW):
        for v in (vB0, vB1):
            k.e("v_add_u32 v%d, %d, v%d" % (v + b, b * WS_, v))
    for b in range(1, NX):
        for v in (vA, vS):
            k.e("v_add_u32 v%d, %d, v%d" % (v + b, b * XS_, v))
    ONES = 36
    for r in range(4):
        k.e("v_mov_b32 v%d, 0x3f803f80" % (ONES + r))
    ACC = 40
    acc = lambda sl, mi: ACC + (sl * 6 + mi) * 4
    SACC = 88
    AF = [[96 + 4 * mi for mi in range(6)], [120 + 4 * mi for mi in range(6)]]
    BF = [[216, 220], [224, 228]]
    lab_q = k.newlab("qpath")
    lab_post = k.newlab("post")
    k.e("s_cmp_ge_u32 s4, 5")
    k.e("s_cbranch_scc1 %s" % lab_q)
    for path in range(2):
        if path == 1:
            k.e("s_branch %s" % lab_post)
            k.label(lab_q)
        k.lq, k.vq = [], []
        mis = [0, 1, 2, 3, 4] if path == 0 else [1, 2, 3, 4]
        if path == 0:
            issue_groups(k, dmaX(0) + dmaW(0) + dmaW(1) + dmaX(1) + dmaW(2) + dmaW(3))
            touch(k, 96, P_WO, D * D * 2, 2048, 8, 18, 1)
        else:
            issue_groups(k, dmaW(0) + dmaW(1) + dmaW(2) + dmaW(3))
            touch(k, 96, P_WO, D * D * 2, 2048, 8, 18, 1)
            lab_nocs = k.newlab("nocs")
            k.e("s_cmp_ge_u32 s13, 576")
            k.e("s_cbranch_scc1 %s" % lab_nocs)
            k.e("s_cmp_lt_u32 s15, 9")
            k.e("s_cselect_b32 s%d, s%d, s%d" % (SG, P_WG, P_WU))
            k.e("s_cselect_b32 s%d, s%d, s%d" % (SG + 1, P_WG + 1, P_WU + 1))
            k.e("s_cselect_b32 s63, 0, 9")
            k.e("s_mov_b32 s%d, 0x%x" % (SG + 2, D * F * 2))
            k.e("s_mov_b32 s%d, 0x00020000" % (SG + 3))
            k.e("s_sub_u32 s63, s15, s63")
            k.e("s_lshl_b32 s63, s63, 10")
            k.e("s_mul_i32 s60, s14, 18 * 9216")
            k.e("s_add_u32 s60, s63, s60")
            k.e("v_lshlrev_b32 v18, 4, v0")
            for i in range(18 if "nocs" not in EXP else 0):
                k.e("buffer_load_dwordx4 %s, v18, %s, s60 offen" % (vr(CX + 4 * i, 4), sr(SG, 4)))
                k.e("s_add_u32 s60, s60, 9216")
            k.label(lab_nocs)

        def rdl(s):
            xs, kk = divmod(s, 2)
            out = []
            for sl in range(2):
                for j in range(2):
                    out.append("ds_read_b64_tr_b16 %s, v%d offset:%d" % (vr(BF[s % 2][sl] + 2 * j, 2), (vB0, vB1)[sl] + s % NW, j * 2048))
            for mi in mis:
                out.append("ds_read_b128 %s, v%d offset:%d" % (vr(AF[s % 2][mi], 4), vA + xs % NX, (mi * 2 + kk) * 1024))
            if path == 0:
                out.append("ds_read_b128 %s, v%d offset:%d" % (vr(AF[s % 2][5], 4), vS + xs % NX, kk * 1024))
            return out
        if path == 0:
            stamp(k, 1)
        k.wait_vm(("dma", 0))
        k.e("s_barrier")
        for x in rdl(0):
            k.lds(x, ("f", 0))
        for s in range(18):
            k.c("---- step %d" % s)
            groups = []
            reads = []
            if s + 1 < 18:
                k.wait_vm(("dma", s + 1))
                k.e("s_barrier")
                if path == 0 and s % 2 == 0 and s // 2 + 2 < 9:
                    groups += dmaX(s // 2 + 2)
                if s + NW - 1 < 18:
                    groups += dmaW(s + NW - 1)
                reads = rdl(s + 1)
            k.wait_lds(("f", s))
            mf = []
            for sl in range(2):
                for mi in mis + [5]:
                    a = acc(sl, mi)
                    cc = "0" if s == 0 else vr(a, 4)
                    bop = vr(AF[s % 2][mi], 4) if mi < 5 else vr(ONES, 4)
                    mf.append("v_mfma_f32_16x16x32_bf16 %s, %s, %s, %s" % (vr(a, 4), vr(BF[s % 2][sl], 4), bop, cc))
            if path == 0:
                sf = vr(AF[s % 2][5], 4)
                mf.append("v_mfma_f32_16x16x32_bf16 %s, %s, %s, %s" % (vr(SACC, 4), vr(ONES, 4), sf, "0" if s == 0 else vr(SACC, 4)))
                mf.append("v_mfma_f32_16x16x32_bf16 %s, %s, %s, %s" % (vr(SACC + 4, 4), sf, sf, "0" if s == 0 else vr(SACC + 4, 4)))
            for n, m in enumerate(mf):
                k.e(m)
                if n < len(reads):
                    k.lds(reads[n], ("f", s + 1))
                g0 = len(mf) - len(groups)
                if n >= g0:
                    issue_groups(k, [groups[n - g0]])
    k.label(lab_post)
    k.lq, k.vq = [], []
    stamp(k, 2)
    k.e("s_nop 7")
    k.e("s_nop 7")
    k.e("s_barrier")
    k.e("v_and_b32 v18, 3, v0")
    k.e("v_cmp_eq_u32 vcc, 1, v18")
    k.e("v_mov_b32 v19, v%d" % (SACC + 4))
    k.e("s_nop 0")
    k.e("v_cndmask_b32 v19, v19, v%d, vcc" % (SACC + 5))
    k.e("v_cmp_eq_u32 vcc, 2, v18")
    k.e("s_nop 1")
    k.e("v_cndmask_b32 v19, v19, v%d, vcc" % (SACC + 6))
    k.e("v_cmp_eq_u32 vcc, 3, v18")
    k.e("s_nop 1")
    k.e("v_cndmask_b32 v19, v19, v%d, vcc" % (SACC + 7))
    k.e("s_mov_b32 s60, 0x%x" % f2u(1.0 / 576.0))
    k.e("s_mov_b32 s61, 0x%x" % f2u(1e-5))
    k.e("v_mul_f32 v8, s60, v%d" % SACC)
    k.e("v_mul_f32 v19, s60, v19")
    k.e("v_fma_f32 v19, -v8, v8, v19")
    k.e("v_max_f32 v19, 0, v19")
    k.e("v_add_f32 v19, s61, v19")
    k.e("v_rsq_f32 v9, v19")
    k.e("v_sub_f32 v8, 0, v8")
    k.e("v_lshrrev_b32 v18, 2, v16")
    k.e("v_cmp_eq_u32 vcc, v18, v17")
    k.e("s_lshl_b32 s60, s4, 7")
    k.e("v_lshlrev_b32 v18, 3, v16")
    k.e("v_add_u32 v18, s60, v18")
    k.e("v_add_u32 v18, %d, v18" % STO)
    k.e("s_and_saveexec_b64 s[60:61], vcc")
    k.e("ds_write_b64 v18, v[8:9]")
    k.e("s_mov_b64 exec, -1")
    k.e("s_waitcnt lgkmcnt(0)")
    k.e("s_barrier")
    k.e("v_lshlrev_b32 v18, 3, v16")
    k.e("v_add_u32 v18, %d, v18" % STO)
    for mi in range(5):
        k.lds("ds_read_b64 %s, v18 offset:%d" % (vr(96 + 2 * mi, 2), mi * 128), "st")
    for sl, sreg in ((0, 11), (1, 12)):
        k.e("s_lshl_b32 s60, s%d, 1" % sreg)
        k.e("v_mul_u32_u24 v18, %d, v16" % QP)
        k.e("v_lshlrev_b32 v19, 4, v17")
        k.e("v_add3_u32 v%d, v18, v19, s60" % (8 + sl))
    k.wait_lds("st")
    for sl in range(2):
        cw = acc(sl, 5)
        for mi in range(5):
            a = acc(sl, mi)
            for r in range(4):
                k.e("v_fma_f32 v%d, v%d, v%d, v%d" % (a + r, 96 + 2 * mi, cw + r, a + r))
            for r in range(4):
                k.e("v_mul_f32 v%d, v%d, v%d" % (a + r, 97 + 2 * mi, a + r))
            k.e("v_cvt_pk_bf16_f32 v18, v%d, v%d" % (a, a + 1))
            k.e("v_cvt_pk_bf16_f32 v19, v%d, v%d" % (a + 2, a + 3))
            k.e("v_lshlrev_b32 v%d, 16, v18" % a)
            k.e("v_and_b32 v%d, 0xffff0000, v18" % (a + 1))
            k.e("v_lshlrev_b32 v%d, 16, v19" % (a + 2))
            k.e("v_and_b32 v%d, 0xffff0000, v19" % (a + 3))
            k.lds("ds_write_b128 v%d, %s offset:%d" % (8 + sl, vr(a, 4), mi * 16 * QP))
    k.wait_lds_all()
    k.e("s_barrier")
    k.e("s_cmp_ge_u32 s4, 4")
    k.e("s_cbranch_scc1 %s" % lab_cs3)
    k.e("v_lshrrev_b32 v18, 2, v0")
    k.e("s_lshl_b32 s60, s4, 4")
    k.e("v_add_u32 v18, s60, v18")
    k.e("v_and_b32 v19, 3, v0")
    k.e("v_mul_u32_u24 v20, %d, v18" % QP)
    k.e("v_mul_u32_u24 v21, 72, v19")
    k.e("v_add_u32 v20, v20, v21")
    Q = 32
    KV = 52
    L = 108
    O = 116
    for d in range(9):
        k.lds("ds_read_b64 %s, v20 offset:%d" % (vr(Q + 2 * d, 2), 16 * QP + d * 8), "q")
    seq = [("k", j) for j in range(8)] + [("v", j) for j in range(8)]

    def rdkv(n):
        kind, j = seq[n]
        col = 320 if kind == "k" else 640
        for d in range(9):
            k.lds("ds_read_b64 %s, v20 offset:%d" % (vr(KV + (n % 3) * 18 + 2 * d, 2), (16 - 2 * j) * QP + col + d * 8), seq[n])
    rdkv(0)
    for j in range(8):
        rdkv(j + 1)
        k.wait_lds(("k", j))
        b = KV + (j % 3) * 18
        k.e("v_mul_f32 v%d, v%d, v%d" % (L + j, Q, b))
        k.e("v_mul_f32 v24, v%d, v%d" % (Q + 1, b + 1))
        for d in range(2, 18, 2):
            k.e("v_fmac_f32 v%d, v%d, v%d" % (L + j, Q + d, b + d))
            k.e("v_fmac_f32 v24, v%d, v%d" % (Q + d + 1, b + d + 1))
        k.e("v_add_f32 v%d, v%d, v24" % (L + j, L + j))
    rdkv(9)
    k.e("s_mov_b32 s60, 0x%x" % f2u(18 ** -0.5))
    k.e("s_lshl_b32 s61, s10, 6")
    k.e("v_add_u32 v22, s61, v18")
    k.e("v_mov_b32 v23, 0x%x" % f2u(-1e9))
    for j in range(8):
        k.e("v_mul_f32 v%d, s60, v%d" % (L + j, L + j))
    for j in range(1, 8):
        k.e("v_cmp_le_u32 vcc, %d, v22" % (2 * j))
        k.e("s_nop 1")
        k.e("v_cndmask_b32 v%d, v23, v%d, vcc" % (L + j, L + j))
    k.e("v_max3_f32 v24, v%d, v%d, v%d" % (L, L + 1, L + 2))
    k.e("v_max3_f32 v24, v24, v%d, v%d" % (L + 3, L + 4))
    k.e("v_max3_f32 v24, v24, v%d, v%d" % (L + 5, L + 6))
    k.e("v_max_f32 v24, v24, v%d" % (L + 7))
    k.e("s_mov_b32 s60, 0x%x" % f2u(1.4426950408889634))
    for j in range(8):
        k.e("v_sub_f32 v%d, v%d, v24" % (L + j, L + j))
    for j in range(8):
        k.e("v_mul_f32 v%d, s60, v%d" % (L + j, L + j))
    for j in range(8):
        k.e("v_exp_f32 v%d, v%d" % (L + j, L + j))
    k.e("s_nop 0")
    k.e("v_add_f32 v24, v%d, v%d" % (L, L + 1))
    for j in range(2, 8):
        k.e("v_add_f32 v24, v24, v%d" % (L + j))
    k.e("v_rcp_f32 v24, v24")
    k.e("s_nop 0")
    for j in range(8):
        k.e("v_mul_f32 v%d, v%d, v24" % (L + j, L + j))
    for j in range(8):
        if 10 + j < 16:
            rdkv(10 + j)
        k.wait_lds(("v", j))
        b = KV + ((8 + j) % 3) * 18
        for d in range(18):
            if j == 0:
                k.e("v_mul_f32 v%d, v%d, v%d" % (O + d, L, b + d))
            else:
                k.e("v_fmac_f32 v%d, v%d, v%d" % (O + d, L + j, b + d))
    for d in range(9):
        k.e("v_cvt_pk_bf16_f32 v%d, v%d, v%d" % (Q + d, O + 2 * d, O + 2 * d + 1))
    k.e("v_lshrrev_b32 v23, 4, v22")
    k.e("v_mul_u32_u24 v23, 18432, v23")
    k.e("v_and_b32 v24, 15, v22")
    k.e("v_lshlrev_b32 v24, 4, v24")
    k.e("v_add_u32 v23, v23, v24")
    k.e("v_mul_u32_u24 v21, 18, v19")
    k.e("s_mul_i32 s60, s9, 72")
    k.e("v_add_u32 v21, s60, v21")
    for d in range(9):
        k.e("v_add_u32 v24, %d, v21" % (2 * d))
        k.e("v_lshrrev_b32 v25, 3, v24")
        k.e("v_lshlrev_b32 v25, 8, v25")
        k.e("v_and_b32 v24, 7, v24")
        k.e("v_lshlrev_b32 v24, 1, v24")
        k.e("v_add3_u32 v%d, v23, v24, v25" % (KV + d))
        k.e("buffer_store_dword v%d, v%d, %s, 0 offen" % (Q + d, KV + d, sr(SO, 4)))
    stamp(k, 3)
    stamp_flush(k, 6)
    k.e("s_endpgm")
    k.label(lab_cs3)
    k.e("s_cmp_eq_u32 s4, 4")
    k.e("s_cbranch_scc1 L_%s_end" % k.name)
    k.e("s_cmp_ge_u32 s13, 576")
    k.e("s_cbranch_scc1 L_%s_end" % k.name)
    k.e("s_waitcnt vmcnt(0)")
    for r in range(8):
        k.e("v_mov_b32 v%d, 0" % (20 + r))
    for i in range(18):
        for d in range(4):
            x = CX + 4 * i + d
            k.e("v_lshlrev_b32 v28, 16, v%d" % x)
            k.e("v_and_b32 v29, 0xffff0000, v%d" % x)
            k.e("v_add_f32 v%d, v%d, v28" % (20 + 2 * d, 20 + 2 * d))
            k.e("v_add_f32 v%d, v%d, v29" % (21 + 2 * d, 21 + 2 * d))
    k.e("s_mul_i32 s63, s14, %d" % (2 * F * 4))
    k.e("s_lshl_b32 s60, s15, 11")
    k.e("s_add_u32 s63, s63, s60")
    k.e("v_lshlrev_b32 v18, 5, v0")
    k.e("v_add_u32 v18, s63, v18")
    k.e("buffer_store_dwordx4 v[20:23], v18, %s, 0 offen" % sr(SCP, 4))
    k.e("buffer_store_dwordx4 v[24:27], v18, %s, 0 offen offset:16" % sr(SCP, 4))
    footer(k)
    return k, 256


def main():
    ks = [
        (gen_k1, 512, 5 * 24576 + 3 * 10240, 232),
        (gen_k2, 256, 5 * 28672, 216),
        (gen_k3, 512, 4 * 40960, 256),
    ]
    hdr = open("sequential_preLN__sliding_local_dilated__geglu_ffn__prompt.s.ref").read().split("\n")
    out = []
    for line in hdr:
        if line.startswith("; Override") or line.startswith("; grid=") or line.startswith("; @launch"):
            continue
        if not line.startswith(";"):
            break
        out.append(line)
    body = []
    desc = []
    for fn, block, lds, nv in ks:
        k, nwg = fn()
        name = k.name + "_kernel"
        out.append("; @launch kernel=%s grid=(%d,1,1) block=(%d,1,1) lds=%d" % (name, nwg, block, lds))
        body += [".globl %s" % name, ".p2align 8", ".type %s,@function" % name, "%s:" % name] + k.L
        desc += [".p2align 6", ".amdhsa_kernel %s" % name,
                 "  .amdhsa_next_free_vgpr %d" % nv, "  .amdhsa_next_free_sgpr 102",
                 "  .amdhsa_accum_offset %d" % nv,
                 "  .amdhsa_group_segment_fixed_size 0", "  .amdhsa_kernarg_size 80",
                 "  .amdhsa_user_sgpr_count 2", "  .amdhsa_user_sgpr_kernarg_segment_ptr 1",
                 "  .amdhsa_system_sgpr_workgroup_id_x 1", ".end_amdhsa_kernel"]
    out += ['.amdgcn_target "amdgcn-amd-amdhsa--gfx950"', ".text"] + body + ['.section .rodata,"a"'] + desc
    path = sys.argv[1] if len(sys.argv) > 1 else "sequential_preLN__sliding_local_dilated__geglu_ffn__prompt.s"
    open(path, "w").write("\n".join(out) + "\n")


main()
```

```python
import sys, struct

S, D, F = 2048, 576, 4608
O_OFF = 0x0000000
H_OFF = 0x0400000
ST_OFF = 0x0800000
CP_OFF = 0x0A00000
CS_OFF = 0x0860000
FLG_OFF = 0x0880000
ACT_OFF = 0xD000000
PART_OFF = 0xE800000


def f2u(x):
    return struct.unpack("<I", struct.pack("<f", x))[0]


EXP = __import__("os").environ.get("EXP", "")


class K:
    def __init__(s, name):
        s.name = name
        s.L = []
        s.lq = []
        s.vq = []
        s.nlab = 0

    def e(s, t):
        if "nomfma" in EXP and t.startswith("v_mfma"):
            return
        if "noldsrd" in EXP and (t.startswith("ds_read_b128") or t.startswith("ds_read_b64_tr")):
            return
        if "nodma" in EXP and t.endswith(" lds"):
            return
        if "nox" in EXP and t.endswith(" lds") and "s[36:39]" in t and s.name == "qkv":
            return
        if "now" in EXP and t.endswith(" lds") and "s[40:43]" in t and s.name == "qkv":
            return
        s.L.append("    " + t)

    def c(s, t):
        s.L.append("    ; " + t)

    def label(s, n):
        s.L.append(n + ":")

    def newlab(s, base):
        s.nlab += 1
        return "L_%s_%s_%d" % (s.name, base, s.nlab)

    def lds(s, t, tag=None):
        s.e(t)
        s.lq.append(tag)

    def vm(s, t, tag=None):
        s.e(t)
        s.vq.append(tag)

    def _need(s, q, tag):
        idx = -1
        for i, x in enumerate(q):
            if x == tag:
                idx = i
        return idx

    def wait_lds(s, tag):
        idx = s._need(s.lq, tag)
        if idx < 0:
            return
        n = len(s.lq) - idx - 1
        n = min(n, 15)
        s.e("s_waitcnt lgkmcnt(%d)" % n)
        s.lq = s.lq[len(s.lq) - n:] if n else []

    def wait_vm(s, tag):
        idx = s._need(s.vq, tag)
        if idx < 0:
            return
        n = len(s.vq) - idx - 1
        n = min(n, 63)
        s.e("s_waitcnt vmcnt(%d)" % n)
        s.vq = s.vq[len(s.vq) - n:] if n else []

    def wait_all(s):
        s.e("s_waitcnt vmcnt(0) lgkmcnt(0)")
        s.lq = []
        s.vq = []

    def wait_lds_all(s):
        s.e("s_waitcnt lgkmcnt(0)")
        s.lq = []

    def wait_vm_all(s):
        s.e("s_waitcnt vmcnt(0)")
        s.vq = []


STAMP = int(__import__("os").environ.get("STAMP", "0"))


def stamp(k, idx):
    if STAMP:
        k.e("s_memtime s[%d:%d]" % (70 + 2 * idx, 71 + 2 * idx))
        if idx in (0, 3):
            k.e("s_memrealtime s[%d:%d]" % (78 + (2 if idx else 0), 79 + (2 if idx else 0)))
        k.e("s_waitcnt lgkmcnt(0)")
        k.lq = []


def stamp_flush(k, n):
    if STAMP:
        lab = k.newlab("nost")
        k.e("s_and_b32 s90, s2, 127")
        k.e("s_cmp_lg_u32 s90, 5")
        k.e("s_cbranch_scc1 %s" % lab)
        k.e("s_cmp_lg_u32 s4, 0")
        k.e("s_cbranch_scc1 %s" % lab)
        srd(k, 92, P_WS, 0x900000 + 512 * getattr(k, "stamp_slot", ["qkv", "wo", "ffn"].index(k.name)), 256)
        k.e("s_lshr_b32 s90, s2, 7")
        k.e("s_lshl_b32 s90, s90, 6")
        k.e("v_mov_b32 v1, s90")
        k.e("s_mov_b64 exec, 1")
        for i in range(n):
            k.e("v_mov_b32 v2, s%d" % (70 + 2 * i))
            k.e("buffer_store_dword v2, v1, s[92:95], 0 offen offset:%d" % (4 * i))
        k.label(lab)


def vr(b, n):
    return "v[%d:%d]" % (b, b + n - 1)


def sr(b, n):
    return "s[%d:%d]" % (b, b + n - 1)


P_X, P_WQKV, P_WO, P_BX, P_WG, P_WU, P_WD, P_OUT, P_DBG, P_WS = 16, 18, 20, 22, 24, 26, 28, 30, 32, 34


def header(k, nwg):
    k.e("s_cmp_ge_u32 s2, %d" % nwg)
    k.e("s_cbranch_scc1 L_%s_end" % k.name)
    k.e("s_load_dwordx16 s[16:31], s[0:1], 0")
    k.e("s_load_dwordx4 s[32:35], s[0:1], 64")
    k.e("v_lshrrev_b32 v1, 6, v0")
    k.e("v_and_b32 v0, 63, v0")
    k.e("s_nop 0")
    k.e("v_readfirstlane_b32 s4, v1")
    k.e("s_waitcnt lgkmcnt(0)")


def srd(k, d, ptr, off, nbytes):
    if off:
        k.e("s_add_u32 s%d, s%d, 0x%x" % (d, ptr, off))
        k.e("s_addc_u32 s%d, s%d, 0" % (d + 1, ptr + 1))
    else:
        k.e("s_mov_b32 s%d, s%d" % (d, ptr))
        k.e("s_mov_b32 s%d, s%d" % (d + 1, ptr + 1))
    k.e("s_mov_b32 s%d, 0x%x" % (d + 2, nbytes))
    k.e("s_mov_b32 s%d, 0x00020000" % (d + 3))


def footer(k):
    k.label("L_%s_end" % k.name)
    k.e("s_endpgm")


def swap23_lane_rowpos(k, vdst, vlane, vt, vt2):
    k.e("v_lshrrev_b32 v%d, 5, v%d" % (vt, vlane))
    k.e("v_lshlrev_b32 v%d, 4, v%d" % (vdst, vt))
    k.e("v_bfe_u32 v%d, v%d, 4, 1" % (vt, vlane))
    k.e("v_lshlrev_b32 v%d, 2, v%d" % (vt, vt))
    k.e("v_add_u32 v%d, v%d, v%d" % (vdst, vdst, vt))
    k.e("v_bfe_u32 v%d, v%d, 2, 2" % (vt2, vlane))
    k.e("v_add_u32 v%d, v%d, v%d" % (vdst, vdst, vt2))


def swap23(k, vdst, vp, vt, vt2):
    k.e("v_and_b32 v%d, 0x33, v%d" % (vdst, vp))
    k.e("v_bfe_u32 v%d, v%d, 2, 1" % (vt, vp))
    k.e("v_lshlrev_b32 v%d, 3, v%d" % (vt, vt))
    k.e("v_bfe_u32 v%d, v%d, 3, 1" % (vt2, vp))
    k.e("v_lshlrev_b32 v%d, 2, v%d" % (vt2, vt2))
    k.e("v_or3_b32 v%d, v%d, v%d, v%d" % (vdst, vdst, vt, vt2))


def gemm_core(k, nst, nbuf, MI, acc, afr, bring, PD, a_rd, b_rd, dma, zero_init, NJ=9, sub=1):
    RB = len(bring)
    nm = MI * NJ
    nsteps = nst * sub

    def rdB(t):
        sp, nj = divmod(t, NJ)
        if sp >= nsteps:
            return []
        st, kk = divmod(sp, sub)
        slot = bring[t % RB]
        out = []
        for j in range(2):
            v, off = b_rd(st % nbuf, nj, j, kk) if sub > 1 else b_rd(st % nbuf, nj, j)
            out.append(("ds_read_b64_tr_b16 %s, v%d offset:%d" % (vr(slot + 2 * j, 2), v, off), ("B", t)))
        return out

    def rdA(sp, i):
        if sp >= nsteps:
            return []
        st, kk = divmod(sp, sub)
        v, off = a_rd(st % nbuf, i, kk) if sub > 1 else a_rd(st % nbuf, i)
        return [("ds_read_b128 %s, v%d offset:%d" % (vr(afr[sp % 2][i], 4), v, off), ("A", sp))]

    k.wait_vm(("dma", 0))
    k.e("s_barrier")
    for i in range(MI):
        for (t, tag) in rdA(0, i):
            k.lds(t, tag)
    for t in range(PD):
        for (x, tag) in rdB(t):
            k.lds(x, tag)
    for s in range(nsteps):
        k.c("---- step %d" % s)
        groups = []
        st = s // sub
        if (s + 1) % sub == 0 and st + 1 < nst:
            k.wait_vm(("dma", st + 1))
            k.e("s_barrier")
            if st + nbuf - 1 < nst:
                groups = dma(st + nbuf - 1)
        ev = {}

        def add(idx, fn):
            ev.setdefault(min(idx, nm - 1), []).append(fn)
        for nj in range(NJ):
            t = s * NJ + nj
            add(nj * MI, (lambda tt: (lambda: [k.lds(x, tag) for (x, tag) in rdB(tt)]))(t + PD))
        for i in range(MI):
            add((2 + i) * MI + min(1, MI - 1), (lambda ii: (lambda: [k.lds(x, tag) for (x, tag) in rdA(s + 1, ii)]))(i))
        for gi, g in enumerate(groups):
            def mk(g):
                def f():
                    for (x, tag) in g:
                        if tag is None:
                            k.e(x)
                        else:
                            k.vm(x, tag)
                return f
            add(gi * MI + min(2, MI - 1), mk(g))
        for nj in range(NJ):
            t = s * NJ + nj
            if nj == 0:
                k.wait_lds(("A", s))
            k.wait_lds(("B", t))
            for i in range(MI):
                a = acc(i, nj)
                cc = "0" if (zero_init and s == 0) else vr(a, 4)
                k.e("v_mfma_f32_16x16x32_bf16 %s, %s, %s, %s" % (vr(a, 4), vr(bring[t % RB], 4), vr(afr[s % 2][i], 4), cc))
                for fn in ev.get(nj * MI + i, []):
                    fn()


def fl_lane(k, vdst, vt):
    k.e("v_lshrrev_b32 v%d, 1, v17" % vt)
    k.e("v_lshlrev_b32 v%d, 8, v%d" % (vdst, vt))
    k.e("v_lshlrev_b32 v%d, 4, v16" % vt)
    k.e("v_add_u32 v%d, v%d, v%d" % (vdst, vdst, vt))
    k.e("v_and_b32 v%d, 1, v17" % vt)
    k.e("v_lshlrev_b32 v%d, 3, v%d" % (vt, vt))
    k.e("v_add_u32 v%d, v%d, v%d" % (vdst, vdst, vt))


def b_dma_addr(k, vdst, sL0, iofs, NL, spitch, scol, reg_row=0, reg_col=0):
    k.e("v_lshrrev_b32 v18, 3, v0")
    k.e("v_add_u32 v18, s%d, v18" % sL0)
    if iofs:
        k.e("v_add_u32 v18, %d, v18" % iofs)
    if NL == 3:
        k.e("v_mul_u32_u24 v19, 21846, v18")
        k.e("v_lshrrev_b32 v19, 16, v19")
        k.e("v_mul_u32_u24 v20, 3, v19")
        k.e("v_sub_u32 v18, v18, v20")
    else:
        k.e("v_lshrrev_b32 v19, 1, v18")
        k.e("v_xor_b32 v18, v18, v19")
        k.e("v_and_b32 v18, 1, v18")
    k.e("v_lshlrev_b32 v18, 7, v18")
    k.e("v_bfe_u32 v20, v19, 1, 2")
    k.e("v_bfe_u32 v21, v0, 1, 2")
    k.e("v_xor_b32 v20, v20, v21")
    k.e("v_lshlrev_b32 v20, 5, v20")
    k.e("v_and_b32 v21, 1, v0")
    k.e("v_lshlrev_b32 v21, 4, v21")
    k.e("v_add3_u32 v18, v18, v20, v21")
    k.e("v_lshrrev_b32 v23, 5, v19")
    k.e("v_and_b32 v19, 31, v19")
    swap23(k, 20, 19, 21, 22)
    if reg_row:
        k.e("v_mul_u32_u24 v21, %d, v23" % reg_row)
        k.e("v_add_u32 v20, v20, v21")
    k.e("v_mul_lo_u32 v20, v20, s%d" % spitch)
    if reg_col:
        k.e("v_mul_u32_u24 v23, %d, v23" % reg_col)
        k.e("v_add_u32 v18, v18, v23")
    k.e("v_add3_u32 v%d, v20, v18, s%d" % (vdst, scol))


def b_rd_addr3(k, vq, sn0p, sbase):
    swap23_lane_rowpos(k, 18, 0, 19, 20)
    k.e("v_bfe_u32 v19, v18, 1, 2")
    k.e("v_mul_u32_u24 v18, 384, v18")
    k.e("v_and_b32 v20, 3, v0")
    k.e("v_lshlrev_b32 v20, 3, v20")
    k.e("v_add3_u32 v18, v18, v20, s%d" % sbase)
    for q in range(4):
        k.e("s_add_u32 s60, s%d, %d" % (sn0p, q))
        k.e("s_and_b32 s61, s60, 3")
        k.e("s_lshr_b32 s60, s60, 2")
        k.e("s_lshl_b32 s60, s60, 7")
        k.e("v_xor_b32 v20, s61, v19")
        k.e("v_lshlrev_b32 v20, 5, v20")
        k.e("v_add3_u32 v%d, v18, v20, s60" % (vq + q))


def touch(k, ssrd, ptr, nbytes, nwaves_total, wpw, vtmp, vdst):
    nlines = nbytes // 128
    per = (nlines + nwaves_total - 1) // nwaves_total
    assert per <= 64
    srd(k, ssrd, ptr, 0, nbytes)
    k.e("s_mul_i32 s60, s2, %d" % wpw)
    k.e("s_add_u32 s60, s60, s4")
    k.e("s_mul_i32 s60, s60, %d" % per)
    k.e("v_add_u32 v%d, s60, v0" % vtmp)
    k.e("v_lshlrev_b32 v%d, 7, v%d" % (vtmp, vtmp))
    if per < 64:
        m = (1 << per) - 1
        k.e("s_mov_b32 exec_lo, 0x%x" % (m & 0xffffffff))
        k.e("s_mov_b32 exec_hi, 0x%x" % (m >> 32))
    k.vm("buffer_load_dword v%d, v%d, %s, 0 offen" % (vdst, vtmp, sr(ssrd, 4)), "touch")
    k.e("s_mov_b64 exec, -1")


def issue_groups(k, groups):
    for g in groups:
        for (x, tag) in g:
            if tag is None:
                k.e(x)
            else:
                k.vm(x, tag)


def gen_k3():
    k = K("ffn")
    SB = 40960
    NBUF = 4
    header(k, 256)
    stamp(k, 0)
    SA, SBd, SST, SCS, SO = 36, 40, 44, 48, 52
    sKA, sKB, sMA, sMB = 56, 57, 58, 59
    k.e("s_and_b32 s60, s2, 7")
    k.e("s_lshr_b32 s61, s2, 3")
    k.e("s_and_b32 s62, s61, 3")
    k.e("s_lshl_b32 s60, s60, 2")
    k.e("s_add_u32 s9, s60, s62")
    k.e("s_lshr_b32 s61, s61, 2")
    k.e("s_lshl_b32 s7, s61, 8")
    k.e("s_mul_i32 s8, s9, 144")
    k.e("s_and_b32 s5, s4, 3")
    k.e("s_lshr_b32 s6, s4, 2")
    srd(k, SA, P_WS, H_OFF, S * D * 2)
    k.e("s_cmp_lt_u32 s4, 4")
    k.e("s_cselect_b32 s%d, s%d, s%d" % (SBd, P_WG, P_WU))
    k.e("s_cselect_b32 s%d, s%d, s%d" % (SBd + 1, P_WG + 1, P_WU + 1))
    k.e("s_mov_b32 s%d, 0x%x" % (SBd + 2, D * F * 2))
    k.e("s_mov_b32 s%d, 0x00020000" % (SBd + 3))
    srd(k, SST, P_WS, ST_OFF, S * 32)
    srd(k, SCS, P_WS, CS_OFF, 2 * F * 4)
    srd(k, SO, P_WS, ACT_OFF, S * F * 2)
    vOA0, vOA1, vOB = 2, 3, 4
    vA, vB = 8, 24
    vR, vM = 40, 44
    ACC = 96
    afr = [[48 + 4 * i for i in range(4)], [64 + 4 * i for i in range(4)]]
    bring = [80, 84, 88, 92]
    k.e("v_and_b32 v16, 15, v0")
    k.e("v_lshrrev_b32 v17, 4, v0")
    k.e("s_lshl_b32 s60, s5, 6")
    k.e("s_add_u32 s60, s60, s7")
    k.e("v_add_u32 v18, s60, v16")
    k.e("v_lshlrev_b32 v18, 5, v18")
    for i in range(4):
        for h in range(2):
            k.vm("buffer_load_dwordx4 %s, v18, %s, 0 offen offset:%d" % (vr(ACC + i * 8 + h * 4, 4), sr(SST, 4), i * 512 + h * 16), "st")
    k.e("s_mul_i32 s60, s6, 80")
    k.e("s_add_u32 s60, s60, s8")
    k.e("v_lshlrev_b32 v18, 2, v17")
    k.e("v_add_u32 v18, s60, v18")
    k.e("v_lshlrev_b32 v18, 2, v18")
    k.e("s_movk_i32 s61, 18432")
    CSR = 48
    for f in range(5):
        k.vm("buffer_load_dwordx4 %s, v18, %s, 0 offen offset:%d" % (vr(CSR + f * 8, 4), sr(SCS, 4), f * 64), "cs")
        k.vm("buffer_load_dwordx4 %s, v18, %s, s61 offen offset:%d" % (vr(CSR + f * 8 + 4, 4), sr(SCS, 4), f * 64), "cs")
    k.e("s_lshr_b32 s60, s7, 4")
    k.e("s_lshl_b32 s61, s4, 1")
    k.e("s_add_u32 s60, s60, s61")
    k.e("s_mul_i32 s60, s60, 18432")
    k.e("v_lshlrev_b32 v19, 4, v0")
    k.e("v_add_u32 v%d, s60, v19" % vOA0)
    k.e("v_add_u32 v%d, 18432, v%d" % (vOA1, vOA0))
    k.e("s_and_b32 s60, s4, 3")
    k.e("s_mul_i32 s68, s60, 24")
    k.e("s_lshl_b32 s62, s8, 1")
    k.e("s_and_b32 s62, s62, 0xffffff80")
    k.e("s_movk_i32 s63, 9216")
    for i in range(3):
        b_dma_addr(k, vOB + i, 68, 8 * i, 3, 63, 62)
    k.e("s_mov_b32 s%d, 0" % sKA)
    k.e("s_mov_b32 s%d, 0" % sKB)
    k.e("s_lshl_b32 s%d, s4, 11" % sMA)
    k.e("s_mul_i32 s%d, s4, 3072" % sMB)
    k.e("s_add_u32 s%d, s%d, 16384" % (sMB, sMB))

    def dma(st):
        b = (st % NBUF) * SB
        tag = ("dma", st)
        g = []
        for i in range(2):
            g.append([("s_add_u32 m0, s%d, %d" % (sMA, b + i * 1024), None), ("s_nop 0", None),
                      ("buffer_load_dwordx4 v%d, %s, s%d offen lds" % (vOA0 + i, sr(SA, 4), sKA), tag)])
        for i in range(3):
            x = [("s_add_u32 m0, s%d, %d" % (sMB, b + i * 1024), None), ("s_nop 0", None)]
            x.append(("buffer_load_dwordx4 v%d, %s, s%d offen lds" % (vOB + i, sr(SBd, 4), sKB), tag))
            if i == 2:
                x.append(("s_add_u32 s%d, s%d, 1024" % (sKA, sKA), None))
                x.append(("s_add_u32 s%d, s%d, %d" % (sKB, sKB, 32 * 9216), None))
            g.append(x)
        return g
    for st in range(NBUF - 1):
        issue_groups(k, dma(st))
    touch(k, 64, P_WD, F * D * 2, 2048, 8, 18, 1)
    k.e("s_lshl_b32 s60, s5, 12")
    k.e("v_lshlrev_b32 v18, 4, v0")
    k.e("v_add_u32 v%d, s60, v18" % vA)
    for b_ in range(1, 4):
        k.e("v_add_u32 v%d, %d, v%d" % (vA + b_, b_ * SB, vA))
    k.e("s_bfe_u32 s62, s8, 0x20004")
    k.e("s_mul_i32 s63, s6, 5")
    k.e("s_add_u32 s62, s62, s63")
    k.e("s_movk_i32 s63, 16384")
    b_rd_addr3(k, vB, 62, 63)
    for b_ in range(1, 4):
        for q in range(4):
            k.e("v_add_u32 v%d, %d, v%d" % (vB + 4 * b_ + q, b_ * SB, vB + q))
    k.e("v_lshrrev_b32 v18, 1, v17")
    k.e("v_lshlrev_b32 v12, 8, v18")
    k.e("v_lshlrev_b32 v18, 4, v16")
    k.e("v_add_u32 v12, v12, v18")
    k.e("v_and_b32 v18, 1, v17")
    k.e("v_mul_u32_u24 v13, 147456, v18")
    k.e("v_add_u32 v13, v13, v12")
    k.e("v_lshlrev_b32 v18, 9, v18")
    k.e("v_add_u32 v12, v12, v18")
    k.e("s_lshr_b32 s60, s7, 4")
    k.e("s_lshl_b32 s61, s5, 2")
    k.e("s_add_u32 s60, s60, s61")
    k.e("s_mul_i32 s60, s60, 147456")
    k.e("s_mul_i32 s61, s9, 9")
    k.e("s_mul_i32 s62, s6, 5")
    k.e("s_add_u32 s61, s61, s62")
    k.e("s_lshl_b32 s61, s61, 9")
    k.e("s_add_u32 s60, s60, s61")
    k.e("v_add_u32 v12, s60, v12")
    k.e("v_add_u32 v13, s60, v13")
    k.wait_vm("cs")
    k.e("s_mov_b32 s60, 0x%x" % f2u(1.0 / 576.0))
    k.e("s_mov_b32 s61, 0x%x" % f2u(1e-5))
    for i in range(4):
        b = ACC + i * 8
        k.e("v_add_f32 v18, v%d, v%d" % (b, b + 2))
        k.e("v_add_f32 v19, v%d, v%d" % (b + 4, b + 6))
        k.e("v_add_f32 v20, v%d, v%d" % (b + 1, b + 3))
        k.e("v_add_f32 v21, v%d, v%d" % (b + 5, b + 7))
        k.e("v_add_f32 v18, v18, v19")
        k.e("v_add_f32 v20, v20, v21")
        k.e("v_mul_f32 v18, s60, v18")
        k.e("v_mul_f32 v20, s60, v20")
        k.e("v_fma_f32 v20, -v18, v18, v20")
        k.e("v_max_f32 v20, 0, v20")
        k.e("v_add_f32 v20, s61, v20")
        k.e("v_rsq_f32 v%d, v20" % (vR + i))
        k.e("v_sub_f32 v%d, 0, v18" % (vM + i))
    lab1 = k.newlab("wn1")
    lab_done = k.newlab("done")
    k.e("s_cmp_eq_u32 s6, 1")
    k.e("s_cbranch_scc1 %s" % lab1)
    st_l, st_v = list(k.lq), list(k.vq)
    c1 = -2.0 * 0.7978845608028654 * 1.4426950408889634
    for wn in range(2):
        NF = 5 if wn == 0 else 4
        NJ = 2 * NF
        if wn == 1:
            k.e("s_branch %s" % lab_done)
            k.label(lab1)
            k.lq, k.vq = list(st_l), list(st_v)
        acc = lambda i, c: ACC + (i * NJ + c) * 4
        for i in range(4):
            for c in range(NJ):
                for r in range(4):
                    k.e("v_mul_f32 v%d, v%d, v%d" % (acc(i, c) + r, vM + i, CSR + c * 4 + r))
        k.e("s_nop 1")

        def a_rd(buf, i):
            return vA + buf, i * 1024

        def b_rd(buf, c, j):
            f = c >> 1
            return vB + 4 * buf + (f & 3), (c & 1) * 12288 + j * 3072 + (f >> 2) * 128
        if wn == 0:
            stamp(k, 1)
        gemm_core(k, 18, NBUF, 4, acc, afr, bring, 2, a_rd, b_rd, dma, False, NJ=NJ)
        if wn == 0:
            stamp(k, 2)
        k.c("---- epilogue")
        k.e("v_mov_b32 v20, 1.0")
        k.e("v_mov_b32 v21, 1.0")
        k.e("s_mov_b32 s60, 0x%x" % f2u(c1))
        k.e("s_mov_b32 s61, 0x%x" % f2u(c1 * 0.044715))
        k.e("s_mov_b32 s62, 0")
        k.e("s_nop 7")
        for i in range(4):
            k.e("v_mul_f32 v22, s60, v%d" % (vR + i))
            k.e("v_mul_f32 v26, v%d, v%d" % (vR + i, vR + i))
            k.e("v_mul_f32 v24, s61, v%d" % (vR + i))
            k.e("v_mul_f32 v24, v24, v26")
            k.e("v_mov_b32 v23, v22")
            k.e("v_mov_b32 v25, v24")
            k.e("v_mov_b32 v27, v26")
            for f in range(NF):
                G, U = acc(i, 2 * f), acc(i, 2 * f + 1)
                T, P = 28, 32
                for h in range(2):
                    k.e("v_pk_mul_f32 %s, %s, %s" % (vr(T + 2 * h, 2), vr(G + 2 * h, 2), vr(G + 2 * h, 2)))
                for h in range(2):
                    k.e("v_pk_fma_f32 %s, %s, v[24:25], v[22:23]" % (vr(T + 2 * h, 2), vr(T + 2 * h, 2)))
                for h in range(2):
                    k.e("v_pk_mul_f32 %s, %s, %s" % (vr(T + 2 * h, 2), vr(T + 2 * h, 2), vr(G + 2 * h, 2)))
                for r in range(4):
                    k.e("v_exp_f32 v%d, v%d" % (T + r, T + r))
                for h in range(2):
                    k.e("v_pk_mul_f32 %s, %s, %s" % (vr(P + 2 * h, 2), vr(G + 2 * h, 2), vr(U + 2 * h, 2)))
                for h in range(2):
                    k.e("v_pk_add_f32 %s, %s, v[20:21]" % (vr(T + 2 * h, 2), vr(T + 2 * h, 2)))
                for r in range(4):
                    k.e("v_rcp_f32 v%d, v%d" % (T + r, T + r))
                for h in range(2):
                    k.e("v_pk_mul_f32 %s, %s, v[26:27]" % (vr(P + 2 * h, 2), vr(P + 2 * h, 2)))
                for h in range(2):
                    k.e("v_pk_mul_f32 %s, %s, %s" % (vr(P + 2 * h, 2), vr(P + 2 * h, 2), vr(T + 2 * h, 2)))
                if f < 4:
                    R = acc(i, 2 * (f & ~1)) + 2 * (f & 1)
                else:
                    R = acc(i & ~1, 8) + 2 * (i & 1)
                k.e("v_cvt_pk_bf16_f32 v%d, v%d, v%d" % (R, P, P + 1))
                k.e("v_cvt_pk_bf16_f32 v%d, v%d, v%d" % (R + 1, P + 2, P + 3))
                if (f < 4 and f & 1) or (f == 4 and i & 1):
                    B0 = R - 2
                    k.e("s_nop 1")
                    k.e("v_permlane16_swap_b32 v%d, v%d" % (B0, B0 + 2))
                    k.e("v_permlane16_swap_b32 v%d, v%d" % (B0 + 1, B0 + 3))
                    if f < 4:
                        k.vm("buffer_store_dwordx4 %s, v12, %s, s62 offen offset:%d sc1" % (vr(B0, 4), sr(SO, 4), (f - 1) * 512))
                    else:
                        k.e("s_sub_u32 s63, s62, 147456")
                        k.vm("buffer_store_dwordx4 %s, v13, %s, s63 offen offset:%d sc1" % (vr(B0, 4), sr(SO, 4), 4 * 512))
            k.e("s_add_u32 s62, s62, 147456")
    k.label(lab_done)
    srd(k, 64, P_WS, FLG_OFF + 32768, 1024)
    k.e("s_lshr_b32 s60, s7, 8")
    k.e("s_lshl_b32 s60, s60, 5")
    k.e("s_add_u32 s60, s60, s9")
    k.e("s_lshl_b32 s60, s60, 2")
    k.e("v_mov_b32 v1, s60")
    k.e("v_mov_b32 v2, 1")
    k.e("s_waitcnt vmcnt(0)")
    k.e("s_barrier")
    lab_nf = k.newlab("nf")
    k.e("s_cmp_lg_u32 s4, 0")
    k.e("s_cbranch_scc1 %s" % lab_nf)
    k.e("s_mov_b64 exec, 1")
    k.e("buffer_store_dword v2, v1, s[64:67], 0 offen sc1")
    k.e("s_mov_b64 exec, -1")
    k.label(lab_nf)
    k.lq, k.vq = [], []
    stamp(k, 3)
    stamp_flush(k, 6)
    k.e("s_mov_b64 exec, -1")
    return gen_k4(k)


def gen_k4(k):
    SB = 40960
    NBUF = 4
    k.stamp_slot = 3
    stamp(k, 0)
    SA, SBd, SP, SO, SH, SD = 36, 40, 44, 48, 52, 64
    sKA, sKB, sMA, sMB = 56, 57, 58, 59
    k.e("s_and_b32 s9, s2, 3")
    k.e("s_bfe_u32 s60, s2, 0x10002")
    k.e("s_lshr_b32 s61, s2, 3")
    k.e("s_lshr_b32 s62, s61, 2")
    k.e("s_lshl_b32 s60, s60, 3")
    k.e("s_add_u32 s60, s60, s62")
    k.e("s_lshl_b32 s7, s60, 7")
    k.e("s_and_b32 s61, s61, 3")
    k.e("s_mul_i32 s8, s61, 144")
    k.e("s_lshl_b32 s10, s60, 2")
    k.e("s_add_u32 s10, s10, s61")
    k.e("s_and_b32 s11, s4, 3")
    k.e("s_lshr_b32 s5, s11, 1")
    k.e("s_and_b32 s6, s11, 1")
    k.e("v_and_b32 v16, 15, v0")
    k.e("v_lshrrev_b32 v17, 4, v0")
    lab_comp = k.newlab("comp")
    k.e("s_cmp_lt_u32 s4, 4")
    k.e("s_cbranch_scc1 %s" % lab_comp)
    srd(k, SA, P_WS, ACT_OFF, S * F * 2)
    srd(k, SBd, P_WD, 0, F * D * 2)
    vOA, vOB = 2, 8
    k.e("s_lshr_b32 s60, s7, 4")
    k.e("s_lshl_b32 s61, s11, 1")
    k.e("s_add_u32 s60, s60, s61")
    k.e("s_mul_i32 s60, s60, 147456")
    k.e("s_mul_i32 s61, s9, 36864")
    k.e("s_add_u32 s60, s60, s61")
    k.e("v_lshlrev_b32 v19, 4, v0")
    k.e("v_add_u32 v%d, s60, v19" % vOA)
    k.e("v_add_u32 v%d, 1024, v%d" % (vOA + 1, vOA))
    k.e("v_add_u32 v%d, %d, v%d" % (vOA + 2, 147456, vOA))
    k.e("v_add_u32 v%d, %d, v%d" % (vOA + 3, 147456 + 1024, vOA))
    k.e("s_mul_i32 s64, s11, 48")
    k.e("s_lshl_b32 s62, s8, 1")
    k.e("s_and_b32 s62, s62, 0xffffff80")
    k.e("s_mul_i32 s61, s9, 1152 * 1152")
    k.e("s_add_u32 s62, s62, s61")
    k.e("s_movk_i32 s63, 1152")
    for i in range(6):
        b_dma_addr(k, vOB + i, 64, 8 * i, 3, 63, 62, reg_row=32)
    k.e("s_mov_b32 s%d, 0" % sKA)
    k.e("s_mov_b32 s%d, 0" % sKB)
    k.e("s_lshl_b32 s%d, s11, 12" % sMA)
    k.e("s_mul_i32 s%d, s11, 6144" % sMB)
    k.e("s_add_u32 s%d, s%d, 16384" % (sMB, sMB))

    def dmaA(st):
        b = (st % NBUF) * SB
        tag = ("dma", st)
        g = []
        for i in range(4):
            x = [("s_add_u32 m0, s%d, %d" % (sMA, b + i * 1024), None), ("s_nop 0", None),
                 ("buffer_load_dwordx4 v%d, %s, s%d offen sc1 lds" % (vOA + i, sr(SA, 4), sKA), tag)]
            if i == 3:
                x.append(("s_add_u32 s%d, s%d, 2048" % (sKA, sKA), None))
            g.append(x)
        return g

    def dmaB(st):
        b = (st % NBUF) * SB
        tag = ("dma", st)
        g = []
        for i in range(6):
            x = [("s_add_u32 m0, s%d, %d" % (sMB, b + i * 1024), None), ("s_nop 0", None)]
            x.append(("buffer_load_dwordx4 v%d, %s, s%d offen lds" % (vOB + i, sr(SBd, 4), sKB), tag))
            if i == 5:
                x.append(("s_add_u32 s%d, s%d, %d" % (sKB, sKB, 64 * 1152), None))
            g.append(x)
        return g

    def dma(st):
        return dmaA(st) + dmaB(st)
    for st in range(NBUF - 1):
        issue_groups(k, dmaB(st))
    srd(k, 84, P_WS, FLG_OFF + 32768, 1024)
    k.e("s_lshr_b32 s60, s7, 8")
    k.e("s_lshl_b32 s60, s60, 7")
    k.e("s_lshl_b32 s61, s9, 5")
    k.e("s_add_u32 s60, s60, s61")
    k.e("v_mov_b32 v20, s60")
    lab_p = k.newlab("pollA")
    lab_g = k.newlab("goA")
    k.label(lab_p)
    k.e("buffer_load_dwordx4 v[24:27], v20, s[84:87], 0 offen sc1")
    k.e("buffer_load_dwordx4 v[28:31], v20, s[84:87], 0 offen offset:16 sc1")
    k.e("s_waitcnt vmcnt(0)")
    k.e("v_add3_u32 v24, v24, v25, v26")
    k.e("v_add3_u32 v24, v24, v27, v28")
    k.e("v_add3_u32 v24, v24, v29, v30")
    k.e("v_add_u32 v24, v24, v31")
    k.e("s_nop 0")
    k.e("v_readfirstlane_b32 s61, v24")
    k.e("s_cmp_ge_u32 s61, 8")
    k.e("s_cbranch_scc1 %s" % lab_g)
    k.e("s_sleep 2")
    k.e("s_branch %s" % lab_p)
    k.label(lab_g)
    k.vq = []
    for st in range(NBUF - 1):
        issue_groups(k, dmaA(st))
    k.wait_vm(("dma", 0))
    k.e("s_barrier")
    for s_ in range(17):
        k.wait_vm(("dma", s_ + 1))
        k.e("s_barrier")
        if s_ + NBUF - 1 < 18:
            issue_groups(k, dma(s_ + NBUF - 1))
    k.e("s_endpgm")
    k.label(lab_comp)
    k.lq, k.vq = [], []
    srd(k, SP, P_WS, PART_OFF, 64 * 16 * 18432)
    srd(k, SO, P_OUT, 0, S * D * 2)
    srd(k, SH, P_WS, H_OFF, S * D * 2)
    srd(k, SD, P_WS, FLG_OFF, 256 * 128)
    vA, vB = 2, 24
    ACC = 112
    afr = [[48, 52], [56, 60]]
    bring = [64 + 4 * q for q in range(8)]
    acc = lambda i, nj: ACC + (i * 9 + nj) * 4
    k.e("s_lshl_b32 s60, s4, 12")
    k.e("v_lshlrev_b32 v18, 4, v0")
    k.e("v_add_u32 v%d, s60, v18" % vA)
    for b_ in range(1, 4):
        k.e("v_add_u32 v%d, %d, v%d" % (vA + b_, b_ * SB, vA))
    k.e("s_bfe_u32 s62, s8, 0x20004")
    k.e("s_movk_i32 s63, 16384")
    b_rd_addr3(k, vB, 62, 63)
    for b_ in range(1, 4):
        for q in range(4):
            k.e("v_add_u32 v%d, %d, v%d" % (vB + 4 * b_ + q, b_ * SB, vB + q))

    def a_rd(buf, i, kk):
        return vA + buf, i * 2048 + kk * 1024

    def b_rd(buf, nj, j, kk):
        return vB + 4 * buf + (nj & 3), kk * 12288 + j * 3072 + (nj >> 2) * 128
    gemm_core(k, 18, NBUF, 2, acc, afr, bring, 6, a_rd, b_rd, lambda st: [], True, sub=2)
    stamp(k, 1)
    k.c("---- epilogue: cross-workgroup reduction")
    k.e("v_lshlrev_b32 v18, 4, v0")
    k.e("s_lshl_b32 s60, s10, 2")
    k.e("s_add_u32 s60, s60, s9")
    k.e("s_lshl_b32 s60, s60, 2")
    k.e("s_add_u32 s60, s60, s4")
    k.e("s_mul_i32 s60, s60, 18432")
    k.e("v_add_u32 v21, s60, v18")
    k.e("s_lshl_b32 s60, s10, 2")
    k.e("s_add_u32 s61, s60, s4")
    k.e("s_lshl_b32 s61, s61, 7")
    k.e("s_lshl_b32 s62, s9, 2")
    k.e("s_add_u32 s61, s61, s62")
    k.e("v_mov_b32 v23, s61")
    k.e("s_add_u32 s60, s60, s9")
    k.e("s_lshl_b32 s60, s60, 7")
    k.e("v_mov_b32 v26, s60")
    k.e("v_mov_b32 v24, 1")
    k.e("s_nop 7")
    k.e("s_barrier")
    lab_own = k.newlab("own")
    lab_j = k.newlab("j")
    k.e("s_cmp_eq_u32 s4, s9")
    k.e("s_cbranch_scc1 %s" % lab_own)
    for t in range(18):
        sreg = "0"
        off = t * 1024
        if off >= 4096:
            k.e("s_movk_i32 s61, %d" % (off & ~4095))
            sreg = "s61"
        k.e("buffer_store_dwordx4 %s, v21, %s, %s offen offset:%d sc1" % (vr(ACC + 4 * t, 4), sr(SP, 4), sreg, off & 4095))
    k.e("s_barrier")
    k.e("s_branch %s" % lab_j)
    k.label(lab_own)
    for t in range(18):
        k.e("ds_write_b128 v18, %s offset:%d" % (vr(ACC + 4 * t, 4), t * 1024))
    k.e("s_waitcnt lgkmcnt(0)")
    k.e("s_barrier")
    k.e("s_branch L_%s_end" % k.name)
    k.label(lab_j)
    k.e("s_sub_u32 s62, s4, s9")
    k.e("s_sub_u32 s62, s62, 1")
    k.e("s_and_b32 s62, s62, 3")
    k.e("s_mul_i32 s63, s62, 6144")
    k.e("v_add_u32 v22, s63, v18")
    OWN = 48
    for t in range(6):
        k.lds("ds_read_b128 %s, v22 offset:%d" % (vr(OWN + 4 * t, 4), t * 1024), "own")
    k.e("s_lshl_b32 s60, s9, 5")
    k.e("s_add_u32 s60, s60, s7")
    k.e("v_add_u32 v19, s60, v16")
    k.e("v_mul_u32_u24 v19, 1152, v19")
    k.e("v_lshlrev_b32 v20, 3, v17")
    k.e("s_lshl_b32 s60, s8, 1")
    k.e("v_add3_u32 v19, v19, v20, s60")
    fl_lane(k, 44, 45)
    k.e("s_lshr_b32 s60, s7, 4")
    k.e("s_lshl_b32 s61, s9, 1")
    k.e("s_add_u32 s60, s60, s61")
    k.e("s_mul_i32 s60, s60, 18432")
    k.e("s_lshl_b32 s61, s8, 5")
    k.e("s_add_u32 s60, s60, s61")
    k.e("v_add_u32 v44, s60, v44")
    k.e("s_waitcnt vmcnt(0)")
    k.e("s_mov_b64 exec, 1")
    k.e("buffer_store_dword v24, v23, %s, 0 offen sc1" % sr(SD, 4))
    k.e("s_mov_b64 exec, -1")
    k.e("s_mul_i32 s62, s62, 6")
    HR = 96
    for t in range(6):
        k.e("s_add_u32 s60, s62, %d" % t)
        k.e("s_cmp_ge_u32 s60, 9")
        k.e("s_cselect_b32 s61, %d, 0" % (16 * 1152 - 9 * 32))
        k.e("s_cselect_b32 s69, %d, 0" % (18432 - 9 * 512))
        k.e("s_lshl_b32 s68, s60, 9")
        k.e("s_add_u32 s68, s68, s69")
        k.e("s_lshl_b32 s60, s60, 5")
        k.e("s_add_u32 s%d, s60, s61" % (84 + t))
        k.e("buffer_load_dwordx2 %s, v44, %s, s68 offen" % (vr(HR + 2 * t, 2), sr(SH, 4)))
    stamp(k, 2)
    lab_poll = k.newlab("poll")
    lab_go = k.newlab("go")
    k.label(lab_poll)
    k.e("buffer_load_dwordx4 v[28:31], v26, %s, 0 offen sc1" % sr(SD, 4))
    k.e("s_waitcnt vmcnt(0)")
    k.e("v_add_u32 v28, v28, v29")
    k.e("v_add3_u32 v28, v28, v30, v31")
    k.e("s_nop 0")
    k.e("v_readfirstlane_b32 s61, v28")
    k.e("s_cmp_ge_u32 s61, 3")
    k.e("s_cbranch_scc1 %s" % lab_go)
    k.e("s_sleep 1")
    k.e("s_branch %s" % lab_poll)
    k.label(lab_go)
    if STAMP:
        k.e("s_memtime s[82:83]")
        k.e("s_waitcnt lgkmcnt(0)")
        k.lq = []
    k.e("s_lshl_b32 s60, s10, 4")
    k.e("s_add_u32 s60, s60, s9")
    k.e("s_mul_i32 s60, s60, 18432")
    k.e("s_add_u32 s60, s60, s63")
    k.e("v_add_u32 v21, s60, v18")
    k.vq = []
    for o in range(1, 4):
        k.e("s_add_u32 s61, s9, %d" % o)
        k.e("s_and_b32 s61, s61, 3")
        k.e("s_mul_i32 s61, s61, %d" % (4 * 18432))
        k.e("s_add_u32 s63, s61, 4096")
        for t in range(6):
            k.vm("buffer_load_dwordx4 %s, v21, %s, s%d offen offset:%d sc1" % (vr(ACC + 24 * (o - 1) + 4 * t, 4), sr(SP, 4), 61 if t < 4 else 63, (t & 3) * 1024), ("p", o, t))
    k.wait_lds("own")
    for t in range(6):
        a = OWN + 4 * t
        for d in range(2):
            k.e("v_lshlrev_b32 v42, 16, v%d" % (HR + 2 * t + d))
            k.e("v_and_b32 v43, 0xffff0000, v%d" % (HR + 2 * t + d))
            k.e("v_add_f32 v%d, v%d, v42" % (a + 2 * d, a + 2 * d))
            k.e("v_add_f32 v%d, v%d, v43" % (a + 2 * d + 1, a + 2 * d + 1))
    for o in range(1, 4):
        for t in range(6):
            a = OWN + 4 * t
            k.wait_vm(("p", o, t))
            for r in range(4):
                k.e("v_add_f32 v%d, v%d, v%d" % (a + r, a + r, ACC + 24 * (o - 1) + 4 * t + r))
            if o == 3:
                k.e("v_cvt_pk_bf16_f32 v%d, v%d, v%d" % (HR + 2 * t, a, a + 1))
                k.e("v_cvt_pk_bf16_f32 v%d, v%d, v%d" % (HR + 1 + 2 * t, a + 2, a + 3))
                k.vm("buffer_store_dwordx2 %s, v19, %s, s%d offen" % (vr(HR + 2 * t, 2), sr(SO, 4), 84 + t))
    stamp(k, 3)
    stamp_flush(k, 7)
    footer(k)
    return k, 256


def gen_k5():
    k = K("red")
    nwg = S * D // 8 // 256
    k.e("s_cmp_ge_u32 s2, %d" % nwg)
    k.e("s_cbranch_scc1 L_%s_end" % k.name)
    k.e("s_load_dwordx16 s[16:31], s[0:1], 0")
    k.e("s_load_dwordx4 s[32:35], s[0:1], 64")
    k.e("s_lshl_b32 s3, s2, 8")
    k.e("v_add_u32 v1, s3, v0")
    k.e("v_lshlrev_b32 v2, 4, v1")
    k.e("v_lshlrev_b32 v3, 5, v1")
    k.e("s_waitcnt lgkmcnt(0)")
    srd(k, 36, P_WS, H_OFF, S * D * 2)
    srd(k, 40, P_WS, PART_OFF, 4 * S * D * 4)
    srd(k, 44, P_OUT, 0, S * D * 2)
    k.e("buffer_load_dwordx4 v[4:7], v2, s[36:39], 0 offen")
    for p in range(4):
        k.e("s_mov_b32 s48, 0x%x" % (p * S * D * 4))
        k.e("buffer_load_dwordx4 %s, v3, s[40:43], s48 offen" % vr(8 + p * 8, 4))
        k.e("buffer_load_dwordx4 %s, v3, s[40:43], s48 offen offset:16" % vr(12 + p * 8, 4))
    k.e("s_waitcnt vmcnt(0)")
    for r in range(8):
        k.e("v_add_f32 v%d, v%d, v%d" % (8 + r, 8 + r, 16 + r))
        k.e("v_add_f32 v%d, v%d, v%d" % (24 + r, 24 + r, 32 + r))
    for r in range(8):
        k.e("v_add_f32 v%d, v%d, v%d" % (8 + r, 8 + r, 24 + r))
    for d in range(4):
        k.e("v_lshlrev_b32 v40, 16, v%d" % (4 + d))
        k.e("v_and_b32 v41, 0xffff0000, v%d" % (4 + d))
        k.e("v_add_f32 v%d, v%d, v40" % (8 + 2 * d, 8 + 2 * d))
        k.e("v_add_f32 v%d, v%d, v41" % (9 + 2 * d, 9 + 2 * d))
    for d in range(4):
        k.e("v_cvt_pk_bf16_f32 v%d, v%d, v%d" % (4 + d, 8 + 2 * d, 9 + 2 * d))
    k.e("buffer_store_dwordx4 v[4:7], v2, s[44:47], 0 offen")
    footer(k)
    return k, nwg


def gen_k2():
    k = K("wo")
    SB = 4096 + 24576
    NBUF = 5
    header(k, 256)
    stamp(k, 0)
    SA, SBd, SX, SH, SST, SCP, SCS = 36, 40, 44, 48, 52, 64, 96
    sKA, sKB, sMA, sMB = 56, 57, 58, 59
    k.e("s_and_b32 s9, s2, 3")
    k.e("s_lshr_b32 s60, s2, 2")
    k.e("s_lshl_b32 s7, s60, 5")
    k.e("s_mul_i32 s8, s9, 144")
    k.e("s_lshr_b32 s5, s4, 1")
    k.e("s_and_b32 s6, s4, 1")
    srd(k, SA, P_WS, O_OFF, S * D * 2)
    srd(k, SBd, P_WO, 0, D * D * 2)
    srd(k, SX, P_X, 0, S * D * 2)
    srd(k, SH, P_WS, H_OFF, S * D * 2)
    srd(k, SST, P_WS, ST_OFF, S * 32)
    srd(k, SCP, P_WS, CP_OFF, 32 * 2 * F * 4)
    srd(k, SCS, P_WS, CS_OFF, 2 * F * 4)
    srd(k, 84, P_WS, FLG_OFF, 32768 + 1024)
    k.e("s_lshl_b32 s60, s2, 7")
    k.e("v_mov_b32 v1, s60")
    k.e("s_lshl_b32 s60, s2, 2")
    k.e("s_add_u32 s60, s60, 32768")
    k.e("v_mov_b32 v2, s60")
    for r in range(4):
        k.e("v_mov_b32 v%d, 0" % (20 + r))
    k.e("s_mov_b64 exec, 1")
    k.vm("buffer_store_dwordx4 v[20:23], v1, s[84:87], 0 offen")
    k.vm("buffer_store_dword v20, v2, s[84:87], 0 offen")
    k.e("s_mov_b64 exec, -1")
    k.e("s_nop 1")
    vOA, vOB = 2, 8
    vA, vB = 24, 28
    ACC = 112
    afr = [[48], [52]]
    bring = [56, 60, 64, 68, 72, 76]
    acc = lambda i, nj: ACC + nj * 4
    XR = 80
    CPR = 184
    k.e("v_and_b32 v16, 15, v0")
    k.e("v_lshrrev_b32 v17, 4, v0")
    k.e("s_mul_i32 s60, s2, 36")
    k.e("v_add_u32 v18, s60, v0")
    k.e("v_lshlrev_b32 v30, 2, v18")
    for p in range(32):
        k.e("s_mov_b32 s61, 0x%x" % (p * 2 * F * 4))
        k.vm("buffer_load_dword v%d, v30, %s, s61 offen" % (CPR + p, sr(SCP, 4)), "cp")
    k.e("s_lshl_b32 s60, s5, 4")
    k.e("s_add_u32 s60, s60, s7")
    k.e("v_add_u32 v31, s60, v16")
    k.e("s_movk_i32 s63, 1152")
    k.e("v_mul_lo_u32 v18, v31, s63")
    k.e("v_lshlrev_b32 v19, 3, v17")
    k.e("s_lshl_b32 s62, s8, 1")
    k.e("v_add3_u32 v32, v18, v19, s62")
    for nj in range(9):
        k.vm("buffer_load_dwordx2 %s, v32, %s, 0 offen offset:%d" % (vr(XR + 2 * nj, 2), sr(SX, 4), nj * 32), "x")
    k.e("s_lshr_b32 s60, s7, 4")
    k.e("s_add_u32 s60, s60, s5")
    k.e("s_mul_i32 s60, s60, 18432")
    k.e("s_lshl_b32 s61, s6, 10")
    k.e("s_add_u32 s61, s60, s61")
    k.e("v_lshlrev_b32 v19, 4, v0")
    k.e("v_add_u32 v%d, s61, v19" % vOA)
    fl_lane(k, 37, 18)
    k.e("s_lshl_b32 s61, s8, 5")
    k.e("s_add_u32 s60, s60, s61")
    k.e("v_add_u32 v37, s60, v37")
    k.e("s_mul_i32 s88, s4, 48")
    k.e("s_lshl_b32 s62, s8, 1")
    k.e("s_and_b32 s62, s62, 0xffffff80")
    k.e("s_movk_i32 s63, 1152")
    for i in range(6):
        b_dma_addr(k, vOB + i, 88, 8 * i, 3, 63, 62, reg_row=32)
    k.e("s_mov_b32 s%d, 0" % sKA)
    k.e("s_mov_b32 s%d, 0" % sKB)
    k.e("s_lshl_b32 s%d, s4, 10" % sMA)
    k.e("s_mul_i32 s%d, s4, 6144" % sMB)
    k.e("s_add_u32 s%d, s%d, 4096" % (sMB, sMB))

    def dma(st):
        b = (st % NBUF) * SB
        tag = ("dma", st)
        g = [[("s_add_u32 m0, s%d, %d" % (sMA, b), None), ("s_nop 0", None),
              ("buffer_load_dwordx4 v%d, %s, s%d offen lds" % (vOA, sr(SA, 4), sKA), tag)]]
        for i in range(6):
            x = [("s_add_u32 m0, s%d, %d" % (sMB, b + i * 1024), None), ("s_nop 0", None)]
            x.append(("buffer_load_dwordx4 v%d, %s, s%d offen lds" % (vOB + i, sr(SBd, 4), sKB), tag))
            if i == 5:
                x.append(("s_add_u32 s%d, s%d, 2048" % (sKA, sKA), None))
                x.append(("s_add_u32 s%d, s%d, %d" % (sKB, sKB, 64 * 1152), None))
            g.append(x)
        return g
    for st in range(NBUF - 1):
        issue_groups(k, dma(st))
    k.e("v_lshlrev_b32 v18, 4, v0")
    k.e("v_add_u32 v%d, s%d, v18" % (vA, sMA))
    for q in range(1, 3):
        k.e("v_add_u32 v%d, %d, v%d" % (vA + q, 2 * SB * q, vA))
    vB = 100
    k.e("s_bfe_u32 s62, s8, 0x20004")
    k.e("s_mul_i32 s63, s6, 12288")
    k.e("s_add_u32 s63, s63, 4096")
    b_rd_addr3(k, vB, 62, 63)
    for b_ in range(1, 3):
        for q in range(4):
            k.e("v_add_u32 v%d, %d, v%d" % (vB + 4 * b_ + q, 2 * b_ * SB, vB + q))

    def a_rd(buf, i):
        return vA + (buf >> 1), (buf & 1) * SB

    def b_rd(buf, nj, j):
        return vB + 4 * (buf >> 1) + (nj & 3), (buf & 1) * SB + j * 3072 + (nj >> 2) * 128
    stamp(k, 1)
    gemm_core(k, 9, NBUF, 1, acc, afr, bring, 4, a_rd, b_rd, dma, True)
    stamp(k, 2)
    k.c("---- epilogue")
    k.e("s_nop 7")
    k.e("s_nop 7")
    k.e("s_barrier")
    k.wait_vm("x")
    for w_ in (16, 8, 4, 2, 1):
        for p in range(w_):
            k.e("v_add_f32 v%d, v%d, v%d" % (CPR + p, CPR + p, CPR + p + w_))
    k.e("s_mov_b32 exec_lo, -1")
    k.e("s_mov_b32 exec_hi, 0xf")
    k.vm("buffer_store_dword v%d, v30, %s, 0 offen" % (CPR, sr(SCS, 4)))
    k.e("s_mov_b64 exec, -1")
    k.e("s_mul_i32 s60, s5, 9216")
    k.e("v_lshlrev_b32 v18, 4, v0")
    k.e("v_add_u32 v19, s60, v18")
    lab_recv = k.newlab("recv")
    k.e("s_cmp_eq_u32 s6, 0")
    k.e("s_cbranch_scc1 %s" % lab_recv)
    for nj in range(9):
        k.lds("ds_write_b128 v19, %s offset:%d" % (vr(acc(0, nj), 4), nj * 1024))
    k.wait_lds_all()
    k.e("s_barrier")
    k.e("s_branch L_%s_end" % k.name)
    k.label(lab_recv)
    k.e("s_barrier")
    R = 48
    RX = 148
    for nj in range(9):
        k.lds("ds_read_b128 %s, v19 offset:%d" % (vr(RX + nj * 4, 4), nj * 1024), ("x", nj))
    k.e("v_mov_b32 v40, 0")
    k.e("v_mov_b32 v41, 0")
    for nj in range(9):
        k.wait_lds(("x", nj))
        a = acc(0, nj)
        for r in range(4):
            k.e("v_add_f32 v%d, v%d, v%d" % (a + r, a + r, RX + nj * 4 + r))
        for d in range(2):
            k.e("v_lshlrev_b32 v42, 16, v%d" % (XR + 2 * nj + d))
            k.e("v_and_b32 v43, 0xffff0000, v%d" % (XR + 2 * nj + d))
            k.e("v_add_f32 v%d, v%d, v42" % (a + 2 * d, a + 2 * d))
            k.e("v_add_f32 v%d, v%d, v43" % (a + 2 * d + 1, a + 2 * d + 1))
        k.e("v_cvt_pk_bf16_f32 v%d, v%d, v%d" % (XR + 2 * nj, a, a + 1))
        k.e("v_cvt_pk_bf16_f32 v%d, v%d, v%d" % (XR + 2 * nj + 1, a + 2, a + 3))
        if nj == 8:
            k.e("s_movk_i32 s60, 4096")
        k.vm("buffer_store_dwordx2 %s, v37, %s, %s offen offset:%d" % (vr(XR + 2 * nj, 2), sr(SH, 4), "s60" if nj == 8 else "0", (nj * 512) & 4095))
        for d in range(2):
            k.e("v_lshlrev_b32 v42, 16, v%d" % (XR + 2 * nj + d))
            k.e("v_and_b32 v43, 0xffff0000, v%d" % (XR + 2 * nj + d))
            k.e("v_add_f32 v40, v40, v42")
            k.e("v_fmac_f32 v41, v42, v42")
            k.e("v_add_f32 v40, v40, v43")
            k.e("v_fmac_f32 v41, v43, v43")
    k.e("v_xor_b32 v44, 16, v0")
    k.e("v_lshlrev_b32 v44, 2, v44")
    k.e("v_xor_b32 v45, 32, v0")
    k.e("v_lshlrev_b32 v45, 2, v45")
    for a in (44, 45):
        k.e("ds_bpermute_b32 v42, v%d, v40" % a)
        k.e("ds_bpermute_b32 v43, v%d, v41" % a)
        k.e("s_waitcnt lgkmcnt(0)")
        k.e("v_add_f32 v40, v40, v42")
        k.e("v_add_f32 v41, v41, v43")
    k.e("v_lshlrev_b32 v42, 5, v31")
    k.e("s_lshl_b32 s60, s9, 3")
    k.e("v_add_u32 v42, s60, v42")
    k.e("s_mov_b64 exec, 0xffff")
    k.e("buffer_store_dwordx2 v[40:41], v42, %s, 0 offen" % sr(SST, 4))
    k.e("s_mov_b64 exec, -1")
    stamp(k, 3)
    stamp_flush(k, 6)
    footer(k)
    return k, 256


def gen_k1():
    k = K("qkv")
    WS_, NW = 24576, 5
    XS_, NX = 10240, 3
    XB = WS_ * NW
    QP = 976
    STO = 80 * QP
    header(k, 256)
    stamp(k, 0)
    SX, SW, SO, SG, SCP = 36, 40, 44, 48, 52
    sKW, sKX, sMW, sMX = 56, 57, 58, 59
    k.e("s_and_b32 s9, s2, 7")
    k.e("s_lshr_b32 s10, s2, 3")
    srd(k, SX, P_X, 0, S * D * 2)
    srd(k, SW, P_WQKV, 0, D * 3 * D * 2)
    srd(k, SO, P_WS, O_OFF, S * D * 2)
    srd(k, SCP, P_WS, CP_OFF, 32 * 2 * F * 4)
    if "notouch1" not in EXP:
        touch(k, 96, P_WQKV, D * 3 * D * 2, 2048, 8, 18, 1)
        touch(k, 96, P_X, S * D * 2, 2048, 8, 18, 1)
    k.e("v_and_b32 v16, 15, v0")
    k.e("v_lshrrev_b32 v17, 4, v0")
    vO = 2
    k.e("s_mul_i32 s64, s4, 24")
    k.e("s_mul_i32 s65, s9, 144")
    k.e("s_and_b32 s62, s65, 0xffffff80")
    k.e("s_movk_i32 s63, 3456")
    for t in range(3):
        b_dma_addr(k, vO + t, 64, 8 * t, 2, 63, 62, reg_col=1152)
    k.e("s_lshl_b32 s60, s10, 6")
    k.e("s_lshl_b32 s61, s4, 4")
    k.e("s_add_u32 s60, s60, s61")
    k.e("s_sub_u32 s60, s60, 16")
    k.e("v_add_u32 v18, s60, v16")
    k.e("s_movk_i32 s63, 1152")
    k.e("v_mul_lo_u32 v18, v18, s63")
    k.e("v_lshlrev_b32 v19, 4, v17")
    k.e("v_add_u32 v%d, v18, v19" % (vO + 3))
    k.e("v_add_u32 v%d, 64, v%d" % (vO + 4, vO + 3))
    k.e("s_mov_b32 s%d, 0" % sKW)
    k.e("s_mov_b32 s%d, 0" % sKX)
    k.e("s_mul_i32 s%d, s4, 3072" % sMW)
    k.e("s_lshl_b32 s%d, s4, 11" % sMX)

    def dmaW(st):
        b = (st % NW) * WS_
        g = []
        for t in range(3):
            x = [("s_add_u32 m0, s%d, %d" % (sMW, b + t * 1024), None), ("s_nop 0", None),
                 ("buffer_load_dwordx4 v%d, %s, s%d offen lds" % (vO + t, sr(SW, 4), sKW), ("dma", st))]
            if t == 2:
                x.append(("s_add_u32 s%d, s%d, %d" % (sKW, sKW, 32 * 3456), None))
            g.append(x)
        return g

    def dmaX(xs):
        b = XB + (xs % NX) * XS_
        g = []
        for t in range(2):
            x = [("s_add_u32 m0, s%d, %d" % (sMX, b + t * 1024), None), ("s_nop 0", None),
                 ("buffer_load_dwordx4 v%d, %s, s%d offen lds" % (vO + 3 + t, sr(SX, 4), sKX), ("dma", 2 * xs))]
            if t == 1:
                x.append(("s_add_u32 s%d, s%d, 128" % (sKX, sKX), None))
            g.append(x)
        return g
    CX = 144
    lab_cs3 = k.newlab("cs3")
    k.e("s_mul_i32 s13, s2, 3")
    k.e("s_add_u32 s13, s13, s4")
    k.e("s_sub_u32 s13, s13, 5")
    k.e("s_mul_i32 s14, s13, 3641")
    k.e("s_lshr_b32 s14, s14, 16")
    k.e("s_mul_i32 s15, s14, 18")
    k.e("s_sub_u32 s15, s13, s15")
    k.e("s_lshl_b32 s60, s4, 5")
    k.e("s_add_u32 s61, s60, 160")
    k.e("s_add_u32 s62, s60, 320")
    k.e("s_sub_u32 s60, s4, 5")
    k.e("s_lshl_b32 s60, s60, 6")
    k.e("s_add_u32 s63, s60, 32")
    k.e("s_min_u32 s63, s63, 128")
    k.e("s_cmp_lt_u32 s4, 5")
    k.e("s_cselect_b32 s11, s61, s60")
    k.e("s_cselect_b32 s12, s62, s63")
    k.e("s_cselect_b32 s66, 8192, 0")
    k.e("s_cselect_b32 s67, 16384, 0")
    k.e("s_cselect_b32 s68, 160, 0")
    k.e("s_cselect_b32 s69, 320, 0")
    vB0, vB1, vA, vS = 20, 25, 30, 33
    swap23_lane_rowpos(k, 8, 0, 18, 19)
    k.e("v_bfe_u32 v9, v8, 1, 2")
    k.e("v_and_b32 v10, 1, v8")
    k.e("v_lshlrev_b32 v8, 8, v8")
    k.e("v_and_b32 v11, 3, v0")
    k.e("v_lshlrev_b32 v11, 3, v11")
    k.e("s_and_b32 s65, s65, 127")
    for (vd, sreg, sreb, ssub) in ((vB0, 11, 66, 68), (vB1, 12, 67, 69)):
        k.e("s_sub_u32 s60, s%d, s%d" % (sreg, ssub))
        k.e("s_add_u32 s60, s60, s65")
        k.e("v_add_u32 v18, s60, v11")
        k.e("v_bfe_u32 v19, v18, 7, 1")
        k.e("v_xor_b32 v19, v19, v10")
        k.e("v_lshlrev_b32 v19, 7, v19")
        k.e("v_bfe_u32 v12, v18, 5, 2")
        k.e("v_xor_b32 v12, v12, v9")
        k.e("v_lshlrev_b32 v12, 5, v12")
        k.e("v_and_b32 v18, 31, v18")
        k.e("v_add3_u32 v18, v18, v19, v12")
        k.e("v_add3_u32 v%d, v18, v8, s%d" % (vd, sreb))
    k.e("v_lshlrev_b32 v%d, 4, v0" % vA)
    k.e("v_add_u32 v%d, %d, v%d" % (vA, XB, vA))
    k.e("v_add_u32 v%d, s%d, v%d" % (vS, sMX, vA))
    for b in range(1, NW):
        for v in (vB0, vB1):
            k.e("v_add_u32 v%d, %d, v%d" % (v + b, b * WS_, v))
    for b in range(1, NX):
        for v in (vA, vS):
            k.e("v_add_u32 v%d, %d, v%d" % (v + b, b * XS_, v))
    ONES = 36
    for r in range(4):
        k.e("v_mov_b32 v%d, 0x3f803f80" % (ONES + r))
    ACC = 40
    acc = lambda sl, mi: ACC + (sl * 6 + mi) * 4
    SACC = 88
    AF = [[96 + 4 * mi for mi in range(6)], [120 + 4 * mi for mi in range(6)]]
    BF = [[216, 220], [224, 228]]
    lab_q = k.newlab("qpath")
    lab_post = k.newlab("post")
    k.e("s_cmp_ge_u32 s4, 5")
    k.e("s_cbranch_scc1 %s" % lab_q)
    for path in range(2):
        if path == 1:
            k.e("s_branch %s" % lab_post)
            k.label(lab_q)
        k.lq, k.vq = [], []
        mis = [0, 1, 2, 3, 4] if path == 0 else [1, 2, 3, 4]
        if path == 0:
            issue_groups(k, dmaX(0) + dmaW(0) + dmaW(1) + dmaX(1) + dmaW(2) + dmaW(3))
            touch(k, 96, P_WO, D * D * 2, 2048, 8, 18, 1)
        else:
            issue_groups(k, dmaW(0) + dmaW(1) + dmaW(2) + dmaW(3))
            touch(k, 96, P_WO, D * D * 2, 2048, 8, 18, 1)
            lab_nocs = k.newlab("nocs")
            k.e("s_cmp_ge_u32 s13, 576")
            k.e("s_cbranch_scc1 %s" % lab_nocs)
            k.e("s_cmp_lt_u32 s15, 9")
            k.e("s_cselect_b32 s%d, s%d, s%d" % (SG, P_WG, P_WU))
            k.e("s_cselect_b32 s%d, s%d, s%d" % (SG + 1, P_WG + 1, P_WU + 1))
            k.e("s_cselect_b32 s63, 0, 9")
            k.e("s_mov_b32 s%d, 0x%x" % (SG + 2, D * F * 2))
            k.e("s_mov_b32 s%d, 0x00020000" % (SG + 3))
            k.e("s_sub_u32 s63, s15, s63")
            k.e("s_lshl_b32 s63, s63, 10")
            k.e("s_mul_i32 s60, s14, 18 * 9216")
            k.e("s_add_u32 s60, s63, s60")
            k.e("v_lshlrev_b32 v18, 4, v0")
            for i in range(18 if "nocs" not in EXP else 0):
                k.e("buffer_load_dwordx4 %s, v18, %s, s60 offen" % (vr(CX + 4 * i, 4), sr(SG, 4)))
                k.e("s_add_u32 s60, s60, 9216")
            k.label(lab_nocs)

        def rdl(s):
            xs, kk = divmod(s, 2)
            out = []
            for sl in range(2):
                for j in range(2):
                    out.append("ds_read_b64_tr_b16 %s, v%d offset:%d" % (vr(BF[s % 2][sl] + 2 * j, 2), (vB0, vB1)[sl] + s % NW, j * 2048))
            for mi in mis:
                out.append("ds_read_b128 %s, v%d offset:%d" % (vr(AF[s % 2][mi], 4), vA + xs % NX, (mi * 2 + kk) * 1024))
            if path == 0:
                out.append("ds_read_b128 %s, v%d offset:%d" % (vr(AF[s % 2][5], 4), vS + xs % NX, kk * 1024))
            return out
        if path == 0:
            stamp(k, 1)
        k.wait_vm(("dma", 0))
        k.e("s_barrier")
        for x in rdl(0):
            k.lds(x, ("f", 0))
        for s in range(18):
            k.c("---- step %d" % s)
            groups = []
            reads = []
            if s + 1 < 18:
                k.wait_vm(("dma", s + 1))
                k.e("s_barrier")
                if path == 0 and s % 2 == 0 and s // 2 + 2 < 9:
                    groups += dmaX(s // 2 + 2)
                if s + NW - 1 < 18:
                    groups += dmaW(s + NW - 1)
                reads = rdl(s + 1)
            k.wait_lds(("f", s))
            mf = []
            for sl in range(2):
                for mi in mis + [5]:
                    a = acc(sl, mi)
                    cc = "0" if s == 0 else vr(a, 4)
                    bop = vr(AF[s % 2][mi], 4) if mi < 5 else vr(ONES, 4)
                    mf.append("v_mfma_f32_16x16x32_bf16 %s, %s, %s, %s" % (vr(a, 4), vr(BF[s % 2][sl], 4), bop, cc))
            if path == 0:
                sf = vr(AF[s % 2][5], 4)
                mf.append("v_mfma_f32_16x16x32_bf16 %s, %s, %s, %s" % (vr(SACC, 4), vr(ONES, 4), sf, "0" if s == 0 else vr(SACC, 4)))
                mf.append("v_mfma_f32_16x16x32_bf16 %s, %s, %s, %s" % (vr(SACC + 4, 4), sf, sf, "0" if s == 0 else vr(SACC + 4, 4)))
            for n, m in enumerate(mf):
                k.e(m)
                if n < len(reads):
                    k.lds(reads[n], ("f", s + 1))
                g0 = len(mf) - len(groups)
                if n >= g0:
                    issue_groups(k, [groups[n - g0]])
    k.label(lab_post)
    k.lq, k.vq = [], []
    stamp(k, 2)
    k.e("s_nop 7")
    k.e("s_nop 7")
    k.e("s_barrier")
    k.e("v_and_b32 v18, 3, v0")
    k.e("v_cmp_eq_u32 vcc, 1, v18")
    k.e("v_mov_b32 v19, v%d" % (SACC + 4))
    k.e("s_nop 0")
    k.e("v_cndmask_b32 v19, v19, v%d, vcc" % (SACC + 5))
    k.e("v_cmp_eq_u32 vcc, 2, v18")
    k.e("s_nop 1")
    k.e("v_cndmask_b32 v19, v19, v%d, vcc" % (SACC + 6))
    k.e("v_cmp_eq_u32 vcc, 3, v18")
    k.e("s_nop 1")
    k.e("v_cndmask_b32 v19, v19, v%d, vcc" % (SACC + 7))
    k.e("s_mov_b32 s60, 0x%x" % f2u(1.0 / 576.0))
    k.e("s_mov_b32 s61, 0x%x" % f2u(1e-5))
    k.e("v_mul_f32 v8, s60, v%d" % SACC)
    k.e("v_mul_f32 v19, s60, v19")
    k.e("v_fma_f32 v19, -v8, v8, v19")
    k.e("v_max_f32 v19, 0, v19")
    k.e("v_add_f32 v19, s61, v19")
    k.e("v_rsq_f32 v9, v19")
    k.e("v_sub_f32 v8, 0, v8")
    k.e("v_lshrrev_b32 v18, 2, v16")
    k.e("v_cmp_eq_u32 vcc, v18, v17")
    k.e("s_lshl_b32 s60, s4, 7")
    k.e("v_lshlrev_b32 v18, 3, v16")
    k.e("v_add_u32 v18, s60, v18")
    k.e("v_add_u32 v18, %d, v18" % STO)
    k.e("s_and_saveexec_b64 s[60:61], vcc")
    k.e("ds_write_b64 v18, v[8:9]")
    k.e("s_mov_b64 exec, -1")
    k.e("s_waitcnt lgkmcnt(0)")
    k.e("s_barrier")
    k.e("v_lshlrev_b32 v18, 3, v16")
    k.e("v_add_u32 v18, %d, v18" % STO)
    for mi in range(5):
        k.lds("ds_read_b64 %s, v18 offset:%d" % (vr(96 + 2 * mi, 2), mi * 128), "st")
    for sl, sreg in ((0, 11), (1, 12)):
        k.e("s_lshl_b32 s60, s%d, 1" % sreg)
        k.e("v_mul_u32_u24 v18, %d, v16" % QP)
        k.e("v_lshlrev_b32 v19, 4, v17")
        k.e("v_add3_u32 v%d, v18, v19, s60" % (8 + sl))
    k.wait_lds("st")
    for sl in range(2):
        cw = acc(sl, 5)
        for mi in range(5):
            a = acc(sl, mi)
            for r in range(4):
                k.e("v_fma_f32 v%d, v%d, v%d, v%d" % (a + r, 96 + 2 * mi, cw + r, a + r))
            for r in range(4):
                k.e("v_mul_f32 v%d, v%d, v%d" % (a + r, 97 + 2 * mi, a + r))
            k.e("v_cvt_pk_bf16_f32 v18, v%d, v%d" % (a, a + 1))
            k.e("v_cvt_pk_bf16_f32 v19, v%d, v%d" % (a + 2, a + 3))
            k.e("v_lshlrev_b32 v%d, 16, v18" % a)
            k.e("v_and_b32 v%d, 0xffff0000, v18" % (a + 1))
            k.e("v_lshlrev_b32 v%d, 16, v19" % (a + 2))
            k.e("v_and_b32 v%d, 0xffff0000, v19" % (a + 3))
            k.lds("ds_write_b128 v%d, %s offset:%d" % (8 + sl, vr(a, 4), mi * 16 * QP))
    k.wait_lds_all()
    k.e("s_barrier")
    k.e("s_cmp_ge_u32 s4, 4")
    k.e("s_cbranch_scc1 %s" % lab_cs3)
    k.e("v_lshrrev_b32 v18, 2, v0")
    k.e("s_lshl_b32 s60, s4, 4")
    k.e("v_add_u32 v18, s60, v18")
    k.e("v_and_b32 v19, 3, v0")
    k.e("v_mul_u32_u24 v20, %d, v18" % QP)
    k.e("v_mul_u32_u24 v21, 72, v19")
    k.e("v_add_u32 v20, v20, v21")
    Q = 32
    KV = 52
    L = 108
    O = 116
    for d in range(9):
        k.lds("ds_read_b64 %s, v20 offset:%d" % (vr(Q + 2 * d, 2), 16 * QP + d * 8), "q")
    seq = [("k", j) for j in range(8)] + [("v", j) for j in range(8)]

    def rdkv(n):
        kind, j = seq[n]
        col = 320 if kind == "k" else 640
        for d in range(9):
            k.lds("ds_read_b64 %s, v20 offset:%d" % (vr(KV + (n % 3) * 18 + 2 * d, 2), (16 - 2 * j) * QP + col + d * 8), seq[n])
    rdkv(0)
    for j in range(8):
        rdkv(j + 1)
        k.wait_lds(("k", j))
        b = KV + (j % 3) * 18
        k.e("v_mul_f32 v%d, v%d, v%d" % (L + j, Q, b))
        k.e("v_mul_f32 v24, v%d, v%d" % (Q + 1, b + 1))
        for d in range(2, 18, 2):
            k.e("v_fmac_f32 v%d, v%d, v%d" % (L + j, Q + d, b + d))
            k.e("v_fmac_f32 v24, v%d, v%d" % (Q + d + 1, b + d + 1))
        k.e("v_add_f32 v%d, v%d, v24" % (L + j, L + j))
    rdkv(9)
    k.e("s_mov_b32 s60, 0x%x" % f2u(18 ** -0.5))
    k.e("s_lshl_b32 s61, s10, 6")
    k.e("v_add_u32 v22, s61, v18")
    k.e("v_mov_b32 v23, 0x%x" % f2u(-1e9))
    for j in range(8):
        k.e("v_mul_f32 v%d, s60, v%d" % (L + j, L + j))
    for j in range(1, 8):
        k.e("v_cmp_le_u32 vcc, %d, v22" % (2 * j))
        k.e("s_nop 1")
        k.e("v_cndmask_b32 v%d, v23, v%d, vcc" % (L + j, L + j))
    k.e("v_max3_f32 v24, v%d, v%d, v%d" % (L, L + 1, L + 2))
    k.e("v_max3_f32 v24, v24, v%d, v%d" % (L + 3, L + 4))
    k.e("v_max3_f32 v24, v24, v%d, v%d" % (L + 5, L + 6))
    k.e("v_max_f32 v24, v24, v%d" % (L + 7))
    k.e("s_mov_b32 s60, 0x%x" % f2u(1.4426950408889634))
    for j in range(8):
        k.e("v_sub_f32 v%d, v%d, v24" % (L + j, L + j))
    for j in range(8):
        k.e("v_mul_f32 v%d, s60, v%d" % (L + j, L + j))
    for j in range(8):
        k.e("v_exp_f32 v%d, v%d" % (L + j, L + j))
    k.e("s_nop 0")
    k.e("v_add_f32 v24, v%d, v%d" % (L, L + 1))
    for j in range(2, 8):
        k.e("v_add_f32 v24, v24, v%d" % (L + j))
    k.e("v_rcp_f32 v24, v24")
    k.e("s_nop 0")
    for j in range(8):
        k.e("v_mul_f32 v%d, v%d, v24" % (L + j, L + j))
    for j in range(8):
        if 10 + j < 16:
            rdkv(10 + j)
        k.wait_lds(("v", j))
        b = KV + ((8 + j) % 3) * 18
        for d in range(18):
            if j == 0:
                k.e("v_mul_f32 v%d, v%d, v%d" % (O + d, L, b + d))
            else:
                k.e("v_fmac_f32 v%d, v%d, v%d" % (O + d, L + j, b + d))
    for d in range(9):
        k.e("v_cvt_pk_bf16_f32 v%d, v%d, v%d" % (Q + d, O + 2 * d, O + 2 * d + 1))
    k.e("v_lshrrev_b32 v23, 4, v22")
    k.e("v_mul_u32_u24 v23, 18432, v23")
    k.e("v_and_b32 v24, 15, v22")
    k.e("v_lshlrev_b32 v24, 4, v24")
    k.e("v_add_u32 v23, v23, v24")
    k.e("v_mul_u32_u24 v21, 18, v19")
    k.e("s_mul_i32 s60, s9, 72")
    k.e("v_add_u32 v21, s60, v21")
    for d in range(9):
        k.e("v_add_u32 v24, %d, v21" % (2 * d))
        k.e("v_lshrrev_b32 v25, 3, v24")
        k.e("v_lshlrev_b32 v25, 8, v25")
        k.e("v_and_b32 v24, 7, v24")
        k.e("v_lshlrev_b32 v24, 1, v24")
        k.e("v_add3_u32 v%d, v23, v24, v25" % (KV + d))
        k.e("buffer_store_dword v%d, v%d, %s, 0 offen" % (Q + d, KV + d, sr(SO, 4)))
    stamp(k, 3)
    stamp_flush(k, 6)
    k.e("s_endpgm")
    k.label(lab_cs3)
    k.e("s_cmp_eq_u32 s4, 4")
    k.e("s_cbranch_scc1 L_%s_end" % k.name)
    k.e("s_cmp_ge_u32 s13, 576")
    k.e("s_cbranch_scc1 L_%s_end" % k.name)
    k.e("s_waitcnt vmcnt(0)")
    for r in range(8):
        k.e("v_mov_b32 v%d, 0" % (20 + r))
    for i in range(18):
        for d in range(4):
            x = CX + 4 * i + d
            k.e("v_lshlrev_b32 v28, 16, v%d" % x)
            k.e("v_and_b32 v29, 0xffff0000, v%d" % x)
            k.e("v_add_f32 v%d, v%d, v28" % (20 + 2 * d, 20 + 2 * d))
            k.e("v_add_f32 v%d, v%d, v29" % (21 + 2 * d, 21 + 2 * d))
    k.e("s_mul_i32 s63, s14, %d" % (2 * F * 4))
    k.e("s_lshl_b32 s60, s15, 11")
    k.e("s_add_u32 s63, s63, s60")
    k.e("v_lshlrev_b32 v18, 5, v0")
    k.e("v_add_u32 v18, s63, v18")
    k.e("buffer_store_dwordx4 v[20:23], v18, %s, 0 offen" % sr(SCP, 4))
    k.e("buffer_store_dwordx4 v[24:27], v18, %s, 0 offen offset:16" % sr(SCP, 4))
    footer(k)
    return k, 256


def main():
    ks = [
        (gen_k1, 512, 5 * 24576 + 3 * 10240, 232),
        (gen_k2, 256, 5 * 28672, 216),
        (gen_k3, 512, 4 * 40960, 256),
    ]
    hdr = open("sequential_preLN__sliding_local_dilated__geglu_ffn__prompt.s.ref").read().split("\n")
    out = []
    for line in hdr:
        if line.startswith("; Override") or line.startswith("; grid=") or line.startswith("; @launch"):
            continue
        if not line.startswith(";"):
            break
        out.append(line)
    body = []
    desc = []
    for fn, block, lds, nv in ks:
        k, nwg = fn()
        name = k.name + "_kernel"
        out.append("; @launch kernel=%s grid=(%d,1,1) block=(%d,1,1) lds=%d" % (name, nwg, block, lds))
        body += [".globl %s" % name, ".p2align 8", ".type %s,@function" % name, "%s:" % name] + k.L
        desc += [".p2align 6", ".amdhsa_kernel %s" % name,
                 "  .amdhsa_next_free_vgpr %d" % nv, "  .amdhsa_next_free_sgpr 102",
                 "  .amdhsa_accum_offset %d" % nv,
                 "  .amdhsa_group_segment_fixed_size 0", "  .amdhsa_kernarg_size 80",
                 "  .amdhsa_user_sgpr_count 2", "  .amdhsa_user_sgpr_kernarg_segment_ptr 1",
                 "  .amdhsa_system_sgpr_workgroup_id_x 1", ".end_amdhsa_kernel"]
    out += ['.amdgcn_target "amdgcn-amd-amdhsa--gfx950"', ".text"] + body + ['.section .rodata,"a"'] + desc
    path = sys.argv[1] if len(sys.argv) > 1 else "sequential_preLN__sliding_local_dilated__geglu_ffn__prompt.s"
    open(path, "w").write("\n".join(out) + "\n")


main()
```

```python
import sys, struct

S, D, F = 2048, 576, 4608
O_OFF = 0x0000000
H_OFF = 0x0400000
ST_OFF = 0x0800000
CP_OFF = 0x0A00000
CS_OFF = 0x0860000
FLG_OFF = 0x0880000
ACT_OFF = 0x1000000
PART_OFF = 0x3000000


def f2u(x):
    return struct.unpack("<I", struct.pack("<f", x))[0]


EXP = __import__("os").environ.get("EXP", "")


class K:
    def __init__(s, name):
        s.name = name
        s.L = []
        s.lq = []
        s.vq = []
        s.nlab = 0

    def e(s, t):
        if "nomfma" in EXP and t.startswith("v_mfma"):
            return
        if "noldsrd" in EXP and (t.startswith("ds_read_b128") or t.startswith("ds_read_b64_tr")):
            return
        if "nodma" in EXP and t.endswith(" lds"):
            return
        if "nox" in EXP and t.endswith(" lds") and "s[36:39]" in t and s.name == "qkv":
            return
        if "now" in EXP and t.endswith(" lds") and "s[40:43]" in t and s.name == "qkv":
            return
        s.L.append("    " + t)

    def c(s, t):
        s.L.append("    ; " + t)

    def label(s, n):
        s.L.append(n + ":")

    def newlab(s, base):
        s.nlab += 1
        return "L_%s_%s_%d" % (s.name, base, s.nlab)

    def lds(s, t, tag=None):
        s.e(t)
        s.lq.append(tag)

    def vm(s, t, tag=None):
        s.e(t)
        s.vq.append(tag)

    def _need(s, q, tag):
        idx = -1
        for i, x in enumerate(q):
            if x == tag:
                idx = i
        return idx

    def wait_lds(s, tag):
        idx = s._need(s.lq, tag)
        if idx < 0:
            return
        n = len(s.lq) - idx - 1
        n = min(n, 15)
        s.e("s_waitcnt lgkmcnt(%d)" % n)
        s.lq = s.lq[len(s.lq) - n:] if n else []

    def wait_vm(s, tag):
        idx = s._need(s.vq, tag)
        if idx < 0:
            return
        n = len(s.vq) - idx - 1
        n = min(n, 63)
        s.e("s_waitcnt vmcnt(%d)" % n)
        s.vq = s.vq[len(s.vq) - n:] if n else []

    def wait_all(s):
        s.e("s_waitcnt vmcnt(0) lgkmcnt(0)")
        s.lq = []
        s.vq = []

    def wait_lds_all(s):
        s.e("s_waitcnt lgkmcnt(0)")
        s.lq = []

    def wait_vm_all(s):
        s.e("s_waitcnt vmcnt(0)")
        s.vq = []


STAMP = int(__import__("os").environ.get("STAMP", "0"))


def stamp(k, idx):
    if STAMP:
        k.e("s_memtime s[%d:%d]" % (70 + 2 * idx, 71 + 2 * idx))
        if idx in (0, 3):
            k.e("s_memrealtime s[%d:%d]" % (78 + (2 if idx else 0), 79 + (2 if idx else 0)))
        k.e("s_waitcnt lgkmcnt(0)")
        k.lq = []


def stamp_flush(k, n):
    if STAMP:
        lab = k.newlab("nost")
        k.e("s_and_b32 s90, s2, 127")
        k.e("s_cmp_lg_u32 s90, 5")
        k.e("s_cbranch_scc1 %s" % lab)
        k.e("s_cmp_lg_u32 s4, 0")
        k.e("s_cbranch_scc1 %s" % lab)
        srd(k, 92, P_WS, 0x900000 + 512 * getattr(k, "stamp_slot", ["qkv", "wo", "ffn"].index(k.name)), 256)
        k.e("s_lshr_b32 s90, s2, 7")
        k.e("s_lshl_b32 s90, s90, 6")
        k.e("v_mov_b32 v1, s90")
        k.e("s_mov_b64 exec, 1")
        for i in range(n):
            k.e("v_mov_b32 v2, s%d" % (70 + 2 * i))
            k.e("buffer_store_dword v2, v1, s[92:95], 0 offen offset:%d" % (4 * i))
        k.label(lab)


def vr(b, n):
    return "v[%d:%d]" % (b, b + n - 1)


def sr(b, n):
    return "s[%d:%d]" % (b, b + n - 1)


P_X, P_WQKV, P_WO, P_BX, P_WG, P_WU, P_WD, P_OUT, P_DBG, P_WS = 16, 18, 20, 22, 24, 26, 28, 30, 32, 34


def header(k, nwg):
    k.e("s_cmp_ge_u32 s2, %d" % nwg)
    k.e("s_cbranch_scc1 L_%s_end" % k.name)
    k.e("s_load_dwordx16 s[16:31], s[0:1], 0")
    k.e("s_load_dwordx4 s[32:35], s[0:1], 64")
    k.e("v_lshrrev_b32 v1, 6, v0")
    k.e("v_and_b32 v0, 63, v0")
    k.e("s_nop 0")
    k.e("v_readfirstlane_b32 s4, v1")
    k.e("s_waitcnt lgkmcnt(0)")


def srd(k, d, ptr, off, nbytes):
    if off:
        k.e("s_add_u32 s%d, s%d, 0x%x" % (d, ptr, off))
        k.e("s_addc_u32 s%d, s%d, 0" % (d + 1, ptr + 1))
    else:
        k.e("s_mov_b32 s%d, s%d" % (d, ptr))
        k.e("s_mov_b32 s%d, s%d" % (d + 1, ptr + 1))
    k.e("s_mov_b32 s%d, 0x%x" % (d + 2, nbytes))
    k.e("s_mov_b32 s%d, 0x00020000" % (d + 3))


def footer(k):
    k.label("L_%s_end" % k.name)
    k.e("s_endpgm")


def swap23_lane_rowpos(k, vdst, vlane, vt, vt2):
    k.e("v_lshrrev_b32 v%d, 5, v%d" % (vt, vlane))
    k.e("v_lshlrev_b32 v%d, 4, v%d" % (vdst, vt))
    k.e("v_bfe_u32 v%d, v%d, 4, 1" % (vt, vlane))
    k.e("v_lshlrev_b32 v%d, 2, v%d" % (vt, vt))
    k.e("v_add_u32 v%d, v%d, v%d" % (vdst, vdst, vt))
    k.e("v_bfe_u32 v%d, v%d, 2, 2" % (vt2, vlane))
    k.e("v_add_u32 v%d, v%d, v%d" % (vdst, vdst, vt2))


def swap23(k, vdst, vp, vt, vt2):
    k.e("v_and_b32 v%d, 0x33, v%d" % (vdst, vp))
    k.e("v_bfe_u32 v%d, v%d, 2, 1" % (vt, vp))
    k.e("v_lshlrev_b32 v%d, 3, v%d" % (vt, vt))
    k.e("v_bfe_u32 v%d, v%d, 3, 1" % (vt2, vp))
    k.e("v_lshlrev_b32 v%d, 2, v%d" % (vt2, vt2))
    k.e("v_or3_b32 v%d, v%d, v%d, v%d" % (vdst, vdst, vt, vt2))


def gemm_core(k, nst, nbuf, MI, acc, afr, bring, PD, a_rd, b_rd, dma, zero_init, NJ=9, sub=1):
    RB = len(bring)
    nm = MI * NJ
    nsteps = nst * sub

    def rdB(t):
        sp, nj = divmod(t, NJ)
        if sp >= nsteps:
            return []
        st, kk = divmod(sp, sub)
        slot = bring[t % RB]
        out = []
        for j in range(2):
            v, off = b_rd(st % nbuf, nj, j, kk) if sub > 1 else b_rd(st % nbuf, nj, j)
            out.append(("ds_read_b64_tr_b16 %s, v%d offset:%d" % (vr(slot + 2 * j, 2), v, off), ("B", t)))
        return out

    def rdA(sp, i):
        if sp >= nsteps:
            return []
        st, kk = divmod(sp, sub)
        v, off = a_rd(st % nbuf, i, kk) if sub > 1 else a_rd(st % nbuf, i)
        return [("ds_read_b128 %s, v%d offset:%d" % (vr(afr[sp % 2][i], 4), v, off), ("A", sp))]

    k.wait_vm(("dma", 0))
    k.e("s_barrier")
    for i in range(MI):
        for (t, tag) in rdA(0, i):
            k.lds(t, tag)
    for t in range(PD):
        for (x, tag) in rdB(t):
            k.lds(x, tag)
    for s in range(nsteps):
        k.c("---- step %d" % s)
        groups = []
        st = s // sub
        if (s + 1) % sub == 0 and st + 1 < nst:
            k.wait_vm(("dma", st + 1))
            k.e("s_barrier")
            if st + nbuf - 1 < nst:
                groups = dma(st + nbuf - 1)
        ev = {}

        def add(idx, fn):
            ev.setdefault(min(idx, nm - 1), []).append(fn)
        for nj in range(NJ):
            t = s * NJ + nj
            add(nj * MI, (lambda tt: (lambda: [k.lds(x, tag) for (x, tag) in rdB(tt)]))(t + PD))
        for i in range(MI):
            add((2 + i) * MI + min(1, MI - 1), (lambda ii: (lambda: [k.lds(x, tag) for (x, tag) in rdA(s + 1, ii)]))(i))
        for gi, g in enumerate(groups):
            def mk(g):
                def f():
                    for (x, tag) in g:
                        if tag is None:
                            k.e(x)
                        else:
                            k.vm(x, tag)
                return f
            add(gi * MI + min(2, MI - 1), mk(g))
        for nj in range(NJ):
            t = s * NJ + nj
            if nj == 0:
                k.wait_lds(("A", s))
            k.wait_lds(("B", t))
            for i in range(MI):
                a = acc(i, nj)
                cc = "0" if (zero_init and s == 0) else vr(a, 4)
                k.e("v_mfma_f32_16x16x32_bf16 %s, %s, %s, %s" % (vr(a, 4), vr(bring[t % RB], 4), vr(afr[s % 2][i], 4), cc))
                for fn in ev.get(nj * MI + i, []):
                    fn()


def fl_lane(k, vdst, vt):
    k.e("v_lshrrev_b32 v%d, 1, v17" % vt)
    k.e("v_lshlrev_b32 v%d, 8, v%d" % (vdst, vt))
    k.e("v_lshlrev_b32 v%d, 4, v16" % vt)
    k.e("v_add_u32 v%d, v%d, v%d" % (vdst, vdst, vt))
    k.e("v_and_b32 v%d, 1, v17" % vt)
    k.e("v_lshlrev_b32 v%d, 3, v%d" % (vt, vt))
    k.e("v_add_u32 v%d, v%d, v%d" % (vdst, vdst, vt))


def b_dma_addr(k, vdst, sL0, iofs, NL, spitch, scol, reg_row=0, reg_col=0):
    k.e("v_lshrrev_b32 v18, 3, v0")
    k.e("v_add_u32 v18, s%d, v18" % sL0)
    if iofs:
        k.e("v_add_u32 v18, %d, v18" % iofs)
    if NL == 3:
        k.e("v_mul_u32_u24 v19, 21846, v18")
        k.e("v_lshrrev_b32 v19, 16, v19")
        k.e("v_mul_u32_u24 v20, 3, v19")
        k.e("v_sub_u32 v18, v18, v20")
    else:
        k.e("v_lshrrev_b32 v19, 1, v18")
        k.e("v_xor_b32 v18, v18, v19")
        k.e("v_and_b32 v18, 1, v18")
    k.e("v_lshlrev_b32 v18, 7, v18")
    k.e("v_bfe_u32 v20, v19, 1, 2")
    k.e("v_bfe_u32 v21, v0, 1, 2")
    k.e("v_xor_b32 v20, v20, v21")
    k.e("v_lshlrev_b32 v20, 5, v20")
    k.e("v_and_b32 v21, 1, v0")
    k.e("v_lshlrev_b32 v21, 4, v21")
    k.e("v_add3_u32 v18, v18, v20, v21")
    k.e("v_lshrrev_b32 v23, 5, v19")
    k.e("v_and_b32 v19, 31, v19")
    swap23(k, 20, 19, 21, 22)
    if reg_row:
        k.e("v_mul_u32_u24 v21, %d, v23" % reg_row)
        k.e("v_add_u32 v20, v20, v21")
    k.e("v_mul_lo_u32 v20, v20, s%d" % spitch)
    if reg_col:
        k.e("v_mul_u32_u24 v23, %d, v23" % reg_col)
        k.e("v_add_u32 v18, v18, v23")
    k.e("v_add3_u32 v%d, v20, v18, s%d" % (vdst, scol))


def b_rd_addr3(k, vq, sn0p, sbase):
    swap23_lane_rowpos(k, 18, 0, 19, 20)
    k.e("v_bfe_u32 v19, v18, 1, 2")
    k.e("v_mul_u32_u24 v18, 384, v18")
    k.e("v_and_b32 v20, 3, v0")
    k.e("v_lshlrev_b32 v20, 3, v20")
    k.e("v_add3_u32 v18, v18, v20, s%d" % sbase)
    for q in range(4):
        k.e("s_add_u32 s60, s%d, %d" % (sn0p, q))
        k.e("s_and_b32 s61, s60, 3")
        k.e("s_lshr_b32 s60, s60, 2")
        k.e("s_lshl_b32 s60, s60, 7")
        k.e("v_xor_b32 v20, s61, v19")
        k.e("v_lshlrev_b32 v20, 5, v20")
        k.e("v_add3_u32 v%d, v18, v20, s60" % (vq + q))


def touch(k, ssrd, ptr, nbytes, nwaves_total, wpw, vtmp, vdst):
    nlines = nbytes // 128
    per = (nlines + nwaves_total - 1) // nwaves_total
    assert per <= 64
    srd(k, ssrd, ptr, 0, nbytes)
    k.e("s_mul_i32 s60, s2, %d" % wpw)
    k.e("s_add_u32 s60, s60, s4")
    k.e("s_mul_i32 s60, s60, %d" % per)
    k.e("v_add_u32 v%d, s60, v0" % vtmp)
    k.e("v_lshlrev_b32 v%d, 7, v%d" % (vtmp, vtmp))
    if per < 64:
        m = (1 << per) - 1
        k.e("s_mov_b32 exec_lo, 0x%x" % (m & 0xffffffff))
        k.e("s_mov_b32 exec_hi, 0x%x" % (m >> 32))
    k.vm("buffer_load_dword v%d, v%d, %s, 0 offen" % (vdst, vtmp, sr(ssrd, 4)), "touch")
    k.e("s_mov_b64 exec, -1")


def issue_groups(k, groups):
    for g in groups:
        for (x, tag) in g:
            if tag is None:
                k.e(x)
            else:
                k.vm(x, tag)


def gen_k3(k):
    SB = 40960
    NBUF = 4
    k.stamp_slot = 2
    stamp(k, 0)
    SA, SBd, SST, SCS, SO = 36, 40, 44, 48, 52
    sKA, sKB, sMA, sMB = 56, 57, 58, 59
    k.e("s_and_b32 s60, s2, 7")
    k.e("s_lshr_b32 s61, s2, 3")
    k.e("s_and_b32 s62, s61, 3")
    k.e("s_lshl_b32 s60, s60, 2")
    k.e("s_add_u32 s9, s60, s62")
    k.e("s_lshr_b32 s61, s61, 2")
    k.e("s_lshl_b32 s7, s61, 8")
    k.e("s_mul_i32 s8, s9, 144")
    k.e("s_and_b32 s5, s4, 3")
    k.e("s_lshr_b32 s6, s4, 2")
    srd(k, SA, P_WS, H_OFF, S * D * 2)
    k.e("s_cmp_lt_u32 s4, 4")
    k.e("s_cselect_b32 s%d, s%d, s%d" % (SBd, P_WG, P_WU))
    k.e("s_cselect_b32 s%d, s%d, s%d" % (SBd + 1, P_WG + 1, P_WU + 1))
    k.e("s_mov_b32 s%d, 0x%x" % (SBd + 2, D * F * 2))
    k.e("s_mov_b32 s%d, 0x00020000" % (SBd + 3))
    srd(k, SST, P_WS, ST_OFF, S * 32)
    srd(k, SCS, P_WS, CS_OFF, 2 * F * 4)
    srd(k, SO, P_WS, ACT_OFF, S * F * 2)
    vOA0, vOA1, vOB = 2, 3, 4
    vA, vB = 8, 24
    vR, vM = 40, 44
    ACC = 96
    afr = [[48 + 4 * i for i in range(4)], [64 + 4 * i for i in range(4)]]
    bring = [80, 84, 88, 92]
    k.e("v_and_b32 v16, 15, v0")
    k.e("v_lshrrev_b32 v17, 4, v0")
    k.e("s_lshr_b32 s60, s7, 4")
    k.e("s_lshl_b32 s61, s4, 1")
    k.e("s_add_u32 s60, s60, s61")
    k.e("s_mul_i32 s60, s60, 18432")
    k.e("v_lshlrev_b32 v19, 4, v0")
    k.e("v_add_u32 v%d, s60, v19" % vOA0)
    k.e("v_add_u32 v%d, 18432, v%d" % (vOA1, vOA0))
    k.e("s_and_b32 s60, s4, 3")
    k.e("s_mul_i32 s68, s60, 24")
    k.e("s_lshl_b32 s62, s8, 1")
    k.e("s_and_b32 s62, s62, 0xffffff80")
    k.e("s_movk_i32 s63, 9216")
    for i in range(3):
        b_dma_addr(k, vOB + i, 68, 8 * i, 3, 63, 62)
    k.e("s_mov_b32 s%d, 0" % sKA)
    k.e("s_mov_b32 s%d, 0" % sKB)
    k.e("s_lshl_b32 s%d, s4, 11" % sMA)
    k.e("s_mul_i32 s%d, s4, 3072" % sMB)
    k.e("s_add_u32 s%d, s%d, 16384" % (sMB, sMB))

    def dmaA(st):
        b = (st % NBUF) * SB
        tag = ("dma", st)
        g = []
        for i in range(2):
            x = [("s_add_u32 m0, s%d, %d" % (sMA, b + i * 1024), None), ("s_nop 0", None),
                 ("buffer_load_dwordx4 v%d, %s, s%d offen sc1 lds" % (vOA0 + i, sr(SA, 4), sKA), tag)]
            if i == 1:
                x.append(("s_add_u32 s%d, s%d, 1024" % (sKA, sKA), None))
            g.append(x)
        return g

    def dmaB(st):
        b = (st % NBUF) * SB
        tag = ("dma", st)
        g = []
        for i in range(3):
            x = [("s_add_u32 m0, s%d, %d" % (sMB, b + i * 1024), None), ("s_nop 0", None)]
            x.append(("buffer_load_dwordx4 v%d, %s, s%d offen lds" % (vOB + i, sr(SBd, 4), sKB), tag))
            if i == 2:
                x.append(("s_add_u32 s%d, s%d, %d" % (sKB, sKB, 32 * 9216), None))
            g.append(x)
        return g

    def dma(st):
        return dmaA(st) + dmaB(st)
    for st in range(NBUF - 1):
        issue_groups(k, dmaB(st))
    srd(k, 64, P_WS, FLG_OFF + 32768 + 1024, 1024)
    k.e("s_lshr_b32 s60, s7, 3")
    k.e("v_and_b32 v18, 31, v0")
    k.e("v_add_u32 v18, s60, v18")
    k.e("s_lshl_b32 s60, s9, 2")
    k.e("v_and_b32 v19, 3, v0")
    k.e("v_add_u32 v19, s60, v19")
    k.e("v_bfe_u32 v20, v0, 2, 1")
    k.e("v_lshlrev_b32 v20, 7, v20")
    k.e("v_add_u32 v19, v19, v20")
    k.e("v_cmp_gt_u32 vcc, 32, v0")
    k.e("s_nop 1")
    k.e("v_cndmask_b32 v18, v19, v18, vcc")
    k.e("v_lshlrev_b32 v18, 2, v18")
    lab_p = k.newlab("pollH")
    lab_g = k.newlab("goH")
    k.label(lab_p)
    k.e("buffer_load_dword v19, v18, s[64:67], 0 offen sc1")
    k.e("s_waitcnt vmcnt(0)")
    k.e("v_cmp_ne_u32 vcc, 1, v19")
    k.e("s_nop 1")
    k.e("s_cmp_eq_u64 vcc, 0")
    k.e("s_cbranch_scc1 %s" % lab_g)
    k.e("s_sleep 2")
    k.e("s_branch %s" % lab_p)
    k.label(lab_g)
    k.vq = []
    k.e("s_lshl_b32 s60, s5, 6")
    k.e("s_add_u32 s60, s60, s7")
    k.e("v_add_u32 v18, s60, v16")
    k.e("v_lshlrev_b32 v18, 5, v18")
    for i in range(4):
        for h in range(2):
            k.vm("buffer_load_dwordx4 %s, v18, %s, 0 offen offset:%d" % (vr(ACC + i * 8 + h * 4, 4), sr(SST, 4), i * 512 + h * 16) + " sc1", "st")
    k.e("s_mul_i32 s60, s6, 80")
    k.e("s_add_u32 s60, s60, s8")
    k.e("v_lshlrev_b32 v18, 2, v17")
    k.e("v_add_u32 v18, s60, v18")
    k.e("v_lshlrev_b32 v18, 2, v18")
    k.e("s_movk_i32 s61, 18432")
    CSR = 48
    for f in range(5):
        k.vm("buffer_load_dwordx4 %s, v18, %s, 0 offen offset:%d" % (vr(CSR + f * 8, 4), sr(SCS, 4), f * 64) + " sc1", "cs")
        k.vm("buffer_load_dwordx4 %s, v18, %s, s61 offen offset:%d" % (vr(CSR + f * 8 + 4, 4), sr(SCS, 4), f * 64) + " sc1", "cs")
    for st in range(NBUF - 1):
        issue_groups(k, dmaA(st))
    touch(k, 64, P_WD, F * D * 2, 2048, 8, 18, 1)
    k.e("s_lshl_b32 s60, s5, 12")
    k.e("v_lshlrev_b32 v18, 4, v0")
    k.e("v_add_u32 v%d, s60, v18" % vA)
    for b_ in range(1, 4):
        k.e("v_add_u32 v%d, %d, v%d" % (vA + b_, b_ * SB, vA))
    k.e("s_bfe_u32 s62, s8, 0x20004")
    k.e("s_mul_i32 s63, s6, 5")
    k.e("s_add_u32 s62, s62, s63")
    k.e("s_movk_i32 s63, 16384")
    b_rd_addr3(k, vB, 62, 63)
    for b_ in range(1, 4):
        for q in range(4):
            k.e("v_add_u32 v%d, %d, v%d" % (vB + 4 * b_ + q, b_ * SB, vB + q))
    k.e("v_lshrrev_b32 v18, 1, v17")
    k.e("v_lshlrev_b32 v12, 8, v18")
    k.e("v_lshlrev_b32 v18, 4, v16")
    k.e("v_add_u32 v12, v12, v18")
    k.e("v_and_b32 v18, 1, v17")
    k.e("v_mul_u32_u24 v13, 147456, v18")
    k.e("v_add_u32 v13, v13, v12")
    k.e("v_lshlrev_b32 v18, 9, v18")
    k.e("v_add_u32 v12, v12, v18")
    k.e("s_lshr_b32 s60, s7, 4")
    k.e("s_lshl_b32 s61, s5, 2")
    k.e("s_add_u32 s60, s60, s61")
    k.e("s_mul_i32 s60, s60, 147456")
    k.e("s_mul_i32 s61, s9, 9")
    k.e("s_mul_i32 s62, s6, 5")
    k.e("s_add_u32 s61, s61, s62")
    k.e("s_lshl_b32 s61, s61, 9")
    k.e("s_add_u32 s60, s60, s61")
    k.e("v_add_u32 v12, s60, v12")
    k.e("v_add_u32 v13, s60, v13")
    k.wait_vm("cs")
    k.e("s_mov_b32 s60, 0x%x" % f2u(1.0 / 576.0))
    k.e("s_mov_b32 s61, 0x%x" % f2u(1e-5))
    for i in range(4):
        b = ACC + i * 8
        k.e("v_add_f32 v18, v%d, v%d" % (b, b + 2))
        k.e("v_add_f32 v19, v%d, v%d" % (b + 4, b + 6))
        k.e("v_add_f32 v20, v%d, v%d" % (b + 1, b + 3))
        k.e("v_add_f32 v21, v%d, v%d" % (b + 5, b + 7))
        k.e("v_add_f32 v18, v18, v19")
        k.e("v_add_f32 v20, v20, v21")
        k.e("v_mul_f32 v18, s60, v18")
        k.e("v_mul_f32 v20, s60, v20")
        k.e("v_fma_f32 v20, -v18, v18, v20")
        k.e("v_max_f32 v20, 0, v20")
        k.e("v_add_f32 v20, s61, v20")
        k.e("v_rsq_f32 v%d, v20" % (vR + i))
        k.e("v_sub_f32 v%d, 0, v18" % (vM + i))
    lab1 = k.newlab("wn1")
    lab_done = k.newlab("done")
    k.e("s_cmp_eq_u32 s6, 1")
    k.e("s_cbranch_scc1 %s" % lab1)
    st_l, st_v = list(k.lq), list(k.vq)
    c1 = -2.0 * 0.7978845608028654 * 1.4426950408889634
    for wn in range(2):
        NF = 5 if wn == 0 else 4
        NJ = 2 * NF
        if wn == 1:
            k.e("s_branch %s" % lab_done)
            k.label(lab1)
            k.lq, k.vq = list(st_l), list(st_v)
        acc = lambda i, c: ACC + (i * NJ + c) * 4
        for i in range(4):
            for c in range(NJ):
                for r in range(4):
                    k.e("v_mul_f32 v%d, v%d, v%d" % (acc(i, c) + r, vM + i, CSR + c * 4 + r))
        k.e("s_nop 1")

        def a_rd(buf, i):
            return vA + buf, i * 1024

        def b_rd(buf, c, j):
            f = c >> 1
            return vB + 4 * buf + (f & 3), (c & 1) * 12288 + j * 3072 + (f >> 2) * 128
        if wn == 0:
            stamp(k, 1)
        gemm_core(k, 18, NBUF, 4, acc, afr, bring, 2, a_rd, b_rd, dma, False, NJ=NJ)
        if wn == 0:
            stamp(k, 2)
        k.c("---- epilogue")
        k.e("v_mov_b32 v20, 1.0")
        k.e("v_mov_b32 v21, 1.0")
        k.e("s_mov_b32 s60, 0x%x" % f2u(c1))
        k.e("s_mov_b32 s61, 0x%x" % f2u(c1 * 0.044715))
        k.e("s_mov_b32 s62, 0")
        k.e("s_nop 7")
        for i in range(4):
            k.e("v_mul_f32 v22, s60, v%d" % (vR + i))
            k.e("v_mul_f32 v26, v%d, v%d" % (vR + i, vR + i))
            k.e("v_mul_f32 v24, s61, v%d" % (vR + i))
            k.e("v_mul_f32 v24, v24, v26")
            k.e("v_mov_b32 v23, v22")
            k.e("v_mov_b32 v25, v24")
            k.e("v_mov_b32 v27, v26")
            for f in range(NF):
                G, U = acc(i, 2 * f), acc(i, 2 * f + 1)
                T, P = 28, 32
                for h in range(2):
                    k.e("v_pk_mul_f32 %s, %s, %s" % (vr(T + 2 * h, 2), vr(G + 2 * h, 2), vr(G + 2 * h, 2)))
                for h in range(2):
                    k.e("v_pk_fma_f32 %s, %s, v[24:25], v[22:23]" % (vr(T + 2 * h, 2), vr(T + 2 * h, 2)))
                for h in range(2):
                    k.e("v_pk_mul_f32 %s, %s, %s" % (vr(T + 2 * h, 2), vr(T + 2 * h, 2), vr(G + 2 * h, 2)))
                for r in range(4):
                    k.e("v_exp_f32 v%d, v%d" % (T + r, T + r))
                for h in range(2):
                    k.e("v_pk_mul_f32 %s, %s, %s" % (vr(P + 2 * h, 2), vr(G + 2 * h, 2), vr(U + 2 * h, 2)))
                for h in range(2):
                    k.e("v_pk_add_f32 %s, %s, v[20:21]" % (vr(T + 2 * h, 2), vr(T + 2 * h, 2)))
                for r in range(4):
                    k.e("v_rcp_f32 v%d, v%d" % (T + r, T + r))
                for h in range(2):
                    k.e("v_pk_mul_f32 %s, %s, v[26:27]" % (vr(P + 2 * h, 2), vr(P + 2 * h, 2)))
                for h in range(2):
                    k.e("v_pk_mul_f32 %s, %s, %s" % (vr(P + 2 * h, 2), vr(P + 2 * h, 2), vr(T + 2 * h, 2)))
                if f < 4:
                    R = acc(i, 2 * (f & ~1)) + 2 * (f & 1)
                else:
                    R = acc(i & ~1, 8) + 2 * (i & 1)
                k.e("v_cvt_pk_bf16_f32 v%d, v%d, v%d" % (R, P, P + 1))
                k.e("v_cvt_pk_bf16_f32 v%d, v%d, v%d" % (R + 1, P + 2, P + 3))
                if (f < 4 and f & 1) or (f == 4 and i & 1):
                    B0 = R - 2
                    k.e("s_nop 1")
                    k.e("v_permlane16_swap_b32 v%d, v%d" % (B0, B0 + 2))
                    k.e("v_permlane16_swap_b32 v%d, v%d" % (B0 + 1, B0 + 3))
                    if f < 4:
                        k.vm("buffer_store_dwordx4 %s, v12, %s, s62 offen offset:%d sc1" % (vr(B0, 4), sr(SO, 4), (f - 1) * 512))
                    else:
                        k.e("s_sub_u32 s63, s62, 147456")
                        k.vm("buffer_store_dwordx4 %s, v13, %s, s63 offen offset:%d sc1" % (vr(B0, 4), sr(SO, 4), 4 * 512))
            k.e("s_add_u32 s62, s62, 147456")
    k.label(lab_done)
    srd(k, 64, P_WS, FLG_OFF + 32768, 1024)
    k.e("s_lshr_b32 s60, s7, 8")
    k.e("s_lshl_b32 s60, s60, 5")
    k.e("s_add_u32 s60, s60, s9")
    k.e("s_lshl_b32 s60, s60, 2")
    k.e("v_mov_b32 v1, s60")
    k.e("v_mov_b32 v2, 1")
    k.e("s_waitcnt vmcnt(0)")
    k.e("s_barrier")
    lab_nf = k.newlab("nf")
    k.e("s_cmp_lg_u32 s4, 0")
    k.e("s_cbranch_scc1 %s" % lab_nf)
    k.e("s_mov_b64 exec, 1")
    k.e("buffer_store_dword v2, v1, s[64:67], 0 offen sc1")
    k.e("s_mov_b64 exec, -1")
    k.label(lab_nf)
    k.lq, k.vq = [], []
    stamp(k, 3)
    stamp_flush(k, 6)
    k.e("s_mov_b64 exec, -1")
    return gen_k4(k)


def gen_k4(k):
    SB = 40960
    NBUF = 4
    k.stamp_slot = 3
    stamp(k, 0)
    SA, SBd, SP, SO, SH, SD = 36, 40, 44, 48, 52, 64
    sKA, sKB, sMA, sMB = 56, 57, 58, 59
    k.e("s_and_b32 s9, s2, 3")
    k.e("s_bfe_u32 s60, s2, 0x10002")
    k.e("s_lshr_b32 s61, s2, 3")
    k.e("s_lshr_b32 s62, s61, 2")
    k.e("s_lshl_b32 s60, s60, 3")
    k.e("s_add_u32 s60, s60, s62")
    k.e("s_lshl_b32 s7, s60, 7")
    k.e("s_and_b32 s61, s61, 3")
    k.e("s_mul_i32 s8, s61, 144")
    k.e("s_lshl_b32 s10, s60, 2")
    k.e("s_add_u32 s10, s10, s61")
    k.e("s_and_b32 s11, s4, 3")
    k.e("s_lshr_b32 s5, s11, 1")
    k.e("s_and_b32 s6, s11, 1")
    k.e("v_and_b32 v16, 15, v0")
    k.e("v_lshrrev_b32 v17, 4, v0")
    lab_comp = k.newlab("comp")
    k.e("s_cmp_lt_u32 s4, 4")
    k.e("s_cbranch_scc1 %s" % lab_comp)
    srd(k, SA, P_WS, ACT_OFF, S * F * 2)
    srd(k, SBd, P_WD, 0, F * D * 2)
    vOA, vOB = 2, 8
    k.e("s_lshr_b32 s60, s7, 4")
    k.e("s_lshl_b32 s61, s11, 1")
    k.e("s_add_u32 s60, s60, s61")
    k.e("s_mul_i32 s60, s60, 147456")
    k.e("s_mul_i32 s61, s9, 36864")
    k.e("s_add_u32 s60, s60, s61")
    k.e("v_lshlrev_b32 v19, 4, v0")
    k.e("v_add_u32 v%d, s60, v19" % vOA)
    k.e("v_add_u32 v%d, 1024, v%d" % (vOA + 1, vOA))
    k.e("v_add_u32 v%d, %d, v%d" % (vOA + 2, 147456, vOA))
    k.e("v_add_u32 v%d, %d, v%d" % (vOA + 3, 147456 + 1024, vOA))
    k.e("s_mul_i32 s64, s11, 48")
    k.e("s_lshl_b32 s62, s8, 1")
    k.e("s_and_b32 s62, s62, 0xffffff80")
    k.e("s_mul_i32 s61, s9, 1152 * 1152")
    k.e("s_add_u32 s62, s62, s61")
    k.e("s_movk_i32 s63, 1152")
    for i in range(6):
        b_dma_addr(k, vOB + i, 64, 8 * i, 3, 63, 62, reg_row=32)
    k.e("s_mov_b32 s%d, 0" % sKA)
    k.e("s_mov_b32 s%d, 0" % sKB)
    k.e("s_lshl_b32 s%d, s11, 12" % sMA)
    k.e("s_mul_i32 s%d, s11, 6144" % sMB)
    k.e("s_add_u32 s%d, s%d, 16384" % (sMB, sMB))

    def dmaA(st):
        b = (st % NBUF) * SB
        tag = ("dma", st)
        g = []
        for i in range(4):
            x = [("s_add_u32 m0, s%d, %d" % (sMA, b + i * 1024), None), ("s_nop 0", None),
                 ("buffer_load_dwordx4 v%d, %s, s%d offen sc1 lds" % (vOA + i, sr(SA, 4), sKA), tag)]
            if i == 3:
                x.append(("s_add_u32 s%d, s%d, 2048" % (sKA, sKA), None))
            g.append(x)
        return g

    def dmaB(st):
        b = (st % NBUF) * SB
        tag = ("dma", st)
        g = []
        for i in range(6):
            x = [("s_add_u32 m0, s%d, %d" % (sMB, b + i * 1024), None), ("s_nop 0", None)]
            x.append(("buffer_load_dwordx4 v%d, %s, s%d offen lds" % (vOB + i, sr(SBd, 4), sKB), tag))
            if i == 5:
                x.append(("s_add_u32 s%d, s%d, %d" % (sKB, sKB, 64 * 1152), None))
            g.append(x)
        return g

    def dma(st):
        return dmaA(st) + dmaB(st)
    for st in range(NBUF - 1):
        issue_groups(k, dmaB(st))
    srd(k, 84, P_WS, FLG_OFF + 32768, 1024)
    k.e("s_lshr_b32 s60, s7, 8")
    k.e("s_lshl_b32 s60, s60, 7")
    k.e("s_lshl_b32 s61, s9, 5")
    k.e("s_add_u32 s60, s60, s61")
    k.e("v_mov_b32 v20, s60")
    lab_p = k.newlab("pollA")
    lab_g = k.newlab("goA")
    k.label(lab_p)
    k.e("buffer_load_dwordx4 v[24:27], v20, s[84:87], 0 offen sc1")
    k.e("buffer_load_dwordx4 v[28:31], v20, s[84:87], 0 offen offset:16 sc1")
    k.e("s_waitcnt vmcnt(0)")
    k.e("v_add3_u32 v24, v24, v25, v26")
    k.e("v_add3_u32 v24, v24, v27, v28")
    k.e("v_add3_u32 v24, v24, v29, v30")
    k.e("v_add_u32 v24, v24, v31")
    k.e("s_nop 0")
    k.e("v_readfirstlane_b32 s61, v24")
    k.e("s_cmp_ge_u32 s61, 8")
    k.e("s_cbranch_scc1 %s" % lab_g)
    k.e("s_sleep 2")
    k.e("s_branch %s" % lab_p)
    k.label(lab_g)
    k.vq = []
    for st in range(NBUF - 1):
        issue_groups(k, dmaA(st))
    k.wait_vm(("dma", 0))
    k.e("s_barrier")
    for s_ in range(17):
        k.wait_vm(("dma", s_ + 1))
        k.e("s_barrier")
        if s_ + NBUF - 1 < 18:
            issue_groups(k, dma(s_ + NBUF - 1))
    k.e("s_endpgm")
    k.label(lab_comp)
    k.lq, k.vq = [], []
    srd(k, SP, P_WS, PART_OFF, 64 * 16 * 18432)
    srd(k, SO, P_OUT, 0, S * D * 2)
    srd(k, SH, P_WS, H_OFF, S * D * 2)
    srd(k, SD, P_WS, FLG_OFF, 256 * 128)
    vA, vB = 2, 24
    ACC = 112
    afr = [[48, 52], [56, 60]]
    bring = [64 + 4 * q for q in range(8)]
    acc = lambda i, nj: ACC + (i * 9 + nj) * 4
    k.e("s_lshl_b32 s60, s4, 12")
    k.e("v_lshlrev_b32 v18, 4, v0")
    k.e("v_add_u32 v%d, s60, v18" % vA)
    for b_ in range(1, 4):
        k.e("v_add_u32 v%d, %d, v%d" % (vA + b_, b_ * SB, vA))
    k.e("s_bfe_u32 s62, s8, 0x20004")
    k.e("s_movk_i32 s63, 16384")
    b_rd_addr3(k, vB, 62, 63)
    for b_ in range(1, 4):
        for q in range(4):
            k.e("v_add_u32 v%d, %d, v%d" % (vB + 4 * b_ + q, b_ * SB, vB + q))

    def a_rd(buf, i, kk):
        return vA + buf, i * 2048 + kk * 1024

    def b_rd(buf, nj, j, kk):
        return vB + 4 * buf + (nj & 3), kk * 12288 + j * 3072 + (nj >> 2) * 128
    gemm_core(k, 18, NBUF, 2, acc, afr, bring, 6, a_rd, b_rd, lambda st: [], True, sub=2)
    stamp(k, 1)
    k.c("---- epilogue: cross-workgroup reduction")
    k.e("v_lshlrev_b32 v18, 4, v0")
    k.e("s_lshl_b32 s60, s10, 2")
    k.e("s_add_u32 s60, s60, s9")
    k.e("s_lshl_b32 s60, s60, 2")
    k.e("s_add_u32 s60, s60, s4")
    k.e("s_mul_i32 s60, s60, 9216")
    k.e("v_add_u32 v21, s60, v18")
    k.e("s_lshl_b32 s60, s10, 2")
    k.e("s_add_u32 s61, s60, s4")
    k.e("s_lshl_b32 s61, s61, 7")
    k.e("s_lshl_b32 s62, s9, 2")
    k.e("s_add_u32 s61, s61, s62")
    k.e("v_mov_b32 v23, s61")
    k.e("s_add_u32 s60, s60, s9")
    k.e("s_lshl_b32 s60, s60, 7")
    k.e("v_mov_b32 v26, s60")
    k.e("v_mov_b32 v24, 1")
    k.e("s_nop 7")
    k.e("s_barrier")
    lab_own = k.newlab("own")
    lab_j = k.newlab("j")
    k.e("s_cmp_eq_u32 s4, s9")
    k.e("s_cbranch_scc1 %s" % lab_own)
    for t in range(9):
        a = ACC + 8 * t
        for d in range(4):
            k.e("v_cvt_pk_bf16_f32 v%d, v%d, v%d" % (a + d, a + 2 * d, a + 2 * d + 1))
        sreg = "0"
        off = t * 1024
        if off >= 4096:
            k.e("s_movk_i32 s61, %d" % (off & ~4095))
            sreg = "s61"
        k.e("buffer_store_dwordx4 %s, v21, %s, %s offen offset:%d sc1" % (vr(a, 4), sr(SP, 4), sreg, off & 4095))
    k.e("s_barrier")
    k.e("s_branch %s" % lab_j)
    k.label(lab_own)
    for t in range(18):
        k.e("ds_write_b128 v18, %s offset:%d" % (vr(ACC + 4 * t, 4), t * 1024))
    k.e("s_waitcnt lgkmcnt(0)")
    k.e("s_barrier")
    k.e("s_branch L_%s_end" % k.name)
    k.label(lab_j)
    k.e("s_sub_u32 s62, s4, s9")
    k.e("s_sub_u32 s62, s62, 1")
    k.e("s_and_b32 s62, s62, 3")
    k.e("s_mul_i32 s63, s62, 6144")
    k.e("v_add_u32 v22, s63, v18")
    OWN = 48
    for t in range(6):
        k.lds("ds_read_b128 %s, v22 offset:%d" % (vr(OWN + 4 * t, 4), t * 1024), "own")
    k.e("s_lshl_b32 s60, s9, 5")
    k.e("s_add_u32 s60, s60, s7")
    k.e("v_add_u32 v19, s60, v16")
    k.e("v_mul_u32_u24 v19, 1152, v19")
    k.e("v_lshlrev_b32 v20, 3, v17")
    k.e("s_lshl_b32 s60, s8, 1")
    k.e("v_add3_u32 v19, v19, v20, s60")
    fl_lane(k, 44, 45)
    k.e("s_lshr_b32 s60, s7, 4")
    k.e("s_lshl_b32 s61, s9, 1")
    k.e("s_add_u32 s60, s60, s61")
    k.e("s_mul_i32 s60, s60, 18432")
    k.e("s_lshl_b32 s61, s8, 5")
    k.e("s_add_u32 s60, s60, s61")
    k.e("v_add_u32 v44, s60, v44")
    k.e("s_waitcnt vmcnt(0)")
    k.e("s_mov_b64 exec, 1")
    k.e("buffer_store_dword v24, v23, %s, 0 offen sc1" % sr(SD, 4))
    k.e("s_mov_b64 exec, -1")
    k.e("s_mul_i32 s62, s62, 6")
    HR = 96
    for t in range(6):
        k.e("s_add_u32 s60, s62, %d" % t)
        k.e("s_cmp_ge_u32 s60, 9")
        k.e("s_cselect_b32 s61, %d, 0" % (16 * 1152 - 9 * 32))
        k.e("s_cselect_b32 s69, %d, 0" % (18432 - 9 * 512))
        k.e("s_lshl_b32 s68, s60, 9")
        k.e("s_add_u32 s68, s68, s69")
        k.e("s_lshl_b32 s60, s60, 5")
        k.e("s_add_u32 s%d, s60, s61" % (84 + t))
        k.e("buffer_load_dwordx2 %s, v44, %s, s68 offen sc1" % (vr(HR + 2 * t, 2), sr(SH, 4)))
    stamp(k, 2)
    lab_poll = k.newlab("poll")
    lab_go = k.newlab("go")
    k.label(lab_poll)
    k.e("buffer_load_dwordx4 v[28:31], v26, %s, 0 offen sc1" % sr(SD, 4))
    k.e("s_waitcnt vmcnt(0)")
    k.e("v_add_u32 v28, v28, v29")
    k.e("v_add3_u32 v28, v28, v30, v31")
    k.e("s_nop 0")
    k.e("v_readfirstlane_b32 s61, v28")
    k.e("s_cmp_ge_u32 s61, 3")
    k.e("s_cbranch_scc1 %s" % lab_go)
    k.e("s_sleep 1")
    k.e("s_branch %s" % lab_poll)
    k.label(lab_go)
    if STAMP:
        k.e("s_memtime s[82:83]")
        k.e("s_waitcnt lgkmcnt(0)")
        k.lq = []
    k.e("s_lshl_b32 s60, s10, 4")
    k.e("s_add_u32 s60, s60, s9")
    k.e("s_mul_i32 s60, s60, 9216")
    k.e("s_lshr_b32 s63, s63, 1")
    k.e("s_add_u32 s60, s60, s63")
    k.e("v_add_u32 v21, s60, v18")
    k.vq = []
    for o in range(1, 4):
        k.e("s_add_u32 s61, s9, %d" % o)
        k.e("s_and_b32 s61, s61, 3")
        k.e("s_mul_i32 s61, s61, %d" % (4 * 9216))
        for t in range(3):
            k.vm("buffer_load_dwordx4 %s, v21, %s, s61 offen offset:%d sc1" % (vr(ACC + 12 * (o - 1) + 4 * t, 4), sr(SP, 4), t * 1024), ("p", o, t))
    k.wait_lds("own")
    for t in range(6):
        a = OWN + 4 * t
        for d in range(2):
            k.e("v_lshlrev_b32 v42, 16, v%d" % (HR + 2 * t + d))
            k.e("v_and_b32 v43, 0xffff0000, v%d" % (HR + 2 * t + d))
            k.e("v_add_f32 v%d, v%d, v42" % (a + 2 * d, a + 2 * d))
            k.e("v_add_f32 v%d, v%d, v43" % (a + 2 * d + 1, a + 2 * d + 1))
    for o in range(1, 4):
        for t in range(6):
            a = OWN + 4 * t
            k.wait_vm(("p", o, t >> 1))
            for d in range(2):
                x = ACC + 12 * (o - 1) + 2 * t + d
                k.e("v_lshlrev_b32 v42, 16, v%d" % x)
                k.e("v_and_b32 v43, 0xffff0000, v%d" % x)
                k.e("v_add_f32 v%d, v%d, v42" % (a + 2 * d, a + 2 * d))
                k.e("v_add_f32 v%d, v%d, v43" % (a + 2 * d + 1, a + 2 * d + 1))
            if o == 3:
                k.e("v_cvt_pk_bf16_f32 v%d, v%d, v%d" % (HR + 2 * t, a, a + 1))
                k.e("v_cvt_pk_bf16_f32 v%d, v%d, v%d" % (HR + 1 + 2 * t, a + 2, a + 3))
                k.vm("buffer_store_dwordx2 %s, v19, %s, s%d offen" % (vr(HR + 2 * t, 2), sr(SO, 4), 84 + t))
    stamp(k, 3)
    stamp_flush(k, 7)
    footer(k)
    return k, 256


def gen_k5():
    k = K("red")
    nwg = S * D // 8 // 256
    k.e("s_cmp_ge_u32 s2, %d" % nwg)
    k.e("s_cbranch_scc1 L_%s_end" % k.name)
    k.e("s_load_dwordx16 s[16:31], s[0:1], 0")
    k.e("s_load_dwordx4 s[32:35], s[0:1], 64")
    k.e("s_lshl_b32 s3, s2, 8")
    k.e("v_add_u32 v1, s3, v0")
    k.e("v_lshlrev_b32 v2, 4, v1")
    k.e("v_lshlrev_b32 v3, 5, v1")
    k.e("s_waitcnt lgkmcnt(0)")
    srd(k, 36, P_WS, H_OFF, S * D * 2)
    srd(k, 40, P_WS, PART_OFF, 4 * S * D * 4)
    srd(k, 44, P_OUT, 0, S * D * 2)
    k.e("buffer_load_dwordx4 v[4:7], v2, s[36:39], 0 offen")
    for p in range(4):
        k.e("s_mov_b32 s48, 0x%x" % (p * S * D * 4))
        k.e("buffer_load_dwordx4 %s, v3, s[40:43], s48 offen" % vr(8 + p * 8, 4))
        k.e("buffer_load_dwordx4 %s, v3, s[40:43], s48 offen offset:16" % vr(12 + p * 8, 4))
    k.e("s_waitcnt vmcnt(0)")
    for r in range(8):
        k.e("v_add_f32 v%d, v%d, v%d" % (8 + r, 8 + r, 16 + r))
        k.e("v_add_f32 v%d, v%d, v%d" % (24 + r, 24 + r, 32 + r))
    for r in range(8):
        k.e("v_add_f32 v%d, v%d, v%d" % (8 + r, 8 + r, 24 + r))
    for d in range(4):
        k.e("v_lshlrev_b32 v40, 16, v%d" % (4 + d))
        k.e("v_and_b32 v41, 0xffff0000, v%d" % (4 + d))
        k.e("v_add_f32 v%d, v%d, v40" % (8 + 2 * d, 8 + 2 * d))
        k.e("v_add_f32 v%d, v%d, v41" % (9 + 2 * d, 9 + 2 * d))
    for d in range(4):
        k.e("v_cvt_pk_bf16_f32 v%d, v%d, v%d" % (4 + d, 8 + 2 * d, 9 + 2 * d))
    k.e("buffer_store_dwordx4 v[4:7], v2, s[44:47], 0 offen")
    footer(k)
    return k, nwg


def gen_k2():
    k = K("ffn")
    k.stamp_slot = 1
    SB = 4096 + 24576
    NBUF = 5
    header(k, 256)
    stamp(k, 0)
    SA, SBd, SX, SH, SST, SCP, SCS = 36, 40, 44, 48, 52, 64, 96
    sKA, sKB, sMA, sMB = 56, 57, 58, 59
    k.e("s_and_b32 s9, s2, 3")
    k.e("s_lshr_b32 s60, s2, 2")
    k.e("s_lshl_b32 s7, s60, 5")
    k.e("s_mul_i32 s8, s9, 144")
    k.e("s_lshr_b32 s5, s4, 1")
    k.e("s_and_b32 s6, s4, 1")
    srd(k, SA, P_WS, O_OFF, S * D * 2)
    srd(k, SBd, P_WO, 0, D * D * 2)
    srd(k, SX, P_X, 0, S * D * 2)
    srd(k, SH, P_WS, H_OFF, S * D * 2)
    srd(k, SST, P_WS, ST_OFF, S * 32)
    srd(k, SCP, P_WS, CP_OFF, 32 * 2 * F * 4)
    srd(k, SCS, P_WS, CS_OFF, 2 * F * 4)
    lab_idle = k.newlab("idle")
    lab_p2done = k.newlab("p2done")
    k.e("s_cmp_ge_u32 s4, 4")
    k.e("s_cbranch_scc1 %s" % lab_idle)
    vOA, vOB = 2, 8
    vA, vB = 24, 28
    ACC = 112
    afr = [[48], [52]]
    bring = [56, 60, 64, 68, 72, 76]
    acc = lambda i, nj: ACC + nj * 4
    XR = 80
    CPR = 184
    k.e("v_and_b32 v16, 15, v0")
    k.e("v_lshrrev_b32 v17, 4, v0")
    k.e("s_mul_i32 s60, s2, 36")
    k.e("v_add_u32 v18, s60, v0")
    k.e("v_lshlrev_b32 v30, 2, v18")
    for p in range(32):
        k.e("s_mov_b32 s61, 0x%x" % (p * 2 * F * 4))
        k.vm("buffer_load_dword v%d, v30, %s, s61 offen" % (CPR + p, sr(SCP, 4)), "cp")
    k.e("s_lshl_b32 s60, s5, 4")
    k.e("s_add_u32 s60, s60, s7")
    k.e("v_add_u32 v31, s60, v16")
    k.e("s_movk_i32 s63, 1152")
    k.e("v_mul_lo_u32 v18, v31, s63")
    k.e("v_lshlrev_b32 v19, 3, v17")
    k.e("s_lshl_b32 s62, s8, 1")
    k.e("v_add3_u32 v32, v18, v19, s62")
    for nj in range(9):
        k.vm("buffer_load_dwordx2 %s, v32, %s, 0 offen offset:%d" % (vr(XR + 2 * nj, 2), sr(SX, 4), nj * 32), "x")
    k.e("s_lshr_b32 s60, s7, 4")
    k.e("s_add_u32 s60, s60, s5")
    k.e("s_mul_i32 s60, s60, 18432")
    k.e("s_lshl_b32 s61, s6, 10")
    k.e("s_add_u32 s61, s60, s61")
    k.e("v_lshlrev_b32 v19, 4, v0")
    k.e("v_add_u32 v%d, s61, v19" % vOA)
    fl_lane(k, 37, 18)
    k.e("s_lshl_b32 s61, s8, 5")
    k.e("s_add_u32 s60, s60, s61")
    k.e("v_add_u32 v37, s60, v37")
    k.e("s_mul_i32 s88, s4, 48")
    k.e("s_lshl_b32 s62, s8, 1")
    k.e("s_and_b32 s62, s62, 0xffffff80")
    k.e("s_movk_i32 s63, 1152")
    for i in range(6):
        b_dma_addr(k, vOB + i, 88, 8 * i, 3, 63, 62, reg_row=32)
    k.e("s_mov_b32 s%d, 0" % sKA)
    k.e("s_mov_b32 s%d, 0" % sKB)
    k.e("s_lshl_b32 s%d, s4, 10" % sMA)
    k.e("s_mul_i32 s%d, s4, 6144" % sMB)
    k.e("s_add_u32 s%d, s%d, 4096" % (sMB, sMB))

    def dma(st):
        b = (st % NBUF) * SB
        tag = ("dma", st)
        g = [[("s_add_u32 m0, s%d, %d" % (sMA, b), None), ("s_nop 0", None),
              ("buffer_load_dwordx4 v%d, %s, s%d offen lds" % (vOA, sr(SA, 4), sKA), tag)]]
        for i in range(6):
            x = [("s_add_u32 m0, s%d, %d" % (sMB, b + i * 1024), None), ("s_nop 0", None)]
            x.append(("buffer_load_dwordx4 v%d, %s, s%d offen lds" % (vOB + i, sr(SBd, 4), sKB), tag))
            if i == 5:
                x.append(("s_add_u32 s%d, s%d, 2048" % (sKA, sKA), None))
                x.append(("s_add_u32 s%d, s%d, %d" % (sKB, sKB, 64 * 1152), None))
            g.append(x)
        return g
    for st in range(NBUF - 1):
        issue_groups(k, dma(st))
    k.e("v_lshlrev_b32 v18, 4, v0")
    k.e("v_add_u32 v%d, s%d, v18" % (vA, sMA))
    for q in range(1, 3):
        k.e("v_add_u32 v%d, %d, v%d" % (vA + q, 2 * SB * q, vA))
    vB = 100
    k.e("s_bfe_u32 s62, s8, 0x20004")
    k.e("s_mul_i32 s63, s6, 12288")
    k.e("s_add_u32 s63, s63, 4096")
    b_rd_addr3(k, vB, 62, 63)
    for b_ in range(1, 3):
        for q in range(4):
            k.e("v_add_u32 v%d, %d, v%d" % (vB + 4 * b_ + q, 2 * b_ * SB, vB + q))

    def a_rd(buf, i):
        return vA + (buf >> 1), (buf & 1) * SB

    def b_rd(buf, nj, j):
        return vB + 4 * (buf >> 1) + (nj & 3), (buf & 1) * SB + j * 3072 + (nj >> 2) * 128
    stamp(k, 1)
    gemm_core(k, 9, NBUF, 1, acc, afr, bring, 4, a_rd, b_rd, dma, True)
    stamp(k, 2)
    k.c("---- epilogue")
    k.e("s_nop 7")
    k.e("s_nop 7")
    k.e("s_barrier")
    k.wait_vm("x")
    for w_ in (16, 8, 4, 2, 1):
        for p in range(w_):
            k.e("v_add_f32 v%d, v%d, v%d" % (CPR + p, CPR + p, CPR + p + w_))
    k.e("s_mov_b32 exec_lo, -1")
    k.e("s_mov_b32 exec_hi, 0xf")
    k.vm("buffer_store_dword v%d, v30, %s, 0 offen sc1" % (CPR, sr(SCS, 4)))
    k.e("s_mov_b64 exec, -1")
    k.e("s_mul_i32 s60, s5, 9216")
    k.e("v_lshlrev_b32 v18, 4, v0")
    k.e("v_add_u32 v19, s60, v18")
    lab_recv = k.newlab("recv")
    k.e("s_cmp_eq_u32 s6, 0")
    k.e("s_cbranch_scc1 %s" % lab_recv)
    for nj in range(9):
        k.lds("ds_write_b128 v19, %s offset:%d" % (vr(acc(0, nj), 4), nj * 1024))
    k.wait_lds_all()
    k.e("s_barrier")
    k.e("s_branch %s" % lab_p2done)
    k.label(lab_recv)
    k.e("s_barrier")
    R = 48
    RX = 148
    for nj in range(9):
        k.lds("ds_read_b128 %s, v19 offset:%d" % (vr(RX + nj * 4, 4), nj * 1024), ("x", nj))
    k.e("v_mov_b32 v40, 0")
    k.e("v_mov_b32 v41, 0")
    for nj in range(9):
        k.wait_lds(("x", nj))
        a = acc(0, nj)
        for r in range(4):
            k.e("v_add_f32 v%d, v%d, v%d" % (a + r, a + r, RX + nj * 4 + r))
        for d in range(2):
            k.e("v_lshlrev_b32 v42, 16, v%d" % (XR + 2 * nj + d))
            k.e("v_and_b32 v43, 0xffff0000, v%d" % (XR + 2 * nj + d))
            k.e("v_add_f32 v%d, v%d, v42" % (a + 2 * d, a + 2 * d))
            k.e("v_add_f32 v%d, v%d, v43" % (a + 2 * d + 1, a + 2 * d + 1))
        k.e("v_cvt_pk_bf16_f32 v%d, v%d, v%d" % (XR + 2 * nj, a, a + 1))
        k.e("v_cvt_pk_bf16_f32 v%d, v%d, v%d" % (XR + 2 * nj + 1, a + 2, a + 3))
        if nj == 8:
            k.e("s_movk_i32 s60, 4096")
        k.vm("buffer_store_dwordx2 %s, v37, %s, %s offen offset:%d" % (vr(XR + 2 * nj, 2), sr(SH, 4), "s60" if nj == 8 else "0", (nj * 512) & 4095) + " sc1")
        for d in range(2):
            k.e("v_lshlrev_b32 v42, 16, v%d" % (XR + 2 * nj + d))
            k.e("v_and_b32 v43, 0xffff0000, v%d" % (XR + 2 * nj + d))
            k.e("v_add_f32 v40, v40, v42")
            k.e("v_fmac_f32 v41, v42, v42")
            k.e("v_add_f32 v40, v40, v43")
            k.e("v_fmac_f32 v41, v43, v43")
    k.e("v_xor_b32 v44, 16, v0")
    k.e("v_lshlrev_b32 v44, 2, v44")
    k.e("v_xor_b32 v45, 32, v0")
    k.e("v_lshlrev_b32 v45, 2, v45")
    for a in (44, 45):
        k.e("ds_bpermute_b32 v42, v%d, v40" % a)
        k.e("ds_bpermute_b32 v43, v%d, v41" % a)
        k.e("s_waitcnt lgkmcnt(0)")
        k.e("v_add_f32 v40, v40, v42")
        k.e("v_add_f32 v41, v41, v43")
    k.e("v_lshlrev_b32 v42, 5, v31")
    k.e("s_lshl_b32 s60, s9, 3")
    k.e("v_add_u32 v42, s60, v42")
    k.e("s_mov_b64 exec, 0xffff")
    k.e("buffer_store_dwordx2 v[40:41], v42, %s, 0 offen sc1" % sr(SST, 4))
    k.e("s_mov_b64 exec, -1")
    stamp(k, 3)
    stamp_flush(k, 6)
    k.e("s_mov_b64 exec, -1")
    k.e("s_branch %s" % lab_p2done)
    k.label(lab_idle)
    for _ in range(11):
        k.e("s_barrier")
    k.label(lab_p2done)
    srd(k, 64, P_WS, FLG_OFF + 32768 + 1024, 1024)
    k.e("s_lshl_b32 s60, s2, 2")
    k.e("v_mov_b32 v1, s60")
    k.e("v_mov_b32 v2, 1")
    k.e("s_waitcnt vmcnt(0) lgkmcnt(0)")
    k.e("s_barrier")
    lab_nf = k.newlab("nf")
    k.e("s_cmp_lg_u32 s4, 0")
    k.e("s_cbranch_scc1 %s" % lab_nf)
    k.e("s_mov_b64 exec, 1")
    k.e("buffer_store_dword v2, v1, s[64:67], 0 offen sc1")
    k.e("s_mov_b64 exec, -1")
    k.label(lab_nf)
    k.lq, k.vq = [], []
    return gen_k3(k)


def gen_k1():
    k = K("qkv")
    WS_, NW = 24576, 5
    XS_, NX = 10240, 3
    XB = WS_ * NW
    QP = 976
    STO = 80 * QP
    header(k, 256)
    stamp(k, 0)
    SX, SW, SO, SG, SCP = 36, 40, 44, 48, 52
    sKW, sKX, sMW, sMX = 56, 57, 58, 59
    k.e("s_and_b32 s9, s2, 7")
    k.e("s_lshr_b32 s10, s2, 3")
    srd(k, SX, P_X, 0, S * D * 2)
    srd(k, SW, P_WQKV, 0, D * 3 * D * 2)
    srd(k, SO, P_WS, O_OFF, S * D * 2)
    srd(k, SCP, P_WS, CP_OFF, 32 * 2 * F * 4)
    srd(k, 84, P_WS, FLG_OFF, 32768 + 2048)
    k.e("s_lshl_b32 s60, s2, 7")
    k.e("v_mov_b32 v1, s60")
    k.e("s_lshl_b32 s60, s2, 2")
    k.e("s_add_u32 s60, s60, 32768")
    k.e("v_mov_b32 v2, s60")
    for r in range(4):
        k.e("v_mov_b32 v%d, 0" % (20 + r))
    k.e("s_mov_b64 exec, 1")
    k.e("buffer_store_dwordx4 v[20:23], v1, s[84:87], 0 offen")
    k.e("buffer_store_dword v20, v2, s[84:87], 0 offen")
    k.e("buffer_store_dword v20, v2, s[84:87], 0 offen offset:1024")
    k.e("s_mov_b64 exec, -1")
    k.e("s_nop 1")
    if "newtouch" not in EXP:
        touch(k, 96, P_WQKV, D * 3 * D * 2, 2048, 8, 18, 1)
        touch(k, 96, P_X, S * D * 2, 2048, 8, 18, 1)
    else:
        k.e("s_lshl_b32 s60, s10, 6")
        k.e("s_sub_u32 s60, s60, 16")
        k.e("s_mul_i32 s60, s60, 1152")
        k.e("s_mul_i32 s61, s4, 90 * 128")
        k.e("s_add_u32 s60, s60, s61")
        k.e("v_lshlrev_b32 v18, 7, v0")
        k.e("v_add_u32 v18, s60, v18")
        k.e("v_add_u32 v19, 8192, v18")
        k.vm("buffer_load_dword v1, v18, %s, 0 offen" % sr(SX, 4), "touch")
        k.e("s_mov_b64 exec, 0x3ffffff")
        k.vm("buffer_load_dword v1, v19, %s, 0 offen" % sr(SX, 4), "touch")
        k.e("s_mov_b64 exec, -1")
        k.e("s_mul_i32 s60, s4, 14")
        k.e("v_add_u32 v18, s60, v0")
        k.e("v_mul_u32_u24 v19, 10923, v18")
        k.e("v_lshrrev_b32 v19, 16, v19")
        k.e("v_mul_u32_u24 v20, 6, v19")
        k.e("v_sub_u32 v18, v18, v20")
        k.e("v_lshrrev_b32 v20, 1, v18")
        k.e("v_mul_u32_u24 v20, 1152, v20")
        k.e("v_and_b32 v18, 1, v18")
        k.e("v_lshlrev_b32 v18, 7, v18")
        k.e("s_mul_i32 s60, s10, 18")
        k.e("v_add_u32 v19, s60, v19")
        k.e("v_mul_u32_u24 v19, 3456, v19")
        k.e("s_mul_i32 s60, s9, 144")
        k.e("s_and_b32 s60, s60, 0xffffff80")
        k.e("v_add3_u32 v18, v18, v19, v20")
        k.e("v_add_u32 v18, s60, v18")
        k.e("s_mov_b64 exec, 0x3fff")
        k.vm("buffer_load_dword v1, v18, %s, 0 offen" % sr(SW, 4), "touch")
        k.e("s_mov_b64 exec, -1")
    k.e("v_and_b32 v16, 15, v0")
    k.e("v_lshrrev_b32 v17, 4, v0")
    vO = 2
    k.e("s_mul_i32 s64, s4, 24")
    k.e("s_mul_i32 s65, s9, 144")
    k.e("s_and_b32 s62, s65, 0xffffff80")
    k.e("s_movk_i32 s63, 3456")
    for t in range(3):
        b_dma_addr(k, vO + t, 64, 8 * t, 2, 63, 62, reg_col=1152)
    k.e("s_lshl_b32 s60, s10, 6")
    k.e("s_lshl_b32 s61, s4, 4")
    k.e("s_add_u32 s60, s60, s61")
    k.e("s_sub_u32 s60, s60, 16")
    k.e("v_add_u32 v18, s60, v16")
    k.e("s_movk_i32 s63, 1152")
    k.e("v_mul_lo_u32 v18, v18, s63")
    k.e("v_lshlrev_b32 v19, 4, v17")
    k.e("v_add_u32 v%d, v18, v19" % (vO + 3))
    k.e("v_add_u32 v%d, 64, v%d" % (vO + 4, vO + 3))
    k.e("s_mov_b32 s%d, 0" % sKW)
    k.e("s_mov_b32 s%d, 0" % sKX)
    k.e("s_mul_i32 s%d, s4, 3072" % sMW)
    k.e("s_lshl_b32 s%d, s4, 11" % sMX)

    def dmaW(st):
        b = (st % NW) * WS_
        g = []
        for t in range(3):
            x = [("s_add_u32 m0, s%d, %d" % (sMW, b + t * 1024), None), ("s_nop 0", None),
                 ("buffer_load_dwordx4 v%d, %s, s%d offen lds" % (vO + t, sr(SW, 4), sKW), ("dma", st))]
            if t == 2:
                x.append(("s_add_u32 s%d, s%d, %d" % (sKW, sKW, 32 * 3456), None))
            g.append(x)
        return g

    def dmaX(xs):
        b = XB + (xs % NX) * XS_
        g = []
        for t in range(2):
            x = [("s_add_u32 m0, s%d, %d" % (sMX, b + t * 1024), None), ("s_nop 0", None),
                 ("buffer_load_dwordx4 v%d, %s, s%d offen lds" % (vO + 3 + t, sr(SX, 4), sKX), ("dma", 2 * xs))]
            if t == 1:
                x.append(("s_add_u32 s%d, s%d, 128" % (sKX, sKX), None))
            g.append(x)
        return g
    CX = 144
    lab_cs3 = k.newlab("cs3")
    k.e("s_mul_i32 s13, s2, 3")
    k.e("s_add_u32 s13, s13, s4")
    k.e("s_sub_u32 s13, s13, 5")
    k.e("s_mul_i32 s14, s13, 3641")
    k.e("s_lshr_b32 s14, s14, 16")
    k.e("s_mul_i32 s15, s14, 18")
    k.e("s_sub_u32 s15, s13, s15")
    k.e("s_lshl_b32 s60, s4, 5")
    k.e("s_add_u32 s61, s60, 160")
    k.e("s_add_u32 s62, s60, 320")
    k.e("s_sub_u32 s60, s4, 5")
    k.e("s_lshl_b32 s60, s60, 6")
    k.e("s_add_u32 s63, s60, 32")
    k.e("s_min_u32 s63, s63, 128")
    k.e("s_cmp_lt_u32 s4, 5")
    k.e("s_cselect_b32 s11, s61, s60")
    k.e("s_cselect_b32 s12, s62, s63")
    k.e("s_cselect_b32 s66, 8192, 0")
    k.e("s_cselect_b32 s67, 16384, 0")
    k.e("s_cselect_b32 s68, 160, 0")
    k.e("s_cselect_b32 s69, 320, 0")
    vB0, vB1, vA, vS = 20, 25, 30, 33
    swap23_lane_rowpos(k, 8, 0, 18, 19)
    k.e("v_bfe_u32 v9, v8, 1, 2")
    k.e("v_and_b32 v10, 1, v8")
    k.e("v_lshlrev_b32 v8, 8, v8")
    k.e("v_and_b32 v11, 3, v0")
    k.e("v_lshlrev_b32 v11, 3, v11")
    k.e("s_and_b32 s65, s65, 127")
    for (vd, sreg, sreb, ssub) in ((vB0, 11, 66, 68), (vB1, 12, 67, 69)):
        k.e("s_sub_u32 s60, s%d, s%d" % (sreg, ssub))
        k.e("s_add_u32 s60, s60, s65")
        k.e("v_add_u32 v18, s60, v11")
        k.e("v_bfe_u32 v19, v18, 7, 1")
        k.e("v_xor_b32 v19, v19, v10")
        k.e("v_lshlrev_b32 v19, 7, v19")
        k.e("v_bfe_u32 v12, v18, 5, 2")
        k.e("v_xor_b32 v12, v12, v9")
        k.e("v_lshlrev_b32 v12, 5, v12")
        k.e("v_and_b32 v18, 31, v18")
        k.e("v_add3_u32 v18, v18, v19, v12")
        k.e("v_add3_u32 v%d, v18, v8, s%d" % (vd, sreb))
    k.e("v_lshlrev_b32 v%d, 4, v0" % vA)
    k.e("v_add_u32 v%d, %d, v%d" % (vA, XB, vA))
    k.e("v_add_u32 v%d, s%d, v%d" % (vS, sMX, vA))
    for b in range(1, NW):
        for v in (vB0, vB1):
            k.e("v_add_u32 v%d, %d, v%d" % (v + b, b * WS_, v))
    for b in range(1, NX):
        for v in (vA, vS):
            k.e("v_add_u32 v%d, %d, v%d" % (v + b, b * XS_, v))
    ONES = 36
    for r in range(4):
        k.e("v_mov_b32 v%d, 0x3f803f80" % (ONES + r))
    ACC = 40
    acc = lambda sl, mi: ACC + (sl * 6 + mi) * 4
    SACC = 88
    AF = [[96 + 4 * mi for mi in range(6)], [120 + 4 * mi for mi in range(6)]]
    BF = [[216, 220], [224, 228]]
    lab_q = k.newlab("qpath")
    lab_post = k.newlab("post")
    k.e("s_cmp_ge_u32 s4, 5")
    k.e("s_cbranch_scc1 %s" % lab_q)
    for path in range(2):
        if path == 1:
            k.e("s_branch %s" % lab_post)
            k.label(lab_q)
        k.lq, k.vq = [], []
        mis = [0, 1, 2, 3, 4] if path == 0 else [1, 2, 3, 4]
        if path == 0:
            issue_groups(k, dmaX(0) + dmaW(0) + dmaW(1) + dmaX(1) + dmaW(2) + dmaW(3))
            touch(k, 96, P_WO, D * D * 2, 2048, 8, 18, 1)
        else:
            issue_groups(k, dmaW(0) + dmaW(1) + dmaW(2) + dmaW(3))
            touch(k, 96, P_WO, D * D * 2, 2048, 8, 18, 1)
            k.e("s_cmp_lt_u32 s15, 9")
            k.e("s_cselect_b32 s%d, s%d, s%d" % (SG, P_WG, P_WU))
            k.e("s_cselect_b32 s%d, s%d, s%d" % (SG + 1, P_WG + 1, P_WU + 1))
            k.e("s_cselect_b32 s63, 0, 9")
            k.e("s_cmp_lt_u32 s13, 576")
            k.e("s_cselect_b32 s%d, 0x%x, 0" % (SG + 2, D * F * 2))
            k.e("s_mov_b32 s%d, 0x00020000" % (SG + 3))
            k.e("s_sub_u32 s63, s15, s63")
            k.e("s_lshl_b32 s63, s63, 10")
            k.e("s_mul_i32 s88, s14, 18 * 9216")
            k.e("s_add_u32 s88, s63, s88")
            k.e("v_lshlrev_b32 v7, 4, v0")

        def rdl(s):
            xs, kk = divmod(s, 2)
            out = []
            for sl in range(2):
                for j in range(2):
                    out.append("ds_read_b64_tr_b16 %s, v%d offset:%d" % (vr(BF[s % 2][sl] + 2 * j, 2), (vB0, vB1)[sl] + s % NW, j * 2048))
            for mi in mis:
                out.append("ds_read_b128 %s, v%d offset:%d" % (vr(AF[s % 2][mi], 4), vA + xs % NX, (mi * 2 + kk) * 1024))
            if path == 0:
                out.append("ds_read_b128 %s, v%d offset:%d" % (vr(AF[s % 2][5], 4), vS + xs % NX, kk * 1024))
            return out
        if path == 0:
            stamp(k, 1)
        k.wait_vm(("dma", 0))
        k.e("s_barrier")
        for x in rdl(0):
            k.lds(x, ("f", 0))
        for s in range(18):
            k.c("---- step %d" % s)
            groups = []
            reads = []
            if s + 1 < 18:
                k.wait_vm(("dma", s + 1))
                k.e("s_barrier")
                if path == 0 and s % 2 == 0 and s // 2 + 2 < 9:
                    groups += dmaX(s // 2 + 2)
                if s + NW - 1 < 18:
                    groups += dmaW(s + NW - 1)
                reads = rdl(s + 1)
            if path == 1:
                groups.append([("buffer_load_dwordx4 %s, v7, %s, s88 offen" % (vr(CX + 4 * s, 4), sr(SG, 4)), "cs"),
                               ("s_add_u32 s88, s88, 9216", None)])
            k.wait_lds(("f", s))
            mf = []
            for sl in range(2):
                for mi in mis + [5]:
                    a = acc(sl, mi)
                    cc = "0" if s == 0 else vr(a, 4)
                    bop = vr(AF[s % 2][mi], 4) if mi < 5 else vr(ONES, 4)
                    mf.append("v_mfma_f32_16x16x32_bf16 %s, %s, %s, %s" % (vr(a, 4), vr(BF[s % 2][sl], 4), bop, cc))
            if path == 0:
                sf = vr(AF[s % 2][5], 4)
                mf.append("v_mfma_f32_16x16x32_bf16 %s, %s, %s, %s" % (vr(SACC, 4), vr(ONES, 4), sf, "0" if s == 0 else vr(SACC, 4)))
                mf.append("v_mfma_f32_16x16x32_bf16 %s, %s, %s, %s" % (vr(SACC + 4, 4), sf, sf, "0" if s == 0 else vr(SACC + 4, 4)))
            for n, m in enumerate(mf):
                k.e(m)
                if n < len(reads):
                    k.lds(reads[n], ("f", s + 1))
                g0 = len(mf) - len(groups)
                if n >= g0:
                    issue_groups(k, [groups[n - g0]])
    k.label(lab_post)
    k.lq, k.vq = [], []
    stamp(k, 2)
    k.e("s_nop 7")
    k.e("s_nop 7")
    k.e("s_barrier")
    k.e("v_and_b32 v18, 3, v0")
    k.e("v_cmp_eq_u32 vcc, 1, v18")
    k.e("v_mov_b32 v19, v%d" % (SACC + 4))
    k.e("s_nop 0")
    k.e("v_cndmask_b32 v19, v19, v%d, vcc" % (SACC + 5))
    k.e("v_cmp_eq_u32 vcc, 2, v18")
    k.e("s_nop 1")
    k.e("v_cndmask_b32 v19, v19, v%d, vcc" % (SACC + 6))
    k.e("v_cmp_eq_u32 vcc, 3, v18")
    k.e("s_nop 1")
    k.e("v_cndmask_b32 v19, v19, v%d, vcc" % (SACC + 7))
    k.e("s_mov_b32 s60, 0x%x" % f2u(1.0 / 576.0))
    k.e("s_mov_b32 s61, 0x%x" % f2u(1e-5))
    k.e("v_mul_f32 v8, s60, v%d" % SACC)
    k.e("v_mul_f32 v19, s60, v19")
    k.e("v_fma_f32 v19, -v8, v8, v19")
    k.e("v_max_f32 v19, 0, v19")
    k.e("v_add_f32 v19, s61, v19")
    k.e("v_rsq_f32 v9, v19")
    k.e("v_sub_f32 v8, 0, v8")
    k.e("v_lshrrev_b32 v18, 2, v16")
    k.e("v_cmp_eq_u32 vcc, v18, v17")
    k.e("s_lshl_b32 s60, s4, 7")
    k.e("v_lshlrev_b32 v18, 3, v16")
    k.e("v_add_u32 v18, s60, v18")
    k.e("v_add_u32 v18, %d, v18" % STO)
    k.e("s_and_saveexec_b64 s[60:61], vcc")
    k.e("ds_write_b64 v18, v[8:9]")
    k.e("s_mov_b64 exec, -1")
    k.e("s_waitcnt lgkmcnt(0)")
    k.e("s_barrier")
    k.e("v_lshlrev_b32 v18, 3, v16")
    k.e("v_add_u32 v18, %d, v18" % STO)
    for mi in range(5):
        k.lds("ds_read_b64 %s, v18 offset:%d" % (vr(96 + 2 * mi, 2), mi * 128), "st")
    for sl, sreg in ((0, 11), (1, 12)):
        k.e("s_lshl_b32 s60, s%d, 1" % sreg)
        k.e("v_mul_u32_u24 v18, %d, v16" % QP)
        k.e("v_lshlrev_b32 v19, 4, v17")
        k.e("v_add3_u32 v%d, v18, v19, s60" % (8 + sl))
    k.wait_lds("st")
    for sl in range(2):
        cw = acc(sl, 5)
        for mi in range(5):
            a = acc(sl, mi)
            for r in range(4):
                k.e("v_fma_f32 v%d, v%d, v%d, v%d" % (a + r, 96 + 2 * mi, cw + r, a + r))
            for r in range(4):
                k.e("v_mul_f32 v%d, v%d, v%d" % (a + r, 97 + 2 * mi, a + r))
            k.e("v_cvt_pk_bf16_f32 v18, v%d, v%d" % (a, a + 1))
            k.e("v_cvt_pk_bf16_f32 v19, v%d, v%d" % (a + 2, a + 3))
            k.e("v_lshlrev_b32 v%d, 16, v18" % a)
            k.e("v_and_b32 v%d, 0xffff0000, v18" % (a + 1))
            k.e("v_lshlrev_b32 v%d, 16, v19" % (a + 2))
            k.e("v_and_b32 v%d, 0xffff0000, v19" % (a + 3))
            k.lds("ds_write_b128 v%d, %s offset:%d" % (8 + sl, vr(a, 4), mi * 16 * QP))
    k.wait_lds_all()
    k.e("s_barrier")
    k.e("s_cmp_ge_u32 s4, 4")
    k.e("s_cbranch_scc1 %s" % lab_cs3)
    k.e("v_lshrrev_b32 v18, 2, v0")
    k.e("s_lshl_b32 s60, s4, 4")
    k.e("v_add_u32 v18, s60, v18")
    k.e("v_and_b32 v19, 3, v0")
    k.e("v_mul_u32_u24 v20, %d, v18" % QP)
    k.e("v_mul_u32_u24 v21, 72, v19")
    k.e("v_add_u32 v20, v20, v21")
    Q = 32
    KV = 52
    L = 108
    O = 116
    for d in range(9):
        k.lds("ds_read_b64 %s, v20 offset:%d" % (vr(Q + 2 * d, 2), 16 * QP + d * 8), "q")
    seq = [("k", j) for j in range(8)] + [("v", j) for j in range(8)]

    def rdkv(n):
        kind, j = seq[n]
        col = 320 if kind == "k" else 640
        for d in range(9):
            k.lds("ds_read_b64 %s, v20 offset:%d" % (vr(KV + (n % 3) * 18 + 2 * d, 2), (16 - 2 * j) * QP + col + d * 8), seq[n])
    rdkv(0)
    for j in range(8):
        rdkv(j + 1)
        k.wait_lds(("k", j))
        b = KV + (j % 3) * 18
        k.e("v_mul_f32 v%d, v%d, v%d" % (L + j, Q, b))
        k.e("v_mul_f32 v24, v%d, v%d" % (Q + 1, b + 1))
        for d in range(2, 18, 2):
            k.e("v_fmac_f32 v%d, v%d, v%d" % (L + j, Q + d, b + d))
            k.e("v_fmac_f32 v24, v%d, v%d" % (Q + d + 1, b + d + 1))
        k.e("v_add_f32 v%d, v%d, v24" % (L + j, L + j))
    rdkv(9)
    k.e("s_mov_b32 s60, 0x%x" % f2u(18 ** -0.5))
    k.e("s_lshl_b32 s61, s10, 6")
    k.e("v_add_u32 v22, s61, v18")
    k.e("v_mov_b32 v23, 0x%x" % f2u(-1e9))
    for j in range(8):
        k.e("v_mul_f32 v%d, s60, v%d" % (L + j, L + j))
    for j in range(1, 8):
        k.e("v_cmp_le_u32 vcc, %d, v22" % (2 * j))
        k.e("s_nop 1")
        k.e("v_cndmask_b32 v%d, v23, v%d, vcc" % (L + j, L + j))
    k.e("v_max3_f32 v24, v%d, v%d, v%d" % (L, L + 1, L + 2))
    k.e("v_max3_f32 v24, v24, v%d, v%d" % (L + 3, L + 4))
    k.e("v_max3_f32 v24, v24, v%d, v%d" % (L + 5, L + 6))
    k.e("v_max_f32 v24, v24, v%d" % (L + 7))
    k.e("s_mov_b32 s60, 0x%x" % f2u(1.4426950408889634))
    for j in range(8):
        k.e("v_sub_f32 v%d, v%d, v24" % (L + j, L + j))
    for j in range(8):
        k.e("v_mul_f32 v%d, s60, v%d" % (L + j, L + j))
    for j in range(8):
        k.e("v_exp_f32 v%d, v%d" % (L + j, L + j))
    k.e("s_nop 0")
    k.e("v_add_f32 v24, v%d, v%d" % (L, L + 1))
    for j in range(2, 8):
        k.e("v_add_f32 v24, v24, v%d" % (L + j))
    k.e("v_rcp_f32 v24, v24")
    k.e("s_nop 0")
    for j in range(8):
        k.e("v_mul_f32 v%d, v%d, v24" % (L + j, L + j))
    for j in range(8):
        if 10 + j < 16:
            rdkv(10 + j)
        k.wait_lds(("v", j))
        b = KV + ((8 + j) % 3) * 18
        for d in range(18):
            if j == 0:
                k.e("v_mul_f32 v%d, v%d, v%d" % (O + d, L, b + d))
            else:
                k.e("v_fmac_f32 v%d, v%d, v%d" % (O + d, L + j, b + d))
    for d in range(9):
        k.e("v_cvt_pk_bf16_f32 v%d, v%d, v%d" % (Q + d, O + 2 * d, O + 2 * d + 1))
    k.e("v_lshrrev_b32 v23, 4, v22")
    k.e("v_mul_u32_u24 v23, 18432, v23")
    k.e("v_and_b32 v24, 15, v22")
    k.e("v_lshlrev_b32 v24, 4, v24")
    k.e("v_add_u32 v23, v23, v24")
    k.e("v_mul_u32_u24 v21, 18, v19")
    k.e("s_mul_i32 s60, s9, 72")
    k.e("v_add_u32 v21, s60, v21")
    for d in range(9):
        k.e("v_add_u32 v24, %d, v21" % (2 * d))
        k.e("v_lshrrev_b32 v25, 3, v24")
        k.e("v_lshlrev_b32 v25, 8, v25")
        k.e("v_and_b32 v24, 7, v24")
        k.e("v_lshlrev_b32 v24, 1, v24")
        k.e("v_add3_u32 v%d, v23, v24, v25" % (KV + d))
        k.e("buffer_store_dword v%d, v%d, %s, 0 offen" % (Q + d, KV + d, sr(SO, 4)))
    stamp(k, 3)
    stamp_flush(k, 6)
    k.e("s_endpgm")
    k.label(lab_cs3)
    k.e("s_cmp_eq_u32 s4, 4")
    k.e("s_cbranch_scc1 L_%s_end" % k.name)
    k.e("s_cmp_ge_u32 s13, 576")
    k.e("s_cbranch_scc1 L_%s_end" % k.name)
    k.e("s_waitcnt vmcnt(0)")
    for r in range(8):
        k.e("v_mov_b32 v%d, 0" % (20 + r))
    for i in range(18):
        for d in range(4):
            x = CX + 4 * i + d
            k.e("v_lshlrev_b32 v28, 16, v%d" % x)
            k.e("v_and_b32 v29, 0xffff0000, v%d" % x)
            k.e("v_add_f32 v%d, v%d, v28" % (20 + 2 * d, 20 + 2 * d))
            k.e("v_add_f32 v%d, v%d, v29" % (21 + 2 * d, 21 + 2 * d))
    k.e("s_mul_i32 s63, s14, %d" % (2 * F * 4))
    k.e("s_lshl_b32 s60, s15, 11")
    k.e("s_add_u32 s63, s63, s60")
    k.e("v_lshlrev_b32 v18, 5, v0")
    k.e("v_add_u32 v18, s63, v18")
    k.e("buffer_store_dwordx4 v[20:23], v18, %s, 0 offen" % sr(SCP, 4))
    k.e("buffer_store_dwordx4 v[24:27], v18, %s, 0 offen offset:16" % sr(SCP, 4))
    footer(k)
    return k, 256


def main():
    ks = [
        (gen_k1, 512, 5 * 24576 + 3 * 10240, 232),
        (gen_k2, 512, 4 * 40960, 256),
    ]
    hdr = open("sequential_preLN__sliding_local_dilated__geglu_ffn__prompt.s.ref").read().split("\n")
    out = []
    for line in hdr:
        if line.startswith("; Override") or line.startswith("; grid=") or line.startswith("; @launch"):
            continue
        if not line.startswith(";"):
            break
        out.append(line)
    body = []
    desc = []
    for fn, block, lds, nv in ks:
        k, nwg = fn()
        name = k.name + "_kernel"
        out.append("; @launch kernel=%s grid=(%d,1,1) block=(%d,1,1) lds=%d" % (name, nwg, block, lds))
        body += [".globl %s" % name, ".p2align 8", ".type %s,@function" % name, "%s:" % name] + k.L
        desc += [".p2align 6", ".amdhsa_kernel %s" % name,
                 "  .amdhsa_next_free_vgpr %d" % nv, "  .amdhsa_next_free_sgpr 102",
                 "  .amdhsa_accum_offset %d" % nv,
                 "  .amdhsa_group_segment_fixed_size 0", "  .amdhsa_kernarg_size 80",
                 "  .amdhsa_user_sgpr_count 2", "  .amdhsa_user_sgpr_kernarg_segment_ptr 1",
                 "  .amdhsa_system_sgpr_workgroup_id_x 1", ".end_amdhsa_kernel"]
    out += ['.amdgcn_target "amdgcn-amd-amdhsa--gfx950"', ".text"] + body + ['.section .rodata,"a"'] + desc
    path = sys.argv[1] if len(sys.argv) > 1 else "sequential_preLN__sliding_local_dilated__geglu_ffn__prompt.s"
    open(path, "w").write("\n".join(out) + "\n")


main()
```

```python
import sys, struct

S, D, F = 2048, 576, 4608
O_OFF = 0x0000000
H_OFF = 0x0400000
ST_OFF = 0x0800000
CP_OFF = 0x0A00000
CS_OFF = 0x0860000
FLG_OFF = 0x0880000
ACT_OFF = 0x1000000
PART_OFF = 0x3000000


def f2u(x):
    return struct.unpack("<I", struct.pack("<f", x))[0]


EXP = __import__("os").environ.get("EXP", "")


class K:
    def __init__(s, name):
        s.name = name
        s.L = []
        s.lq = []
        s.vq = []
        s.nlab = 0

    def e(s, t):
        if "nomfma" in EXP and t.startswith("v_mfma"):
            return
        if "noldsrd" in EXP and (t.startswith("ds_read_b128") or t.startswith("ds_read_b64_tr")):
            return
        if "nodma" in EXP and t.endswith(" lds"):
            return
        if "nox" in EXP and t.endswith(" lds") and "s[36:39]" in t and s.name == "qkv":
            return
        if "now" in EXP and t.endswith(" lds") and "s[40:43]" in t and s.name == "qkv":
            return
        s.L.append("    " + t)

    def c(s, t):
        s.L.append("    ; " + t)

    def label(s, n):
        s.L.append(n + ":")

    def newlab(s, base):
        s.nlab += 1
        return "L_%s_%s_%d" % (s.name, base, s.nlab)

    def lds(s, t, tag=None):
        s.e(t)
        s.lq.append(tag)

    def vm(s, t, tag=None):
        s.e(t)
        s.vq.append(tag)

    def _need(s, q, tag):
        idx = -1
        for i, x in enumerate(q):
            if x == tag:
                idx = i
        return idx

    def wait_lds(s, tag):
        idx = s._need(s.lq, tag)
        if idx < 0:
            return
        n = len(s.lq) - idx - 1
        n = min(n, 15)
        s.e("s_waitcnt lgkmcnt(%d)" % n)
        s.lq = s.lq[len(s.lq) - n:] if n else []

    def wait_vm(s, tag):
        idx = s._need(s.vq, tag)
        if idx < 0:
            return
        n = len(s.vq) - idx - 1
        n = min(n, 63)
        s.e("s_waitcnt vmcnt(%d)" % n)
        s.vq = s.vq[len(s.vq) - n:] if n else []

    def wait_all(s):
        s.e("s_waitcnt vmcnt(0) lgkmcnt(0)")
        s.lq = []
        s.vq = []

    def wait_lds_all(s):
        s.e("s_waitcnt lgkmcnt(0)")
        s.lq = []

    def wait_vm_all(s):
        s.e("s_waitcnt vmcnt(0)")
        s.vq = []


STAMP = int(__import__("os").environ.get("STAMP", "0"))


def stamp(k, idx):
    if STAMP:
        k.e("s_memtime s[%d:%d]" % (70 + 2 * idx, 71 + 2 * idx))
        if idx in (0, 3):
            k.e("s_memrealtime s[%d:%d]" % (78 + (2 if idx else 0), 79 + (2 if idx else 0)))
        k.e("s_waitcnt lgkmcnt(0)")
        k.lq = []


def stamp_flush(k, n):
    if STAMP:
        lab = k.newlab("nost")
        k.e("s_and_b32 s90, s2, 127")
        k.e("s_cmp_lg_u32 s90, 5")
        k.e("s_cbranch_scc1 %s" % lab)
        k.e("s_cmp_lg_u32 s4, 0")
        k.e("s_cbranch_scc1 %s" % lab)
        srd(k, 92, P_WS, 0x900000 + 512 * getattr(k, "stamp_slot", ["qkv", "wo", "ffn"].index(k.name)), 256)
        k.e("s_lshr_b32 s90, s2, 7")
        k.e("s_lshl_b32 s90, s90, 6")
        k.e("v_mov_b32 v1, s90")
        k.e("s_mov_b64 exec, 1")
        for i in range(n):
            k.e("v_mov_b32 v2, s%d" % (70 + 2 * i))
            k.e("buffer_store_dword v2, v1, s[92:95], 0 offen offset:%d" % (4 * i))
        k.label(lab)


def vr(b, n):
    return "v[%d:%d]" % (b, b + n - 1)


def sr(b, n):
    return "s[%d:%d]" % (b, b + n - 1)


P_X, P_WQKV, P_WO, P_BX, P_WG, P_WU, P_WD, P_OUT, P_DBG, P_WS = 16, 18, 20, 22, 24, 26, 28, 30, 32, 34


def header(k, nwg):
    k.e("s_cmp_ge_u32 s2, %d" % nwg)
    k.e("s_cbranch_scc1 L_%s_end" % k.name)
    k.e("s_load_dwordx16 s[16:31], s[0:1], 0")
    k.e("s_load_dwordx4 s[32:35], s[0:1], 64")
    k.e("v_lshrrev_b32 v1, 6, v0")
    k.e("v_and_b32 v0, 63, v0")
    k.e("s_nop 0")
    k.e("v_readfirstlane_b32 s4, v1")
    k.e("s_waitcnt lgkmcnt(0)")


def srd(k, d, ptr, off, nbytes):
    if off:
        k.e("s_add_u32 s%d, s%d, 0x%x" % (d, ptr, off))
        k.e("s_addc_u32 s%d, s%d, 0" % (d + 1, ptr + 1))
    else:
        k.e("s_mov_b32 s%d, s%d" % (d, ptr))
        k.e("s_mov_b32 s%d, s%d" % (d + 1, ptr + 1))
    k.e("s_mov_b32 s%d, 0x%x" % (d + 2, nbytes))
    k.e("s_mov_b32 s%d, 0x00020000" % (d + 3))


def footer(k):
    k.label("L_%s_end" % k.name)
    k.e("s_endpgm")


def swap23_lane_rowpos(k, vdst, vlane, vt, vt2):
    k.e("v_lshrrev_b32 v%d, 5, v%d" % (vt, vlane))
    k.e("v_lshlrev_b32 v%d, 4, v%d" % (vdst, vt))
    k.e("v_bfe_u32 v%d, v%d, 4, 1" % (vt, vlane))
    k.e("v_lshlrev_b32 v%d, 2, v%d" % (vt, vt))
    k.e("v_add_u32 v%d, v%d, v%d" % (vdst, vdst, vt))
    k.e("v_bfe_u32 v%d, v%d, 2, 2" % (vt2, vlane))
    k.e("v_add_u32 v%d, v%d, v%d" % (vdst, vdst, vt2))


def swap23(k, vdst, vp, vt, vt2):
    k.e("v_and_b32 v%d, 0x33, v%d" % (vdst, vp))
    k.e("v_bfe_u32 v%d, v%d, 2, 1" % (vt, vp))
    k.e("v_lshlrev_b32 v%d, 3, v%d" % (vt, vt))
    k.e("v_bfe_u32 v%d, v%d, 3, 1" % (vt2, vp))
    k.e("v_lshlrev_b32 v%d, 2, v%d" % (vt2, vt2))
    k.e("v_or3_b32 v%d, v%d, v%d, v%d" % (vdst, vdst, vt, vt2))


def gemm_core(k, nst, nbuf, MI, acc, afr, bring, PD, a_rd, b_rd, dma, zero_init, NJ=9, sub=1, extra=None):
    RB = len(bring)
    nm = MI * NJ
    nsteps = nst * sub

    def rdB(t):
        sp, nj = divmod(t, NJ)
        if sp >= nsteps:
            return []
        st, kk = divmod(sp, sub)
        slot = bring[t % RB]
        out = []
        for j in range(2):
            v, off = b_rd(st % nbuf, nj, j, kk) if sub > 1 else b_rd(st % nbuf, nj, j)
            out.append(("ds_read_b64_tr_b16 %s, v%d offset:%d" % (vr(slot + 2 * j, 2), v, off), ("B", t)))
        return out

    def rdA(sp, i):
        if sp >= nsteps:
            return []
        st, kk = divmod(sp, sub)
        v, off = a_rd(st % nbuf, i, kk) if sub > 1 else a_rd(st % nbuf, i)
        return [("ds_read_b128 %s, v%d offset:%d" % (vr(afr[sp % 2][i], 4), v, off), ("A", sp))]

    k.wait_vm(("dma", 0))
    k.e("s_barrier")
    for i in range(MI):
        for (t, tag) in rdA(0, i):
            k.lds(t, tag)
    for t in range(PD):
        for (x, tag) in rdB(t):
            k.lds(x, tag)
    for s in range(nsteps):
        k.c("---- step %d" % s)
        groups = []
        st = s // sub
        if (s + 1) % sub == 0 and st + 1 < nst:
            k.wait_vm(("dma", st + 1))
            k.e("s_barrier")
            if st + nbuf - 1 < nst:
                groups = dma(st + nbuf - 1)
        ev = {}

        def add(idx, fn):
            ev.setdefault(min(idx, nm - 1), []).append(fn)
        for nj in range(NJ):
            t = s * NJ + nj
            add(nj * MI, (lambda tt: (lambda: [k.lds(x, tag) for (x, tag) in rdB(tt)]))(t + PD))
        for i in range(MI):
            add((2 + i) * MI + min(1, MI - 1), (lambda ii: (lambda: [k.lds(x, tag) for (x, tag) in rdA(s + 1, ii)]))(i))
        for gi, g in enumerate(groups):
            def mk(g):
                def f():
                    for (x, tag) in g:
                        if tag is None:
                            k.e(x)
                        else:
                            k.vm(x, tag)
                return f
            add(gi * MI + min(2, MI - 1), mk(g))
        for nj in range(NJ):
            t = s * NJ + nj
            if nj == 0:
                k.wait_lds(("A", s))
            k.wait_lds(("B", t))
            for i in range(MI):
                a = acc(i, nj)
                cc = "0" if (zero_init and s == 0) else vr(a, 4)
                k.e("v_mfma_f32_16x16x32_bf16 %s, %s, %s, %s" % (vr(a, 4), vr(bring[t % RB], 4), vr(afr[s % 2][i], 4), cc))
                for fn in ev.get(nj * MI + i, []):
                    fn()
            if extra:
                extra(s, nj, bring[t % RB])


def fl_lane(k, vdst, vt):
    k.e("v_lshrrev_b32 v%d, 1, v17" % vt)
    k.e("v_lshlrev_b32 v%d, 8, v%d" % (vdst, vt))
    k.e("v_lshlrev_b32 v%d, 4, v16" % vt)
    k.e("v_add_u32 v%d, v%d, v%d" % (vdst, vdst, vt))
    k.e("v_and_b32 v%d, 1, v17" % vt)
    k.e("v_lshlrev_b32 v%d, 3, v%d" % (vt, vt))
    k.e("v_add_u32 v%d, v%d, v%d" % (vdst, vdst, vt))


def b_dma_addr(k, vdst, sL0, iofs, NL, spitch, scol, reg_row=0, reg_col=0):
    k.e("v_lshrrev_b32 v18, 3, v0")
    k.e("v_add_u32 v18, s%d, v18" % sL0)
    if iofs:
        k.e("v_add_u32 v18, %d, v18" % iofs)
    if NL == 3:
        k.e("v_mul_u32_u24 v19, 21846, v18")
        k.e("v_lshrrev_b32 v19, 16, v19")
        k.e("v_mul_u32_u24 v20, 3, v19")
        k.e("v_sub_u32 v18, v18, v20")
    else:
        k.e("v_lshrrev_b32 v19, 1, v18")
        k.e("v_xor_b32 v18, v18, v19")
        k.e("v_and_b32 v18, 1, v18")
    k.e("v_lshlrev_b32 v18, 7, v18")
    k.e("v_bfe_u32 v20, v19, 1, 2")
    k.e("v_bfe_u32 v21, v0, 1, 2")
    k.e("v_xor_b32 v20, v20, v21")
    k.e("v_lshlrev_b32 v20, 5, v20")
    k.e("v_and_b32 v21, 1, v0")
    k.e("v_lshlrev_b32 v21, 4, v21")
    k.e("v_add3_u32 v18, v18, v20, v21")
    k.e("v_lshrrev_b32 v23, 5, v19")
    k.e("v_and_b32 v19, 31, v19")
    swap23(k, 20, 19, 21, 22)
    if reg_row:
        k.e("v_mul_u32_u24 v21, %d, v23" % reg_row)
        k.e("v_add_u32 v20, v20, v21")
    k.e("v_mul_lo_u32 v20, v20, s%d" % spitch)
    if reg_col:
        k.e("v_mul_u32_u24 v23, %d, v23" % reg_col)
        k.e("v_add_u32 v18, v18, v23")
    k.e("v_add3_u32 v%d, v20, v18, s%d" % (vdst, scol))


def b_rd_addr3(k, vq, sn0p, sbase):
    swap23_lane_rowpos(k, 18, 0, 19, 20)
    k.e("v_bfe_u32 v19, v18, 1, 2")
    k.e("v_mul_u32_u24 v18, 384, v18")
    k.e("v_and_b32 v20, 3, v0")
    k.e("v_lshlrev_b32 v20, 3, v20")
    k.e("v_add3_u32 v18, v18, v20, s%d" % sbase)
    for q in range(4):
        k.e("s_add_u32 s60, s%d, %d" % (sn0p, q))
        k.e("s_and_b32 s61, s60, 3")
        k.e("s_lshr_b32 s60, s60, 2")
        k.e("s_lshl_b32 s60, s60, 7")
        k.e("v_xor_b32 v20, s61, v19")
        k.e("v_lshlrev_b32 v20, 5, v20")
        k.e("v_add3_u32 v%d, v18, v20, s60" % (vq + q))


def touch(k, ssrd, ptr, nbytes, nwaves_total, wpw, vtmp, vdst):
    nlines = nbytes // 128
    per = (nlines + nwaves_total - 1) // nwaves_total
    assert per <= 64
    srd(k, ssrd, ptr, 0, nbytes)
    k.e("s_mul_i32 s60, s2, %d" % wpw)
    k.e("s_add_u32 s60, s60, s4")
    k.e("s_mul_i32 s60, s60, %d" % per)
    k.e("v_add_u32 v%d, s60, v0" % vtmp)
    k.e("v_lshlrev_b32 v%d, 7, v%d" % (vtmp, vtmp))
    if per < 64:
        m = (1 << per) - 1
        k.e("s_mov_b32 exec_lo, 0x%x" % (m & 0xffffffff))
        k.e("s_mov_b32 exec_hi, 0x%x" % (m >> 32))
    k.vm("buffer_load_dword v%d, v%d, %s, 0 offen" % (vdst, vtmp, sr(ssrd, 4)), "touch")
    k.e("s_mov_b64 exec, -1")


def issue_groups(k, groups):
    for g in groups:
        for (x, tag) in g:
            if tag is None:
                k.e(x)
            else:
                k.vm(x, tag)


def gen_k3(k):
    SB = 40960
    NBUF = 4
    k.stamp_slot = 2
    stamp(k, 0)
    SA, SBd, SST, SCS, SO = 36, 40, 44, 48, 52
    sKA, sKB, sMA, sMB = 56, 57, 58, 59
    k.e("s_and_b32 s60, s2, 7")
    k.e("s_lshr_b32 s61, s2, 3")
    k.e("s_and_b32 s62, s61, 3")
    k.e("s_lshl_b32 s60, s60, 2")
    k.e("s_add_u32 s9, s60, s62")
    k.e("s_lshr_b32 s61, s61, 2")
    k.e("s_lshl_b32 s7, s61, 8")
    k.e("s_mul_i32 s8, s9, 144")
    k.e("s_and_b32 s5, s4, 3")
    k.e("s_lshr_b32 s6, s4, 2")
    srd(k, SA, P_WS, H_OFF, S * D * 2)
    k.e("s_cmp_lt_u32 s4, 4")
    k.e("s_cselect_b32 s%d, s%d, s%d" % (SBd, P_WG, P_WU))
    k.e("s_cselect_b32 s%d, s%d, s%d" % (SBd + 1, P_WG + 1, P_WU + 1))
    k.e("s_mov_b32 s%d, 0x%x" % (SBd + 2, D * F * 2))
    k.e("s_mov_b32 s%d, 0x00020000" % (SBd + 3))
    srd(k, SST, P_WS, ST_OFF, S * 32)
    srd(k, SO, P_WS, ACT_OFF, S * F * 2)
    vOA0, vOA1, vOB = 2, 3, 4
    vA, vB = 8, 24
    vR, vM = 40, 44
    ACC = 96
    afr = [[48 + 4 * i for i in range(4)], [64 + 4 * i for i in range(4)]]
    bring = [80, 84, 88, 92]
    k.e("v_and_b32 v16, 15, v0")
    k.e("v_lshrrev_b32 v17, 4, v0")
    k.e("s_lshr_b32 s60, s7, 4")
    k.e("s_lshl_b32 s61, s4, 1")
    k.e("s_add_u32 s60, s60, s61")
    k.e("s_mul_i32 s60, s60, 18432")
    k.e("v_lshlrev_b32 v19, 4, v0")
    k.e("v_add_u32 v%d, s60, v19" % vOA0)
    k.e("v_add_u32 v%d, 18432, v%d" % (vOA1, vOA0))
    k.e("s_and_b32 s60, s4, 3")
    k.e("s_mul_i32 s68, s60, 24")
    k.e("s_lshl_b32 s62, s8, 1")
    k.e("s_and_b32 s62, s62, 0xffffff80")
    k.e("s_movk_i32 s63, 9216")
    for i in range(3):
        b_dma_addr(k, vOB + i, 68, 8 * i, 3, 63, 62)
    k.e("s_mov_b32 s%d, 0" % sKA)
    k.e("s_mov_b32 s%d, 0" % sKB)
    k.e("s_lshl_b32 s%d, s4, 11" % sMA)
    k.e("s_mul_i32 s%d, s4, 3072" % sMB)
    k.e("s_add_u32 s%d, s%d, 16384" % (sMB, sMB))

    def dmaA(st):
        b = (st % NBUF) * SB
        tag = ("dma", st)
        g = []
        for i in range(2):
            x = [("s_add_u32 m0, s%d, %d" % (sMA, b + i * 1024), None), ("s_nop 0", None),
                 ("buffer_load_dwordx4 v%d, %s, s%d offen sc1 lds" % (vOA0 + i, sr(SA, 4), sKA), tag)]
            if i == 1:
                x.append(("s_add_u32 s%d, s%d, 1024" % (sKA, sKA), None))
            g.append(x)
        return g

    def dmaB(st):
        b = (st % NBUF) * SB
        tag = ("dma", st)
        g = []
        for i in range(3):
            x = [("s_add_u32 m0, s%d, %d" % (sMB, b + i * 1024), None), ("s_nop 0", None)]
            x.append(("buffer_load_dwordx4 v%d, %s, s%d offen lds" % (vOB + i, sr(SBd, 4), sKB), tag))
            if i == 2:
                x.append(("s_add_u32 s%d, s%d, %d" % (sKB, sKB, 32 * 9216), None))
            g.append(x)
        return g

    def dma(st):
        return dmaA(st) + dmaB(st)
    for st in range(NBUF - 1):
        issue_groups(k, dmaB(st))
    srd(k, 64, P_WS, FLG_OFF + 32768 + 1024, 1024)
    k.e("s_lshr_b32 s60, s7, 3")
    k.e("v_and_b32 v18, 31, v0")
    k.e("v_add_u32 v18, s60, v18")
    k.e("v_lshlrev_b32 v18, 2, v18")
    lab_p = k.newlab("pollH")
    lab_g = k.newlab("goH")
    k.label(lab_p)
    k.e("buffer_load_dword v19, v18, s[64:67], 0 offen sc1")
    k.e("s_waitcnt vmcnt(0)")
    k.e("v_cmp_ne_u32 vcc, 1, v19")
    k.e("s_nop 1")
    k.e("s_cmp_eq_u64 vcc, 0")
    k.e("s_cbranch_scc1 %s" % lab_g)
    k.e("s_sleep 2")
    k.e("s_branch %s" % lab_p)
    k.label(lab_g)
    k.vq = []
    k.e("s_lshl_b32 s60, s5, 6")
    k.e("s_add_u32 s60, s60, s7")
    k.e("v_add_u32 v18, s60, v16")
    k.e("v_lshlrev_b32 v18, 5, v18")
    for i in range(4):
        for h in range(2):
            k.vm("buffer_load_dwordx4 %s, v18, %s, 0 offen offset:%d" % (vr(ACC + i * 8 + h * 4, 4), sr(SST, 4), i * 512 + h * 16) + " sc1", "st")
    for st in range(NBUF - 1):
        issue_groups(k, dmaA(st))
    touch(k, 64, P_WD, F * D * 2, 2048, 8, 18, 1)
    k.e("s_lshl_b32 s60, s5, 12")
    k.e("v_lshlrev_b32 v18, 4, v0")
    k.e("v_add_u32 v%d, s60, v18" % vA)
    k.e("v_add_u32 v%d, %d, v%d" % (vA + 1, 2 * SB, vA))
    k.e("s_bfe_u32 s62, s8, 0x20004")
    k.e("s_mul_i32 s63, s6, 5")
    k.e("s_add_u32 s62, s62, s63")
    k.e("s_movk_i32 s63, 16384")
    b_rd_addr3(k, vB, 62, 63)
    for q in range(4):
        k.e("v_add_u32 v%d, %d, v%d" % (vB + 4 + q, 2 * SB, vB + q))
    k.e("v_lshrrev_b32 v18, 1, v17")
    k.e("v_lshlrev_b32 v14, 8, v18")
    k.e("v_lshlrev_b32 v18, 4, v16")
    k.e("v_add_u32 v14, v14, v18")
    k.e("v_and_b32 v18, 1, v17")
    k.e("v_mul_u32_u24 v15, 147456, v18")
    k.e("v_add_u32 v15, v15, v14")
    k.e("v_lshlrev_b32 v18, 9, v18")
    k.e("v_add_u32 v14, v14, v18")
    k.e("s_lshr_b32 s60, s7, 4")
    k.e("s_lshl_b32 s61, s5, 2")
    k.e("s_add_u32 s60, s60, s61")
    k.e("s_mul_i32 s60, s60, 147456")
    k.e("s_mul_i32 s61, s9, 9")
    k.e("s_mul_i32 s62, s6, 5")
    k.e("s_add_u32 s61, s61, s62")
    k.e("s_lshl_b32 s61, s61, 9")
    k.e("s_add_u32 s60, s60, s61")
    k.e("v_add_u32 v14, s60, v14")
    k.e("v_add_u32 v15, s60, v15")
    k.wait_vm("st")
    k.e("s_mov_b32 s60, 0x%x" % f2u(1.0 / 576.0))
    k.e("s_mov_b32 s61, 0x%x" % f2u(1e-5))
    for i in range(4):
        b = ACC + i * 8
        k.e("v_add_f32 v18, v%d, v%d" % (b, b + 2))
        k.e("v_add_f32 v19, v%d, v%d" % (b + 4, b + 6))
        k.e("v_add_f32 v20, v%d, v%d" % (b + 1, b + 3))
        k.e("v_add_f32 v21, v%d, v%d" % (b + 5, b + 7))
        k.e("v_add_f32 v18, v18, v19")
        k.e("v_add_f32 v20, v20, v21")
        k.e("v_mul_f32 v18, s60, v18")
        k.e("v_mul_f32 v20, s60, v20")
        k.e("v_fma_f32 v20, -v18, v18, v20")
        k.e("v_max_f32 v20, 0, v20")
        k.e("v_add_f32 v20, s61, v20")
        k.e("v_rsq_f32 v%d, v20" % (vR + i))
        k.e("v_sub_f32 v%d, 0, v18" % (vM + i))
    lab1 = k.newlab("wn1")
    lab_done = k.newlab("done")
    k.e("s_cmp_eq_u32 s6, 1")
    k.e("s_cbranch_scc1 %s" % lab1)
    st_l, st_v = list(k.lq), list(k.vq)
    c1 = -2.0 * 0.7978845608028654 * 1.4426950408889634
    for wn in range(2):
        NF = 5 if wn == 0 else 4
        NJ = 2 * NF
        if wn == 1:
            k.e("s_branch %s" % lab_done)
            k.label(lab1)
            k.lq, k.vq = list(st_l), list(st_v)
        acc = lambda i, c: ACC + (i * NJ + c) * 4
        CW = {0: 32, 1: 36, 8: 10, 9: 16}
        ONES = 20
        for r in range(4):
            k.e("v_mov_b32 v%d, 0x3f803f80" % (ONES + r))
        prevb = [None]

        def cwreg(c):
            return CW[(c & 1) + 8 * (c >> 3)]

        def extra(s_, c, breg):
            if c & 1 == 0:
                prevb[0] = breg
                return
            lab = k.newlab("cw")
            k.e("s_cmp_eq_u32 s5, %d" % ((c >> 1) & 3))
            k.e("s_cbranch_scc0 %s" % lab)
            for cc, br in ((c - 1, prevb[0]), (c, breg)):
                k.e("v_mfma_f32_16x16x32_bf16 %s, %s, %s, %s" % (vr(cwreg(cc), 4), vr(br, 4), vr(ONES, 4), "0" if s_ == 0 else vr(cwreg(cc), 4)))
            k.label(lab)

        def a_rd(buf, i):
            return vA + (buf >> 1), (buf & 1) * SB + i * 1024

        def b_rd(buf, c, j):
            f = c >> 1
            return vB + 4 * (buf >> 1) + (f & 3), (buf & 1) * SB + (c & 1) * 12288 + j * 3072 + (f >> 2) * 128
        if wn == 0:
            stamp(k, 1)
        gemm_core(k, 18, NBUF, 4, acc, afr, bring, 2, a_rd, b_rd, dma, True, NJ=NJ, extra=extra)
        if wn == 0:
            stamp(k, 2)
        k.c("---- epilogue")
        k.e("s_nop 7")
        k.e("s_barrier")
        k.e("v_lshlrev_b32 v1, 4, v0")
        k.e("v_add_u32 v1, %d, v1" % (wn * 10240))
        for c in range(0, NJ, 2):
            lab = k.newlab("cww")
            k.e("s_cmp_eq_u32 s5, %d" % ((c >> 1) & 3))
            k.e("s_cbranch_scc0 %s" % lab)
            k.e("ds_write_b128 v1, %s offset:%d" % (vr(cwreg(c), 4), c * 1024))
            k.e("ds_write_b128 v1, %s offset:%d" % (vr(cwreg(c + 1), 4), c * 1024 + 1024))
            k.label(lab)
        k.e("s_waitcnt lgkmcnt(0)")
        k.e("s_barrier")
        CSR = 48
        for c in range(NJ):
            k.e("ds_read_b128 %s, v1 offset:%d" % (vr(CSR + 4 * c, 4), c * 1024))
        k.e("s_waitcnt lgkmcnt(0)")
        k.lq = []
        k.e("v_mov_b32 v20, 1.0")
        k.e("v_mov_b32 v21, 1.0")
        k.e("s_mov_b32 s60, 0x%x" % f2u(c1))
        k.e("s_mov_b32 s61, 0x%x" % f2u(c1 * 0.044715))
        k.e("s_mov_b32 s62, 0")
        k.e("s_nop 7")
        for i in range(4):
            k.e("v_mul_f32 v22, s60, v%d" % (vR + i))
            k.e("v_mul_f32 v26, v%d, v%d" % (vR + i, vR + i))
            k.e("v_mul_f32 v24, s61, v%d" % (vR + i))
            k.e("v_mul_f32 v24, v24, v26")
            k.e("v_mov_b32 v23, v22")
            k.e("v_mov_b32 v25, v24")
            k.e("v_mov_b32 v27, v26")
            k.e("v_mov_b32 v36, v%d" % (vM + i))
            k.e("v_mov_b32 v37, v%d" % (vM + i))
            for f in range(NF):
                G, U = acc(i, 2 * f), acc(i, 2 * f + 1)
                T, P = 28, 32
                for h in range(2):
                    k.e("v_pk_fma_f32 %s, %s, v[36:37], %s" % (vr(G + 2 * h, 2), vr(CSR + 8 * f + 2 * h, 2), vr(G + 2 * h, 2)))
                    k.e("v_pk_fma_f32 %s, %s, v[36:37], %s" % (vr(U + 2 * h, 2), vr(CSR + 8 * f + 4 + 2 * h, 2), vr(U + 2 * h, 2)))
                for h in range(2):
                    k.e("v_pk_mul_f32 %s, %s, %s" % (vr(T + 2 * h, 2), vr(G + 2 * h, 2), vr(G + 2 * h, 2)))
                for h in range(2):
                    k.e("v_pk_fma_f32 %s, %s, v[24:25], v[22:23]" % (vr(T + 2 * h, 2), vr(T + 2 * h, 2)))
                for h in range(2):
                    k.e("v_pk_mul_f32 %s, %s, %s" % (vr(T + 2 * h, 2), vr(T + 2 * h, 2), vr(G + 2 * h, 2)))
                for r in range(4):
                    k.e("v_exp_f32 v%d, v%d" % (T + r, T + r))
                for h in range(2):
                    k.e("v_pk_mul_f32 %s, %s, %s" % (vr(P + 2 * h, 2), vr(G + 2 * h, 2), vr(U + 2 * h, 2)))
                for h in range(2):
                    k.e("v_pk_add_f32 %s, %s, v[20:21]" % (vr(T + 2 * h, 2), vr(T + 2 * h, 2)))
                for r in range(4):
                    k.e("v_rcp_f32 v%d, v%d" % (T + r, T + r))
                for h in range(2):
                    k.e("v_pk_mul_f32 %s, %s, v[26:27]" % (vr(P + 2 * h, 2), vr(P + 2 * h, 2)))
                for h in range(2):
                    k.e("v_pk_mul_f32 %s, %s, %s" % (vr(P + 2 * h, 2), vr(P + 2 * h, 2), vr(T + 2 * h, 2)))
                if f < 4:
                    R = acc(i, 2 * (f & ~1)) + 2 * (f & 1)
                else:
                    R = acc(i & ~1, 8) + 2 * (i & 1)
                k.e("v_cvt_pk_bf16_f32 v%d, v%d, v%d" % (R, P, P + 1))
                k.e("v_cvt_pk_bf16_f32 v%d, v%d, v%d" % (R + 1, P + 2, P + 3))
                if (f < 4 and f & 1) or (f == 4 and i & 1):
                    B0 = R - 2
                    k.e("s_nop 1")
                    k.e("v_permlane16_swap_b32 v%d, v%d" % (B0, B0 + 2))
                    k.e("v_permlane16_swap_b32 v%d, v%d" % (B0 + 1, B0 + 3))
                    if f < 4:
                        k.vm("buffer_store_dwordx4 %s, v14, %s, s62 offen offset:%d sc1" % (vr(B0, 4), sr(SO, 4), (f - 1) * 512))
                    else:
                        k.e("s_sub_u32 s63, s62, 147456")
                        k.vm("buffer_store_dwordx4 %s, v15, %s, s63 offen offset:%d sc1" % (vr(B0, 4), sr(SO, 4), 4 * 512))
            k.e("s_add_u32 s62, s62, 147456")
    k.label(lab_done)
    srd(k, 64, P_WS, FLG_OFF + 32768, 1024)
    k.e("s_lshr_b32 s60, s7, 8")
    k.e("s_lshl_b32 s60, s60, 5")
    k.e("s_add_u32 s60, s60, s9")
    k.e("s_lshl_b32 s60, s60, 2")
    k.e("v_mov_b32 v1, s60")
    k.e("v_mov_b32 v2, 1")
    k.e("s_waitcnt vmcnt(0)")
    k.e("s_barrier")
    lab_nf = k.newlab("nf")
    k.e("s_cmp_lg_u32 s4, 0")
    k.e("s_cbranch_scc1 %s" % lab_nf)
    k.e("s_mov_b64 exec, 1")
    k.e("buffer_store_dword v2, v1, s[64:67], 0 offen sc1")
    k.e("s_mov_b64 exec, -1")
    k.label(lab_nf)
    k.lq, k.vq = [], []
    stamp(k, 3)
    stamp_flush(k, 6)
    k.e("s_mov_b64 exec, -1")
    return gen_k4(k)


def gen_k4(k):
    SB = 40960
    NBUF = 4
    k.stamp_slot = 3
    stamp(k, 0)
    SA, SBd, SP, SO, SH, SD = 36, 40, 44, 48, 52, 64
    sKA, sKB, sMA, sMB = 56, 57, 58, 59
    k.e("s_and_b32 s9, s2, 3")
    k.e("s_bfe_u32 s60, s2, 0x10002")
    k.e("s_lshr_b32 s61, s2, 3")
    k.e("s_lshr_b32 s62, s61, 2")
    k.e("s_lshl_b32 s60, s60, 3")
    k.e("s_add_u32 s60, s60, s62")
    k.e("s_lshl_b32 s7, s60, 7")
    k.e("s_and_b32 s61, s61, 3")
    k.e("s_mul_i32 s8, s61, 144")
    k.e("s_lshl_b32 s10, s60, 2")
    k.e("s_add_u32 s10, s10, s61")
    k.e("s_and_b32 s11, s4, 3")
    k.e("s_lshr_b32 s5, s11, 1")
    k.e("s_and_b32 s6, s11, 1")
    k.e("v_and_b32 v16, 15, v0")
    k.e("v_lshrrev_b32 v17, 4, v0")
    lab_comp = k.newlab("comp")
    k.e("s_cmp_lt_u32 s4, 4")
    k.e("s_cbranch_scc1 %s" % lab_comp)
    srd(k, SA, P_WS, ACT_OFF, S * F * 2)
    srd(k, SBd, P_WD, 0, F * D * 2)
    vOA, vOB = 2, 8
    k.e("s_lshr_b32 s60, s7, 4")
    k.e("s_lshl_b32 s61, s11, 1")
    k.e("s_add_u32 s60, s60, s61")
    k.e("s_mul_i32 s60, s60, 147456")
    k.e("s_mul_i32 s61, s9, 36864")
    k.e("s_add_u32 s60, s60, s61")
    k.e("v_lshlrev_b32 v19, 4, v0")
    k.e("v_add_u32 v%d, s60, v19" % vOA)
    k.e("v_add_u32 v%d, 1024, v%d" % (vOA + 1, vOA))
    k.e("v_add_u32 v%d, %d, v%d" % (vOA + 2, 147456, vOA))
    k.e("v_add_u32 v%d, %d, v%d" % (vOA + 3, 147456 + 1024, vOA))
    k.e("s_mul_i32 s64, s11, 48")
    k.e("s_lshl_b32 s62, s8, 1")
    k.e("s_and_b32 s62, s62, 0xffffff80")
    k.e("s_mul_i32 s61, s9, 1152 * 1152")
    k.e("s_add_u32 s62, s62, s61")
    k.e("s_movk_i32 s63, 1152")
    for i in range(6):
        b_dma_addr(k, vOB + i, 64, 8 * i, 3, 63, 62, reg_row=32)
    k.e("s_mov_b32 s%d, 0" % sKA)
    k.e("s_mov_b32 s%d, 0" % sKB)
    k.e("s_lshl_b32 s%d, s11, 12" % sMA)
    k.e("s_mul_i32 s%d, s11, 6144" % sMB)
    k.e("s_add_u32 s%d, s%d, 16384" % (sMB, sMB))

    def dmaA(st):
        b = (st % NBUF) * SB
        tag = ("dma", st)
        g = []
        for i in range(4):
            x = [("s_add_u32 m0, s%d, %d" % (sMA, b + i * 1024), None), ("s_nop 0", None),
                 ("buffer_load_dwordx4 v%d, %s, s%d offen sc1 lds" % (vOA + i, sr(SA, 4), sKA), tag)]
            if i == 3:
                x.append(("s_add_u32 s%d, s%d, 2048" % (sKA, sKA), None))
            g.append(x)
        return g

    def dmaB(st):
        b = (st % NBUF) * SB
        tag = ("dma", st)
        g = []
        for i in range(6):
            x = [("s_add_u32 m0, s%d, %d" % (sMB, b + i * 1024), None), ("s_nop 0", None)]
            x.append(("buffer_load_dwordx4 v%d, %s, s%d offen lds" % (vOB + i, sr(SBd, 4), sKB), tag))
            if i == 5:
                x.append(("s_add_u32 s%d, s%d, %d" % (sKB, sKB, 64 * 1152), None))
            g.append(x)
        return g

    def dma(st):
        return dmaA(st) + dmaB(st)
    for st in range(NBUF - 1):
        issue_groups(k, dmaB(st))
    srd(k, 84, P_WS, FLG_OFF + 32768, 1024)
    k.e("s_lshr_b32 s60, s7, 8")
    k.e("s_lshl_b32 s60, s60, 7")
    k.e("s_lshl_b32 s61, s9, 5")
    k.e("s_add_u32 s60, s60, s61")
    k.e("v_mov_b32 v20, s60")
    lab_p = k.newlab("pollA")
    lab_g = k.newlab("goA")
    k.label(lab_p)
    k.e("buffer_load_dwordx4 v[24:27], v20, s[84:87], 0 offen sc1")
    k.e("buffer_load_dwordx4 v[28:31], v20, s[84:87], 0 offen offset:16 sc1")
    k.e("s_waitcnt vmcnt(0)")
    k.e("v_add3_u32 v24, v24, v25, v26")
    k.e("v_add3_u32 v24, v24, v27, v28")
    k.e("v_add3_u32 v24, v24, v29, v30")
    k.e("v_add_u32 v24, v24, v31")
    k.e("s_nop 0")
    k.e("v_readfirstlane_b32 s61, v24")
    k.e("s_cmp_ge_u32 s61, 8")
    k.e("s_cbranch_scc1 %s" % lab_g)
    k.e("s_sleep 2")
    k.e("s_branch %s" % lab_p)
    k.label(lab_g)
    k.vq = []
    for st in range(NBUF - 1):
        issue_groups(k, dmaA(st))
    k.wait_vm(("dma", 0))
    k.e("s_barrier")
    for s_ in range(17):
        k.wait_vm(("dma", s_ + 1))
        k.e("s_barrier")
        if s_ + NBUF - 1 < 18:
            issue_groups(k, dma(s_ + NBUF - 1))
    k.e("s_endpgm")
    k.label(lab_comp)
    k.lq, k.vq = [], []
    srd(k, SP, P_WS, PART_OFF, 64 * 16 * 18432)
    srd(k, SO, P_OUT, 0, S * D * 2)
    srd(k, SH, P_WS, H_OFF, S * D * 2)
    srd(k, SD, P_WS, FLG_OFF, 256 * 128)
    vA, vB = 2, 24
    ACC = 112
    afr = [[48, 52], [56, 60]]
    bring = [64 + 4 * q for q in range(8)]
    acc = lambda i, nj: ACC + (i * 9 + nj) * 4
    k.e("s_lshl_b32 s60, s4, 12")
    k.e("v_lshlrev_b32 v18, 4, v0")
    k.e("v_add_u32 v%d, s60, v18" % vA)
    for b_ in range(1, 4):
        k.e("v_add_u32 v%d, %d, v%d" % (vA + b_, b_ * SB, vA))
    k.e("s_bfe_u32 s62, s8, 0x20004")
    k.e("s_movk_i32 s63, 16384")
    b_rd_addr3(k, vB, 62, 63)
    for b_ in range(1, 4):
        for q in range(4):
            k.e("v_add_u32 v%d, %d, v%d" % (vB + 4 * b_ + q, b_ * SB, vB + q))

    def a_rd(buf, i, kk):
        return vA + buf, i * 2048 + kk * 1024

    def b_rd(buf, nj, j, kk):
        return vB + 4 * buf + (nj & 3), kk * 12288 + j * 3072 + (nj >> 2) * 128
    gemm_core(k, 18, NBUF, 2, acc, afr, bring, 6, a_rd, b_rd, lambda st: [], True, sub=2)
    stamp(k, 1)
    k.c("---- epilogue: cross-workgroup reduction")
    k.e("v_lshlrev_b32 v18, 4, v0")
    k.e("s_lshl_b32 s60, s10, 2")
    k.e("s_add_u32 s60, s60, s9")
    k.e("s_lshl_b32 s60, s60, 2")
    k.e("s_add_u32 s60, s60, s4")
    k.e("s_mul_i32 s60, s60, 9216")
    k.e("v_add_u32 v21, s60, v18")
    k.e("s_lshl_b32 s60, s10, 2")
    k.e("s_add_u32 s61, s60, s4")
    k.e("s_lshl_b32 s61, s61, 7")
    k.e("s_lshl_b32 s62, s9, 2")
    k.e("s_add_u32 s61, s61, s62")
    k.e("v_mov_b32 v23, s61")
    k.e("s_add_u32 s60, s60, s9")
    k.e("s_lshl_b32 s60, s60, 7")
    k.e("v_mov_b32 v26, s60")
    k.e("v_mov_b32 v24, 1")
    k.e("s_nop 7")
    k.e("s_barrier")
    lab_own = k.newlab("own")
    lab_j = k.newlab("j")
    k.e("s_cmp_eq_u32 s4, s9")
    k.e("s_cbranch_scc1 %s" % lab_own)
    for t in range(9):
        a = ACC + 8 * t
        for d in range(4):
            k.e("v_cvt_pk_bf16_f32 v%d, v%d, v%d" % (a + d, a + 2 * d, a + 2 * d + 1))
        sreg = "0"
        off = t * 1024
        if off >= 4096:
            k.e("s_movk_i32 s61, %d" % (off & ~4095))
            sreg = "s61"
        k.e("buffer_store_dwordx4 %s, v21, %s, %s offen offset:%d sc1" % (vr(a, 4), sr(SP, 4), sreg, off & 4095))
    k.e("s_barrier")
    k.e("s_branch %s" % lab_j)
    k.label(lab_own)
    for t in range(18):
        k.e("ds_write_b128 v18, %s offset:%d" % (vr(ACC + 4 * t, 4), t * 1024))
    k.e("s_waitcnt lgkmcnt(0)")
    k.e("s_barrier")
    k.e("s_branch L_%s_end" % k.name)
    k.label(lab_j)
    k.e("s_sub_u32 s62, s4, s9")
    k.e("s_sub_u32 s62, s62, 1")
    k.e("s_and_b32 s62, s62, 3")
    k.e("s_mul_i32 s63, s62, 6144")
    k.e("v_add_u32 v22, s63, v18")
    OWN = 48
    for t in range(6):
        k.lds("ds_read_b128 %s, v22 offset:%d" % (vr(OWN + 4 * t, 4), t * 1024), "own")
    k.e("s_lshl_b32 s60, s9, 5")
    k.e("s_add_u32 s60, s60, s7")
    k.e("v_add_u32 v19, s60, v16")
    k.e("v_mul_u32_u24 v19, 1152, v19")
    k.e("v_lshlrev_b32 v20, 3, v17")
    k.e("s_lshl_b32 s60, s8, 1")
    k.e("v_add3_u32 v19, v19, v20, s60")
    fl_lane(k, 44, 45)
    k.e("s_lshr_b32 s60, s7, 4")
    k.e("s_lshl_b32 s61, s9, 1")
    k.e("s_add_u32 s60, s60, s61")
    k.e("s_mul_i32 s60, s60, 18432")
    k.e("s_lshl_b32 s61, s8, 5")
    k.e("s_add_u32 s60, s60, s61")
    k.e("v_add_u32 v44, s60, v44")
    k.e("s_waitcnt vmcnt(0)")
    k.e("s_mov_b64 exec, 1")
    k.e("buffer_store_dword v24, v23, %s, 0 offen sc1" % sr(SD, 4))
    k.e("s_mov_b64 exec, -1")
    k.e("s_mul_i32 s62, s62, 6")
    HR = 96
    for t in range(6):
        k.e("s_add_u32 s60, s62, %d" % t)
        k.e("s_cmp_ge_u32 s60, 9")
        k.e("s_cselect_b32 s61, %d, 0" % (16 * 1152 - 9 * 32))
        k.e("s_cselect_b32 s69, %d, 0" % (18432 - 9 * 512))
        k.e("s_lshl_b32 s68, s60, 9")
        k.e("s_add_u32 s68, s68, s69")
        k.e("s_lshl_b32 s60, s60, 5")
        k.e("s_add_u32 s%d, s60, s61" % (84 + t))
        k.e("buffer_load_dwordx2 %s, v44, %s, s68 offen sc1" % (vr(HR + 2 * t, 2), sr(SH, 4)))
    stamp(k, 2)
    lab_poll = k.newlab("poll")
    lab_go = k.newlab("go")
    k.label(lab_poll)
    k.e("buffer_load_dwordx4 v[28:31], v26, %s, 0 offen sc1" % sr(SD, 4))
    k.e("s_waitcnt vmcnt(0)")
    k.e("v_add_u32 v28, v28, v29")
    k.e("v_add3_u32 v28, v28, v30, v31")
    k.e("s_nop 0")
    k.e("v_readfirstlane_b32 s61, v28")
    k.e("s_cmp_ge_u32 s61, 3")
    k.e("s_cbranch_scc1 %s" % lab_go)
    k.e("s_sleep 1")
    k.e("s_branch %s" % lab_poll)
    k.label(lab_go)
    if STAMP:
        k.e("s_memtime s[82:83]")
        k.e("s_waitcnt lgkmcnt(0)")
        k.lq = []
    k.e("s_lshl_b32 s60, s10, 4")
    k.e("s_add_u32 s60, s60, s9")
    k.e("s_mul_i32 s60, s60, 9216")
    k.e("s_lshr_b32 s63, s63, 1")
    k.e("s_add_u32 s60, s60, s63")
    k.e("v_add_u32 v21, s60, v18")
    k.vq = []
    for o in range(1, 4):
        k.e("s_add_u32 s61, s9, %d" % o)
        k.e("s_and_b32 s61, s61, 3")
        k.e("s_mul_i32 s61, s61, %d" % (4 * 9216))
        for t in range(3):
            k.vm("buffer_load_dwordx4 %s, v21, %s, s61 offen offset:%d sc1" % (vr(ACC + 12 * (o - 1) + 4 * t, 4), sr(SP, 4), t * 1024), ("p", o, t))
    k.wait_lds("own")
    for t in range(6):
        a = OWN + 4 * t
        for d in range(2):
            k.e("v_lshlrev_b32 v42, 16, v%d" % (HR + 2 * t + d))
            k.e("v_and_b32 v43, 0xffff0000, v%d" % (HR + 2 * t + d))
            k.e("v_add_f32 v%d, v%d, v42" % (a + 2 * d, a + 2 * d))
            k.e("v_add_f32 v%d, v%d, v43" % (a + 2 * d + 1, a + 2 * d + 1))
    for o in range(1, 4):
        for t in range(6):
            a = OWN + 4 * t
            k.wait_vm(("p", o, t >> 1))
            for d in range(2):
                x = ACC + 12 * (o - 1) + 2 * t + d
                k.e("v_lshlrev_b32 v42, 16, v%d" % x)
                k.e("v_and_b32 v43, 0xffff0000, v%d" % x)
                k.e("v_add_f32 v%d, v%d, v42" % (a + 2 * d, a + 2 * d))
                k.e("v_add_f32 v%d, v%d, v43" % (a + 2 * d + 1, a + 2 * d + 1))
            if o == 3:
                k.e("v_cvt_pk_bf16_f32 v%d, v%d, v%d" % (HR + 2 * t, a, a + 1))
                k.e("v_cvt_pk_bf16_f32 v%d, v%d, v%d" % (HR + 1 + 2 * t, a + 2, a + 3))
                k.vm("buffer_store_dwordx2 %s, v19, %s, s%d offen" % (vr(HR + 2 * t, 2), sr(SO, 4), 84 + t))
    stamp(k, 3)
    stamp_flush(k, 7)
    footer(k)
    return k, 256


def gen_k5():
    k = K("red")
    nwg = S * D // 8 // 256
    k.e("s_cmp_ge_u32 s2, %d" % nwg)
    k.e("s_cbranch_scc1 L_%s_end" % k.name)
    k.e("s_load_dwordx16 s[16:31], s[0:1], 0")
    k.e("s_load_dwordx4 s[32:35], s[0:1], 64")
    k.e("s_lshl_b32 s3, s2, 8")
    k.e("v_add_u32 v1, s3, v0")
    k.e("v_lshlrev_b32 v2, 4, v1")
    k.e("v_lshlrev_b32 v3, 5, v1")
    k.e("s_waitcnt lgkmcnt(0)")
    srd(k, 36, P_WS, H_OFF, S * D * 2)
    srd(k, 40, P_WS, PART_OFF, 4 * S * D * 4)
    srd(k, 44, P_OUT, 0, S * D * 2)
    k.e("buffer_load_dwordx4 v[4:7], v2, s[36:39], 0 offen")
    for p in range(4):
        k.e("s_mov_b32 s48, 0x%x" % (p * S * D * 4))
        k.e("buffer_load_dwordx4 %s, v3, s[40:43], s48 offen" % vr(8 + p * 8, 4))
        k.e("buffer_load_dwordx4 %s, v3, s[40:43], s48 offen offset:16" % vr(12 + p * 8, 4))
    k.e("s_waitcnt vmcnt(0)")
    for r in range(8):
        k.e("v_add_f32 v%d, v%d, v%d" % (8 + r, 8 + r, 16 + r))
        k.e("v_add_f32 v%d, v%d, v%d" % (24 + r, 24 + r, 32 + r))
    for r in range(8):
        k.e("v_add_f32 v%d, v%d, v%d" % (8 + r, 8 + r, 24 + r))
    for d in range(4):
        k.e("v_lshlrev_b32 v40, 16, v%d" % (4 + d))
        k.e("v_and_b32 v41, 0xffff0000, v%d" % (4 + d))
        k.e("v_add_f32 v%d, v%d, v40" % (8 + 2 * d, 8 + 2 * d))
        k.e("v_add_f32 v%d, v%d, v41" % (9 + 2 * d, 9 + 2 * d))
    for d in range(4):
        k.e("v_cvt_pk_bf16_f32 v%d, v%d, v%d" % (4 + d, 8 + 2 * d, 9 + 2 * d))
    k.e("buffer_store_dwordx4 v[4:7], v2, s[44:47], 0 offen")
    footer(k)
    return k, nwg


def gen_k2():
    k = K("ffn")
    k.stamp_slot = 1
    SB = 4096 + 24576
    NBUF = 5
    header(k, 256)
    stamp(k, 0)
    SA, SBd, SX, SH, SST, SCP, SCS = 36, 40, 44, 48, 52, 64, 96
    sKA, sKB, sMA, sMB = 56, 57, 58, 59
    k.e("s_and_b32 s9, s2, 3")
    k.e("s_lshr_b32 s60, s2, 2")
    k.e("s_lshl_b32 s7, s60, 5")
    k.e("s_mul_i32 s8, s9, 144")
    k.e("s_lshr_b32 s5, s4, 1")
    k.e("s_and_b32 s6, s4, 1")
    srd(k, SA, P_WS, O_OFF, S * D * 2)
    srd(k, SBd, P_WO, 0, D * D * 2)
    srd(k, SX, P_X, 0, S * D * 2)
    srd(k, SH, P_WS, H_OFF, S * D * 2)
    srd(k, SST, P_WS, ST_OFF, S * 32)
    lab_idle = k.newlab("idle")
    lab_p2done = k.newlab("p2done")
    k.e("s_cmp_ge_u32 s4, 4")
    k.e("s_cbranch_scc1 %s" % lab_idle)
    vOA, vOB = 2, 8
    vA, vB = 24, 28
    ACC = 112
    afr = [[48], [52]]
    bring = [56, 60, 64, 68, 72, 76]
    acc = lambda i, nj: ACC + nj * 4
    XR = 80
    CPR = 184
    k.e("v_and_b32 v16, 15, v0")
    k.e("v_lshrrev_b32 v17, 4, v0")
    k.e("s_lshl_b32 s60, s5, 4")
    k.e("s_add_u32 s60, s60, s7")
    k.e("v_add_u32 v31, s60, v16")
    k.e("s_movk_i32 s63, 1152")
    k.e("v_mul_lo_u32 v18, v31, s63")
    k.e("v_lshlrev_b32 v19, 3, v17")
    k.e("s_lshl_b32 s62, s8, 1")
    k.e("v_add3_u32 v32, v18, v19, s62")
    for nj in range(9):
        k.vm("buffer_load_dwordx2 %s, v32, %s, 0 offen offset:%d" % (vr(XR + 2 * nj, 2), sr(SX, 4), nj * 32), "x")
    k.e("s_lshr_b32 s60, s7, 4")
    k.e("s_add_u32 s60, s60, s5")
    k.e("s_mul_i32 s60, s60, 18432")
    k.e("s_lshl_b32 s61, s6, 10")
    k.e("s_add_u32 s61, s60, s61")
    k.e("v_lshlrev_b32 v19, 4, v0")
    k.e("v_add_u32 v%d, s61, v19" % vOA)
    fl_lane(k, 37, 18)
    k.e("s_lshl_b32 s61, s8, 5")
    k.e("s_add_u32 s60, s60, s61")
    k.e("v_add_u32 v37, s60, v37")
    k.e("s_mul_i32 s88, s4, 48")
    k.e("s_lshl_b32 s62, s8, 1")
    k.e("s_and_b32 s62, s62, 0xffffff80")
    k.e("s_movk_i32 s63, 1152")
    for i in range(6):
        b_dma_addr(k, vOB + i, 88, 8 * i, 3, 63, 62, reg_row=32)
    k.e("s_mov_b32 s%d, 0" % sKA)
    k.e("s_mov_b32 s%d, 0" % sKB)
    k.e("s_lshl_b32 s%d, s4, 10" % sMA)
    k.e("s_mul_i32 s%d, s4, 6144" % sMB)
    k.e("s_add_u32 s%d, s%d, 4096" % (sMB, sMB))

    def dma(st):
        b = (st % NBUF) * SB
        tag = ("dma", st)
        g = [[("s_add_u32 m0, s%d, %d" % (sMA, b), None), ("s_nop 0", None),
              ("buffer_load_dwordx4 v%d, %s, s%d offen lds" % (vOA, sr(SA, 4), sKA), tag)]]
        for i in range(6):
            x = [("s_add_u32 m0, s%d, %d" % (sMB, b + i * 1024), None), ("s_nop 0", None)]
            x.append(("buffer_load_dwordx4 v%d, %s, s%d offen lds" % (vOB + i, sr(SBd, 4), sKB), tag))
            if i == 5:
                x.append(("s_add_u32 s%d, s%d, 2048" % (sKA, sKA), None))
                x.append(("s_add_u32 s%d, s%d, %d" % (sKB, sKB, 64 * 1152), None))
            g.append(x)
        return g
    for st in range(NBUF - 1):
        issue_groups(k, dma(st))
    k.e("v_lshlrev_b32 v18, 4, v0")
    k.e("v_add_u32 v%d, s%d, v18" % (vA, sMA))
    for q in range(1, 3):
        k.e("v_add_u32 v%d, %d, v%d" % (vA + q, 2 * SB * q, vA))
    vB = 100
    k.e("s_bfe_u32 s62, s8, 0x20004")
    k.e("s_mul_i32 s63, s6, 12288")
    k.e("s_add_u32 s63, s63, 4096")
    b_rd_addr3(k, vB, 62, 63)
    for b_ in range(1, 3):
        for q in range(4):
            k.e("v_add_u32 v%d, %d, v%d" % (vB + 4 * b_ + q, 2 * b_ * SB, vB + q))

    def a_rd(buf, i):
        return vA + (buf >> 1), (buf & 1) * SB

    def b_rd(buf, nj, j):
        return vB + 4 * (buf >> 1) + (nj & 3), (buf & 1) * SB + j * 3072 + (nj >> 2) * 128
    stamp(k, 1)
    gemm_core(k, 9, NBUF, 1, acc, afr, bring, 4, a_rd, b_rd, dma, True)
    stamp(k, 2)
    k.c("---- epilogue")
    k.e("s_nop 7")
    k.e("s_nop 7")
    k.e("s_barrier")
    k.wait_vm("x")
    k.e("s_mul_i32 s60, s5, 9216")
    k.e("v_lshlrev_b32 v18, 4, v0")
    k.e("v_add_u32 v19, s60, v18")
    lab_recv = k.newlab("recv")
    k.e("s_cmp_eq_u32 s6, 0")
    k.e("s_cbranch_scc1 %s" % lab_recv)
    for nj in range(9):
        k.lds("ds_write_b128 v19, %s offset:%d" % (vr(acc(0, nj), 4), nj * 1024))
    k.wait_lds_all()
    k.e("s_barrier")
    k.e("s_branch %s" % lab_p2done)
    k.label(lab_recv)
    k.e("s_barrier")
    R = 48
    RX = 148
    for nj in range(9):
        k.lds("ds_read_b128 %s, v19 offset:%d" % (vr(RX + nj * 4, 4), nj * 1024), ("x", nj))
    k.e("v_mov_b32 v40, 0")
    k.e("v_mov_b32 v41, 0")
    for nj in range(9):
        k.wait_lds(("x", nj))
        a = acc(0, nj)
        for r in range(4):
            k.e("v_add_f32 v%d, v%d, v%d" % (a + r, a + r, RX + nj * 4 + r))
        for d in range(2):
            k.e("v_lshlrev_b32 v42, 16, v%d" % (XR + 2 * nj + d))
            k.e("v_and_b32 v43, 0xffff0000, v%d" % (XR + 2 * nj + d))
            k.e("v_add_f32 v%d, v%d, v42" % (a + 2 * d, a + 2 * d))
            k.e("v_add_f32 v%d, v%d, v43" % (a + 2 * d + 1, a + 2 * d + 1))
        k.e("v_cvt_pk_bf16_f32 v%d, v%d, v%d" % (XR + 2 * nj, a, a + 1))
        k.e("v_cvt_pk_bf16_f32 v%d, v%d, v%d" % (XR + 2 * nj + 1, a + 2, a + 3))
        if nj == 8:
            k.e("s_movk_i32 s60, 4096")
        k.vm("buffer_store_dwordx2 %s, v37, %s, %s offen offset:%d" % (vr(XR + 2 * nj, 2), sr(SH, 4), "s60" if nj == 8 else "0", (nj * 512) & 4095) + " sc1")
        for d in range(2):
            k.e("v_lshlrev_b32 v42, 16, v%d" % (XR + 2 * nj + d))
            k.e("v_and_b32 v43, 0xffff0000, v%d" % (XR + 2 * nj + d))
            k.e("v_add_f32 v40, v40, v42")
            k.e("v_fmac_f32 v41, v42, v42")
            k.e("v_add_f32 v40, v40, v43")
            k.e("v_fmac_f32 v41, v43, v43")
    k.e("v_xor_b32 v44, 16, v0")
    k.e("v_lshlrev_b32 v44, 2, v44")
    k.e("v_xor_b32 v45, 32, v0")
    k.e("v_lshlrev_b32 v45, 2, v45")
    for a in (44, 45):
        k.e("ds_bpermute_b32 v42, v%d, v40" % a)
        k.e("ds_bpermute_b32 v43, v%d, v41" % a)
        k.e("s_waitcnt lgkmcnt(0)")
        k.e("v_add_f32 v40, v40, v42")
        k.e("v_add_f32 v41, v41, v43")
    k.e("v_lshlrev_b32 v42, 5, v31")
    k.e("s_lshl_b32 s60, s9, 3")
    k.e("v_add_u32 v42, s60, v42")
    k.e("s_mov_b64 exec, 0xffff")
    k.e("buffer_store_dwordx2 v[40:41], v42, %s, 0 offen sc1" % sr(SST, 4))
    k.e("s_mov_b64 exec, -1")
    stamp(k, 3)
    stamp_flush(k, 6)
    k.e("s_mov_b64 exec, -1")
    k.e("s_branch %s" % lab_p2done)
    k.label(lab_idle)
    for _ in range(11):
        k.e("s_barrier")
    k.label(lab_p2done)
    srd(k, 64, P_WS, FLG_OFF + 32768 + 1024, 1024)
    k.e("s_lshl_b32 s60, s2, 2")
    k.e("v_mov_b32 v1, s60")
    k.e("v_mov_b32 v2, 1")
    k.e("s_waitcnt vmcnt(0) lgkmcnt(0)")
    k.e("s_barrier")
    lab_nf = k.newlab("nf")
    k.e("s_cmp_lg_u32 s4, 0")
    k.e("s_cbranch_scc1 %s" % lab_nf)
    k.e("s_mov_b64 exec, 1")
    k.e("buffer_store_dword v2, v1, s[64:67], 0 offen sc1")
    k.e("s_mov_b64 exec, -1")
    k.label(lab_nf)
    k.lq, k.vq = [], []
    return gen_k3(k)


def gen_k1():
    k = K("qkv")
    WS_, NW = 24576, 5
    XS_, NX = 10240, 3
    XB = WS_ * NW
    QP = 976
    STO = 80 * QP
    header(k, 256)
    stamp(k, 0)
    SX, SW, SO, SG, SCP = 36, 40, 44, 48, 52
    sKW, sKX, sMW, sMX = 56, 57, 58, 59
    k.e("s_and_b32 s9, s2, 7")
    k.e("s_lshr_b32 s10, s2, 3")
    srd(k, SX, P_X, 0, S * D * 2)
    srd(k, SW, P_WQKV, 0, D * 3 * D * 2)
    srd(k, SO, P_WS, O_OFF, S * D * 2)
    k.e("v_and_b32 v16, 15, v0")
    k.e("v_lshrrev_b32 v17, 4, v0")
    vO = 2
    k.e("s_mul_i32 s64, s4, 24")
    k.e("s_mul_i32 s65, s9, 144")
    k.e("s_and_b32 s62, s65, 0xffffff80")
    k.e("s_movk_i32 s63, 3456")
    for t in range(3):
        b_dma_addr(k, vO + t, 64, 8 * t, 2, 63, 62, reg_col=1152)
    k.e("s_lshl_b32 s60, s10, 6")
    k.e("s_lshl_b32 s61, s4, 4")
    k.e("s_add_u32 s60, s60, s61")
    k.e("s_sub_u32 s60, s60, 16")
    k.e("v_add_u32 v18, s60, v16")
    k.e("s_movk_i32 s63, 1152")
    k.e("v_mul_lo_u32 v18, v18, s63")
    k.e("v_lshlrev_b32 v19, 4, v17")
    k.e("v_add_u32 v%d, v18, v19" % (vO + 3))
    k.e("v_add_u32 v%d, 64, v%d" % (vO + 4, vO + 3))
    k.e("s_mov_b32 s%d, 0" % sKW)
    k.e("s_mov_b32 s%d, 0" % sKX)
    k.e("s_mul_i32 s%d, s4, 3072" % sMW)
    k.e("s_lshl_b32 s%d, s4, 11" % sMX)

    def dmaW(st):
        b = (st % NW) * WS_
        g = []
        for t in range(3):
            x = [("s_add_u32 m0, s%d, %d" % (sMW, b + t * 1024), None), ("s_nop 0", None),
                 ("buffer_load_dwordx4 v%d, %s, s%d offen lds" % (vO + t, sr(SW, 4), sKW), ("dma", st))]
            if t == 2:
                x.append(("s_add_u32 s%d, s%d, %d" % (sKW, sKW, 32 * 3456), None))
            g.append(x)
        return g

    def dmaX(xs):
        b = XB + (xs % NX) * XS_
        g = []
        for t in range(2):
            x = [("s_add_u32 m0, s%d, %d" % (sMX, b + t * 1024), None), ("s_nop 0", None),
                 ("buffer_load_dwordx4 v%d, %s, s%d offen lds" % (vO + 3 + t, sr(SX, 4), sKX), ("dma", 2 * xs))]
            if t == 1:
                x.append(("s_add_u32 s%d, s%d, 128" % (sKX, sKX), None))
            g.append(x)
        return g
    lab_nx = k.newlab("nx")
    k.e("s_cmp_ge_u32 s4, 5")
    k.e("s_cbranch_scc1 %s" % lab_nx)
    issue_groups(k, dmaX(0) + dmaX(1))
    k.label(lab_nx)
    issue_groups(k, dmaW(0) + dmaW(1) + dmaW(2) + dmaW(3))
    srd(k, 84, P_WS, FLG_OFF, 32768 + 2048)
    k.e("s_lshl_b32 s60, s2, 7")
    k.e("v_mov_b32 v8, s60")
    k.e("s_lshl_b32 s60, s2, 2")
    k.e("s_add_u32 s60, s60, 32768")
    k.e("v_mov_b32 v9, s60")
    for r in range(4):
        k.e("v_mov_b32 v%d, 0" % (20 + r))
    k.e("s_mov_b64 exec, 1")
    k.e("buffer_store_dwordx4 v[20:23], v8, s[84:87], 0 offen")
    k.e("buffer_store_dword v20, v9, s[84:87], 0 offen")
    k.e("buffer_store_dword v20, v9, s[84:87], 0 offen offset:1024")
    k.e("s_mov_b64 exec, -1")
    k.e("s_nop 1")
    if "newtouch" not in EXP:
        touch(k, 96, P_WQKV, D * 3 * D * 2, 2048, 8, 18, 1)
        touch(k, 96, P_X, S * D * 2, 2048, 8, 18, 1)
    else:
        k.e("s_lshl_b32 s60, s10, 6")
        k.e("s_sub_u32 s60, s60, 16")
        k.e("s_mul_i32 s60, s60, 1152")
        k.e("s_mul_i32 s61, s4, 90 * 128")
        k.e("s_add_u32 s60, s60, s61")
        k.e("v_lshlrev_b32 v18, 7, v0")
        k.e("v_add_u32 v18, s60, v18")
        k.e("v_add_u32 v19, 8192, v18")
        k.vm("buffer_load_dword v1, v18, %s, 0 offen" % sr(SX, 4), "touch")
        k.e("s_mov_b64 exec, 0x3ffffff")
        k.vm("buffer_load_dword v1, v19, %s, 0 offen" % sr(SX, 4), "touch")
        k.e("s_mov_b64 exec, -1")
        k.e("s_mul_i32 s60, s4, 14")
        k.e("v_add_u32 v18, s60, v0")
        k.e("v_mul_u32_u24 v19, 10923, v18")
        k.e("v_lshrrev_b32 v19, 16, v19")
        k.e("v_mul_u32_u24 v20, 6, v19")
        k.e("v_sub_u32 v18, v18, v20")
        k.e("v_lshrrev_b32 v20, 1, v18")
        k.e("v_mul_u32_u24 v20, 1152, v20")
        k.e("v_and_b32 v18, 1, v18")
        k.e("v_lshlrev_b32 v18, 7, v18")
        k.e("s_mul_i32 s60, s10, 18")
        k.e("v_add_u32 v19, s60, v19")
        k.e("v_mul_u32_u24 v19, 3456, v19")
        k.e("s_mul_i32 s60, s9, 144")
        k.e("s_and_b32 s60, s60, 0xffffff80")
        k.e("v_add3_u32 v18, v18, v19, v20")
        k.e("v_add_u32 v18, s60, v18")
        k.e("s_mov_b64 exec, 0x3fff")
        k.vm("buffer_load_dword v1, v18, %s, 0 offen" % sr(SW, 4), "touch")
        k.e("s_mov_b64 exec, -1")
    touch(k, 96, P_WO, D * D * 2, 2048, 8, 18, 1)
    CX = 144
    lab_cs3 = k.newlab("cs3")
    k.e("s_mul_i32 s13, s2, 3")
    k.e("s_add_u32 s13, s13, s4")
    k.e("s_sub_u32 s13, s13, 5")
    k.e("s_mul_i32 s14, s13, 3641")
    k.e("s_lshr_b32 s14, s14, 16")
    k.e("s_mul_i32 s15, s14, 18")
    k.e("s_sub_u32 s15, s13, s15")
    k.e("s_lshl_b32 s60, s4, 5")
    k.e("s_add_u32 s61, s60, 160")
    k.e("s_add_u32 s62, s60, 320")
    k.e("s_sub_u32 s60, s4, 5")
    k.e("s_lshl_b32 s60, s60, 6")
    k.e("s_add_u32 s63, s60, 32")
    k.e("s_min_u32 s63, s63, 128")
    k.e("s_cmp_lt_u32 s4, 5")
    k.e("s_cselect_b32 s11, s61, s60")
    k.e("s_cselect_b32 s12, s62, s63")
    k.e("s_cselect_b32 s66, 8192, 0")
    k.e("s_cselect_b32 s67, 16384, 0")
    k.e("s_cselect_b32 s68, 160, 0")
    k.e("s_cselect_b32 s69, 320, 0")
    vB0, vB1, vA, vS = 20, 25, 30, 33
    swap23_lane_rowpos(k, 8, 0, 18, 19)
    k.e("v_bfe_u32 v9, v8, 1, 2")
    k.e("v_and_b32 v10, 1, v8")
    k.e("v_lshlrev_b32 v8, 8, v8")
    k.e("v_and_b32 v11, 3, v0")
    k.e("v_lshlrev_b32 v11, 3, v11")
    k.e("s_and_b32 s65, s65, 127")
    for (vd, sreg, sreb, ssub) in ((vB0, 11, 66, 68), (vB1, 12, 67, 69)):
        k.e("s_sub_u32 s60, s%d, s%d" % (sreg, ssub))
        k.e("s_add_u32 s60, s60, s65")
        k.e("v_add_u32 v18, s60, v11")
        k.e("v_bfe_u32 v19, v18, 7, 1")
        k.e("v_xor_b32 v19, v19, v10")
        k.e("v_lshlrev_b32 v19, 7, v19")
        k.e("v_bfe_u32 v12, v18, 5, 2")
        k.e("v_xor_b32 v12, v12, v9")
        k.e("v_lshlrev_b32 v12, 5, v12")
        k.e("v_and_b32 v18, 31, v18")
        k.e("v_add3_u32 v18, v18, v19, v12")
        k.e("v_add3_u32 v%d, v18, v8, s%d" % (vd, sreb))
    k.e("v_lshlrev_b32 v%d, 4, v0" % vA)
    k.e("v_add_u32 v%d, %d, v%d" % (vA, XB, vA))
    k.e("v_add_u32 v%d, s%d, v%d" % (vS, sMX, vA))
    for b in range(1, NW):
        for v in (vB0, vB1):
            k.e("v_add_u32 v%d, %d, v%d" % (v + b, b * WS_, v))
    for b in range(1, NX):
        for v in (vA, vS):
            k.e("v_add_u32 v%d, %d, v%d" % (v + b, b * XS_, v))
    ONES = 36
    for r in range(4):
        k.e("v_mov_b32 v%d, 0x3f803f80" % (ONES + r))
    ACC = 40
    acc = lambda sl, mi: ACC + (sl * 6 + mi) * 4
    SACC = 88
    AF = [[96 + 4 * mi for mi in range(6)], [120 + 4 * mi for mi in range(6)]]
    BF = [[216, 220], [224, 228]]
    lab_q = k.newlab("qpath")
    lab_post = k.newlab("post")
    k.e("s_cmp_ge_u32 s4, 5")
    k.e("s_cbranch_scc1 %s" % lab_q)
    for path in range(2):
        if path == 1:
            k.e("s_branch %s" % lab_post)
            k.label(lab_q)
        k.lq, k.vq = [], []
        mis = [0, 1, 2, 3, 4] if path == 0 else [1, 2, 3, 4]
        k.vq = [("dma", 0)] * 3 + [("dma", 1)] * 3 + [("dma", 2)] * 3 + [("dma", 3)] * 3 + ["z"] * 6
        def rdl(s):
            xs, kk = divmod(s, 2)
            out = []
            for sl in range(2):
                for j in range(2):
                    out.append("ds_read_b64_tr_b16 %s, v%d offset:%d" % (vr(BF[s % 2][sl] + 2 * j, 2), (vB0, vB1)[sl] + s % NW, j * 2048))
            for mi in mis:
                out.append("ds_read_b128 %s, v%d offset:%d" % (vr(AF[s % 2][mi], 4), vA + xs % NX, (mi * 2 + kk) * 1024))
            if path == 0:
                out.append("ds_read_b128 %s, v%d offset:%d" % (vr(AF[s % 2][5], 4), vS + xs % NX, kk * 1024))
            return out
        if path == 0 and "k1fine" not in EXP:
            stamp(k, 1)
        k.wait_vm(("dma", 0))
        k.e("s_barrier")
        for x in rdl(0):
            k.lds(x, ("f", 0))
        for s in range(18):
            k.c("---- step %d" % s)
            if STAMP and "k1fine" in EXP and path == 0 and s in (1, 6):
                k.e("s_memtime s[%d:%d]" % ((72, 73) if s == 1 else (74, 75)))
            groups = []
            reads = []
            if s + 1 < 18:
                k.wait_vm(("dma", s + 1))
                k.e("s_barrier")
                if path == 0 and s % 2 == 0 and s // 2 + 2 < 9:
                    groups += dmaX(s // 2 + 2)
                if s + NW - 1 < 18:
                    groups += dmaW(s + NW - 1)
                reads = rdl(s + 1)
            if False:
                groups.append([("buffer_load_dwordx4 %s, v7, %s, s88 offen" % (vr(CX + 4 * s, 4), sr(SG, 4)), "cs"),
                               ("s_add_u32 s88, s88, 9216", None)])
            k.wait_lds(("f", s))
            mf = []
            for sl in range(2):
                for mi in mis + [5]:
                    a = acc(sl, mi)
                    cc = "0" if s == 0 else vr(a, 4)
                    bop = vr(AF[s % 2][mi], 4) if mi < 5 else vr(ONES, 4)
                    mf.append("v_mfma_f32_16x16x32_bf16 %s, %s, %s, %s" % (vr(a, 4), vr(BF[s % 2][sl], 4), bop, cc))
            if path == 0:
                sf = vr(AF[s % 2][5], 4)
                mf.append("v_mfma_f32_16x16x32_bf16 %s, %s, %s, %s" % (vr(SACC, 4), vr(ONES, 4), sf, "0" if s == 0 else vr(SACC, 4)))
                mf.append("v_mfma_f32_16x16x32_bf16 %s, %s, %s, %s" % (vr(SACC + 4, 4), sf, sf, "0" if s == 0 else vr(SACC + 4, 4)))
            for n, m in enumerate(mf):
                k.e(m)
                if n < len(reads):
                    k.lds(reads[n], ("f", s + 1))
                g0 = len(mf) - len(groups)
                if n >= g0:
                    issue_groups(k, [groups[n - g0]])
    k.label(lab_post)
    k.lq, k.vq = [], []
    if "k1fine" in EXP:
        k.e("s_waitcnt lgkmcnt(0)")
        stamp(k, 3)
        stamp_flush(k, 6)
        k.e("s_mov_b64 exec, -1")
    else:
        stamp(k, 2)
    k.e("s_nop 7")
    k.e("s_nop 7")
    k.e("s_barrier")
    k.e("v_and_b32 v18, 3, v0")
    k.e("v_cmp_eq_u32 vcc, 1, v18")
    k.e("v_mov_b32 v19, v%d" % (SACC + 4))
    k.e("s_nop 0")
    k.e("v_cndmask_b32 v19, v19, v%d, vcc" % (SACC + 5))
    k.e("v_cmp_eq_u32 vcc, 2, v18")
    k.e("s_nop 1")
    k.e("v_cndmask_b32 v19, v19, v%d, vcc" % (SACC + 6))
    k.e("v_cmp_eq_u32 vcc, 3, v18")
    k.e("s_nop 1")
    k.e("v_cndmask_b32 v19, v19, v%d, vcc" % (SACC + 7))
    k.e("s_mov_b32 s60, 0x%x" % f2u(1.0 / 576.0))
    k.e("s_mov_b32 s61, 0x%x" % f2u(1e-5))
    k.e("v_mul_f32 v8, s60, v%d" % SACC)
    k.e("v_mul_f32 v19, s60, v19")
    k.e("v_fma_f32 v19, -v8, v8, v19")
    k.e("v_max_f32 v19, 0, v19")
    k.e("v_add_f32 v19, s61, v19")
    k.e("v_rsq_f32 v9, v19")
    k.e("v_sub_f32 v8, 0, v8")
    k.e("v_lshrrev_b32 v18, 2, v16")
    k.e("v_cmp_eq_u32 vcc, v18, v17")
    k.e("s_lshl_b32 s60, s4, 7")
    k.e("v_lshlrev_b32 v18, 3, v16")
    k.e("v_add_u32 v18, s60, v18")
    k.e("v_add_u32 v18, %d, v18" % STO)
    k.e("s_and_saveexec_b64 s[60:61], vcc")
    k.e("ds_write_b64 v18, v[8:9]")
    k.e("s_mov_b64 exec, -1")
    k.e("s_waitcnt lgkmcnt(0)")
    k.e("s_barrier")
    k.e("v_lshlrev_b32 v18, 3, v16")
    k.e("v_add_u32 v18, %d, v18" % STO)
    for mi in range(5):
        k.lds("ds_read_b64 %s, v18 offset:%d" % (vr(96 + 2 * mi, 2), mi * 128), "st")
    for sl, sreg in ((0, 11), (1, 12)):
        k.e("s_lshl_b32 s60, s%d, 1" % sreg)
        k.e("v_mul_u32_u24 v18, %d, v16" % QP)
        k.e("v_lshlrev_b32 v19, 4, v17")
        k.e("v_add3_u32 v%d, v18, v19, s60" % (8 + sl))
    k.wait_lds("st")
    for sl in range(2):
        cw = acc(sl, 5)
        for mi in range(5):
            a = acc(sl, mi)
            for r in range(4):
                k.e("v_fma_f32 v%d, v%d, v%d, v%d" % (a + r, 96 + 2 * mi, cw + r, a + r))
            for r in range(4):
                k.e("v_mul_f32 v%d, v%d, v%d" % (a + r, 97 + 2 * mi, a + r))
            k.e("v_cvt_pk_bf16_f32 v18, v%d, v%d" % (a, a + 1))
            k.e("v_cvt_pk_bf16_f32 v19, v%d, v%d" % (a + 2, a + 3))
            k.e("v_lshlrev_b32 v%d, 16, v18" % a)
            k.e("v_and_b32 v%d, 0xffff0000, v18" % (a + 1))
            k.e("v_lshlrev_b32 v%d, 16, v19" % (a + 2))
            k.e("v_and_b32 v%d, 0xffff0000, v19" % (a + 3))
            k.lds("ds_write_b128 v%d, %s offset:%d" % (8 + sl, vr(a, 4), mi * 16 * QP))
    k.wait_lds_all()
    k.e("s_barrier")
    k.e("s_cmp_ge_u32 s4, 4")
    k.e("s_cbranch_scc1 %s" % lab_cs3)
    k.e("v_lshrrev_b32 v18, 2, v0")
    k.e("s_lshl_b32 s60, s4, 4")
    k.e("v_add_u32 v18, s60, v18")
    k.e("v_and_b32 v19, 3, v0")
    k.e("v_mul_u32_u24 v20, %d, v18" % QP)
    k.e("v_mul_u32_u24 v21, 72, v19")
    k.e("v_add_u32 v20, v20, v21")
    Q = 32
    KV = 52
    L = 108
    O = 116
    for d in range(9):
        k.lds("ds_read_b64 %s, v20 offset:%d" % (vr(Q + 2 * d, 2), 16 * QP + d * 8), "q")
    seq = [("k", j) for j in range(8)] + [("v", j) for j in range(8)]

    def rdkv(n):
        kind, j = seq[n]
        col = 320 if kind == "k" else 640
        for d in range(9):
            k.lds("ds_read_b64 %s, v20 offset:%d" % (vr(KV + (n % 3) * 18 + 2 * d, 2), (16 - 2 * j) * QP + col + d * 8), seq[n])
    rdkv(0)
    for j in range(8):
        rdkv(j + 1)
        k.wait_lds(("k", j))
        b = KV + (j % 3) * 18
        k.e("v_mul_f32 v%d, v%d, v%d" % (L + j, Q, b))
        k.e("v_mul_f32 v24, v%d, v%d" % (Q + 1, b + 1))
        for d in range(2, 18, 2):
            k.e("v_fmac_f32 v%d, v%d, v%d" % (L + j, Q + d, b + d))
            k.e("v_fmac_f32 v24, v%d, v%d" % (Q + d + 1, b + d + 1))
        k.e("v_add_f32 v%d, v%d, v24" % (L + j, L + j))
    rdkv(9)
    k.e("s_mov_b32 s60, 0x%x" % f2u(18 ** -0.5))
    k.e("s_lshl_b32 s61, s10, 6")
    k.e("v_add_u32 v22, s61, v18")
    k.e("v_mov_b32 v23, 0x%x" % f2u(-1e9))
    for j in range(8):
        k.e("v_mul_f32 v%d, s60, v%d" % (L + j, L + j))
    for j in range(1, 8):
        k.e("v_cmp_le_u32 vcc, %d, v22" % (2 * j))
        k.e("s_nop 1")
        k.e("v_cndmask_b32 v%d, v23, v%d, vcc" % (L + j, L + j))
    k.e("v_max3_f32 v24, v%d, v%d, v%d" % (L, L + 1, L + 2))
    k.e("v_max3_f32 v24, v24, v%d, v%d" % (L + 3, L + 4))
    k.e("v_max3_f32 v24, v24, v%d, v%d" % (L + 5, L + 6))
    k.e("v_max_f32 v24, v24, v%d" % (L + 7))
    k.e("s_mov_b32 s60, 0x%x" % f2u(1.4426950408889634))
    for j in range(8):
        k.e("v_sub_f32 v%d, v%d, v24" % (L + j, L + j))
    for j in range(8):
        k.e("v_mul_f32 v%d, s60, v%d" % (L + j, L + j))
    for j in range(8):
        k.e("v_exp_f32 v%d, v%d" % (L + j, L + j))
    k.e("s_nop 0")
    k.e("v_add_f32 v24, v%d, v%d" % (L, L + 1))
    for j in range(2, 8):
        k.e("v_add_f32 v24, v24, v%d" % (L + j))
    k.e("v_rcp_f32 v24, v24")
    k.e("s_nop 0")
    for j in range(8):
        k.e("v_mul_f32 v%d, v%d, v24" % (L + j, L + j))
    for j in range(8):
        if 10 + j < 16:
            rdkv(10 + j)
        k.wait_lds(("v", j))
        b = KV + ((8 + j) % 3) * 18
        for d in range(18):
            if j == 0:
                k.e("v_mul_f32 v%d, v%d, v%d" % (O + d, L, b + d))
            else:
                k.e("v_fmac_f32 v%d, v%d, v%d" % (O + d, L + j, b + d))
    for d in range(9):
        k.e("v_cvt_pk_bf16_f32 v%d, v%d, v%d" % (Q + d, O + 2 * d, O + 2 * d + 1))
    k.e("v_lshrrev_b32 v23, 4, v22")
    k.e("v_mul_u32_u24 v23, 18432, v23")
    k.e("v_and_b32 v24, 15, v22")
    k.e("v_lshlrev_b32 v24, 4, v24")
    k.e("v_add_u32 v23, v23, v24")
    k.e("v_mul_u32_u24 v21, 18, v19")
    k.e("s_mul_i32 s60, s9, 72")
    k.e("v_add_u32 v21, s60, v21")
    for d in range(9):
        k.e("v_add_u32 v24, %d, v21" % (2 * d))
        k.e("v_lshrrev_b32 v25, 3, v24")
        k.e("v_lshlrev_b32 v25, 8, v25")
        k.e("v_and_b32 v24, 7, v24")
        k.e("v_lshlrev_b32 v24, 1, v24")
        k.e("v_add3_u32 v%d, v23, v24, v25" % (KV + d))
        k.e("buffer_store_dword v%d, v%d, %s, 0 offen" % (Q + d, KV + d, sr(SO, 4)))
    if "k1fine" not in EXP:
        stamp(k, 3)
        stamp_flush(k, 6)
    k.label(lab_cs3)
    footer(k)
    return k, 256


def main():
    ks = [
        (gen_k1, 512, 5 * 24576 + 3 * 10240, 232),
        (gen_k2, 512, 4 * 40960, 256),
    ]
    hdr = open("sequential_preLN__sliding_local_dilated__geglu_ffn__prompt.s.ref").read().split("\n")
    out = []
    for line in hdr:
        if line.startswith("; Override") or line.startswith("; grid=") or line.startswith("; @launch"):
            continue
        if not line.startswith(";"):
            break
        out.append(line)
    body = []
    desc = []
    for fn, block, lds, nv in ks:
        k, nwg = fn()
        name = k.name + "_kernel"
        out.append("; @launch kernel=%s grid=(%d,1,1) block=(%d,1,1) lds=%d" % (name, nwg, block, lds))
        body += [".globl %s" % name, ".p2align 8", ".type %s,@function" % name, "%s:" % name] + k.L
        desc += [".p2align 6", ".amdhsa_kernel %s" % name,
                 "  .amdhsa_next_free_vgpr %d" % nv, "  .amdhsa_next_free_sgpr 102",
                 "  .amdhsa_accum_offset %d" % nv,
                 "  .amdhsa_group_segment_fixed_size 0", "  .amdhsa_kernarg_size 80",
                 "  .amdhsa_user_sgpr_count 2", "  .amdhsa_user_sgpr_kernarg_segment_ptr 1",
                 "  .amdhsa_system_sgpr_workgroup_id_x 1", ".end_amdhsa_kernel"]
    out += ['.amdgcn_target "amdgcn-amd-amdhsa--gfx950"', ".text"] + body + ['.section .rodata,"a"'] + desc
    path = sys.argv[1] if len(sys.argv) > 1 else "sequential_preLN__sliding_local_dilated__geglu_ffn__prompt.s"
    open(path, "w").write("\n".join(out) + "\n")


main()
```

```python
import sys, struct

S, D, F = 2048, 576, 4608
O_OFF = 0x0000000
H_OFF = 0x0400000
ST_OFF = 0x0800000
CP_OFF = 0x0A00000
CS_OFF = 0x0860000
FLG_OFF = 0x0880000
ACT_OFF = 0x1000000
PART_OFF = 0x3000000


def f2u(x):
    return struct.unpack("<I", struct.pack("<f", x))[0]


EXP = __import__("os").environ.get("EXP", "")


class K:
    def __init__(s, name):
        s.name = name
        s.L = []
        s.lq = []
        s.vq = []
        s.nlab = 0

    def e(s, t):
        if "nomfma" in EXP and t.startswith("v_mfma"):
            return
        if "noldsrd" in EXP and (t.startswith("ds_read_b128") or t.startswith("ds_read_b64_tr")):
            return
        if "nodma" in EXP and t.endswith(" lds"):
            return
        if "nox" in EXP and t.endswith(" lds") and "s[36:39]" in t and s.name == "qkv":
            return
        if "now" in EXP and t.endswith(" lds") and "s[40:43]" in t and s.name == "qkv":
            return
        s.L.append("    " + t)

    def c(s, t):
        s.L.append("    ; " + t)

    def label(s, n):
        s.L.append(n + ":")

    def newlab(s, base):
        s.nlab += 1
        return "L_%s_%s_%d" % (s.name, base, s.nlab)

    def lds(s, t, tag=None):
        s.e(t)
        s.lq.append(tag)

    def vm(s, t, tag=None):
        s.e(t)
        s.vq.append(tag)

    def _need(s, q, tag):
        idx = -1
        for i, x in enumerate(q):
            if x == tag:
                idx = i
        return idx

    def wait_lds(s, tag):
        idx = s._need(s.lq, tag)
        if idx < 0:
            return
        n = len(s.lq) - idx - 1
        n = min(n, 15)
        s.e("s_waitcnt lgkmcnt(%d)" % n)
        s.lq = s.lq[len(s.lq) - n:] if n else []

    def wait_vm(s, tag):
        idx = s._need(s.vq, tag)
        if idx < 0:
            return
        n = len(s.vq) - idx - 1
        n = min(n, 63)
        s.e("s_waitcnt vmcnt(%d)" % n)
        s.vq = s.vq[len(s.vq) - n:] if n else []

    def wait_all(s):
        s.e("s_waitcnt vmcnt(0) lgkmcnt(0)")
        s.lq = []
        s.vq = []

    def wait_lds_all(s):
        s.e("s_waitcnt lgkmcnt(0)")
        s.lq = []

    def wait_vm_all(s):
        s.e("s_waitcnt vmcnt(0)")
        s.vq = []


STAMP = int(__import__("os").environ.get("STAMP", "0"))


def stamp(k, idx):
    if STAMP:
        k.e("s_memtime s[%d:%d]" % (70 + 2 * idx, 71 + 2 * idx))
        if idx in (0, 3):
            k.e("s_memrealtime s[%d:%d]" % (78 + (2 if idx else 0), 79 + (2 if idx else 0)))
        k.e("s_waitcnt lgkmcnt(0)")
        k.lq = []


def stamp_flush(k, n):
    if STAMP:
        lab = k.newlab("nost")
        k.e("s_and_b32 s90, s2, 127")
        k.e("s_cmp_lg_u32 s90, 5")
        k.e("s_cbranch_scc1 %s" % lab)
        k.e("s_cmp_lg_u32 s4, 0")
        k.e("s_cbranch_scc1 %s" % lab)
        srd(k, 92, P_WS, 0x900000 + 512 * getattr(k, "stamp_slot", ["qkv", "wo", "ffn"].index(k.name)), 256)
        k.e("s_lshr_b32 s90, s2, 7")
        k.e("s_lshl_b32 s90, s90, 6")
        k.e("v_mov_b32 v1, s90")
        k.e("s_mov_b64 exec, 1")
        for i in range(n):
            k.e("v_mov_b32 v2, s%d" % (70 + 2 * i))
            k.e("buffer_store_dword v2, v1, s[92:95], 0 offen offset:%d" % (4 * i))
        k.label(lab)


def vr(b, n):
    return "v[%d:%d]" % (b, b + n - 1)


def sr(b, n):
    return "s[%d:%d]" % (b, b + n - 1)


P_X, P_WQKV, P_WO, P_BX, P_WG, P_WU, P_WD, P_OUT, P_DBG, P_WS = 16, 18, 20, 22, 24, 26, 28, 30, 32, 34


def header(k, nwg):
    k.e("s_cmp_ge_u32 s2, %d" % nwg)
    k.e("s_cbranch_scc1 L_%s_end" % k.name)
    k.e("s_load_dwordx16 s[16:31], s[0:1], 0")
    k.e("s_load_dwordx4 s[32:35], s[0:1], 64")
    k.e("v_lshrrev_b32 v1, 6, v0")
    k.e("v_and_b32 v0, 63, v0")
    k.e("s_nop 0")
    k.e("v_readfirstlane_b32 s4, v1")
    k.e("s_waitcnt lgkmcnt(0)")


def srd(k, d, ptr, off, nbytes):
    if off:
        k.e("s_add_u32 s%d, s%d, 0x%x" % (d, ptr, off))
        k.e("s_addc_u32 s%d, s%d, 0" % (d + 1, ptr + 1))
    else:
        k.e("s_mov_b32 s%d, s%d" % (d, ptr))
        k.e("s_mov_b32 s%d, s%d" % (d + 1, ptr + 1))
    k.e("s_mov_b32 s%d, 0x%x" % (d + 2, nbytes))
    k.e("s_mov_b32 s%d, 0x00020000" % (d + 3))


def footer(k):
    k.label("L_%s_end" % k.name)
    k.e("s_endpgm")


def swap23_lane_rowpos(k, vdst, vlane, vt, vt2):
    k.e("v_lshrrev_b32 v%d, 5, v%d" % (vt, vlane))
    k.e("v_lshlrev_b32 v%d, 4, v%d" % (vdst, vt))
    k.e("v_bfe_u32 v%d, v%d, 4, 1" % (vt, vlane))
    k.e("v_lshlrev_b32 v%d, 2, v%d" % (vt, vt))
    k.e("v_add_u32 v%d, v%d, v%d" % (vdst, vdst, vt))
    k.e("v_bfe_u32 v%d, v%d, 2, 2" % (vt2, vlane))
    k.e("v_add_u32 v%d, v%d, v%d" % (vdst, vdst, vt2))


def swap23(k, vdst, vp, vt, vt2):
    k.e("v_and_b32 v%d, 0x33, v%d" % (vdst, vp))
    k.e("v_bfe_u32 v%d, v%d, 2, 1" % (vt, vp))
    k.e("v_lshlrev_b32 v%d, 3, v%d" % (vt, vt))
    k.e("v_bfe_u32 v%d, v%d, 3, 1" % (vt2, vp))
    k.e("v_lshlrev_b32 v%d, 2, v%d" % (vt2, vt2))
    k.e("v_or3_b32 v%d, v%d, v%d, v%d" % (vdst, vdst, vt, vt2))


def gemm_core(k, nst, nbuf, MI, acc, afr, bring, PD, a_rd, b_rd, dma, zero_init, NJ=9, sub=1, extra=None):
    RB = len(bring)
    nm = MI * NJ
    nsteps = nst * sub

    def rdB(t):
        sp, nj = divmod(t, NJ)
        if sp >= nsteps:
            return []
        st, kk = divmod(sp, sub)
        slot = bring[t % RB]
        out = []
        for j in range(2):
            v, off = b_rd(st % nbuf, nj, j, kk) if sub > 1 else b_rd(st % nbuf, nj, j)
            out.append(("ds_read_b64_tr_b16 %s, v%d offset:%d" % (vr(slot + 2 * j, 2), v, off), ("B", t)))
        return out

    def rdA(sp, i):
        if sp >= nsteps:
            return []
        st, kk = divmod(sp, sub)
        v, off = a_rd(st % nbuf, i, kk) if sub > 1 else a_rd(st % nbuf, i)
        return [("ds_read_b128 %s, v%d offset:%d" % (vr(afr[sp % 2][i], 4), v, off), ("A", sp))]

    k.wait_vm(("dma", 0))
    k.e("s_barrier")
    for i in range(MI):
        for (t, tag) in rdA(0, i):
            k.lds(t, tag)
    for t in range(PD):
        for (x, tag) in rdB(t):
            k.lds(x, tag)
    for s in range(nsteps):
        k.c("---- step %d" % s)
        groups = []
        st = s // sub
        if (s + 1) % sub == 0 and st + 1 < nst:
            k.wait_vm(("dma", st + 1))
            k.e("s_barrier")
            if st + nbuf - 1 < nst:
                groups = dma(st + nbuf - 1)
        ev = {}

        def add(idx, fn):
            ev.setdefault(min(idx, nm - 1), []).append(fn)
        for nj in range(NJ):
            t = s * NJ + nj
            add(nj * MI, (lambda tt: (lambda: [k.lds(x, tag) for (x, tag) in rdB(tt)]))(t + PD))
        for i in range(MI):
            add((2 + i) * MI + min(1, MI - 1), (lambda ii: (lambda: [k.lds(x, tag) for (x, tag) in rdA(s + 1, ii)]))(i))
        for gi, g in enumerate(groups):
            def mk(g):
                def f():
                    for (x, tag) in g:
                        if tag is None:
                            k.e(x)
                        else:
                            k.vm(x, tag)
                return f
            add(gi * MI + min(2, MI - 1), mk(g))
        for nj in range(NJ):
            t = s * NJ + nj
            if nj == 0:
                k.wait_lds(("A", s))
            k.wait_lds(("B", t))
            for i in range(MI):
                a = acc(i, nj)
                cc = "0" if (zero_init and s == 0) else vr(a, 4)
                k.e("v_mfma_f32_16x16x32_bf16 %s, %s, %s, %s" % (vr(a, 4), vr(bring[t % RB], 4), vr(afr[s % 2][i], 4), cc))
                for fn in ev.get(nj * MI + i, []):
                    fn()
            if extra:
                extra(s, nj, bring[t % RB])


def fl_lane(k, vdst, vt):
    k.e("v_lshrrev_b32 v%d, 1, v17" % vt)
    k.e("v_lshlrev_b32 v%d, 8, v%d" % (vdst, vt))
    k.e("v_lshlrev_b32 v%d, 4, v16" % vt)
    k.e("v_add_u32 v%d, v%d, v%d" % (vdst, vdst, vt))
    k.e("v_and_b32 v%d, 1, v17" % vt)
    k.e("v_lshlrev_b32 v%d, 3, v%d" % (vt, vt))
    k.e("v_add_u32 v%d, v%d, v%d" % (vdst, vdst, vt))


def b_dma_addr(k, vdst, sL0, iofs, NL, spitch, scol, reg_row=0, reg_col=0):
    k.e("v_lshrrev_b32 v18, 3, v0")
    k.e("v_add_u32 v18, s%d, v18" % sL0)
    if iofs:
        k.e("v_add_u32 v18, %d, v18" % iofs)
    if NL == 3:
        k.e("v_mul_u32_u24 v19, 21846, v18")
        k.e("v_lshrrev_b32 v19, 16, v19")
        k.e("v_mul_u32_u24 v20, 3, v19")
        k.e("v_sub_u32 v18, v18, v20")
    else:
        k.e("v_lshrrev_b32 v19, 1, v18")
        k.e("v_xor_b32 v18, v18, v19")
        k.e("v_and_b32 v18, 1, v18")
    k.e("v_lshlrev_b32 v18, 7, v18")
    k.e("v_bfe_u32 v20, v19, 1, 2")
    k.e("v_bfe_u32 v21, v0, 1, 2")
    k.e("v_xor_b32 v20, v20, v21")
    k.e("v_lshlrev_b32 v20, 5, v20")
    k.e("v_and_b32 v21, 1, v0")
    k.e("v_lshlrev_b32 v21, 4, v21")
    k.e("v_add3_u32 v18, v18, v20, v21")
    k.e("v_lshrrev_b32 v23, 5, v19")
    k.e("v_and_b32 v19, 31, v19")
    swap23(k, 20, 19, 21, 22)
    if reg_row:
        k.e("v_mul_u32_u24 v21, %d, v23" % reg_row)
        k.e("v_add_u32 v20, v20, v21")
    k.e("v_mul_lo_u32 v20, v20, s%d" % spitch)
    if reg_col:
        k.e("v_mul_u32_u24 v23, %d, v23" % reg_col)
        k.e("v_add_u32 v18, v18, v23")
    k.e("v_add3_u32 v%d, v20, v18, s%d" % (vdst, scol))


def b_rd_addr3(k, vq, sn0p, sbase):
    swap23_lane_rowpos(k, 18, 0, 19, 20)
    k.e("v_bfe_u32 v19, v18, 1, 2")
    k.e("v_mul_u32_u24 v18, 384, v18")
    k.e("v_and_b32 v20, 3, v0")
    k.e("v_lshlrev_b32 v20, 3, v20")
    k.e("v_add3_u32 v18, v18, v20, s%d" % sbase)
    for q in range(4):
        k.e("s_add_u32 s60, s%d, %d" % (sn0p, q))
        k.e("s_and_b32 s61, s60, 3")
        k.e("s_lshr_b32 s60, s60, 2")
        k.e("s_lshl_b32 s60, s60, 7")
        k.e("v_xor_b32 v20, s61, v19")
        k.e("v_lshlrev_b32 v20, 5, v20")
        k.e("v_add3_u32 v%d, v18, v20, s60" % (vq + q))


def touch(k, ssrd, ptr, nbytes, nwaves_total, wpw, vtmp, vdst):
    nlines = nbytes // 128
    per = (nlines + nwaves_total - 1) // nwaves_total
    assert per <= 64
    srd(k, ssrd, ptr, 0, nbytes)
    k.e("s_mul_i32 s60, s2, %d" % wpw)
    k.e("s_add_u32 s60, s60, s4")
    k.e("s_mul_i32 s60, s60, %d" % per)
    k.e("v_add_u32 v%d, s60, v0" % vtmp)
    k.e("v_lshlrev_b32 v%d, 7, v%d" % (vtmp, vtmp))
    if per < 64:
        m = (1 << per) - 1
        k.e("s_mov_b32 exec_lo, 0x%x" % (m & 0xffffffff))
        k.e("s_mov_b32 exec_hi, 0x%x" % (m >> 32))
    k.vm("buffer_load_dword v%d, v%d, %s, 0 offen" % (vdst, vtmp, sr(ssrd, 4)), "touch")
    k.e("s_mov_b64 exec, -1")


def issue_groups(k, groups):
    for g in groups:
        for (x, tag) in g:
            if tag is None:
                k.e(x)
            else:
                k.vm(x, tag)


def gen_k3(k):
    SB = 40960
    NBUF = 4
    k.stamp_slot = 2
    stamp(k, 0)
    SA, SBd, SST, SCS, SO = 36, 40, 44, 48, 52
    sKA, sKB, sMA, sMB = 56, 57, 58, 59
    k.e("s_and_b32 s60, s2, 7")
    k.e("s_lshr_b32 s61, s2, 3")
    k.e("s_and_b32 s62, s61, 3")
    k.e("s_lshl_b32 s60, s60, 2")
    k.e("s_add_u32 s9, s60, s62")
    k.e("s_lshr_b32 s61, s61, 2")
    k.e("s_lshl_b32 s7, s61, 8")
    k.e("s_mul_i32 s8, s9, 144")
    k.e("s_and_b32 s5, s4, 3")
    k.e("s_lshr_b32 s6, s4, 2")
    srd(k, SA, P_WS, H_OFF, S * D * 2)
    k.e("s_cmp_lt_u32 s4, 4")
    k.e("s_cselect_b32 s%d, s%d, s%d" % (SBd, P_WG, P_WU))
    k.e("s_cselect_b32 s%d, s%d, s%d" % (SBd + 1, P_WG + 1, P_WU + 1))
    k.e("s_mov_b32 s%d, 0x%x" % (SBd + 2, D * F * 2))
    k.e("s_mov_b32 s%d, 0x00020000" % (SBd + 3))
    srd(k, SST, P_WS, ST_OFF, S * 32)
    srd(k, SO, P_WS, ACT_OFF, S * F * 2)
    vOA0, vOA1, vOB = 2, 3, 4
    vA, vB = 8, 24
    vR, vM = 40, 44
    ACC = 96
    afr = [[48 + 4 * i for i in range(4)], [64 + 4 * i for i in range(4)]]
    bring = [80, 84, 88, 92]
    k.e("v_and_b32 v16, 15, v0")
    k.e("v_lshrrev_b32 v17, 4, v0")
    k.e("s_lshr_b32 s60, s7, 4")
    k.e("s_lshl_b32 s61, s4, 1")
    k.e("s_add_u32 s60, s60, s61")
    k.e("s_mul_i32 s60, s60, 18432")
    k.e("v_lshlrev_b32 v19, 4, v0")
    k.e("v_add_u32 v%d, s60, v19" % vOA0)
    k.e("v_add_u32 v%d, 18432, v%d" % (vOA1, vOA0))
    k.e("s_and_b32 s60, s4, 3")
    k.e("s_mul_i32 s68, s60, 24")
    k.e("s_lshl_b32 s62, s8, 1")
    k.e("s_and_b32 s62, s62, 0xffffff80")
    k.e("s_movk_i32 s63, 9216")
    for i in range(3):
        b_dma_addr(k, vOB + i, 68, 8 * i, 3, 63, 62)
    k.e("s_mov_b32 s%d, 0" % sKA)
    k.e("s_mov_b32 s%d, 0" % sKB)
    k.e("s_lshl_b32 s%d, s4, 11" % sMA)
    k.e("s_mul_i32 s%d, s4, 3072" % sMB)
    k.e("s_add_u32 s%d, s%d, 16384" % (sMB, sMB))

    def dmaA(st):
        b = (st % NBUF) * SB
        tag = ("dma", st)
        g = []
        for i in range(2):
            x = [("s_add_u32 m0, s%d, %d" % (sMA, b + i * 1024), None), ("s_nop 0", None),
                 ("buffer_load_dwordx4 v%d, %s, s%d offen sc1 lds" % (vOA0 + i, sr(SA, 4), sKA), tag)]
            if i == 1:
                x.append(("s_add_u32 s%d, s%d, 1024" % (sKA, sKA), None))
            g.append(x)
        return g

    def dmaB(st):
        b = (st % NBUF) * SB
        tag = ("dma", st)
        g = []
        for i in range(3):
            x = [("s_add_u32 m0, s%d, %d" % (sMB, b + i * 1024), None), ("s_nop 0", None)]
            x.append(("buffer_load_dwordx4 v%d, %s, s%d offen lds" % (vOB + i, sr(SBd, 4), sKB), tag))
            if i == 2:
                x.append(("s_add_u32 s%d, s%d, %d" % (sKB, sKB, 32 * 9216), None))
            g.append(x)
        return g

    def dma(st):
        return dmaA(st) + dmaB(st)
    for st in range(NBUF - 1):
        issue_groups(k, dmaB(st))
    srd(k, 64, P_WS, FLG_OFF + 32768 + 1024, 1024)
    k.e("s_lshr_b32 s60, s7, 3")
    k.e("v_and_b32 v18, 31, v0")
    k.e("v_add_u32 v18, s60, v18")
    k.e("v_lshlrev_b32 v18, 2, v18")
    lab_p = k.newlab("pollH")
    lab_g = k.newlab("goH")
    k.label(lab_p)
    k.e("buffer_load_dword v19, v18, s[64:67], 0 offen sc1")
    k.e("s_waitcnt vmcnt(0)")
    k.e("v_cmp_ne_u32 vcc, 1, v19")
    k.e("s_nop 1")
    k.e("s_cmp_eq_u64 vcc, 0")
    k.e("s_cbranch_scc1 %s" % lab_g)
    k.e("s_sleep 2")
    k.e("s_branch %s" % lab_p)
    k.label(lab_g)
    k.vq = []
    k.e("s_lshl_b32 s60, s5, 6")
    k.e("s_add_u32 s60, s60, s7")
    k.e("v_add_u32 v18, s60, v16")
    k.e("v_lshlrev_b32 v18, 5, v18")
    for i in range(4):
        for h in range(2):
            k.vm("buffer_load_dwordx4 %s, v18, %s, 0 offen offset:%d" % (vr(ACC + i * 8 + h * 4, 4), sr(SST, 4), i * 512 + h * 16) + " sc1", "st")
    for st in range(NBUF - 1):
        issue_groups(k, dmaA(st))
    touch(k, 64, P_WD, F * D * 2, 2048, 8, 18, 1)
    k.e("s_lshl_b32 s60, s5, 12")
    k.e("v_lshlrev_b32 v18, 4, v0")
    k.e("v_add_u32 v%d, s60, v18" % vA)
    k.e("v_add_u32 v%d, %d, v%d" % (vA + 1, 2 * SB, vA))
    k.e("s_bfe_u32 s62, s8, 0x20004")
    k.e("s_mul_i32 s63, s6, 5")
    k.e("s_add_u32 s62, s62, s63")
    k.e("s_movk_i32 s63, 16384")
    b_rd_addr3(k, vB, 62, 63)
    for q in range(4):
        k.e("v_add_u32 v%d, %d, v%d" % (vB + 4 + q, 2 * SB, vB + q))
    k.e("v_lshrrev_b32 v18, 1, v17")
    k.e("v_lshlrev_b32 v14, 8, v18")
    k.e("v_lshlrev_b32 v18, 4, v16")
    k.e("v_add_u32 v14, v14, v18")
    k.e("v_and_b32 v18, 1, v17")
    k.e("v_mul_u32_u24 v15, 147456, v18")
    k.e("v_add_u32 v15, v15, v14")
    k.e("v_lshlrev_b32 v18, 9, v18")
    k.e("v_add_u32 v14, v14, v18")
    k.e("s_lshr_b32 s60, s7, 4")
    k.e("s_lshl_b32 s61, s5, 2")
    k.e("s_add_u32 s60, s60, s61")
    k.e("s_mul_i32 s60, s60, 147456")
    k.e("s_mul_i32 s61, s9, 9")
    k.e("s_mul_i32 s62, s6, 5")
    k.e("s_add_u32 s61, s61, s62")
    k.e("s_lshl_b32 s61, s61, 9")
    k.e("s_add_u32 s60, s60, s61")
    k.e("v_add_u32 v14, s60, v14")
    k.e("v_add_u32 v15, s60, v15")
    k.wait_vm("st")
    k.e("s_mov_b32 s60, 0x%x" % f2u(1.0 / 576.0))
    k.e("s_mov_b32 s61, 0x%x" % f2u(1e-5))
    for i in range(4):
        b = ACC + i * 8
        k.e("v_add_f32 v18, v%d, v%d" % (b, b + 2))
        k.e("v_add_f32 v19, v%d, v%d" % (b + 4, b + 6))
        k.e("v_add_f32 v20, v%d, v%d" % (b + 1, b + 3))
        k.e("v_add_f32 v21, v%d, v%d" % (b + 5, b + 7))
        k.e("v_add_f32 v18, v18, v19")
        k.e("v_add_f32 v20, v20, v21")
        k.e("v_mul_f32 v18, s60, v18")
        k.e("v_mul_f32 v20, s60, v20")
        k.e("v_fma_f32 v20, -v18, v18, v20")
        k.e("v_max_f32 v20, 0, v20")
        k.e("v_add_f32 v20, s61, v20")
        k.e("v_rsq_f32 v%d, v20" % (vR + i))
        k.e("v_sub_f32 v%d, 0, v18" % (vM + i))
    lab1 = k.newlab("wn1")
    lab_done = k.newlab("done")
    k.e("s_cmp_eq_u32 s6, 1")
    k.e("s_cbranch_scc1 %s" % lab1)
    st_l, st_v = list(k.lq), list(k.vq)
    c1 = -2.0 * 0.7978845608028654 * 1.4426950408889634
    for wn in range(2):
        NF = 5 if wn == 0 else 4
        NJ = 2 * NF
        if wn == 1:
            k.e("s_branch %s" % lab_done)
            k.label(lab1)
            k.lq, k.vq = list(st_l), list(st_v)
        acc = lambda i, c: ACC + (i * NJ + c) * 4
        CW = {0: 32, 1: 36, 8: 10, 9: 16}
        ONES = 20
        for r in range(4):
            k.e("v_mov_b32 v%d, 0x3f803f80" % (ONES + r))
        prevb = [None]

        def cwreg(c):
            return CW[(c & 1) + 8 * (c >> 3)]

        def extra(s_, c, breg):
            if c & 1 == 0:
                prevb[0] = breg
                return
            lab = k.newlab("cw")
            k.e("s_cmp_eq_u32 s5, %d" % ((c >> 1) & 3))
            k.e("s_cbranch_scc0 %s" % lab)
            for cc, br in ((c - 1, prevb[0]), (c, breg)):
                k.e("v_mfma_f32_16x16x32_bf16 %s, %s, %s, %s" % (vr(cwreg(cc), 4), vr(br, 4), vr(ONES, 4), "0" if s_ == 0 else vr(cwreg(cc), 4)))
            k.label(lab)

        def a_rd(buf, i):
            return vA + (buf >> 1), (buf & 1) * SB + i * 1024

        def b_rd(buf, c, j):
            f = c >> 1
            return vB + 4 * (buf >> 1) + (f & 3), (buf & 1) * SB + (c & 1) * 12288 + j * 3072 + (f >> 2) * 128
        if wn == 0:
            stamp(k, 1)
        gemm_core(k, 18, NBUF, 4, acc, afr, bring, 2, a_rd, b_rd, dma, True, NJ=NJ, extra=extra)
        if wn == 0:
            stamp(k, 2)
        k.c("---- epilogue")
        k.e("s_nop 7")
        k.e("s_barrier")
        k.e("v_lshlrev_b32 v1, 4, v0")
        k.e("v_add_u32 v1, %d, v1" % (wn * 10240))
        for c in range(0, NJ, 2):
            lab = k.newlab("cww")
            k.e("s_cmp_eq_u32 s5, %d" % ((c >> 1) & 3))
            k.e("s_cbranch_scc0 %s" % lab)
            k.e("ds_write_b128 v1, %s offset:%d" % (vr(cwreg(c), 4), c * 1024))
            k.e("ds_write_b128 v1, %s offset:%d" % (vr(cwreg(c + 1), 4), c * 1024 + 1024))
            k.label(lab)
        k.e("s_waitcnt lgkmcnt(0)")
        k.e("s_barrier")
        CSR = 48
        for c in range(NJ):
            k.e("ds_read_b128 %s, v1 offset:%d" % (vr(CSR + 4 * c, 4), c * 1024))
        k.e("s_waitcnt lgkmcnt(0)")
        k.lq = []
        k.e("v_mov_b32 v20, 1.0")
        k.e("v_mov_b32 v21, 1.0")
        k.e("s_mov_b32 s60, 0x%x" % f2u(c1))
        k.e("s_mov_b32 s61, 0x%x" % f2u(c1 * 0.044715))
        k.e("s_mov_b32 s62, 0")
        k.e("s_nop 7")
        for i in range(4):
            k.e("v_mul_f32 v22, s60, v%d" % (vR + i))
            k.e("v_mul_f32 v26, v%d, v%d" % (vR + i, vR + i))
            k.e("v_mul_f32 v24, s61, v%d" % (vR + i))
            k.e("v_mul_f32 v24, v24, v26")
            k.e("v_mov_b32 v23, v22")
            k.e("v_mov_b32 v25, v24")
            k.e("v_mov_b32 v27, v26")
            k.e("v_mov_b32 v36, v%d" % (vM + i))
            k.e("v_mov_b32 v37, v%d" % (vM + i))
            for f in range(NF):
                G, U = acc(i, 2 * f), acc(i, 2 * f + 1)
                T, P = 28, 32
                for h in range(2):
                    k.e("v_pk_fma_f32 %s, %s, v[36:37], %s" % (vr(G + 2 * h, 2), vr(CSR + 8 * f + 2 * h, 2), vr(G + 2 * h, 2)))
                    k.e("v_pk_fma_f32 %s, %s, v[36:37], %s" % (vr(U + 2 * h, 2), vr(CSR + 8 * f + 4 + 2 * h, 2), vr(U + 2 * h, 2)))
                for h in range(2):
                    k.e("v_pk_mul_f32 %s, %s, %s" % (vr(T + 2 * h, 2), vr(G + 2 * h, 2), vr(G + 2 * h, 2)))
                for h in range(2):
                    k.e("v_pk_fma_f32 %s, %s, v[24:25], v[22:23]" % (vr(T + 2 * h, 2), vr(T + 2 * h, 2)))
                for h in range(2):
                    k.e("v_pk_mul_f32 %s, %s, %s" % (vr(T + 2 * h, 2), vr(T + 2 * h, 2), vr(G + 2 * h, 2)))
                for r in range(4):
                    k.e("v_exp_f32 v%d, v%d" % (T + r, T + r))
                for h in range(2):
                    k.e("v_pk_mul_f32 %s, %s, %s" % (vr(P + 2 * h, 2), vr(G + 2 * h, 2), vr(U + 2 * h, 2)))
                for h in range(2):
                    k.e("v_pk_add_f32 %s, %s, v[20:21]" % (vr(T + 2 * h, 2), vr(T + 2 * h, 2)))
                for r in range(4):
                    k.e("v_rcp_f32 v%d, v%d" % (T + r, T + r))
                for h in range(2):
                    k.e("v_pk_mul_f32 %s, %s, v[26:27]" % (vr(P + 2 * h, 2), vr(P + 2 * h, 2)))
                for h in range(2):
                    k.e("v_pk_mul_f32 %s, %s, %s" % (vr(P + 2 * h, 2), vr(P + 2 * h, 2), vr(T + 2 * h, 2)))
                if f < 4:
                    R = acc(i, 2 * (f & ~1)) + 2 * (f & 1)
                else:
                    R = acc(i & ~1, 8) + 2 * (i & 1)
                k.e("v_cvt_pk_bf16_f32 v%d, v%d, v%d" % (R, P, P + 1))
                k.e("v_cvt_pk_bf16_f32 v%d, v%d, v%d" % (R + 1, P + 2, P + 3))
                if (f < 4 and f & 1) or (f == 4 and i & 1):
                    B0 = R - 2
                    k.e("s_nop 1")
                    k.e("v_permlane16_swap_b32 v%d, v%d" % (B0, B0 + 2))
                    k.e("v_permlane16_swap_b32 v%d, v%d" % (B0 + 1, B0 + 3))
                    if f < 4:
                        k.vm("buffer_store_dwordx4 %s, v14, %s, s62 offen offset:%d sc1" % (vr(B0, 4), sr(SO, 4), (f - 1) * 512))
                    else:
                        k.e("s_sub_u32 s63, s62, 147456")
                        k.vm("buffer_store_dwordx4 %s, v15, %s, s63 offen offset:%d sc1" % (vr(B0, 4), sr(SO, 4), 4 * 512))
            k.e("s_add_u32 s62, s62, 147456")
    k.label(lab_done)
    srd(k, 64, P_WS, FLG_OFF + 32768, 1024)
    k.e("s_lshr_b32 s60, s7, 8")
    k.e("s_lshl_b32 s60, s60, 5")
    k.e("s_add_u32 s60, s60, s9")
    k.e("s_lshl_b32 s60, s60, 2")
    k.e("v_mov_b32 v1, s60")
    k.e("v_mov_b32 v2, 1")
    k.e("s_waitcnt vmcnt(0)")
    k.e("s_barrier")
    lab_nf = k.newlab("nf")
    k.e("s_cmp_lg_u32 s4, 0")
    k.e("s_cbranch_scc1 %s" % lab_nf)
    k.e("s_mov_b64 exec, 1")
    k.e("buffer_store_dword v2, v1, s[64:67], 0 offen sc1")
    k.e("s_mov_b64 exec, -1")
    k.label(lab_nf)
    k.lq, k.vq = [], []
    stamp(k, 3)
    stamp_flush(k, 6)
    k.e("s_mov_b64 exec, -1")
    return gen_k4(k)


def gen_k4(k):
    SB = 40960
    NBUF = 4
    k.stamp_slot = 3
    stamp(k, 0)
    SA, SBd, SP, SO, SH, SD = 36, 40, 44, 48, 52, 64
    sKA, sKB, sMA, sMB = 56, 57, 58, 59
    k.e("s_and_b32 s9, s2, 3")
    k.e("s_bfe_u32 s60, s2, 0x10002")
    k.e("s_lshr_b32 s61, s2, 3")
    k.e("s_lshr_b32 s62, s61, 2")
    k.e("s_lshl_b32 s60, s60, 3")
    k.e("s_add_u32 s60, s60, s62")
    k.e("s_lshl_b32 s7, s60, 7")
    k.e("s_and_b32 s61, s61, 3")
    k.e("s_mul_i32 s8, s61, 144")
    k.e("s_lshl_b32 s10, s60, 2")
    k.e("s_add_u32 s10, s10, s61")
    k.e("s_and_b32 s11, s4, 3")
    k.e("s_lshr_b32 s5, s11, 1")
    k.e("s_and_b32 s6, s11, 1")
    k.e("v_and_b32 v16, 15, v0")
    k.e("v_lshrrev_b32 v17, 4, v0")
    lab_comp = k.newlab("comp")
    k.e("s_cmp_lt_u32 s4, 4")
    k.e("s_cbranch_scc1 %s" % lab_comp)
    srd(k, SA, P_WS, ACT_OFF, S * F * 2)
    srd(k, SBd, P_WD, 0, F * D * 2)
    vOA, vOB = 2, 8
    k.e("s_lshr_b32 s60, s7, 4")
    k.e("s_lshl_b32 s61, s11, 1")
    k.e("s_add_u32 s60, s60, s61")
    k.e("s_mul_i32 s60, s60, 147456")
    k.e("s_mul_i32 s61, s9, 36864")
    k.e("s_add_u32 s60, s60, s61")
    k.e("v_lshlrev_b32 v19, 4, v0")
    k.e("v_add_u32 v%d, s60, v19" % vOA)
    k.e("v_add_u32 v%d, 1024, v%d" % (vOA + 1, vOA))
    k.e("v_add_u32 v%d, %d, v%d" % (vOA + 2, 147456, vOA))
    k.e("v_add_u32 v%d, %d, v%d" % (vOA + 3, 147456 + 1024, vOA))
    k.e("s_mul_i32 s64, s11, 48")
    k.e("s_lshl_b32 s62, s8, 1")
    k.e("s_and_b32 s62, s62, 0xffffff80")
    k.e("s_mul_i32 s61, s9, 1152 * 1152")
    k.e("s_add_u32 s62, s62, s61")
    k.e("s_movk_i32 s63, 1152")
    for i in range(6):
        b_dma_addr(k, vOB + i, 64, 8 * i, 3, 63, 62, reg_row=32)
    k.e("s_mov_b32 s%d, 0" % sKA)
    k.e("s_mov_b32 s%d, 0" % sKB)
    k.e("s_lshl_b32 s%d, s11, 12" % sMA)
    k.e("s_mul_i32 s%d, s11, 6144" % sMB)
    k.e("s_add_u32 s%d, s%d, 16384" % (sMB, sMB))

    def dmaA(st):
        b = (st % NBUF) * SB
        tag = ("dma", st)
        g = []
        for i in range(4):
            x = [("s_add_u32 m0, s%d, %d" % (sMA, b + i * 1024), None), ("s_nop 0", None),
                 ("buffer_load_dwordx4 v%d, %s, s%d offen sc1 lds" % (vOA + i, sr(SA, 4), sKA), tag)]
            if i == 3:
                x.append(("s_add_u32 s%d, s%d, 2048" % (sKA, sKA), None))
            g.append(x)
        return g

    def dmaB(st):
        b = (st % NBUF) * SB
        tag = ("dma", st)
        g = []
        for i in range(6):
            x = [("s_add_u32 m0, s%d, %d" % (sMB, b + i * 1024), None), ("s_nop 0", None)]
            x.append(("buffer_load_dwordx4 v%d, %s, s%d offen lds" % (vOB + i, sr(SBd, 4), sKB), tag))
            if i == 5:
                x.append(("s_add_u32 s%d, s%d, %d" % (sKB, sKB, 64 * 1152), None))
            g.append(x)
        return g

    def dma(st):
        return dmaA(st) + dmaB(st)
    for st in range(NBUF - 1):
        issue_groups(k, dmaB(st))
    srd(k, 84, P_WS, FLG_OFF + 32768, 1024)
    k.e("s_lshr_b32 s60, s7, 8")
    k.e("s_lshl_b32 s60, s60, 7")
    k.e("s_lshl_b32 s61, s9, 5")
    k.e("s_add_u32 s60, s60, s61")
    k.e("v_mov_b32 v20, s60")
    lab_p = k.newlab("pollA")
    lab_g = k.newlab("goA")
    k.label(lab_p)
    k.e("buffer_load_dwordx4 v[24:27], v20, s[84:87], 0 offen sc1")
    k.e("buffer_load_dwordx4 v[28:31], v20, s[84:87], 0 offen offset:16 sc1")
    k.e("s_waitcnt vmcnt(0)")
    k.e("v_add3_u32 v24, v24, v25, v26")
    k.e("v_add3_u32 v24, v24, v27, v28")
    k.e("v_add3_u32 v24, v24, v29, v30")
    k.e("v_add_u32 v24, v24, v31")
    k.e("s_nop 0")
    k.e("v_readfirstlane_b32 s61, v24")
    k.e("s_cmp_ge_u32 s61, 8")
    k.e("s_cbranch_scc1 %s" % lab_g)
    k.e("s_sleep 2")
    k.e("s_branch %s" % lab_p)
    k.label(lab_g)
    k.vq = []
    for st in range(NBUF - 1):
        issue_groups(k, dmaA(st))
    k.wait_vm(("dma", 0))
    k.e("s_barrier")
    for s_ in range(17):
        k.wait_vm(("dma", s_ + 1))
        k.e("s_barrier")
        if s_ + NBUF - 1 < 18:
            issue_groups(k, dma(s_ + NBUF - 1))
    k.e("s_endpgm")
    k.label(lab_comp)
    k.lq, k.vq = [], []
    srd(k, SP, P_WS, PART_OFF, 64 * 16 * 18432)
    srd(k, SO, P_OUT, 0, S * D * 2)
    srd(k, SH, P_WS, H_OFF, S * D * 2)
    srd(k, SD, P_WS, FLG_OFF, 256 * 128)
    vA, vB = 2, 24
    ACC = 112
    afr = [[48, 52], [56, 60]]
    bring = [64 + 4 * q for q in range(8)]
    acc = lambda i, nj: ACC + (i * 9 + nj) * 4
    k.e("s_lshl_b32 s60, s4, 12")
    k.e("v_lshlrev_b32 v18, 4, v0")
    k.e("v_add_u32 v%d, s60, v18" % vA)
    for b_ in range(1, 4):
        k.e("v_add_u32 v%d, %d, v%d" % (vA + b_, b_ * SB, vA))
    k.e("s_bfe_u32 s62, s8, 0x20004")
    k.e("s_movk_i32 s63, 16384")
    b_rd_addr3(k, vB, 62, 63)
    for b_ in range(1, 4):
        for q in range(4):
            k.e("v_add_u32 v%d, %d, v%d" % (vB + 4 * b_ + q, b_ * SB, vB + q))

    def a_rd(buf, i, kk):
        return vA + buf, i * 2048 + kk * 1024

    def b_rd(buf, nj, j, kk):
        return vB + 4 * buf + (nj & 3), kk * 12288 + j * 3072 + (nj >> 2) * 128
    gemm_core(k, 18, NBUF, 2, acc, afr, bring, 6, a_rd, b_rd, lambda st: [], True, sub=2)
    stamp(k, 1)
    k.c("---- epilogue: cross-workgroup reduction")
    k.e("v_lshlrev_b32 v18, 4, v0")
    k.e("s_lshl_b32 s60, s10, 2")
    k.e("s_add_u32 s60, s60, s9")
    k.e("s_lshl_b32 s60, s60, 2")
    k.e("s_add_u32 s60, s60, s4")
    k.e("s_mul_i32 s60, s60, 9216")
    k.e("v_add_u32 v21, s60, v18")
    k.e("s_lshl_b32 s60, s10, 2")
    k.e("s_add_u32 s61, s60, s4")
    k.e("s_lshl_b32 s61, s61, 7")
    k.e("s_lshl_b32 s62, s9, 2")
    k.e("s_add_u32 s61, s61, s62")
    k.e("v_mov_b32 v23, s61")
    k.e("s_add_u32 s60, s60, s9")
    k.e("s_lshl_b32 s60, s60, 7")
    k.e("v_mov_b32 v26, s60")
    k.e("v_mov_b32 v24, 1")
    k.e("s_nop 7")
    k.e("s_barrier")
    lab_own = k.newlab("own")
    lab_j = k.newlab("j")
    k.e("s_cmp_eq_u32 s4, s9")
    k.e("s_cbranch_scc1 %s" % lab_own)
    for t in range(9):
        a = ACC + 8 * t
        for d in range(4):
            k.e("v_cvt_pk_bf16_f32 v%d, v%d, v%d" % (a + d, a + 2 * d, a + 2 * d + 1))
        sreg = "0"
        off = t * 1024
        if off >= 4096:
            k.e("s_movk_i32 s61, %d" % (off & ~4095))
            sreg = "s61"
        k.e("buffer_store_dwordx4 %s, v21, %s, %s offen offset:%d sc1" % (vr(a, 4), sr(SP, 4), sreg, off & 4095))
    k.e("s_barrier")
    k.e("s_branch %s" % lab_j)
    k.label(lab_own)
    for t in range(18):
        k.e("ds_write_b128 v18, %s offset:%d" % (vr(ACC + 4 * t, 4), t * 1024))
    k.e("s_waitcnt lgkmcnt(0)")
    k.e("s_barrier")
    k.e("s_branch L_%s_end" % k.name)
    k.label(lab_j)
    k.e("s_sub_u32 s62, s4, s9")
    k.e("s_sub_u32 s62, s62, 1")
    k.e("s_and_b32 s62, s62, 3")
    k.e("s_mul_i32 s63, s62, 6144")
    k.e("v_add_u32 v22, s63, v18")
    OWN = 48
    for t in range(6):
        k.lds("ds_read_b128 %s, v22 offset:%d" % (vr(OWN + 4 * t, 4), t * 1024), "own")
    k.e("s_lshl_b32 s60, s9, 5")
    k.e("s_add_u32 s60, s60, s7")
    k.e("v_add_u32 v19, s60, v16")
    k.e("v_mul_u32_u24 v19, 1152, v19")
    k.e("v_lshlrev_b32 v20, 3, v17")
    k.e("s_lshl_b32 s60, s8, 1")
    k.e("v_add3_u32 v19, v19, v20, s60")
    fl_lane(k, 44, 45)
    k.e("s_lshr_b32 s60, s7, 4")
    k.e("s_lshl_b32 s61, s9, 1")
    k.e("s_add_u32 s60, s60, s61")
    k.e("s_mul_i32 s60, s60, 18432")
    k.e("s_lshl_b32 s61, s8, 5")
    k.e("s_add_u32 s60, s60, s61")
    k.e("v_add_u32 v44, s60, v44")
    k.e("s_waitcnt vmcnt(0)")
    k.e("s_mov_b64 exec, 1")
    k.e("buffer_store_dword v24, v23, %s, 0 offen sc1" % sr(SD, 4))
    k.e("s_mov_b64 exec, -1")
    k.e("s_mul_i32 s62, s62, 6")
    HR = 96
    for t in range(6):
        k.e("s_add_u32 s60, s62, %d" % t)
        k.e("s_cmp_ge_u32 s60, 9")
        k.e("s_cselect_b32 s61, %d, 0" % (16 * 1152 - 9 * 32))
        k.e("s_cselect_b32 s69, %d, 0" % (18432 - 9 * 512))
        k.e("s_lshl_b32 s68, s60, 9")
        k.e("s_add_u32 s68, s68, s69")
        k.e("s_lshl_b32 s60, s60, 5")
        k.e("s_add_u32 s%d, s60, s61" % (84 + t))
        k.e("buffer_load_dwordx2 %s, v44, %s, s68 offen sc1" % (vr(HR + 2 * t, 2), sr(SH, 4)))
    stamp(k, 2)
    lab_poll = k.newlab("poll")
    lab_go = k.newlab("go")
    k.label(lab_poll)
    k.e("buffer_load_dwordx4 v[28:31], v26, %s, 0 offen sc1" % sr(SD, 4))
    k.e("s_waitcnt vmcnt(0)")
    k.e("v_add_u32 v28, v28, v29")
    k.e("v_add3_u32 v28, v28, v30, v31")
    k.e("s_nop 0")
    k.e("v_readfirstlane_b32 s61, v28")
    k.e("s_cmp_ge_u32 s61, 3")
    k.e("s_cbranch_scc1 %s" % lab_go)
    k.e("s_sleep 1")
    k.e("s_branch %s" % lab_poll)
    k.label(lab_go)
    if STAMP:
        k.e("s_memtime s[82:83]")
        k.e("s_waitcnt lgkmcnt(0)")
        k.lq = []
    k.e("s_lshl_b32 s60, s10, 4")
    k.e("s_add_u32 s60, s60, s9")
    k.e("s_mul_i32 s60, s60, 9216")
    k.e("s_lshr_b32 s63, s63, 1")
    k.e("s_add_u32 s60, s60, s63")
    k.e("v_add_u32 v21, s60, v18")
    k.vq = []
    for o in range(1, 4):
        k.e("s_add_u32 s61, s9, %d" % o)
        k.e("s_and_b32 s61, s61, 3")
        k.e("s_mul_i32 s61, s61, %d" % (4 * 9216))
        for t in range(3):
            k.vm("buffer_load_dwordx4 %s, v21, %s, s61 offen offset:%d sc1" % (vr(ACC + 12 * (o - 1) + 4 * t, 4), sr(SP, 4), t * 1024), ("p", o, t))
    k.wait_lds("own")
    for t in range(6):
        a = OWN + 4 * t
        for d in range(2):
            k.e("v_lshlrev_b32 v42, 16, v%d" % (HR + 2 * t + d))
            k.e("v_and_b32 v43, 0xffff0000, v%d" % (HR + 2 * t + d))
            k.e("v_add_f32 v%d, v%d, v42" % (a + 2 * d, a + 2 * d))
            k.e("v_add_f32 v%d, v%d, v43" % (a + 2 * d + 1, a + 2 * d + 1))
    for o in range(1, 4):
        for t in range(6):
            a = OWN + 4 * t
            k.wait_vm(("p", o, t >> 1))
            for d in range(2):
                x = ACC + 12 * (o - 1) + 2 * t + d
                k.e("v_lshlrev_b32 v42, 16, v%d" % x)
                k.e("v_and_b32 v43, 0xffff0000, v%d" % x)
                k.e("v_add_f32 v%d, v%d, v42" % (a + 2 * d, a + 2 * d))
                k.e("v_add_f32 v%d, v%d, v43" % (a + 2 * d + 1, a + 2 * d + 1))
            if o == 3:
                k.e("v_cvt_pk_bf16_f32 v%d, v%d, v%d" % (HR + 2 * t, a, a + 1))
                k.e("v_cvt_pk_bf16_f32 v%d, v%d, v%d" % (HR + 1 + 2 * t, a + 2, a + 3))
                k.vm("buffer_store_dwordx2 %s, v19, %s, s%d offen" % (vr(HR + 2 * t, 2), sr(SO, 4), 84 + t))
    stamp(k, 3)
    stamp_flush(k, 7)
    footer(k)
    return k, 256


def gen_k5():
    k = K("red")
    nwg = S * D // 8 // 256
    k.e("s_cmp_ge_u32 s2, %d" % nwg)
    k.e("s_cbranch_scc1 L_%s_end" % k.name)
    k.e("s_load_dwordx16 s[16:31], s[0:1], 0")
    k.e("s_load_dwordx4 s[32:35], s[0:1], 64")
    k.e("s_lshl_b32 s3, s2, 8")
    k.e("v_add_u32 v1, s3, v0")
    k.e("v_lshlrev_b32 v2, 4, v1")
    k.e("v_lshlrev_b32 v3, 5, v1")
    k.e("s_waitcnt lgkmcnt(0)")
    srd(k, 36, P_WS, H_OFF, S * D * 2)
    srd(k, 40, P_WS, PART_OFF, 4 * S * D * 4)
    srd(k, 44, P_OUT, 0, S * D * 2)
    k.e("buffer_load_dwordx4 v[4:7], v2, s[36:39], 0 offen")
    for p in range(4):
        k.e("s_mov_b32 s48, 0x%x" % (p * S * D * 4))
        k.e("buffer_load_dwordx4 %s, v3, s[40:43], s48 offen" % vr(8 + p * 8, 4))
        k.e("buffer_load_dwordx4 %s, v3, s[40:43], s48 offen offset:16" % vr(12 + p * 8, 4))
    k.e("s_waitcnt vmcnt(0)")
    for r in range(8):
        k.e("v_add_f32 v%d, v%d, v%d" % (8 + r, 8 + r, 16 + r))
        k.e("v_add_f32 v%d, v%d, v%d" % (24 + r, 24 + r, 32 + r))
    for r in range(8):
        k.e("v_add_f32 v%d, v%d, v%d" % (8 + r, 8 + r, 24 + r))
    for d in range(4):
        k.e("v_lshlrev_b32 v40, 16, v%d" % (4 + d))
        k.e("v_and_b32 v41, 0xffff0000, v%d" % (4 + d))
        k.e("v_add_f32 v%d, v%d, v40" % (8 + 2 * d, 8 + 2 * d))
        k.e("v_add_f32 v%d, v%d, v41" % (9 + 2 * d, 9 + 2 * d))
    for d in range(4):
        k.e("v_cvt_pk_bf16_f32 v%d, v%d, v%d" % (4 + d, 8 + 2 * d, 9 + 2 * d))
    k.e("buffer_store_dwordx4 v[4:7], v2, s[44:47], 0 offen")
    footer(k)
    return k, nwg


def gen_k2():
    k = K("ffn")
    k.stamp_slot = 1
    SB = 4096 + 24576
    NBUF = 5
    header(k, 256)
    stamp(k, 0)
    SA, SBd, SX, SH, SST, SCP, SCS = 36, 40, 44, 48, 52, 64, 96
    sKA, sKB, sMA, sMB = 56, 57, 58, 59
    k.e("s_and_b32 s9, s2, 3")
    k.e("s_lshr_b32 s60, s2, 2")
    k.e("s_lshl_b32 s7, s60, 5")
    k.e("s_mul_i32 s8, s9, 144")
    k.e("s_lshr_b32 s5, s4, 1")
    k.e("s_and_b32 s6, s4, 1")
    srd(k, SA, P_WS, O_OFF, S * D * 2)
    srd(k, SBd, P_WO, 0, D * D * 2)
    srd(k, SX, P_X, 0, S * D * 2)
    srd(k, SH, P_WS, H_OFF, S * D * 2)
    srd(k, SST, P_WS, ST_OFF, S * 32)
    lab_idle = k.newlab("idle")
    lab_p2done = k.newlab("p2done")
    k.e("s_cmp_ge_u32 s4, 4")
    k.e("s_cbranch_scc1 %s" % lab_idle)
    vOA, vOB = 2, 8
    vA, vB = 24, 28
    ACC = 112
    afr = [[48], [52]]
    bring = [56, 60, 64, 68, 72, 76]
    acc = lambda i, nj: ACC + nj * 4
    XR = 80
    CPR = 184
    k.e("v_and_b32 v16, 15, v0")
    k.e("v_lshrrev_b32 v17, 4, v0")
    k.e("s_lshl_b32 s60, s5, 4")
    k.e("s_add_u32 s60, s60, s7")
    k.e("v_add_u32 v31, s60, v16")
    k.e("s_movk_i32 s63, 1152")
    k.e("v_mul_lo_u32 v18, v31, s63")
    k.e("v_lshlrev_b32 v19, 3, v17")
    k.e("s_lshl_b32 s62, s8, 1")
    k.e("v_add3_u32 v32, v18, v19, s62")
    for nj in range(9):
        k.vm("buffer_load_dwordx2 %s, v32, %s, 0 offen offset:%d" % (vr(XR + 2 * nj, 2), sr(SX, 4), nj * 32), "x")
    k.e("s_lshr_b32 s60, s7, 4")
    k.e("s_add_u32 s60, s60, s5")
    k.e("s_mul_i32 s60, s60, 18432")
    k.e("s_lshl_b32 s61, s6, 10")
    k.e("s_add_u32 s61, s60, s61")
    k.e("v_lshlrev_b32 v19, 4, v0")
    k.e("v_add_u32 v%d, s61, v19" % vOA)
    fl_lane(k, 37, 18)
    k.e("s_lshl_b32 s61, s8, 5")
    k.e("s_add_u32 s60, s60, s61")
    k.e("v_add_u32 v37, s60, v37")
    k.e("s_mul_i32 s88, s4, 48")
    k.e("s_lshl_b32 s62, s8, 1")
    k.e("s_and_b32 s62, s62, 0xffffff80")
    k.e("s_movk_i32 s63, 1152")
    for i in range(6):
        b_dma_addr(k, vOB + i, 88, 8 * i, 3, 63, 62, reg_row=32)
    k.e("s_mov_b32 s%d, 0" % sKA)
    k.e("s_mov_b32 s%d, 0" % sKB)
    k.e("s_lshl_b32 s%d, s4, 10" % sMA)
    k.e("s_mul_i32 s%d, s4, 6144" % sMB)
    k.e("s_add_u32 s%d, s%d, 4096" % (sMB, sMB))

    def dma(st):
        b = (st % NBUF) * SB
        tag = ("dma", st)
        g = [[("s_add_u32 m0, s%d, %d" % (sMA, b), None), ("s_nop 0", None),
              ("buffer_load_dwordx4 v%d, %s, s%d offen lds" % (vOA, sr(SA, 4), sKA), tag)]]
        for i in range(6):
            x = [("s_add_u32 m0, s%d, %d" % (sMB, b + i * 1024), None), ("s_nop 0", None)]
            x.append(("buffer_load_dwordx4 v%d, %s, s%d offen lds" % (vOB + i, sr(SBd, 4), sKB), tag))
            if i == 5:
                x.append(("s_add_u32 s%d, s%d, 2048" % (sKA, sKA), None))
                x.append(("s_add_u32 s%d, s%d, %d" % (sKB, sKB, 64 * 1152), None))
            g.append(x)
        return g
    for st in range(NBUF - 1):
        issue_groups(k, dma(st))
    k.e("v_lshlrev_b32 v18, 4, v0")
    k.e("v_add_u32 v%d, s%d, v18" % (vA, sMA))
    for q in range(1, 3):
        k.e("v_add_u32 v%d, %d, v%d" % (vA + q, 2 * SB * q, vA))
    vB = 100
    k.e("s_bfe_u32 s62, s8, 0x20004")
    k.e("s_mul_i32 s63, s6, 12288")
    k.e("s_add_u32 s63, s63, 4096")
    b_rd_addr3(k, vB, 62, 63)
    for b_ in range(1, 3):
        for q in range(4):
            k.e("v_add_u32 v%d, %d, v%d" % (vB + 4 * b_ + q, 2 * b_ * SB, vB + q))

    def a_rd(buf, i):
        return vA + (buf >> 1), (buf & 1) * SB

    def b_rd(buf, nj, j):
        return vB + 4 * (buf >> 1) + (nj & 3), (buf & 1) * SB + j * 3072 + (nj >> 2) * 128
    stamp(k, 1)
    gemm_core(k, 9, NBUF, 1, acc, afr, bring, 4, a_rd, b_rd, dma, True)
    stamp(k, 2)
    k.c("---- epilogue")
    k.e("s_nop 7")
    k.e("s_nop 7")
    k.e("s_barrier")
    k.wait_vm("x")
    k.e("s_mul_i32 s60, s5, 9216")
    k.e("v_lshlrev_b32 v18, 4, v0")
    k.e("v_add_u32 v19, s60, v18")
    lab_recv = k.newlab("recv")
    k.e("s_cmp_eq_u32 s6, 0")
    k.e("s_cbranch_scc1 %s" % lab_recv)
    for nj in range(9):
        k.lds("ds_write_b128 v19, %s offset:%d" % (vr(acc(0, nj), 4), nj * 1024))
    k.wait_lds_all()
    k.e("s_barrier")
    k.e("s_branch %s" % lab_p2done)
    k.label(lab_recv)
    k.e("s_barrier")
    R = 48
    RX = 148
    for nj in range(9):
        k.lds("ds_read_b128 %s, v19 offset:%d" % (vr(RX + nj * 4, 4), nj * 1024), ("x", nj))
    k.e("v_mov_b32 v40, 0")
    k.e("v_mov_b32 v41, 0")
    for nj in range(9):
        k.wait_lds(("x", nj))
        a = acc(0, nj)
        for r in range(4):
            k.e("v_add_f32 v%d, v%d, v%d" % (a + r, a + r, RX + nj * 4 + r))
        for d in range(2):
            k.e("v_lshlrev_b32 v42, 16, v%d" % (XR + 2 * nj + d))
            k.e("v_and_b32 v43, 0xffff0000, v%d" % (XR + 2 * nj + d))
            k.e("v_add_f32 v%d, v%d, v42" % (a + 2 * d, a + 2 * d))
            k.e("v_add_f32 v%d, v%d, v43" % (a + 2 * d + 1, a + 2 * d + 1))
        k.e("v_cvt_pk_bf16_f32 v%d, v%d, v%d" % (XR + 2 * nj, a, a + 1))
        k.e("v_cvt_pk_bf16_f32 v%d, v%d, v%d" % (XR + 2 * nj + 1, a + 2, a + 3))
        if nj == 8:
            k.e("s_movk_i32 s60, 4096")
        k.vm("buffer_store_dwordx2 %s, v37, %s, %s offen offset:%d" % (vr(XR + 2 * nj, 2), sr(SH, 4), "s60" if nj == 8 else "0", (nj * 512) & 4095) + " sc1")
        for d in range(2):
            k.e("v_lshlrev_b32 v42, 16, v%d" % (XR + 2 * nj + d))
            k.e("v_and_b32 v43, 0xffff0000, v%d" % (XR + 2 * nj + d))
            k.e("v_add_f32 v40, v40, v42")
            k.e("v_fmac_f32 v41, v42, v42")
            k.e("v_add_f32 v40, v40, v43")
            k.e("v_fmac_f32 v41, v43, v43")
    k.e("v_xor_b32 v44, 16, v0")
    k.e("v_lshlrev_b32 v44, 2, v44")
    k.e("v_xor_b32 v45, 32, v0")
    k.e("v_lshlrev_b32 v45, 2, v45")
    for a in (44, 45):
        k.e("ds_bpermute_b32 v42, v%d, v40" % a)
        k.e("ds_bpermute_b32 v43, v%d, v41" % a)
        k.e("s_waitcnt lgkmcnt(0)")
        k.e("v_add_f32 v40, v40, v42")
        k.e("v_add_f32 v41, v41, v43")
    k.e("v_lshlrev_b32 v42, 5, v31")
    k.e("s_lshl_b32 s60, s9, 3")
    k.e("v_add_u32 v42, s60, v42")
    k.e("s_mov_b64 exec, 0xffff")
    k.e("buffer_store_dwordx2 v[40:41], v42, %s, 0 offen sc1" % sr(SST, 4))
    k.e("s_mov_b64 exec, -1")
    stamp(k, 3)
    stamp_flush(k, 6)
    k.e("s_mov_b64 exec, -1")
    k.e("s_branch %s" % lab_p2done)
    k.label(lab_idle)
    for _ in range(11):
        k.e("s_barrier")
    k.label(lab_p2done)
    srd(k, 64, P_WS, FLG_OFF + 32768 + 1024, 1024)
    k.e("s_lshl_b32 s60, s2, 2")
    k.e("v_mov_b32 v1, s60")
    k.e("v_mov_b32 v2, 1")
    k.e("s_waitcnt vmcnt(0) lgkmcnt(0)")
    k.e("s_barrier")
    lab_nf = k.newlab("nf")
    k.e("s_cmp_lg_u32 s4, 0")
    k.e("s_cbranch_scc1 %s" % lab_nf)
    k.e("s_mov_b64 exec, 1")
    k.e("buffer_store_dword v2, v1, s[64:67], 0 offen sc1")
    k.e("s_mov_b64 exec, -1")
    k.label(lab_nf)
    k.lq, k.vq = [], []
    return gen_k3(k)


def gen_k1():
    k = K("qkv")
    WS_, NW = 24576, 5
    XS_, NX = 10240, 3
    XB = WS_ * NW
    QP = 976
    STO = 80 * QP
    header(k, 256)
    stamp(k, 0)
    SX, SW, SO, SG, SCP = 36, 40, 44, 48, 52
    sKW, sKX, sMW, sMX = 56, 57, 58, 59
    k.e("s_and_b32 s9, s2, 7")
    k.e("s_lshr_b32 s10, s2, 3")
    srd(k, SX, P_X, 0, S * D * 2)
    srd(k, SW, P_WQKV, 0, D * 3 * D * 2)
    srd(k, SO, P_WS, O_OFF, S * D * 2)
    k.e("v_and_b32 v16, 15, v0")
    k.e("v_lshrrev_b32 v17, 4, v0")
    vO = 2
    k.e("s_mul_i32 s64, s4, 24")
    k.e("s_mul_i32 s65, s9, 144")
    k.e("s_and_b32 s62, s65, 0xffffff80")
    k.e("s_movk_i32 s63, 3456")
    for t in range(3):
        b_dma_addr(k, vO + t, 64, 8 * t, 2, 63, 62, reg_col=1152)
    k.e("s_lshl_b32 s60, s10, 6")
    k.e("s_lshl_b32 s61, s4, 4")
    k.e("s_add_u32 s60, s60, s61")
    k.e("s_sub_u32 s60, s60, 16")
    k.e("v_add_u32 v18, s60, v16")
    k.e("s_movk_i32 s63, 1152")
    k.e("v_mul_lo_u32 v18, v18, s63")
    k.e("v_lshlrev_b32 v19, 4, v17")
    k.e("v_add_u32 v%d, v18, v19" % (vO + 3))
    k.e("v_add_u32 v%d, 64, v%d" % (vO + 4, vO + 3))
    k.e("s_mov_b32 s%d, 0" % sKW)
    k.e("s_mov_b32 s%d, 0" % sKX)
    k.e("s_mul_i32 s%d, s4, 3072" % sMW)
    k.e("s_lshl_b32 s%d, s4, 11" % sMX)

    def dmaW(st):
        b = (st % NW) * WS_
        g = []
        for t in range(3):
            x = [("s_add_u32 m0, s%d, %d" % (sMW, b + t * 1024), None), ("s_nop 0", None),
                 ("buffer_load_dwordx4 v%d, %s, s%d offen lds" % (vO + t, sr(SW, 4), sKW), ("dma", st))]
            if t == 2:
                x.append(("s_add_u32 s%d, s%d, %d" % (sKW, sKW, 32 * 3456), None))
            g.append(x)
        return g

    def dmaX(xs):
        b = XB + (xs % NX) * XS_
        g = []
        for t in range(2):
            x = [("s_add_u32 m0, s%d, %d" % (sMX, b + t * 1024), None), ("s_nop 0", None),
                 ("buffer_load_dwordx4 v%d, %s, s%d offen lds" % (vO + 3 + t, sr(SX, 4), sKX), ("dma", 2 * xs))]
            if t == 1:
                x.append(("s_add_u32 s%d, s%d, 128" % (sKX, sKX), None))
            g.append(x)
        return g
    lab_nx = k.newlab("nx")
    k.e("s_cmp_ge_u32 s4, 5")
    k.e("s_cbranch_scc1 %s" % lab_nx)
    issue_groups(k, dmaX(0) + dmaX(1))
    k.label(lab_nx)
    issue_groups(k, dmaW(0) + dmaW(1) + dmaW(2) + dmaW(3))
    srd(k, 84, P_WS, FLG_OFF, 32768 + 2048)
    k.e("s_lshl_b32 s60, s2, 7")
    k.e("v_mov_b32 v8, s60")
    k.e("s_lshl_b32 s60, s2, 2")
    k.e("s_add_u32 s60, s60, 32768")
    k.e("v_mov_b32 v9, s60")
    for r in range(4):
        k.e("v_mov_b32 v%d, 0" % (20 + r))
    k.e("s_mov_b64 exec, 1")
    k.e("buffer_store_dwordx4 v[20:23], v8, s[84:87], 0 offen")
    k.e("buffer_store_dword v20, v9, s[84:87], 0 offen")
    k.e("buffer_store_dword v20, v9, s[84:87], 0 offen offset:1024")
    k.e("s_mov_b64 exec, -1")
    k.e("s_nop 1")
    if "newtouch" not in EXP:
        touch(k, 96, P_WQKV, D * 3 * D * 2, 2048, 8, 18, 1)
        touch(k, 96, P_X, S * D * 2, 2048, 8, 18, 1)
    else:
        k.e("s_lshl_b32 s60, s10, 6")
        k.e("s_sub_u32 s60, s60, 16")
        k.e("s_mul_i32 s60, s60, 1152")
        k.e("s_mul_i32 s61, s4, 90 * 128")
        k.e("s_add_u32 s60, s60, s61")
        k.e("v_lshlrev_b32 v18, 7, v0")
        k.e("v_add_u32 v18, s60, v18")
        k.e("v_add_u32 v19, 8192, v18")
        k.vm("buffer_load_dword v1, v18, %s, 0 offen" % sr(SX, 4), "touch")
        k.e("s_mov_b64 exec, 0x3ffffff")
        k.vm("buffer_load_dword v1, v19, %s, 0 offen" % sr(SX, 4), "touch")
        k.e("s_mov_b64 exec, -1")
        k.e("s_mul_i32 s60, s4, 14")
        k.e("v_add_u32 v18, s60, v0")
        k.e("v_mul_u32_u24 v19, 10923, v18")
        k.e("v_lshrrev_b32 v19, 16, v19")
        k.e("v_mul_u32_u24 v20, 6, v19")
        k.e("v_sub_u32 v18, v18, v20")
        k.e("v_lshrrev_b32 v20, 1, v18")
        k.e("v_mul_u32_u24 v20, 1152, v20")
        k.e("v_and_b32 v18, 1, v18")
        k.e("v_lshlrev_b32 v18, 7, v18")
        k.e("s_mul_i32 s60, s10, 18")
        k.e("v_add_u32 v19, s60, v19")
        k.e("v_mul_u32_u24 v19, 3456, v19")
        k.e("s_mul_i32 s60, s9, 144")
        k.e("s_and_b32 s60, s60, 0xffffff80")
        k.e("v_add3_u32 v18, v18, v19, v20")
        k.e("v_add_u32 v18, s60, v18")
        k.e("s_mov_b64 exec, 0x3fff")
        k.vm("buffer_load_dword v1, v18, %s, 0 offen" % sr(SW, 4), "touch")
        k.e("s_mov_b64 exec, -1")
    touch(k, 96, P_WO, D * D * 2, 2048, 8, 18, 1)
    CX = 144
    lab_cs3 = k.newlab("cs3")
    k.e("s_mul_i32 s13, s2, 3")
    k.e("s_add_u32 s13, s13, s4")
    k.e("s_sub_u32 s13, s13, 5")
    k.e("s_mul_i32 s14, s13, 3641")
    k.e("s_lshr_b32 s14, s14, 16")
    k.e("s_mul_i32 s15, s14, 18")
    k.e("s_sub_u32 s15, s13, s15")
    k.e("s_lshl_b32 s60, s4, 5")
    k.e("s_add_u32 s61, s60, 160")
    k.e("s_add_u32 s62, s60, 320")
    k.e("s_sub_u32 s60, s4, 5")
    k.e("s_lshl_b32 s60, s60, 6")
    k.e("s_add_u32 s63, s60, 32")
    k.e("s_min_u32 s63, s63, 128")
    k.e("s_cmp_lt_u32 s4, 5")
    k.e("s_cselect_b32 s11, s61, s60")
    k.e("s_cselect_b32 s12, s62, s63")
    k.e("s_cselect_b32 s66, 8192, 0")
    k.e("s_cselect_b32 s67, 16384, 0")
    k.e("s_cselect_b32 s68, 160, 0")
    k.e("s_cselect_b32 s69, 320, 0")
    vB0, vB1, vA, vS = 20, 25, 30, 33
    swap23_lane_rowpos(k, 8, 0, 18, 19)
    k.e("v_bfe_u32 v9, v8, 1, 2")
    k.e("v_and_b32 v10, 1, v8")
    k.e("v_lshlrev_b32 v8, 8, v8")
    k.e("v_and_b32 v11, 3, v0")
    k.e("v_lshlrev_b32 v11, 3, v11")
    k.e("s_and_b32 s65, s65, 127")
    for (vd, sreg, sreb, ssub) in ((vB0, 11, 66, 68), (vB1, 12, 67, 69)):
        k.e("s_sub_u32 s60, s%d, s%d" % (sreg, ssub))
        k.e("s_add_u32 s60, s60, s65")
        k.e("v_add_u32 v18, s60, v11")
        k.e("v_bfe_u32 v19, v18, 7, 1")
        k.e("v_xor_b32 v19, v19, v10")
        k.e("v_lshlrev_b32 v19, 7, v19")
        k.e("v_bfe_u32 v12, v18, 5, 2")
        k.e("v_xor_b32 v12, v12, v9")
        k.e("v_lshlrev_b32 v12, 5, v12")
        k.e("v_and_b32 v18, 31, v18")
        k.e("v_add3_u32 v18, v18, v19, v12")
        k.e("v_add3_u32 v%d, v18, v8, s%d" % (vd, sreb))
    k.e("v_lshlrev_b32 v%d, 4, v0" % vA)
    k.e("v_add_u32 v%d, %d, v%d" % (vA, XB, vA))
    k.e("v_add_u32 v%d, s%d, v%d" % (vS, sMX, vA))
    for b in range(1, NW):
        for v in (vB0, vB1):
            k.e("v_add_u32 v%d, %d, v%d" % (v + b, b * WS_, v))
    for b in range(1, NX):
        for v in (vA, vS):
            k.e("v_add_u32 v%d, %d, v%d" % (v + b, b * XS_, v))
    ONES = 36
    for r in range(4):
        k.e("v_mov_b32 v%d, 0x3f803f80" % (ONES + r))
    ACC = 40
    acc = lambda sl, mi: ACC + (sl * 6 + mi) * 4
    SACC = 88
    AF = [[96 + 4 * mi for mi in range(6)], [120 + 4 * mi for mi in range(6)]]
    BF = [[216, 220], [224, 228]]
    lab_q = k.newlab("qpath")
    lab_post = k.newlab("post")
    k.e("s_cmp_ge_u32 s4, 5")
    k.e("s_cbranch_scc1 %s" % lab_q)
    for path in range(2):
        if path == 1:
            k.e("s_branch %s" % lab_post)
            k.label(lab_q)
        k.lq, k.vq = [], []
        mis = [0, 1, 2, 3, 4] if path == 0 else [1, 2, 3, 4]
        k.vq = [("dma", 0)] * 3 + [("dma", 1)] * 3 + [("dma", 2)] * 3 + [("dma", 3)] * 3 + ["z"] * 6
        def rdl(s):
            xs, kk = divmod(s, 2)
            out = []
            for sl in range(2):
                for j in range(2):
                    out.append("ds_read_b64_tr_b16 %s, v%d offset:%d" % (vr(BF[s % 2][sl] + 2 * j, 2), (vB0, vB1)[sl] + s % NW, j * 2048))
            for mi in mis:
                out.append("ds_read_b128 %s, v%d offset:%d" % (vr(AF[s % 2][mi], 4), vA + xs % NX, (mi * 2 + kk) * 1024))
            if path == 0:
                out.append("ds_read_b128 %s, v%d offset:%d" % (vr(AF[s % 2][5], 4), vS + xs % NX, kk * 1024))
            return out
        if path == 0 and "k1fine" not in EXP:
            stamp(k, 1)
        k.wait_vm(("dma", 0))
        k.e("s_barrier")
        for x in rdl(0):
            k.lds(x, ("f", 0))
        for s in range(18):
            k.c("---- step %d" % s)
            if STAMP and "k1fine" in EXP and path == 0 and s in (1, 6):
                k.e("s_memtime s[%d:%d]" % ((72, 73) if s == 1 else (74, 75)))
            groups = []
            reads = []
            if s + 1 < 18:
                k.wait_vm(("dma", s + 1))
                k.e("s_barrier")
                if path == 0 and s % 2 == 0 and s // 2 + 2 < 9:
                    groups += dmaX(s // 2 + 2)
                if s + NW - 1 < 18:
                    groups += dmaW(s + NW - 1)
                reads = rdl(s + 1)
            if False:
                groups.append([("buffer_load_dwordx4 %s, v7, %s, s88 offen" % (vr(CX + 4 * s, 4), sr(SG, 4)), "cs"),
                               ("s_add_u32 s88, s88, 9216", None)])
            k.wait_lds(("f", s))
            mf = []
            for sl in range(2):
                for mi in mis + [5]:
                    a = acc(sl, mi)
                    cc = "0" if s == 0 else vr(a, 4)
                    bop = vr(AF[s % 2][mi], 4) if mi < 5 else vr(ONES, 4)
                    mf.append("v_mfma_f32_16x16x32_bf16 %s, %s, %s, %s" % (vr(a, 4), vr(BF[s % 2][sl], 4), bop, cc))
            if path == 0:
                sf = vr(AF[s % 2][5], 4)
                mf.append("v_mfma_f32_16x16x32_bf16 %s, %s, %s, %s" % (vr(SACC, 4), vr(ONES, 4), sf, "0" if s == 0 else vr(SACC, 4)))
                mf.append("v_mfma_f32_16x16x32_bf16 %s, %s, %s, %s" % (vr(SACC + 4, 4), sf, sf, "0" if s == 0 else vr(SACC + 4, 4)))
            for n, m in enumerate(mf):
                k.e(m)
                if n < len(reads):
                    k.lds(reads[n], ("f", s + 1))
                g0 = len(mf) - len(groups)
                if n >= g0:
                    issue_groups(k, [groups[n - g0]])
    k.label(lab_post)
    k.lq, k.vq = [], []
    if "k1fine" in EXP:
        k.e("s_waitcnt lgkmcnt(0)")
        stamp(k, 3)
        stamp_flush(k, 6)
        k.e("s_mov_b64 exec, -1")
    else:
        stamp(k, 2)
    k.e("s_nop 7")
    k.e("s_nop 7")
    k.e("s_barrier")
    k.e("v_and_b32 v18, 3, v0")
    k.e("v_cmp_eq_u32 vcc, 1, v18")
    k.e("v_mov_b32 v19, v%d" % (SACC + 4))
    k.e("s_nop 0")
    k.e("v_cndmask_b32 v19, v19, v%d, vcc" % (SACC + 5))
    k.e("v_cmp_eq_u32 vcc, 2, v18")
    k.e("s_nop 1")
    k.e("v_cndmask_b32 v19, v19, v%d, vcc" % (SACC + 6))
    k.e("v_cmp_eq_u32 vcc, 3, v18")
    k.e("s_nop 1")
    k.e("v_cndmask_b32 v19, v19, v%d, vcc" % (SACC + 7))
    k.e("s_mov_b32 s60, 0x%x" % f2u(1.0 / 576.0))
    k.e("s_mov_b32 s61, 0x%x" % f2u(1e-5))
    k.e("v_mul_f32 v8, s60, v%d" % SACC)
    k.e("v_mul_f32 v19, s60, v19")
    k.e("v_fma_f32 v19, -v8, v8, v19")
    k.e("v_max_f32 v19, 0, v19")
    k.e("v_add_f32 v19, s61, v19")
    k.e("v_rsq_f32 v9, v19")
    k.e("v_sub_f32 v8, 0, v8")
    k.e("v_lshrrev_b32 v18, 2, v16")
    k.e("v_cmp_eq_u32 vcc, v18, v17")
    k.e("s_lshl_b32 s60, s4, 7")
    k.e("v_lshlrev_b32 v18, 3, v16")
    k.e("v_add_u32 v18, s60, v18")
    k.e("v_add_u32 v18, %d, v18" % STO)
    k.e("s_and_saveexec_b64 s[60:61], vcc")
    k.e("ds_write_b64 v18, v[8:9]")
    k.e("s_mov_b64 exec, -1")
    k.e("s_waitcnt lgkmcnt(0)")
    k.e("s_barrier")
    k.e("v_lshlrev_b32 v18, 3, v16")
    k.e("v_add_u32 v18, %d, v18" % STO)
    for mi in range(5):
        k.lds("ds_read_b64 %s, v18 offset:%d" % (vr(96 + 2 * mi, 2), mi * 128), "st")
    for sl, sreg in ((0, 11), (1, 12)):
        k.e("s_lshl_b32 s60, s%d, 1" % sreg)
        k.e("v_mul_u32_u24 v18, %d, v16" % QP)
        k.e("v_lshlrev_b32 v19, 4, v17")
        k.e("v_add3_u32 v%d, v18, v19, s60" % (8 + sl))
    k.wait_lds("st")
    for sl in range(2):
        cw = acc(sl, 5)
        for mi in range(5):
            a = acc(sl, mi)
            for r in range(4):
                k.e("v_fma_f32 v%d, v%d, v%d, v%d" % (a + r, 96 + 2 * mi, cw + r, a + r))
            for r in range(4):
                k.e("v_mul_f32 v%d, v%d, v%d" % (a + r, 97 + 2 * mi, a + r))
            k.e("v_cvt_pk_bf16_f32 v18, v%d, v%d" % (a, a + 1))
            k.e("v_cvt_pk_bf16_f32 v19, v%d, v%d" % (a + 2, a + 3))
            k.e("v_lshlrev_b32 v%d, 16, v18" % a)
            k.e("v_and_b32 v%d, 0xffff0000, v18" % (a + 1))
            k.e("v_lshlrev_b32 v%d, 16, v19" % (a + 2))
            k.e("v_and_b32 v%d, 0xffff0000, v19" % (a + 3))
            k.lds("ds_write_b128 v%d, %s offset:%d" % (8 + sl, vr(a, 4), mi * 16 * QP))
    k.wait_lds_all()
    k.e("s_barrier")
    k.e("v_lshrrev_b32 v18, 3, v0")
    k.e("s_lshl_b32 s60, s4, 3")
    k.e("v_add_u32 v18, s60, v18")
    k.e("v_bfe_u32 v19, v0, 1, 2")
    k.e("v_and_b32 v26, 1, v0")
    k.e("v_mul_u32_u24 v20, %d, v18" % QP)
    k.e("v_mul_u32_u24 v21, 72, v19")
    k.e("v_add_u32 v20, v20, v21")
    k.e("v_mul_u32_u24 v21, %d, v26" % (8 * QP))
    k.e("v_sub_u32 v27, v20, v21")
    k.e("v_add_u32 v27, %d, v27" % (10 * QP))
    Q = 32
    KV = 52
    L = 124
    O = 128
    for d in range(9):
        k.lds("ds_read_b64 %s, v20 offset:%d" % (vr(Q + 2 * d, 2), 16 * QP + d * 8), "q")
    seq = [("k", j) for j in range(4)] + [("v", j) for j in range(4)]

    def rdkv(n):
        kind, j = seq[n]
        col = 320 if kind == "k" else 640
        for d in range(9):
            k.lds("ds_read_b64 %s, v27 offset:%d" % (vr(KV + (n % 4) * 18 + 2 * d, 2), (3 - j) * 2 * QP + col + d * 8), seq[n])
    rdkv(0)
    rdkv(1)
    rdkv(2)
    for j in range(4):
        rdkv(j + 3)
        k.wait_lds(("k", j))
        b = KV + j * 18
        k.e("v_mul_f32 v%d, v%d, v%d" % (L + j, Q, b))
        k.e("v_mul_f32 v24, v%d, v%d" % (Q + 1, b + 1))
        for d in range(2, 18, 2):
            k.e("v_fmac_f32 v%d, v%d, v%d" % (L + j, Q + d, b + d))
            k.e("v_fmac_f32 v24, v%d, v%d" % (Q + d + 1, b + d + 1))
        k.e("v_add_f32 v%d, v%d, v24" % (L + j, L + j))
    rdkv(7)
    k.e("s_mov_b32 s60, 0x%x" % f2u(18 ** -0.5))
    k.e("s_lshl_b32 s61, s10, 6")
    k.e("v_add_u32 v22, s61, v18")
    k.e("v_lshlrev_b32 v25, 3, v26")
    k.e("v_sub_u32 v25, v22, v25")
    k.e("v_mov_b32 v23, 0x%x" % f2u(-1e9))
    for j in range(4):
        k.e("v_mul_f32 v%d, s60, v%d" % (L + j, L + j))
    for j in range(4):
        k.e("v_cmp_le_i32 vcc, %d, v25" % (2 * j))
        k.e("s_nop 1")
        k.e("v_cndmask_b32 v%d, v23, v%d, vcc" % (L + j, L + j))
    k.e("v_max3_f32 v24, v%d, v%d, v%d" % (L, L + 1, L + 2))
    k.e("v_max_f32 v24, v24, v%d" % (L + 3))
    k.e("s_nop 1")
    k.e("v_max_f32 v24, v24, v24 quad_perm:[1,0,3,2] row_mask:0xf bank_mask:0xf")
    k.e("s_mov_b32 s60, 0x%x" % f2u(1.4426950408889634))
    for j in range(4):
        k.e("v_sub_f32 v%d, v%d, v24" % (L + j, L + j))
    for j in range(4):
        k.e("v_mul_f32 v%d, s60, v%d" % (L + j, L + j))
    for j in range(4):
        k.e("v_exp_f32 v%d, v%d" % (L + j, L + j))
    k.e("s_nop 0")
    k.e("v_add_f32 v24, v%d, v%d" % (L, L + 1))
    k.e("v_add_f32 v25, v%d, v%d" % (L + 2, L + 3))
    k.e("v_add_f32 v24, v24, v25")
    k.e("s_nop 1")
    k.e("v_add_f32 v24, v24, v24 quad_perm:[1,0,3,2] row_mask:0xf bank_mask:0xf")
    k.e("v_rcp_f32 v24, v24")
    k.e("s_nop 0")
    for j in range(4):
        k.e("v_mul_f32 v%d, v%d, v24" % (L + j, L + j))
    for j in range(4):
        k.wait_lds(("v", j))
        b = KV + j * 18
        for d in range(18):
            if j == 0:
                k.e("v_mul_f32 v%d, v%d, v%d" % (O + d, L, b + d))
            else:
                k.e("v_fmac_f32 v%d, v%d, v%d" % (O + d, L + j, b + d))
    k.e("s_nop 1")
    for d in range(18):
        k.e("v_add_f32 v%d, v%d, v%d quad_perm:[1,0,3,2] row_mask:0xf bank_mask:0xf" % (KV + d, O + d, O + d))
    for d in range(9):
        k.e("v_cvt_pk_bf16_f32 v%d, v%d, v%d" % (Q + d, KV + 2 * d, KV + 2 * d + 1))
    k.e("v_cmp_eq_u32 vcc, 1, v26")
    k.e("v_lshrrev_b32 v23, 4, v22")
    k.e("v_mul_u32_u24 v23, 18432, v23")
    k.e("v_and_b32 v24, 15, v22")
    k.e("v_lshlrev_b32 v24, 4, v24")
    k.e("v_add_u32 v23, v23, v24")
    k.e("v_mul_u32_u24 v21, 18, v19")
    k.e("s_mul_i32 s60, s9, 72")
    k.e("v_add_u32 v21, s60, v21")
    k.e("v_lshlrev_b32 v24, 3, v26")
    k.e("v_add_u32 v21, v21, v24")
    for d in range(5):
        k.e("v_cndmask_b32 v%d, v%d, v%d, vcc" % (O + d, Q + d, Q + d + 4))
        k.e("v_add_u32 v24, %d, v21" % (2 * d))
        k.e("v_lshrrev_b32 v25, 3, v24")
        k.e("v_lshlrev_b32 v25, 8, v25")
        k.e("v_and_b32 v24, 7, v24")
        k.e("v_lshlrev_b32 v24, 1, v24")
        k.e("v_add3_u32 v%d, v23, v24, v25" % (O + 8 + d))
        k.e("buffer_store_dword v%d, v%d, %s, 0 offen" % (O + d, O + 8 + d, sr(SO, 4)))
    if "k1fine" not in EXP:
        stamp(k, 3)
        stamp_flush(k, 6)
    k.label(lab_cs3)
    footer(k)
    return k, 256


def main():
    ks = [
        (gen_k1, 512, 5 * 24576 + 3 * 10240, 232),
        (gen_k2, 512, 4 * 40960, 256),
    ]
    hdr = open("sequential_preLN__sliding_local_dilated__geglu_ffn__prompt.s.ref").read().split("\n")
    out = []
    for line in hdr:
        if line.startswith("; Override") or line.startswith("; grid=") or line.startswith("; @launch"):
            continue
        if not line.startswith(";"):
            break
        out.append(line)
    body = []
    desc = []
    for fn, block, lds, nv in ks:
        k, nwg = fn()
        name = k.name + "_kernel"
        out.append("; @launch kernel=%s grid=(%d,1,1) block=(%d,1,1) lds=%d" % (name, nwg, block, lds))
        body += [".globl %s" % name, ".p2align 8", ".type %s,@function" % name, "%s:" % name] + k.L
        desc += [".p2align 6", ".amdhsa_kernel %s" % name,
                 "  .amdhsa_next_free_vgpr %d" % nv, "  .amdhsa_next_free_sgpr 102",
                 "  .amdhsa_accum_offset %d" % nv,
                 "  .amdhsa_group_segment_fixed_size 0", "  .amdhsa_kernarg_size 80",
                 "  .amdhsa_user_sgpr_count 2", "  .amdhsa_user_sgpr_kernarg_segment_ptr 1",
                 "  .amdhsa_system_sgpr_workgroup_id_x 1", ".end_amdhsa_kernel"]
    out += ['.amdgcn_target "amdgcn-amd-amdhsa--gfx950"', ".text"] + body + ['.section .rodata,"a"'] + desc
    path = sys.argv[1] if len(sys.argv) > 1 else "sequential_preLN__sliding_local_dilated__geglu_ffn__prompt.s"
    open(path, "w").write("\n".join(out) + "\n")


main()
```

```python
import sys, struct

S, D, F = 2048, 576, 4608
O_OFF = 0x0000000
H_OFF = 0x0400000
ST_OFF = 0x0800000
CP_OFF = 0x0A00000
CS_OFF = 0x0860000
FLG_OFF = 0x0880000
ACT_OFF = 0x1000000
PART_OFF = 0x3000000


def f2u(x):
    return struct.unpack("<I", struct.pack("<f", x))[0]


EXP = __import__("os").environ.get("EXP", "")


class K:
    def __init__(s, name):
        s.name = name
        s.L = []
        s.lq = []
        s.vq = []
        s.nlab = 0

    def e(s, t):
        if "nomfma" in EXP and t.startswith("v_mfma"):
            return
        if "noldsrd" in EXP and (t.startswith("ds_read_b128") or t.startswith("ds_read_b64_tr")):
            return
        if "nodma" in EXP and t.endswith(" lds"):
            return
        if "nox" in EXP and t.endswith(" lds") and "s[36:39]" in t and s.name == "qkv":
            return
        if "now" in EXP and t.endswith(" lds") and "s[40:43]" in t and s.name == "qkv":
            return
        s.L.append("    " + t)

    def c(s, t):
        s.L.append("    ; " + t)

    def label(s, n):
        s.L.append(n + ":")

    def newlab(s, base):
        s.nlab += 1
        return "L_%s_%s_%d" % (s.name, base, s.nlab)

    def lds(s, t, tag=None):
        s.e(t)
        s.lq.append(tag)

    def vm(s, t, tag=None):
        s.e(t)
        s.vq.append(tag)

    def _need(s, q, tag):
        idx = -1
        for i, x in enumerate(q):
            if x == tag:
                idx = i
        return idx

    def wait_lds(s, tag):
        idx = s._need(s.lq, tag)
        if idx < 0:
            return
        n = len(s.lq) - idx - 1
        n = min(n, 15)
        s.e("s_waitcnt lgkmcnt(%d)" % n)
        s.lq = s.lq[len(s.lq) - n:] if n else []

    def wait_vm(s, tag):
        idx = s._need(s.vq, tag)
        if idx < 0:
            return
        n = len(s.vq) - idx - 1
        n = min(n, 63)
        s.e("s_waitcnt vmcnt(%d)" % n)
        s.vq = s.vq[len(s.vq) - n:] if n else []

    def wait_all(s):
        s.e("s_waitcnt vmcnt(0) lgkmcnt(0)")
        s.lq = []
        s.vq = []

    def wait_lds_all(s):
        s.e("s_waitcnt lgkmcnt(0)")
        s.lq = []

    def wait_vm_all(s):
        s.e("s_waitcnt vmcnt(0)")
        s.vq = []


STAMP = int(__import__("os").environ.get("STAMP", "0"))


def stamp(k, idx):
    if STAMP:
        k.e("s_memtime s[%d:%d]" % (70 + 2 * idx, 71 + 2 * idx))
        if idx in (0, 3):
            k.e("s_memrealtime s[%d:%d]" % (78 + (2 if idx else 0), 79 + (2 if idx else 0)))
        k.e("s_waitcnt lgkmcnt(0)")
        k.lq = []


def stamp_flush(k, n):
    if STAMP == 2:
        slot = getattr(k, "stamp_slot", 0)
        lab = k.newlab("nost")
        k.e("s_cmp_lg_u32 s2, 5")
        k.e("s_cbranch_scc1 %s" % lab)
        k.e("s_cmp_lg_u32 s4, 0")
        k.e("s_cbranch_scc1 %s" % lab)
        if not slot:
            k.e("s_add_u32 s92, s%d, 512" % P_DBG)
            k.e("s_addc_u32 s93, s%d, 0" % (P_DBG + 1))
        else:
            k.e("s_mov_b32 s92, s%d" % P_DBG)
            k.e("s_mov_b32 s93, s%d" % (P_DBG + 1))
        k.e("s_mov_b32 s94, 256")
        k.e("s_mov_b32 s95, 0x00020000")
        k.e("v_mov_b32 v1, 0")
        k.e("s_mov_b64 exec, 1")
        for i, r in enumerate((78, 80)):
            k.e("v_mov_b32 v2, s%d" % r)
            k.e("buffer_store_dword v2, v1, s[92:95], 0 offen offset:%d" % (8 * slot + 4 * i))
        k.label(lab)
        return
    if STAMP:
        lab = k.newlab("nost")
        k.e("s_and_b32 s90, s2, 127")
        k.e("s_cmp_lg_u32 s90, 5")
        k.e("s_cbranch_scc1 %s" % lab)
        k.e("s_cmp_lg_u32 s4, 0")
        k.e("s_cbranch_scc1 %s" % lab)
        srd(k, 92, P_WS, 0x900000 + 512 * getattr(k, "stamp_slot", 0), 256)
        k.e("s_lshr_b32 s90, s2, 7")
        k.e("s_lshl_b32 s90, s90, 6")
        k.e("v_mov_b32 v1, s90")
        k.e("s_mov_b64 exec, 1")
        for i in range(n):
            k.e("v_mov_b32 v2, s%d" % (70 + 2 * i))
            k.e("buffer_store_dword v2, v1, s[92:95], 0 offen offset:%d" % (4 * i))
        k.label(lab)


def vr(b, n):
    return "v[%d:%d]" % (b, b + n - 1)


def sr(b, n):
    return "s[%d:%d]" % (b, b + n - 1)


P_X, P_WQKV, P_WO, P_BX, P_WG, P_WU, P_WD, P_OUT, P_DBG, P_WS = 16, 18, 20, 22, 24, 26, 28, 30, 32, 34


def header(k, nwg):
    k.e("s_cmp_ge_u32 s2, %d" % nwg)
    k.e("s_cbranch_scc1 L_%s_end" % k.name)
    k.e("s_load_dwordx16 s[16:31], s[0:1], 0")
    k.e("s_load_dwordx4 s[32:35], s[0:1], 64")
    k.e("v_lshrrev_b32 v1, 6, v0")
    k.e("v_and_b32 v0, 63, v0")
    k.e("s_nop 0")
    k.e("v_readfirstlane_b32 s4, v1")
    k.e("s_waitcnt lgkmcnt(0)")


def srd(k, d, ptr, off, nbytes):
    if off:
        k.e("s_add_u32 s%d, s%d, 0x%x" % (d, ptr, off))
        k.e("s_addc_u32 s%d, s%d, 0" % (d + 1, ptr + 1))
    else:
        k.e("s_mov_b32 s%d, s%d" % (d, ptr))
        k.e("s_mov_b32 s%d, s%d" % (d + 1, ptr + 1))
    k.e("s_mov_b32 s%d, 0x%x" % (d + 2, nbytes))
    k.e("s_mov_b32 s%d, 0x00020000" % (d + 3))


def footer(k):
    k.label("L_%s_end" % k.name)
    k.e("s_endpgm")


def swap23_lane_rowpos(k, vdst, vlane, vt, vt2):
    k.e("v_lshrrev_b32 v%d, 5, v%d" % (vt, vlane))
    k.e("v_lshlrev_b32 v%d, 4, v%d" % (vdst, vt))
    k.e("v_bfe_u32 v%d, v%d, 4, 1" % (vt, vlane))
    k.e("v_lshlrev_b32 v%d, 2, v%d" % (vt, vt))
    k.e("v_add_u32 v%d, v%d, v%d" % (vdst, vdst, vt))
    k.e("v_bfe_u32 v%d, v%d, 2, 2" % (vt2, vlane))
    k.e("v_add_u32 v%d, v%d, v%d" % (vdst, vdst, vt2))


def swap23(k, vdst, vp, vt, vt2):
    k.e("v_and_b32 v%d, 0x33, v%d" % (vdst, vp))
    k.e("v_bfe_u32 v%d, v%d, 2, 1" % (vt, vp))
    k.e("v_lshlrev_b32 v%d, 3, v%d" % (vt, vt))
    k.e("v_bfe_u32 v%d, v%d, 3, 1" % (vt2, vp))
    k.e("v_lshlrev_b32 v%d, 2, v%d" % (vt2, vt2))
    k.e("v_or3_b32 v%d, v%d, v%d, v%d" % (vdst, vdst, vt, vt2))


def gemm_core(k, nst, nbuf, MI, acc, afr, bring, PD, a_rd, b_rd, dma, zero_init, NJ=9, sub=1, extra=None):
    RB = len(bring)
    nm = MI * NJ
    nsteps = nst * sub

    def rdB(t):
        sp, nj = divmod(t, NJ)
        if sp >= nsteps:
            return []
        st, kk = divmod(sp, sub)
        slot = bring[t % RB]
        out = []
        for j in range(2):
            v, off = b_rd(st % nbuf, nj, j, kk) if sub > 1 else b_rd(st % nbuf, nj, j)
            out.append(("ds_read_b64_tr_b16 %s, v%d offset:%d" % (vr(slot + 2 * j, 2), v, off), ("B", t)))
        return out

    def rdA(sp, i):
        if sp >= nsteps:
            return []
        st, kk = divmod(sp, sub)
        v, off = a_rd(st % nbuf, i, kk) if sub > 1 else a_rd(st % nbuf, i)
        return [("ds_read_b128 %s, v%d offset:%d" % (vr(afr[sp % 2][i], 4), v, off), ("A", sp))]

    k.wait_vm(("dma", 0))
    k.e("s_barrier")
    for i in range(MI):
        for (t, tag) in rdA(0, i):
            k.lds(t, tag)
    for t in range(PD):
        for (x, tag) in rdB(t):
            k.lds(x, tag)
    for s in range(nsteps):
        k.c("---- step %d" % s)
        groups = []
        st = s // sub
        if (s + 1) % sub == 0 and st + 1 < nst:
            k.wait_vm(("dma", st + 1))
            k.e("s_barrier")
            if st + nbuf - 1 < nst:
                groups = dma(st + nbuf - 1)
        ev = {}

        def add(idx, fn):
            ev.setdefault(min(idx, nm - 1), []).append(fn)
        for nj in range(NJ):
            t = s * NJ + nj
            add(nj * MI, (lambda tt: (lambda: [k.lds(x, tag) for (x, tag) in rdB(tt)]))(t + PD))
        for i in range(MI):
            add((2 + i) * MI + min(1, MI - 1), (lambda ii: (lambda: [k.lds(x, tag) for (x, tag) in rdA(s + 1, ii)]))(i))
        for gi, g in enumerate(groups):
            def mk(g):
                def f():
                    for (x, tag) in g:
                        if tag is None:
                            k.e(x)
                        else:
                            k.vm(x, tag)
                return f
            add(gi * MI + min(2, MI - 1), mk(g))
        for nj in range(NJ):
            t = s * NJ + nj
            if nj == 0:
                k.wait_lds(("A", s))
            k.wait_lds(("B", t))
            for i in range(MI):
                a = acc(i, nj)
                cc = "0" if (zero_init and s == 0) else vr(a, 4)
                k.e("v_mfma_f32_16x16x32_bf16 %s, %s, %s, %s" % (vr(a, 4), vr(bring[t % RB], 4), vr(afr[s % 2][i], 4), cc))
                for fn in ev.get(nj * MI + i, []):
                    fn()
            if extra:
                extra(s, nj, bring[t % RB])


def fl_lane(k, vdst, vt):
    k.e("v_lshrrev_b32 v%d, 1, v17" % vt)
    k.e("v_lshlrev_b32 v%d, 8, v%d" % (vdst, vt))
    k.e("v_lshlrev_b32 v%d, 4, v16" % vt)
    k.e("v_add_u32 v%d, v%d, v%d" % (vdst, vdst, vt))
    k.e("v_and_b32 v%d, 1, v17" % vt)
    k.e("v_lshlrev_b32 v%d, 3, v%d" % (vt, vt))
    k.e("v_add_u32 v%d, v%d, v%d" % (vdst, vdst, vt))


def b_dma_addr(k, vdst, sL0, iofs, NL, spitch, scol, reg_row=0, reg_col=0):
    k.e("v_lshrrev_b32 v18, 3, v0")
    k.e("v_add_u32 v18, s%d, v18" % sL0)
    if iofs:
        k.e("v_add_u32 v18, %d, v18" % iofs)
    if NL == 3:
        k.e("v_mul_u32_u24 v19, 21846, v18")
        k.e("v_lshrrev_b32 v19, 16, v19")
        k.e("v_mul_u32_u24 v20, 3, v19")
        k.e("v_sub_u32 v18, v18, v20")
    else:
        k.e("v_lshrrev_b32 v19, 1, v18")
        k.e("v_xor_b32 v18, v18, v19")
        k.e("v_and_b32 v18, 1, v18")
    k.e("v_lshlrev_b32 v18, 7, v18")
    k.e("v_bfe_u32 v20, v19, 1, 2")
    k.e("v_bfe_u32 v21, v0, 1, 2")
    k.e("v_xor_b32 v20, v20, v21")
    k.e("v_lshlrev_b32 v20, 5, v20")
    k.e("v_and_b32 v21, 1, v0")
    k.e("v_lshlrev_b32 v21, 4, v21")
    k.e("v_add3_u32 v18, v18, v20, v21")
    k.e("v_lshrrev_b32 v23, 5, v19")
    k.e("v_and_b32 v19, 31, v19")
    swap23(k, 20, 19, 21, 22)
    if reg_row:
        k.e("v_mul_u32_u24 v21, %d, v23" % reg_row)
        k.e("v_add_u32 v20, v20, v21")
    k.e("v_mul_lo_u32 v20, v20, s%d" % spitch)
    if reg_col:
        k.e("v_mul_u32_u24 v23, %d, v23" % reg_col)
        k.e("v_add_u32 v18, v18, v23")
    k.e("v_add3_u32 v%d, v20, v18, s%d" % (vdst, scol))


def b_rd_addr3(k, vq, sn0p, sbase):
    swap23_lane_rowpos(k, 18, 0, 19, 20)
    k.e("v_bfe_u32 v19, v18, 1, 2")
    k.e("v_mul_u32_u24 v18, 384, v18")
    k.e("v_and_b32 v20, 3, v0")
    k.e("v_lshlrev_b32 v20, 3, v20")
    k.e("v_add3_u32 v18, v18, v20, s%d" % sbase)
    for q in range(4):
        k.e("s_add_u32 s60, s%d, %d" % (sn0p, q))
        k.e("s_and_b32 s61, s60, 3")
        k.e("s_lshr_b32 s60, s60, 2")
        k.e("s_lshl_b32 s60, s60, 7")
        k.e("v_xor_b32 v20, s61, v19")
        k.e("v_lshlrev_b32 v20, 5, v20")
        k.e("v_add3_u32 v%d, v18, v20, s60" % (vq + q))


def touch(k, ssrd, ptr, nbytes, nwaves_total, wpw, vtmp, vdst):
    nlines = nbytes // 128
    per = (nlines + nwaves_total - 1) // nwaves_total
    assert per <= 64
    srd(k, ssrd, ptr, 0, nbytes)
    k.e("s_mul_i32 s60, s2, %d" % wpw)
    k.e("s_add_u32 s60, s60, s4")
    k.e("s_mul_i32 s60, s60, %d" % per)
    k.e("v_add_u32 v%d, s60, v0" % vtmp)
    k.e("v_lshlrev_b32 v%d, 7, v%d" % (vtmp, vtmp))
    if per < 64:
        m = (1 << per) - 1
        k.e("s_mov_b32 exec_lo, 0x%x" % (m & 0xffffffff))
        k.e("s_mov_b32 exec_hi, 0x%x" % (m >> 32))
    k.vm("buffer_load_dword v%d, v%d, %s, 0 offen" % (vdst, vtmp, sr(ssrd, 4)), "touch")
    k.e("s_mov_b64 exec, -1")


def issue_groups(k, groups):
    for g in groups:
        for (x, tag) in g:
            if tag is None:
                k.e(x)
            else:
                k.vm(x, tag)


def gen_k3(k):
    SB = 40960
    NBUF = 4
    k.stamp_slot = 2
    stamp(k, 0)
    SA, SBd, SST, SCS, SO = 36, 40, 44, 48, 52
    sKA, sKB, sMA, sMB = 56, 57, 58, 59
    k.e("s_and_b32 s60, s2, 7")
    k.e("s_lshr_b32 s61, s2, 3")
    k.e("s_and_b32 s62, s61, 3")
    k.e("s_lshl_b32 s60, s60, 2")
    k.e("s_add_u32 s9, s60, s62")
    k.e("s_lshr_b32 s61, s61, 2")
    k.e("s_lshl_b32 s7, s61, 8")
    k.e("s_mul_i32 s8, s9, 144")
    k.e("s_and_b32 s5, s4, 3")
    k.e("s_lshr_b32 s6, s4, 2")
    srd(k, SA, P_WS, H_OFF, S * D * 2)
    k.e("s_cmp_lt_u32 s4, 4")
    k.e("s_cselect_b32 s%d, s%d, s%d" % (SBd, P_WG, P_WU))
    k.e("s_cselect_b32 s%d, s%d, s%d" % (SBd + 1, P_WG + 1, P_WU + 1))
    k.e("s_mov_b32 s%d, 0x%x" % (SBd + 2, D * F * 2))
    k.e("s_mov_b32 s%d, 0x00020000" % (SBd + 3))
    srd(k, SST, P_WS, ST_OFF, S * 32)
    srd(k, SO, P_WS, ACT_OFF, S * F * 2)
    vOA0, vOA1, vOB = 2, 3, 4
    vA, vB = 8, 24
    vR, vM = 40, 44
    ACC = 96
    afr = [[48 + 4 * i for i in range(4)], [64 + 4 * i for i in range(4)]]
    bring = [80, 84, 88, 92]
    k.e("v_and_b32 v16, 15, v0")
    k.e("v_lshrrev_b32 v17, 4, v0")
    k.e("s_lshr_b32 s60, s7, 4")
    k.e("s_lshl_b32 s61, s4, 1")
    k.e("s_add_u32 s60, s60, s61")
    k.e("s_mul_i32 s60, s60, 18432")
    k.e("v_lshlrev_b32 v19, 4, v0")
    k.e("v_add_u32 v%d, s60, v19" % vOA0)
    k.e("v_add_u32 v%d, 18432, v%d" % (vOA1, vOA0))
    k.e("s_and_b32 s60, s4, 3")
    k.e("s_mul_i32 s68, s60, 24")
    k.e("s_lshl_b32 s62, s8, 1")
    k.e("s_and_b32 s62, s62, 0xffffff80")
    k.e("s_movk_i32 s63, 9216")
    for i in range(3):
        b_dma_addr(k, vOB + i, 68, 8 * i, 3, 63, 62)
    k.e("s_mov_b32 s%d, 0" % sKA)
    k.e("s_mov_b32 s%d, 0" % sKB)
    k.e("s_lshl_b32 s%d, s4, 11" % sMA)
    k.e("s_mul_i32 s%d, s4, 3072" % sMB)
    k.e("s_add_u32 s%d, s%d, 16384" % (sMB, sMB))

    def dmaA(st):
        b = (st % NBUF) * SB
        tag = ("dma", st)
        g = []
        for i in range(2):
            x = [("s_add_u32 m0, s%d, %d" % (sMA, b + i * 1024), None), ("s_nop 0", None),
                 ("buffer_load_dwordx4 v%d, %s, s%d offen sc1 lds" % (vOA0 + i, sr(SA, 4), sKA), tag)]
            if i == 1:
                x.append(("s_add_u32 s%d, s%d, 1024" % (sKA, sKA), None))
            g.append(x)
        return g

    def dmaB(st):
        b = (st % NBUF) * SB
        tag = ("dma", st)
        g = []
        for i in range(3):
            x = [("s_add_u32 m0, s%d, %d" % (sMB, b + i * 1024), None), ("s_nop 0", None)]
            x.append(("buffer_load_dwordx4 v%d, %s, s%d offen lds" % (vOB + i, sr(SBd, 4), sKB), tag))
            if i == 2:
                x.append(("s_add_u32 s%d, s%d, %d" % (sKB, sKB, 32 * 9216), None))
            g.append(x)
        return g

    def dma(st):
        return dmaA(st) + dmaB(st)
    for st in range(NBUF - 1):
        issue_groups(k, dmaB(st))
    srd(k, 64, P_WS, FLG_OFF + 32768 + 1024, 1024)
    k.e("s_lshr_b32 s60, s7, 3")
    k.e("v_and_b32 v18, 31, v0")
    k.e("v_add_u32 v18, s60, v18")
    k.e("v_lshlrev_b32 v18, 2, v18")
    lab_p = k.newlab("pollH")
    lab_g = k.newlab("goH")
    k.label(lab_p)
    k.e("buffer_load_dword v19, v18, s[64:67], 0 offen sc1")
    k.e("s_waitcnt vmcnt(0)")
    k.e("v_cmp_ne_u32 vcc, 1, v19")
    k.e("s_nop 1")
    k.e("s_cmp_eq_u64 vcc, 0")
    k.e("s_cbranch_scc1 %s" % lab_g)
    k.e("s_sleep 2")
    k.e("s_branch %s" % lab_p)
    k.label(lab_g)
    k.vq = []
    k.e("s_lshl_b32 s60, s5, 6")
    k.e("s_add_u32 s60, s60, s7")
    k.e("v_add_u32 v18, s60, v16")
    k.e("v_lshlrev_b32 v18, 5, v18")
    for i in range(4):
        for h in range(2):
            k.vm("buffer_load_dwordx4 %s, v18, %s, 0 offen offset:%d" % (vr(ACC + i * 8 + h * 4, 4), sr(SST, 4), i * 512 + h * 16) + " sc1", "st")
    for st in range(NBUF - 1):
        issue_groups(k, dmaA(st))
    touch(k, 64, P_WD, F * D * 2, 2048, 8, 18, 1)
    k.e("s_lshl_b32 s60, s5, 12")
    k.e("v_lshlrev_b32 v18, 4, v0")
    k.e("v_add_u32 v%d, s60, v18" % vA)
    k.e("v_add_u32 v%d, %d, v%d" % (vA + 1, 2 * SB, vA))
    k.e("s_bfe_u32 s62, s8, 0x20004")
    k.e("s_mul_i32 s63, s6, 5")
    k.e("s_add_u32 s62, s62, s63")
    k.e("s_movk_i32 s63, 16384")
    b_rd_addr3(k, vB, 62, 63)
    for q in range(4):
        k.e("v_add_u32 v%d, %d, v%d" % (vB + 4 + q, 2 * SB, vB + q))
    k.e("v_lshrrev_b32 v18, 1, v17")
    k.e("v_lshlrev_b32 v14, 8, v18")
    k.e("v_lshlrev_b32 v18, 4, v16")
    k.e("v_add_u32 v14, v14, v18")
    k.e("v_and_b32 v18, 1, v17")
    k.e("v_mul_u32_u24 v15, 147456, v18")
    k.e("v_add_u32 v15, v15, v14")
    k.e("v_lshlrev_b32 v18, 9, v18")
    k.e("v_add_u32 v14, v14, v18")
    k.e("s_lshr_b32 s60, s7, 4")
    k.e("s_lshl_b32 s61, s5, 2")
    k.e("s_add_u32 s60, s60, s61")
    k.e("s_mul_i32 s60, s60, 147456")
    k.e("s_mul_i32 s61, s9, 9")
    k.e("s_mul_i32 s62, s6, 5")
    k.e("s_add_u32 s61, s61, s62")
    k.e("s_lshl_b32 s61, s61, 9")
    k.e("s_add_u32 s60, s60, s61")
    k.e("v_add_u32 v14, s60, v14")
    k.e("v_add_u32 v15, s60, v15")
    k.wait_vm("st")
    k.e("s_mov_b32 s60, 0x%x" % f2u(1.0 / 576.0))
    k.e("s_mov_b32 s61, 0x%x" % f2u(1e-5))
    for i in range(4):
        b = ACC + i * 8
        k.e("v_add_f32 v18, v%d, v%d" % (b, b + 2))
        k.e("v_add_f32 v19, v%d, v%d" % (b + 4, b + 6))
        k.e("v_add_f32 v20, v%d, v%d" % (b + 1, b + 3))
        k.e("v_add_f32 v21, v%d, v%d" % (b + 5, b + 7))
        k.e("v_add_f32 v18, v18, v19")
        k.e("v_add_f32 v20, v20, v21")
        k.e("v_mul_f32 v18, s60, v18")
        k.e("v_mul_f32 v20, s60, v20")
        k.e("v_fma_f32 v20, -v18, v18, v20")
        k.e("v_max_f32 v20, 0, v20")
        k.e("v_add_f32 v20, s61, v20")
        k.e("v_rsq_f32 v%d, v20" % (vR + i))
        k.e("v_sub_f32 v%d, 0, v18" % (vM + i))
    lab1 = k.newlab("wn1")
    lab_done = k.newlab("done")
    k.e("s_cmp_eq_u32 s6, 1")
    k.e("s_cbranch_scc1 %s" % lab1)
    st_l, st_v = list(k.lq), list(k.vq)
    c1 = -2.0 * 0.7978845608028654 * 1.4426950408889634
    for wn in range(2):
        NF = 5 if wn == 0 else 4
        NJ = 2 * NF
        if wn == 1:
            k.e("s_branch %s" % lab_done)
            k.label(lab1)
            k.lq, k.vq = list(st_l), list(st_v)
        acc = lambda i, c: ACC + (i * NJ + c) * 4
        CW = {0: 32, 1: 36, 8: 10, 9: 16}
        ONES = 20
        for r in range(4):
            k.e("v_mov_b32 v%d, 0x3f803f80" % (ONES + r))
        prevb = [None]

        def cwreg(c):
            return CW[(c & 1) + 8 * (c >> 3)]

        def extra(s_, c, breg):
            if c & 1 == 0:
                prevb[0] = breg
                return
            lab = k.newlab("cw")
            k.e("s_cmp_eq_u32 s5, %d" % ((c >> 1) & 3))
            k.e("s_cbranch_scc0 %s" % lab)
            for cc, br in ((c - 1, prevb[0]), (c, breg)):
                k.e("v_mfma_f32_16x16x32_bf16 %s, %s, %s, %s" % (vr(cwreg(cc), 4), vr(br, 4), vr(ONES, 4), "0" if s_ == 0 else vr(cwreg(cc), 4)))
            k.label(lab)

        def a_rd(buf, i):
            return vA + (buf >> 1), (buf & 1) * SB + i * 1024

        def b_rd(buf, c, j):
            f = c >> 1
            return vB + 4 * (buf >> 1) + (f & 3), (buf & 1) * SB + (c & 1) * 12288 + j * 3072 + (f >> 2) * 128
        if wn == 0:
            stamp(k, 1)
        gemm_core(k, 18, NBUF, 4, acc, afr, bring, 2, a_rd, b_rd, dma, True, NJ=NJ, extra=extra)
        if wn == 0:
            stamp(k, 2)
        k.c("---- epilogue")
        k.e("s_nop 7")
        k.e("s_barrier")
        k.e("v_lshlrev_b32 v1, 4, v0")
        k.e("v_add_u32 v1, %d, v1" % (wn * 10240))
        for c in range(0, NJ, 2):
            lab = k.newlab("cww")
            k.e("s_cmp_eq_u32 s5, %d" % ((c >> 1) & 3))
            k.e("s_cbranch_scc0 %s" % lab)
            k.e("ds_write_b128 v1, %s offset:%d" % (vr(cwreg(c), 4), c * 1024))
            k.e("ds_write_b128 v1, %s offset:%d" % (vr(cwreg(c + 1), 4), c * 1024 + 1024))
            k.label(lab)
        k.e("s_waitcnt lgkmcnt(0)")
        k.e("s_barrier")
        CSR = 48
        for c in range(NJ):
            k.e("ds_read_b128 %s, v1 offset:%d" % (vr(CSR + 4 * c, 4), c * 1024))
        k.e("s_waitcnt lgkmcnt(0)")
        k.lq = []
        k.e("v_mov_b32 v20, 1.0")
        k.e("v_mov_b32 v21, 1.0")
        k.e("s_mov_b32 s60, 0x%x" % f2u(c1))
        k.e("s_mov_b32 s61, 0x%x" % f2u(c1 * 0.044715))
        k.e("s_mov_b32 s62, 0")
        k.e("s_nop 7")
        for i in range(4):
            k.e("v_mul_f32 v22, s60, v%d" % (vR + i))
            k.e("v_mul_f32 v26, v%d, v%d" % (vR + i, vR + i))
            k.e("v_mul_f32 v24, s61, v%d" % (vR + i))
            k.e("v_mul_f32 v24, v24, v26")
            k.e("v_mov_b32 v23, v22")
            k.e("v_mov_b32 v25, v24")
            k.e("v_mov_b32 v27, v26")
            k.e("v_mov_b32 v36, v%d" % (vM + i))
            k.e("v_mov_b32 v37, v%d" % (vM + i))
            for f in range(NF):
                G, U = acc(i, 2 * f), acc(i, 2 * f + 1)
                T, P = 28, 32
                for h in range(2):
                    k.e("v_pk_fma_f32 %s, %s, v[36:37], %s" % (vr(G + 2 * h, 2), vr(CSR + 8 * f + 2 * h, 2), vr(G + 2 * h, 2)))
                    k.e("v_pk_fma_f32 %s, %s, v[36:37], %s" % (vr(U + 2 * h, 2), vr(CSR + 8 * f + 4 + 2 * h, 2), vr(U + 2 * h, 2)))
                for h in range(2):
                    k.e("v_pk_mul_f32 %s, %s, %s" % (vr(T + 2 * h, 2), vr(G + 2 * h, 2), vr(G + 2 * h, 2)))
                for h in range(2):
                    k.e("v_pk_fma_f32 %s, %s, v[24:25], v[22:23]" % (vr(T + 2 * h, 2), vr(T + 2 * h, 2)))
                for h in range(2):
                    k.e("v_pk_mul_f32 %s, %s, %s" % (vr(T + 2 * h, 2), vr(T + 2 * h, 2), vr(G + 2 * h, 2)))
                for r in range(4):
                    k.e("v_exp_f32 v%d, v%d" % (T + r, T + r))
                for h in range(2):
                    k.e("v_pk_mul_f32 %s, %s, %s" % (vr(P + 2 * h, 2), vr(G + 2 * h, 2), vr(U + 2 * h, 2)))
                for h in range(2):
                    k.e("v_pk_add_f32 %s, %s, v[20:21]" % (vr(T + 2 * h, 2), vr(T + 2 * h, 2)))
                for r in range(4):
                    k.e("v_rcp_f32 v%d, v%d" % (T + r, T + r))
                for h in range(2):
                    k.e("v_pk_mul_f32 %s, %s, v[26:27]" % (vr(P + 2 * h, 2), vr(P + 2 * h, 2)))
                for h in range(2):
                    k.e("v_pk_mul_f32 %s, %s, %s" % (vr(P + 2 * h, 2), vr(P + 2 * h, 2), vr(T + 2 * h, 2)))
                if f < 4:
                    R = acc(i, 2 * (f & ~1)) + 2 * (f & 1)
                else:
                    R = acc(i & ~1, 8) + 2 * (i & 1)
                k.e("v_cvt_pk_bf16_f32 v%d, v%d, v%d" % (R, P, P + 1))
                k.e("v_cvt_pk_bf16_f32 v%d, v%d, v%d" % (R + 1, P + 2, P + 3))
                if (f < 4 and f & 1) or (f == 4 and i & 1):
                    B0 = R - 2
                    k.e("s_nop 1")
                    k.e("v_permlane16_swap_b32 v%d, v%d" % (B0, B0 + 2))
                    k.e("v_permlane16_swap_b32 v%d, v%d" % (B0 + 1, B0 + 3))
                    if f < 4:
                        k.vm("buffer_store_dwordx4 %s, v14, %s, s62 offen offset:%d sc1" % (vr(B0, 4), sr(SO, 4), (f - 1) * 512))
                    else:
                        k.e("s_sub_u32 s63, s62, 147456")
                        k.vm("buffer_store_dwordx4 %s, v15, %s, s63 offen offset:%d sc1" % (vr(B0, 4), sr(SO, 4), 4 * 512))
            k.e("s_add_u32 s62, s62, 147456")
    k.label(lab_done)
    srd(k, 64, P_WS, FLG_OFF + 32768, 1024)
    k.e("s_lshr_b32 s60, s7, 8")
    k.e("s_lshl_b32 s60, s60, 5")
    k.e("s_add_u32 s60, s60, s9")
    k.e("s_lshl_b32 s60, s60, 2")
    k.e("v_mov_b32 v1, s60")
    k.e("v_mov_b32 v2, 1")
    k.e("s_waitcnt vmcnt(0)")
    k.e("s_barrier")
    lab_nf = k.newlab("nf")
    k.e("s_cmp_lg_u32 s4, 0")
    k.e("s_cbranch_scc1 %s" % lab_nf)
    k.e("s_mov_b64 exec, 1")
    k.e("buffer_store_dword v2, v1, s[64:67], 0 offen sc1")
    k.e("s_mov_b64 exec, -1")
    k.label(lab_nf)
    k.lq, k.vq = [], []
    stamp(k, 3)
    stamp_flush(k, 6)
    k.e("s_mov_b64 exec, -1")
    return gen_k4(k)


def gen_k4(k):
    SB = 40960
    NBUF = 4
    k.stamp_slot = 3
    stamp(k, 0)
    SA, SBd, SP, SO, SH, SD = 36, 40, 44, 48, 52, 64
    sKA, sKB, sMA, sMB = 56, 57, 58, 59
    k.e("s_and_b32 s9, s2, 3")
    k.e("s_bfe_u32 s60, s2, 0x10002")
    k.e("s_lshr_b32 s61, s2, 3")
    k.e("s_lshr_b32 s62, s61, 2")
    k.e("s_lshl_b32 s60, s60, 3")
    k.e("s_add_u32 s60, s60, s62")
    k.e("s_lshl_b32 s7, s60, 7")
    k.e("s_and_b32 s61, s61, 3")
    k.e("s_mul_i32 s8, s61, 144")
    k.e("s_lshl_b32 s10, s60, 2")
    k.e("s_add_u32 s10, s10, s61")
    k.e("s_and_b32 s11, s4, 3")
    k.e("s_lshr_b32 s5, s11, 1")
    k.e("s_and_b32 s6, s11, 1")
    k.e("v_and_b32 v16, 15, v0")
    k.e("v_lshrrev_b32 v17, 4, v0")
    lab_comp = k.newlab("comp")
    k.e("s_cmp_lt_u32 s4, 4")
    k.e("s_cbranch_scc1 %s" % lab_comp)
    srd(k, SA, P_WS, ACT_OFF, S * F * 2)
    srd(k, SBd, P_WD, 0, F * D * 2)
    vOA, vOB = 2, 8
    k.e("s_lshr_b32 s60, s7, 4")
    k.e("s_lshl_b32 s61, s11, 1")
    k.e("s_add_u32 s60, s60, s61")
    k.e("s_mul_i32 s60, s60, 147456")
    k.e("s_mul_i32 s61, s9, 36864")
    k.e("s_add_u32 s60, s60, s61")
    k.e("v_lshlrev_b32 v19, 4, v0")
    k.e("v_add_u32 v%d, s60, v19" % vOA)
    k.e("v_add_u32 v%d, 1024, v%d" % (vOA + 1, vOA))
    k.e("v_add_u32 v%d, %d, v%d" % (vOA + 2, 147456, vOA))
    k.e("v_add_u32 v%d, %d, v%d" % (vOA + 3, 147456 + 1024, vOA))
    k.e("s_mul_i32 s64, s11, 48")
    k.e("s_lshl_b32 s62, s8, 1")
    k.e("s_and_b32 s62, s62, 0xffffff80")
    k.e("s_mul_i32 s61, s9, 1152 * 1152")
    k.e("s_add_u32 s62, s62, s61")
    k.e("s_movk_i32 s63, 1152")
    for i in range(6):
        b_dma_addr(k, vOB + i, 64, 8 * i, 3, 63, 62, reg_row=32)
    k.e("s_mov_b32 s%d, 0" % sKA)
    k.e("s_mov_b32 s%d, 0" % sKB)
    k.e("s_lshl_b32 s%d, s11, 12" % sMA)
    k.e("s_mul_i32 s%d, s11, 6144" % sMB)
    k.e("s_add_u32 s%d, s%d, 16384" % (sMB, sMB))

    def dmaA(st):
        b = (st % NBUF) * SB
        tag = ("dma", st)
        g = []
        for i in range(4):
            x = [("s_add_u32 m0, s%d, %d" % (sMA, b + i * 1024), None), ("s_nop 0", None),
                 ("buffer_load_dwordx4 v%d, %s, s%d offen sc1 lds" % (vOA + i, sr(SA, 4), sKA), tag)]
            if i == 3:
                x.append(("s_add_u32 s%d, s%d, 2048" % (sKA, sKA), None))
            g.append(x)
        return g

    def dmaB(st):
        b = (st % NBUF) * SB
        tag = ("dma", st)
        g = []
        for i in range(6):
            x = [("s_add_u32 m0, s%d, %d" % (sMB, b + i * 1024), None), ("s_nop 0", None)]
            x.append(("buffer_load_dwordx4 v%d, %s, s%d offen lds" % (vOB + i, sr(SBd, 4), sKB), tag))
            if i == 5:
                x.append(("s_add_u32 s%d, s%d, %d" % (sKB, sKB, 64 * 1152), None))
            g.append(x)
        return g

    def dma(st):
        return dmaA(st) + dmaB(st)
    for st in range(NBUF - 1):
        issue_groups(k, dmaB(st))
    srd(k, 84, P_WS, FLG_OFF + 32768, 1024)
    k.e("s_lshr_b32 s60, s7, 8")
    k.e("s_lshl_b32 s60, s60, 7")
    k.e("s_lshl_b32 s61, s9, 5")
    k.e("s_add_u32 s60, s60, s61")
    k.e("v_mov_b32 v20, s60")
    lab_p = k.newlab("pollA")
    lab_g = k.newlab("goA")
    k.label(lab_p)
    k.e("buffer_load_dwordx4 v[24:27], v20, s[84:87], 0 offen sc1")
    k.e("buffer_load_dwordx4 v[28:31], v20, s[84:87], 0 offen offset:16 sc1")
    k.e("s_waitcnt vmcnt(0)")
    k.e("v_add3_u32 v24, v24, v25, v26")
    k.e("v_add3_u32 v24, v24, v27, v28")
    k.e("v_add3_u32 v24, v24, v29, v30")
    k.e("v_add_u32 v24, v24, v31")
    k.e("s_nop 0")
    k.e("v_readfirstlane_b32 s61, v24")
    k.e("s_cmp_ge_u32 s61, 8")
    k.e("s_cbranch_scc1 %s" % lab_g)
    k.e("s_sleep 2")
    k.e("s_branch %s" % lab_p)
    k.label(lab_g)
    k.vq = []
    for st in range(NBUF - 1):
        issue_groups(k, dmaA(st))
    k.wait_vm(("dma", 0))
    k.e("s_barrier")
    for s_ in range(17):
        k.wait_vm(("dma", s_ + 1))
        k.e("s_barrier")
        if s_ + NBUF - 1 < 18:
            issue_groups(k, dma(s_ + NBUF - 1))
    k.e("s_endpgm")
    k.label(lab_comp)
    k.lq, k.vq = [], []
    srd(k, SP, P_WS, PART_OFF, 64 * 16 * 18432)
    srd(k, SO, P_OUT, 0, S * D * 2)
    srd(k, SH, P_WS, H_OFF, S * D * 2)
    srd(k, SD, P_WS, FLG_OFF, 256 * 128)
    vA, vB = 2, 24
    ACC = 112
    afr = [[48, 52], [56, 60]]
    bring = [64 + 4 * q for q in range(8)]
    acc = lambda i, nj: ACC + (i * 9 + nj) * 4
    k.e("s_lshl_b32 s60, s4, 12")
    k.e("v_lshlrev_b32 v18, 4, v0")
    k.e("v_add_u32 v%d, s60, v18" % vA)
    for b_ in range(1, 4):
        k.e("v_add_u32 v%d, %d, v%d" % (vA + b_, b_ * SB, vA))
    k.e("s_bfe_u32 s62, s8, 0x20004")
    k.e("s_movk_i32 s63, 16384")
    b_rd_addr3(k, vB, 62, 63)
    for b_ in range(1, 4):
        for q in range(4):
            k.e("v_add_u32 v%d, %d, v%d" % (vB + 4 * b_ + q, b_ * SB, vB + q))

    def a_rd(buf, i, kk):
        return vA + buf, i * 2048 + kk * 1024

    def b_rd(buf, nj, j, kk):
        return vB + 4 * buf + (nj & 3), kk * 12288 + j * 3072 + (nj >> 2) * 128
    gemm_core(k, 18, NBUF, 2, acc, afr, bring, 6, a_rd, b_rd, lambda st: [], True, sub=2)
    stamp(k, 1)
    k.c("---- epilogue: cross-workgroup reduction")
    k.e("v_lshlrev_b32 v18, 4, v0")
    k.e("s_lshl_b32 s60, s10, 2")
    k.e("s_add_u32 s60, s60, s9")
    k.e("s_lshl_b32 s60, s60, 2")
    k.e("s_add_u32 s60, s60, s4")
    k.e("s_mul_i32 s60, s60, 9216")
    k.e("v_add_u32 v21, s60, v18")
    k.e("s_lshl_b32 s60, s10, 2")
    k.e("s_add_u32 s61, s60, s4")
    k.e("s_lshl_b32 s61, s61, 7")
    k.e("s_lshl_b32 s62, s9, 2")
    k.e("s_add_u32 s61, s61, s62")
    k.e("v_mov_b32 v23, s61")
    k.e("s_add_u32 s60, s60, s9")
    k.e("s_lshl_b32 s60, s60, 7")
    k.e("v_mov_b32 v26, s60")
    k.e("v_mov_b32 v24, 1")
    k.e("s_nop 7")
    k.e("s_barrier")
    lab_own = k.newlab("own")
    lab_j = k.newlab("j")
    k.e("s_cmp_eq_u32 s4, s9")
    k.e("s_cbranch_scc1 %s" % lab_own)
    for t in range(9):
        a = ACC + 8 * t
        for d in range(4):
            k.e("v_cvt_pk_bf16_f32 v%d, v%d, v%d" % (a + d, a + 2 * d, a + 2 * d + 1))
        sreg = "0"
        off = t * 1024
        if off >= 4096:
            k.e("s_movk_i32 s61, %d" % (off & ~4095))
            sreg = "s61"
        k.e("buffer_store_dwordx4 %s, v21, %s, %s offen offset:%d sc1" % (vr(a, 4), sr(SP, 4), sreg, off & 4095))
    k.e("s_barrier")
    k.e("s_branch %s" % lab_j)
    k.label(lab_own)
    for t in range(18):
        k.e("ds_write_b128 v18, %s offset:%d" % (vr(ACC + 4 * t, 4), t * 1024))
    k.e("s_waitcnt lgkmcnt(0)")
    k.e("s_barrier")
    k.e("s_branch L_%s_end" % k.name)
    k.label(lab_j)
    k.e("s_sub_u32 s62, s4, s9")
    k.e("s_sub_u32 s62, s62, 1")
    k.e("s_and_b32 s62, s62, 3")
    k.e("s_mul_i32 s63, s62, 6144")
    k.e("v_add_u32 v22, s63, v18")
    OWN = 48
    for t in range(6):
        k.lds("ds_read_b128 %s, v22 offset:%d" % (vr(OWN + 4 * t, 4), t * 1024), "own")
    k.e("s_lshl_b32 s60, s9, 5")
    k.e("s_add_u32 s60, s60, s7")
    k.e("v_add_u32 v19, s60, v16")
    k.e("v_mul_u32_u24 v19, 1152, v19")
    k.e("v_lshlrev_b32 v20, 3, v17")
    k.e("s_lshl_b32 s60, s8, 1")
    k.e("v_add3_u32 v19, v19, v20, s60")
    fl_lane(k, 44, 45)
    k.e("s_lshr_b32 s60, s7, 4")
    k.e("s_lshl_b32 s61, s9, 1")
    k.e("s_add_u32 s60, s60, s61")
    k.e("s_mul_i32 s60, s60, 18432")
    k.e("s_lshl_b32 s61, s8, 5")
    k.e("s_add_u32 s60, s60, s61")
    k.e("v_add_u32 v44, s60, v44")
    k.e("s_waitcnt vmcnt(0)")
    k.e("s_mov_b64 exec, 1")
    k.e("buffer_store_dword v24, v23, %s, 0 offen sc1" % sr(SD, 4))
    k.e("s_mov_b64 exec, -1")
    k.e("s_mul_i32 s62, s62, 6")
    HR = 96
    for t in range(6):
        k.e("s_add_u32 s60, s62, %d" % t)
        k.e("s_cmp_ge_u32 s60, 9")
        k.e("s_cselect_b32 s61, %d, 0" % (16 * 1152 - 9 * 32))
        k.e("s_cselect_b32 s69, %d, 0" % (18432 - 9 * 512))
        k.e("s_lshl_b32 s68, s60, 9")
        k.e("s_add_u32 s68, s68, s69")
        k.e("s_lshl_b32 s60, s60, 5")
        k.e("s_add_u32 s%d, s60, s61" % (84 + t))
        k.e("buffer_load_dwordx2 %s, v44, %s, s68 offen sc1" % (vr(HR + 2 * t, 2), sr(SH, 4)))
    stamp(k, 2)
    lab_poll = k.newlab("poll")
    lab_go = k.newlab("go")
    k.label(lab_poll)
    k.e("buffer_load_dwordx4 v[28:31], v26, %s, 0 offen sc1" % sr(SD, 4))
    k.e("s_waitcnt vmcnt(0)")
    k.e("v_add_u32 v28, v28, v29")
    k.e("v_add3_u32 v28, v28, v30, v31")
    k.e("s_nop 0")
    k.e("v_readfirstlane_b32 s61, v28")
    k.e("s_cmp_ge_u32 s61, 3")
    k.e("s_cbranch_scc1 %s" % lab_go)
    k.e("s_sleep 1")
    k.e("s_branch %s" % lab_poll)
    k.label(lab_go)
    if STAMP:
        k.e("s_memtime s[82:83]")
        k.e("s_waitcnt lgkmcnt(0)")
        k.lq = []
    k.e("s_lshl_b32 s60, s10, 4")
    k.e("s_add_u32 s60, s60, s9")
    k.e("s_mul_i32 s60, s60, 9216")
    k.e("s_lshr_b32 s63, s63, 1")
    k.e("s_add_u32 s60, s60, s63")
    k.e("v_add_u32 v21, s60, v18")
    k.vq = []
    for o in range(1, 4):
        k.e("s_add_u32 s61, s9, %d" % o)
        k.e("s_and_b32 s61, s61, 3")
        k.e("s_mul_i32 s61, s61, %d" % (4 * 9216))
        for t in range(3):
            k.vm("buffer_load_dwordx4 %s, v21, %s, s61 offen offset:%d sc1" % (vr(ACC + 12 * (o - 1) + 4 * t, 4), sr(SP, 4), t * 1024), ("p", o, t))
    k.wait_lds("own")
    for t in range(6):
        a = OWN + 4 * t
        for d in range(2):
            k.e("v_lshlrev_b32 v42, 16, v%d" % (HR + 2 * t + d))
            k.e("v_and_b32 v43, 0xffff0000, v%d" % (HR + 2 * t + d))
            k.e("v_add_f32 v%d, v%d, v42" % (a + 2 * d, a + 2 * d))
            k.e("v_add_f32 v%d, v%d, v43" % (a + 2 * d + 1, a + 2 * d + 1))
    for o in range(1, 4):
        for t in range(6):
            a = OWN + 4 * t
            k.wait_vm(("p", o, t >> 1))
            for d in range(2):
                x = ACC + 12 * (o - 1) + 2 * t + d
                k.e("v_lshlrev_b32 v42, 16, v%d" % x)
                k.e("v_and_b32 v43, 0xffff0000, v%d" % x)
                k.e("v_add_f32 v%d, v%d, v42" % (a + 2 * d, a + 2 * d))
                k.e("v_add_f32 v%d, v%d, v43" % (a + 2 * d + 1, a + 2 * d + 1))
            if o == 3:
                k.e("v_cvt_pk_bf16_f32 v%d, v%d, v%d" % (HR + 2 * t, a, a + 1))
                k.e("v_cvt_pk_bf16_f32 v%d, v%d, v%d" % (HR + 1 + 2 * t, a + 2, a + 3))
                k.vm("buffer_store_dwordx2 %s, v19, %s, s%d offen" % (vr(HR + 2 * t, 2), sr(SO, 4), 84 + t))
    stamp(k, 3)
    stamp_flush(k, 7)
    footer(k)
    return k, 256


def gen_k5():
    k = K("red")
    nwg = S * D // 8 // 256
    k.e("s_cmp_ge_u32 s2, %d" % nwg)
    k.e("s_cbranch_scc1 L_%s_end" % k.name)
    k.e("s_load_dwordx16 s[16:31], s[0:1], 0")
    k.e("s_load_dwordx4 s[32:35], s[0:1], 64")
    k.e("s_lshl_b32 s3, s2, 8")
    k.e("v_add_u32 v1, s3, v0")
    k.e("v_lshlrev_b32 v2, 4, v1")
    k.e("v_lshlrev_b32 v3, 5, v1")
    k.e("s_waitcnt lgkmcnt(0)")
    srd(k, 36, P_WS, H_OFF, S * D * 2)
    srd(k, 40, P_WS, PART_OFF, 4 * S * D * 4)
    srd(k, 44, P_OUT, 0, S * D * 2)
    k.e("buffer_load_dwordx4 v[4:7], v2, s[36:39], 0 offen")
    for p in range(4):
        k.e("s_mov_b32 s48, 0x%x" % (p * S * D * 4))
        k.e("buffer_load_dwordx4 %s, v3, s[40:43], s48 offen" % vr(8 + p * 8, 4))
        k.e("buffer_load_dwordx4 %s, v3, s[40:43], s48 offen offset:16" % vr(12 + p * 8, 4))
    k.e("s_waitcnt vmcnt(0)")
    for r in range(8):
        k.e("v_add_f32 v%d, v%d, v%d" % (8 + r, 8 + r, 16 + r))
        k.e("v_add_f32 v%d, v%d, v%d" % (24 + r, 24 + r, 32 + r))
    for r in range(8):
        k.e("v_add_f32 v%d, v%d, v%d" % (8 + r, 8 + r, 24 + r))
    for d in range(4):
        k.e("v_lshlrev_b32 v40, 16, v%d" % (4 + d))
        k.e("v_and_b32 v41, 0xffff0000, v%d" % (4 + d))
        k.e("v_add_f32 v%d, v%d, v40" % (8 + 2 * d, 8 + 2 * d))
        k.e("v_add_f32 v%d, v%d, v41" % (9 + 2 * d, 9 + 2 * d))
    for d in range(4):
        k.e("v_cvt_pk_bf16_f32 v%d, v%d, v%d" % (4 + d, 8 + 2 * d, 9 + 2 * d))
    k.e("buffer_store_dwordx4 v[4:7], v2, s[44:47], 0 offen")
    footer(k)
    return k, nwg


def gen_k2():
    k = K("ffn")
    k.stamp_slot = 1
    SB = 4096 + 24576
    NBUF = 5
    header(k, 256)
    stamp(k, 0)
    SA, SBd, SX, SH, SST, SCP, SCS = 36, 40, 44, 48, 52, 64, 96
    sKA, sKB, sMA, sMB = 56, 57, 58, 59
    k.e("s_and_b32 s9, s2, 3")
    k.e("s_lshr_b32 s60, s2, 2")
    k.e("s_lshl_b32 s7, s60, 5")
    k.e("s_mul_i32 s8, s9, 144")
    k.e("s_lshr_b32 s5, s4, 1")
    k.e("s_and_b32 s6, s4, 1")
    srd(k, SA, P_WS, O_OFF, S * D * 2)
    srd(k, SBd, P_WO, 0, D * D * 2)
    srd(k, SX, P_X, 0, S * D * 2)
    srd(k, SH, P_WS, H_OFF, S * D * 2)
    srd(k, SST, P_WS, ST_OFF, S * 32)
    lab_idle = k.newlab("idle")
    lab_p2done = k.newlab("p2done")
    k.e("s_cmp_ge_u32 s4, 4")
    k.e("s_cbranch_scc1 %s" % lab_idle)
    vOA, vOB = 2, 8
    vA, vB = 24, 28
    ACC = 112
    afr = [[48], [52]]
    bring = [56, 60, 64, 68, 72, 76]
    acc = lambda i, nj: ACC + nj * 4
    XR = 80
    CPR = 184
    k.e("v_and_b32 v16, 15, v0")
    k.e("v_lshrrev_b32 v17, 4, v0")
    k.e("s_lshl_b32 s60, s5, 4")
    k.e("s_add_u32 s60, s60, s7")
    k.e("v_add_u32 v31, s60, v16")
    k.e("s_movk_i32 s63, 1152")
    k.e("v_mul_lo_u32 v18, v31, s63")
    k.e("v_lshlrev_b32 v19, 3, v17")
    k.e("s_lshl_b32 s62, s8, 1")
    k.e("v_add3_u32 v32, v18, v19, s62")
    for nj in range(9):
        k.vm("buffer_load_dwordx2 %s, v32, %s, 0 offen offset:%d" % (vr(XR + 2 * nj, 2), sr(SX, 4), nj * 32), "x")
    k.e("s_lshr_b32 s60, s7, 4")
    k.e("s_add_u32 s60, s60, s5")
    k.e("s_mul_i32 s60, s60, 18432")
    k.e("s_lshl_b32 s61, s6, 10")
    k.e("s_add_u32 s61, s60, s61")
    k.e("v_lshlrev_b32 v19, 4, v0")
    k.e("v_add_u32 v%d, s61, v19" % vOA)
    fl_lane(k, 37, 18)
    k.e("s_lshl_b32 s61, s8, 5")
    k.e("s_add_u32 s60, s60, s61")
    k.e("v_add_u32 v37, s60, v37")
    k.e("s_mul_i32 s88, s4, 48")
    k.e("s_lshl_b32 s62, s8, 1")
    k.e("s_and_b32 s62, s62, 0xffffff80")
    k.e("s_movk_i32 s63, 1152")
    for i in range(6):
        b_dma_addr(k, vOB + i, 88, 8 * i, 3, 63, 62, reg_row=32)
    k.e("s_mov_b32 s%d, 0" % sKA)
    k.e("s_mov_b32 s%d, 0" % sKB)
    k.e("s_lshl_b32 s%d, s4, 10" % sMA)
    k.e("s_mul_i32 s%d, s4, 6144" % sMB)
    k.e("s_add_u32 s%d, s%d, 4096" % (sMB, sMB))

    def dma(st):
        b = (st % NBUF) * SB
        tag = ("dma", st)
        g = [[("s_add_u32 m0, s%d, %d" % (sMA, b), None), ("s_nop 0", None),
              ("buffer_load_dwordx4 v%d, %s, s%d offen lds" % (vOA, sr(SA, 4), sKA), tag)]]
        for i in range(6):
            x = [("s_add_u32 m0, s%d, %d" % (sMB, b + i * 1024), None), ("s_nop 0", None)]
            x.append(("buffer_load_dwordx4 v%d, %s, s%d offen lds" % (vOB + i, sr(SBd, 4), sKB), tag))
            if i == 5:
                x.append(("s_add_u32 s%d, s%d, 2048" % (sKA, sKA), None))
                x.append(("s_add_u32 s%d, s%d, %d" % (sKB, sKB, 64 * 1152), None))
            g.append(x)
        return g
    for st in range(NBUF - 1):
        issue_groups(k, dma(st))
    k.e("v_lshlrev_b32 v18, 4, v0")
    k.e("v_add_u32 v%d, s%d, v18" % (vA, sMA))
    for q in range(1, 3):
        k.e("v_add_u32 v%d, %d, v%d" % (vA + q, 2 * SB * q, vA))
    vB = 100
    k.e("s_bfe_u32 s62, s8, 0x20004")
    k.e("s_mul_i32 s63, s6, 12288")
    k.e("s_add_u32 s63, s63, 4096")
    b_rd_addr3(k, vB, 62, 63)
    for b_ in range(1, 3):
        for q in range(4):
            k.e("v_add_u32 v%d, %d, v%d" % (vB + 4 * b_ + q, 2 * b_ * SB, vB + q))

    def a_rd(buf, i):
        return vA + (buf >> 1), (buf & 1) * SB

    def b_rd(buf, nj, j):
        return vB + 4 * (buf >> 1) + (nj & 3), (buf & 1) * SB + j * 3072 + (nj >> 2) * 128
    stamp(k, 1)
    gemm_core(k, 9, NBUF, 1, acc, afr, bring, 4, a_rd, b_rd, dma, True)
    stamp(k, 2)
    k.c("---- epilogue")
    k.e("s_nop 7")
    k.e("s_nop 7")
    k.e("s_barrier")
    k.wait_vm("x")
    k.e("s_mul_i32 s60, s5, 9216")
    k.e("v_lshlrev_b32 v18, 4, v0")
    k.e("v_add_u32 v19, s60, v18")
    lab_recv = k.newlab("recv")
    k.e("s_cmp_eq_u32 s6, 0")
    k.e("s_cbranch_scc1 %s" % lab_recv)
    for nj in range(9):
        k.lds("ds_write_b128 v19, %s offset:%d" % (vr(acc(0, nj), 4), nj * 1024))
    k.wait_lds_all()
    k.e("s_barrier")
    k.e("s_branch %s" % lab_p2done)
    k.label(lab_recv)
    k.e("s_barrier")
    R = 48
    RX = 148
    for nj in range(9):
        k.lds("ds_read_b128 %s, v19 offset:%d" % (vr(RX + nj * 4, 4), nj * 1024), ("x", nj))
    k.e("v_mov_b32 v40, 0")
    k.e("v_mov_b32 v41, 0")
    for nj in range(9):
        k.wait_lds(("x", nj))
        a = acc(0, nj)
        for r in range(4):
            k.e("v_add_f32 v%d, v%d, v%d" % (a + r, a + r, RX + nj * 4 + r))
        for d in range(2):
            k.e("v_lshlrev_b32 v42, 16, v%d" % (XR + 2 * nj + d))
            k.e("v_and_b32 v43, 0xffff0000, v%d" % (XR + 2 * nj + d))
            k.e("v_add_f32 v%d, v%d, v42" % (a + 2 * d, a + 2 * d))
            k.e("v_add_f32 v%d, v%d, v43" % (a + 2 * d + 1, a + 2 * d + 1))
        k.e("v_cvt_pk_bf16_f32 v%d, v%d, v%d" % (XR + 2 * nj, a, a + 1))
        k.e("v_cvt_pk_bf16_f32 v%d, v%d, v%d" % (XR + 2 * nj + 1, a + 2, a + 3))
        if nj == 8:
            k.e("s_movk_i32 s60, 4096")
        k.vm("buffer_store_dwordx2 %s, v37, %s, %s offen offset:%d" % (vr(XR + 2 * nj, 2), sr(SH, 4), "s60" if nj == 8 else "0", (nj * 512) & 4095) + " sc1")
        for d in range(2):
            k.e("v_lshlrev_b32 v42, 16, v%d" % (XR + 2 * nj + d))
            k.e("v_and_b32 v43, 0xffff0000, v%d" % (XR + 2 * nj + d))
            k.e("v_add_f32 v40, v40, v42")
            k.e("v_fmac_f32 v41, v42, v42")
            k.e("v_add_f32 v40, v40, v43")
            k.e("v_fmac_f32 v41, v43, v43")
    k.e("v_xor_b32 v44, 16, v0")
    k.e("v_lshlrev_b32 v44, 2, v44")
    k.e("v_xor_b32 v45, 32, v0")
    k.e("v_lshlrev_b32 v45, 2, v45")
    for a in (44, 45):
        k.e("ds_bpermute_b32 v42, v%d, v40" % a)
        k.e("ds_bpermute_b32 v43, v%d, v41" % a)
        k.e("s_waitcnt lgkmcnt(0)")
        k.e("v_add_f32 v40, v40, v42")
        k.e("v_add_f32 v41, v41, v43")
    k.e("v_lshlrev_b32 v42, 5, v31")
    k.e("s_lshl_b32 s60, s9, 3")
    k.e("v_add_u32 v42, s60, v42")
    k.e("s_mov_b64 exec, 0xffff")
    k.e("buffer_store_dwordx2 v[40:41], v42, %s, 0 offen sc1" % sr(SST, 4))
    k.e("s_mov_b64 exec, -1")
    stamp(k, 3)
    stamp_flush(k, 6)
    k.e("s_mov_b64 exec, -1")
    k.e("s_branch %s" % lab_p2done)
    k.label(lab_idle)
    for _ in range(11):
        k.e("s_barrier")
    k.label(lab_p2done)
    srd(k, 64, P_WS, FLG_OFF + 32768 + 1024, 1024)
    k.e("s_lshl_b32 s60, s2, 2")
    k.e("v_mov_b32 v1, s60")
    k.e("v_mov_b32 v2, 1")
    k.e("s_waitcnt vmcnt(0) lgkmcnt(0)")
    k.e("s_barrier")
    lab_nf = k.newlab("nf")
    k.e("s_cmp_lg_u32 s4, 0")
    k.e("s_cbranch_scc1 %s" % lab_nf)
    k.e("s_mov_b64 exec, 1")
    k.e("buffer_store_dword v2, v1, s[64:67], 0 offen sc1")
    k.e("s_mov_b64 exec, -1")
    k.label(lab_nf)
    k.lq, k.vq = [], []
    return gen_k3(k)


def gen_k1():
    k = K("qkv")
    WS_, NW = 24576, 5
    XS_, NX = 10240, 3
    XB = WS_ * NW
    QP = 976
    STO = 80 * QP
    header(k, 256)
    stamp(k, 0)
    SX, SW, SO, SG, SCP = 36, 40, 44, 48, 52
    sKW, sKX, sMW, sMX = 56, 57, 58, 59
    k.e("s_and_b32 s9, s2, 7")
    k.e("s_lshr_b32 s10, s2, 3")
    srd(k, SX, P_X, 0, S * D * 2)
    srd(k, SW, P_WQKV, 0, D * 3 * D * 2)
    srd(k, SO, P_WS, O_OFF, S * D * 2)
    k.e("v_and_b32 v16, 15, v0")
    k.e("v_lshrrev_b32 v17, 4, v0")
    vO = 2
    k.e("s_mul_i32 s64, s4, 24")
    k.e("s_mul_i32 s65, s9, 144")
    k.e("s_and_b32 s62, s65, 0xffffff80")
    k.e("s_movk_i32 s63, 3456")
    for t in range(3):
        b_dma_addr(k, vO + t, 64, 8 * t, 2, 63, 62, reg_col=1152)
    k.e("s_lshl_b32 s60, s10, 6")
    k.e("s_lshl_b32 s61, s4, 4")
    k.e("s_add_u32 s60, s60, s61")
    k.e("s_sub_u32 s60, s60, 16")
    k.e("v_add_u32 v18, s60, v16")
    k.e("s_movk_i32 s63, 1152")
    k.e("v_mul_lo_u32 v18, v18, s63")
    k.e("v_lshlrev_b32 v19, 4, v17")
    k.e("v_add_u32 v%d, v18, v19" % (vO + 3))
    k.e("v_add_u32 v%d, 64, v%d" % (vO + 4, vO + 3))
    k.e("s_mov_b32 s%d, 0" % sKW)
    k.e("s_mov_b32 s%d, 0" % sKX)
    k.e("s_mul_i32 s%d, s4, 3072" % sMW)
    k.e("s_lshl_b32 s%d, s4, 11" % sMX)

    def dmaW(st):
        b = (st % NW) * WS_
        g = []
        for t in range(3):
            x = [("s_add_u32 m0, s%d, %d" % (sMW, b + t * 1024), None), ("s_nop 0", None),
                 ("buffer_load_dwordx4 v%d, %s, s%d offen lds" % (vO + t, sr(SW, 4), sKW), ("dma", st))]
            if t == 2:
                x.append(("s_add_u32 s%d, s%d, %d" % (sKW, sKW, 32 * 3456), None))
            g.append(x)
        return g

    def dmaX(xs):
        b = XB + (xs % NX) * XS_
        g = []
        for t in range(2):
            x = [("s_add_u32 m0, s%d, %d" % (sMX, b + t * 1024), None), ("s_nop 0", None),
                 ("buffer_load_dwordx4 v%d, %s, s%d offen lds" % (vO + 3 + t, sr(SX, 4), sKX), ("dma", 2 * xs))]
            if t == 1:
                x.append(("s_add_u32 s%d, s%d, 128" % (sKX, sKX), None))
            g.append(x)
        return g
    lab_nx = k.newlab("nx")
    k.e("s_cmp_ge_u32 s4, 5")
    k.e("s_cbranch_scc1 %s" % lab_nx)
    issue_groups(k, dmaX(0) + dmaX(1))
    k.label(lab_nx)
    issue_groups(k, dmaW(0) + dmaW(1) + dmaW(2) + dmaW(3))
    srd(k, 84, P_WS, FLG_OFF, 32768 + 2048)
    k.e("s_lshl_b32 s60, s2, 7")
    k.e("v_mov_b32 v8, s60")
    k.e("s_lshl_b32 s60, s2, 2")
    k.e("s_add_u32 s60, s60, 32768")
    k.e("v_mov_b32 v9, s60")
    for r in range(4):
        k.e("v_mov_b32 v%d, 0" % (20 + r))
    k.e("s_mov_b64 exec, 1")
    k.e("buffer_store_dwordx4 v[20:23], v8, s[84:87], 0 offen")
    k.e("buffer_store_dword v20, v9, s[84:87], 0 offen")
    k.e("buffer_store_dword v20, v9, s[84:87], 0 offen offset:1024")
    k.e("s_mov_b64 exec, -1")
    k.e("s_nop 1")
    if "newtouch" not in EXP:
        touch(k, 96, P_WQKV, D * 3 * D * 2, 2048, 8, 18, 1)
        touch(k, 96, P_X, S * D * 2, 2048, 8, 18, 1)
    else:
        k.e("s_lshl_b32 s60, s10, 6")
        k.e("s_sub_u32 s60, s60, 16")
        k.e("s_mul_i32 s60, s60, 1152")
        k.e("s_mul_i32 s61, s4, 90 * 128")
        k.e("s_add_u32 s60, s60, s61")
        k.e("v_lshlrev_b32 v18, 7, v0")
        k.e("v_add_u32 v18, s60, v18")
        k.e("v_add_u32 v19, 8192, v18")
        k.vm("buffer_load_dword v1, v18, %s, 0 offen" % sr(SX, 4), "touch")
        k.e("s_mov_b64 exec, 0x3ffffff")
        k.vm("buffer_load_dword v1, v19, %s, 0 offen" % sr(SX, 4), "touch")
        k.e("s_mov_b64 exec, -1")
        k.e("s_mul_i32 s60, s4, 14")
        k.e("v_add_u32 v18, s60, v0")
        k.e("v_mul_u32_u24 v19, 10923, v18")
        k.e("v_lshrrev_b32 v19, 16, v19")
        k.e("v_mul_u32_u24 v20, 6, v19")
        k.e("v_sub_u32 v18, v18, v20")
        k.e("v_lshrrev_b32 v20, 1, v18")
        k.e("v_mul_u32_u24 v20, 1152, v20")
        k.e("v_and_b32 v18, 1, v18")
        k.e("v_lshlrev_b32 v18, 7, v18")
        k.e("s_mul_i32 s60, s10, 18")
        k.e("v_add_u32 v19, s60, v19")
        k.e("v_mul_u32_u24 v19, 3456, v19")
        k.e("s_mul_i32 s60, s9, 144")
        k.e("s_and_b32 s60, s60, 0xffffff80")
        k.e("v_add3_u32 v18, v18, v19, v20")
        k.e("v_add_u32 v18, s60, v18")
        k.e("s_mov_b64 exec, 0x3fff")
        k.vm("buffer_load_dword v1, v18, %s, 0 offen" % sr(SW, 4), "touch")
        k.e("s_mov_b64 exec, -1")
    touch(k, 96, P_WO, D * D * 2, 2048, 8, 18, 1)
    CX = 144
    lab_cs3 = k.newlab("cs3")
    k.e("s_mul_i32 s13, s2, 3")
    k.e("s_add_u32 s13, s13, s4")
    k.e("s_sub_u32 s13, s13, 5")
    k.e("s_mul_i32 s14, s13, 3641")
    k.e("s_lshr_b32 s14, s14, 16")
    k.e("s_mul_i32 s15, s14, 18")
    k.e("s_sub_u32 s15, s13, s15")
    k.e("s_lshl_b32 s60, s4, 5")
    k.e("s_add_u32 s61, s60, 160")
    k.e("s_add_u32 s62, s60, 320")
    k.e("s_sub_u32 s60, s4, 5")
    k.e("s_lshl_b32 s60, s60, 6")
    k.e("s_add_u32 s63, s60, 32")
    k.e("s_min_u32 s63, s63, 128")
    k.e("s_cmp_lt_u32 s4, 5")
    k.e("s_cselect_b32 s11, s61, s60")
    k.e("s_cselect_b32 s12, s62, s63")
    k.e("s_cselect_b32 s66, 8192, 0")
    k.e("s_cselect_b32 s67, 16384, 0")
    k.e("s_cselect_b32 s68, 160, 0")
    k.e("s_cselect_b32 s69, 320, 0")
    vB0, vB1, vA, vS = 20, 25, 30, 33
    swap23_lane_rowpos(k, 8, 0, 18, 19)
    k.e("v_bfe_u32 v9, v8, 1, 2")
    k.e("v_and_b32 v10, 1, v8")
    k.e("v_lshlrev_b32 v8, 8, v8")
    k.e("v_and_b32 v11, 3, v0")
    k.e("v_lshlrev_b32 v11, 3, v11")
    k.e("s_and_b32 s65, s65, 127")
    for (vd, sreg, sreb, ssub) in ((vB0, 11, 66, 68), (vB1, 12, 67, 69)):
        k.e("s_sub_u32 s60, s%d, s%d" % (sreg, ssub))
        k.e("s_add_u32 s60, s60, s65")
        k.e("v_add_u32 v18, s60, v11")
        k.e("v_bfe_u32 v19, v18, 7, 1")
        k.e("v_xor_b32 v19, v19, v10")
        k.e("v_lshlrev_b32 v19, 7, v19")
        k.e("v_bfe_u32 v12, v18, 5, 2")
        k.e("v_xor_b32 v12, v12, v9")
        k.e("v_lshlrev_b32 v12, 5, v12")
        k.e("v_and_b32 v18, 31, v18")
        k.e("v_add3_u32 v18, v18, v19, v12")
        k.e("v_add3_u32 v%d, v18, v8, s%d" % (vd, sreb))
    k.e("v_lshlrev_b32 v%d, 4, v0" % vA)
    k.e("v_add_u32 v%d, %d, v%d" % (vA, XB, vA))
    k.e("v_add_u32 v%d, s%d, v%d" % (vS, sMX, vA))
    for b in range(1, NW):
        for v in (vB0, vB1):
            k.e("v_add_u32 v%d, %d, v%d" % (v + b, b * WS_, v))
    for b in range(1, NX):
        for v in (vA, vS):
            k.e("v_add_u32 v%d, %d, v%d" % (v + b, b * XS_, v))
    ONES = 36
    for r in range(4):
        k.e("v_mov_b32 v%d, 0x3f803f80" % (ONES + r))
    ACC = 40
    acc = lambda sl, mi: ACC + (sl * 6 + mi) * 4
    SACC = 88
    AF = [[96 + 4 * mi for mi in range(6)], [120 + 4 * mi for mi in range(6)]]
    BF = [[216, 220], [224, 228]]
    lab_q = k.newlab("qpath")
    lab_post = k.newlab("post")
    k.e("s_cmp_ge_u32 s4, 5")
    k.e("s_cbranch_scc1 %s" % lab_q)
    for path in range(2):
        if path == 1:
            k.e("s_branch %s" % lab_post)
            k.label(lab_q)
        k.lq, k.vq = [], []
        mis = [0, 1, 2, 3, 4] if path == 0 else [1, 2, 3, 4]
        k.vq = [("dma", 0)] * 3 + [("dma", 1)] * 3 + [("dma", 2)] * 3 + [("dma", 3)] * 3 + ["z"] * 6
        def rdl(s):
            xs, kk = divmod(s, 2)
            out = []
            for sl in range(2):
                for j in range(2):
                    out.append("ds_read_b64_tr_b16 %s, v%d offset:%d" % (vr(BF[s % 2][sl] + 2 * j, 2), (vB0, vB1)[sl] + s % NW, j * 2048))
            for mi in mis:
                out.append("ds_read_b128 %s, v%d offset:%d" % (vr(AF[s % 2][mi], 4), vA + xs % NX, (mi * 2 + kk) * 1024))
            if path == 0:
                out.append("ds_read_b128 %s, v%d offset:%d" % (vr(AF[s % 2][5], 4), vS + xs % NX, kk * 1024))
            return out
        if path == 0 and "k1fine" not in EXP:
            stamp(k, 1)
        k.wait_vm(("dma", 0))
        k.e("s_barrier")
        for x in rdl(0):
            k.lds(x, ("f", 0))
        for s in range(18):
            k.c("---- step %d" % s)
            if STAMP and "k1fine" in EXP and path == 0 and s in (1, 6):
                k.e("s_memtime s[%d:%d]" % ((72, 73) if s == 1 else (74, 75)))
            groups = []
            reads = []
            if s + 1 < 18:
                k.wait_vm(("dma", s + 1))
                k.e("s_barrier")
                if path == 0 and s % 2 == 0 and s // 2 + 2 < 9:
                    groups += dmaX(s // 2 + 2)
                if s + NW - 1 < 18:
                    groups += dmaW(s + NW - 1)
                reads = rdl(s + 1)
            if False:
                groups.append([("buffer_load_dwordx4 %s, v7, %s, s88 offen" % (vr(CX + 4 * s, 4), sr(SG, 4)), "cs"),
                               ("s_add_u32 s88, s88, 9216", None)])
            k.wait_lds(("f", s))
            mf = []
            for sl in range(2):
                for mi in mis + [5]:
                    a = acc(sl, mi)
                    cc = "0" if s == 0 else vr(a, 4)
                    bop = vr(AF[s % 2][mi], 4) if mi < 5 else vr(ONES, 4)
                    mf.append("v_mfma_f32_16x16x32_bf16 %s, %s, %s, %s" % (vr(a, 4), vr(BF[s % 2][sl], 4), bop, cc))
            if path == 0:
                sf = vr(AF[s % 2][5], 4)
                mf.append("v_mfma_f32_16x16x32_bf16 %s, %s, %s, %s" % (vr(SACC, 4), vr(ONES, 4), sf, "0" if s == 0 else vr(SACC, 4)))
                mf.append("v_mfma_f32_16x16x32_bf16 %s, %s, %s, %s" % (vr(SACC + 4, 4), sf, sf, "0" if s == 0 else vr(SACC + 4, 4)))
            for n, m in enumerate(mf):
                k.e(m)
                if n < len(reads):
                    k.lds(reads[n], ("f", s + 1))
                g0 = len(mf) - len(groups)
                if n >= g0:
                    issue_groups(k, [groups[n - g0]])
    k.label(lab_post)
    k.lq, k.vq = [], []
    if "k1fine" in EXP:
        k.e("s_waitcnt lgkmcnt(0)")
        stamp(k, 3)
        stamp_flush(k, 6)
        k.e("s_mov_b64 exec, -1")
    else:
        stamp(k, 2)
    k.e("s_nop 7")
    k.e("s_nop 7")
    k.e("s_barrier")
    k.e("v_and_b32 v18, 3, v0")
    k.e("v_cmp_eq_u32 vcc, 1, v18")
    k.e("v_mov_b32 v19, v%d" % (SACC + 4))
    k.e("s_nop 0")
    k.e("v_cndmask_b32 v19, v19, v%d, vcc" % (SACC + 5))
    k.e("v_cmp_eq_u32 vcc, 2, v18")
    k.e("s_nop 1")
    k.e("v_cndmask_b32 v19, v19, v%d, vcc" % (SACC + 6))
    k.e("v_cmp_eq_u32 vcc, 3, v18")
    k.e("s_nop 1")
    k.e("v_cndmask_b32 v19, v19, v%d, vcc" % (SACC + 7))
    k.e("s_mov_b32 s60, 0x%x" % f2u(1.0 / 576.0))
    k.e("s_mov_b32 s61, 0x%x" % f2u(1e-5))
    k.e("v_mul_f32 v8, s60, v%d" % SACC)
    k.e("v_mul_f32 v19, s60, v19")
    k.e("v_fma_f32 v19, -v8, v8, v19")
    k.e("v_max_f32 v19, 0, v19")
    k.e("v_add_f32 v19, s61, v19")
    k.e("v_rsq_f32 v9, v19")
    k.e("v_sub_f32 v8, 0, v8")
    k.e("v_lshrrev_b32 v18, 2, v16")
    k.e("v_cmp_eq_u32 vcc, v18, v17")
    k.e("s_lshl_b32 s60, s4, 7")
    k.e("v_lshlrev_b32 v18, 3, v16")
    k.e("v_add_u32 v18, s60, v18")
    k.e("v_add_u32 v18, %d, v18" % STO)
    k.e("s_and_saveexec_b64 s[60:61], vcc")
    k.e("ds_write_b64 v18, v[8:9]")
    k.e("s_mov_b64 exec, -1")
    k.e("s_waitcnt lgkmcnt(0)")
    k.e("s_barrier")
    k.e("v_lshlrev_b32 v18, 3, v16")
    k.e("v_add_u32 v18, %d, v18" % STO)
    for mi in range(5):
        k.lds("ds_read_b64 %s, v18 offset:%d" % (vr(96 + 2 * mi, 2), mi * 128), "st")
    for sl, sreg in ((0, 11), (1, 12)):
        k.e("s_lshl_b32 s60, s%d, 1" % sreg)
        k.e("v_mul_u32_u24 v18, %d, v16" % QP)
        k.e("v_lshlrev_b32 v19, 4, v17")
        k.e("v_add3_u32 v%d, v18, v19, s60" % (8 + sl))
    k.wait_lds("st")
    for sl in range(2):
        cw = acc(sl, 5)
        for mi in range(5):
            a = acc(sl, mi)
            for r in range(4):
                k.e("v_fma_f32 v%d, v%d, v%d, v%d" % (a + r, 96 + 2 * mi, cw + r, a + r))
            for r in range(4):
                k.e("v_mul_f32 v%d, v%d, v%d" % (a + r, 97 + 2 * mi, a + r))
            k.e("v_cvt_pk_bf16_f32 v18, v%d, v%d" % (a, a + 1))
            k.e("v_cvt_pk_bf16_f32 v19, v%d, v%d" % (a + 2, a + 3))
            k.e("v_lshlrev_b32 v%d, 16, v18" % a)
            k.e("v_and_b32 v%d, 0xffff0000, v18" % (a + 1))
            k.e("v_lshlrev_b32 v%d, 16, v19" % (a + 2))
            k.e("v_and_b32 v%d, 0xffff0000, v19" % (a + 3))
            k.lds("ds_write_b128 v%d, %s offset:%d" % (8 + sl, vr(a, 4), mi * 16 * QP))
    k.wait_lds_all()
    k.e("s_barrier")
    k.e("v_lshrrev_b32 v18, 3, v0")
    k.e("s_lshl_b32 s60, s4, 3")
    k.e("v_add_u32 v18, s60, v18")
    k.e("v_bfe_u32 v19, v0, 1, 2")
    k.e("v_and_b32 v26, 1, v0")
    k.e("v_mul_u32_u24 v20, %d, v18" % QP)
    k.e("v_mul_u32_u24 v21, 72, v19")
    k.e("v_add_u32 v20, v20, v21")
    k.e("v_mul_u32_u24 v21, %d, v26" % (8 * QP))
    k.e("v_sub_u32 v27, v20, v21")
    k.e("v_add_u32 v27, %d, v27" % (10 * QP))
    Q = 32
    KV = 52
    L = 124
    O = 128
    for d in range(9):
        k.lds("ds_read_b64 %s, v20 offset:%d" % (vr(Q + 2 * d, 2), 16 * QP + d * 8), "q")
    seq = [("k", j) for j in range(4)] + [("v", j) for j in range(4)]

    def rdkv(n):
        kind, j = seq[n]
        col = 320 if kind == "k" else 640
        for d in range(9):
            k.lds("ds_read_b64 %s, v27 offset:%d" % (vr(KV + (n % 4) * 18 + 2 * d, 2), (3 - j) * 2 * QP + col + d * 8), seq[n])
    rdkv(0)
    rdkv(1)
    rdkv(2)
    for j in range(4):
        rdkv(j + 3)
        k.wait_lds(("k", j))
        b = KV + j * 18
        k.e("v_mul_f32 v%d, v%d, v%d" % (L + j, Q, b))
        k.e("v_mul_f32 v24, v%d, v%d" % (Q + 1, b + 1))
        for d in range(2, 18, 2):
            k.e("v_fmac_f32 v%d, v%d, v%d" % (L + j, Q + d, b + d))
            k.e("v_fmac_f32 v24, v%d, v%d" % (Q + d + 1, b + d + 1))
        k.e("v_add_f32 v%d, v%d, v24" % (L + j, L + j))
    rdkv(7)
    k.e("s_mov_b32 s60, 0x%x" % f2u(18 ** -0.5))
    k.e("s_lshl_b32 s61, s10, 6")
    k.e("v_add_u32 v22, s61, v18")
    k.e("v_lshlrev_b32 v25, 3, v26")
    k.e("v_sub_u32 v25, v22, v25")
    k.e("v_mov_b32 v23, 0x%x" % f2u(-1e9))
    for j in range(4):
        k.e("v_mul_f32 v%d, s60, v%d" % (L + j, L + j))
    for j in range(4):
        k.e("v_cmp_le_i32 vcc, %d, v25" % (2 * j))
        k.e("s_nop 1")
        k.e("v_cndmask_b32 v%d, v23, v%d, vcc" % (L + j, L + j))
    k.e("v_max3_f32 v24, v%d, v%d, v%d" % (L, L + 1, L + 2))
    k.e("v_max_f32 v24, v24, v%d" % (L + 3))
    k.e("s_nop 1")
    k.e("v_max_f32 v24, v24, v24 quad_perm:[1,0,3,2] row_mask:0xf bank_mask:0xf")
    k.e("s_mov_b32 s60, 0x%x" % f2u(1.4426950408889634))
    for j in range(4):
        k.e("v_sub_f32 v%d, v%d, v24" % (L + j, L + j))
    for j in range(4):
        k.e("v_mul_f32 v%d, s60, v%d" % (L + j, L + j))
    for j in range(4):
        k.e("v_exp_f32 v%d, v%d" % (L + j, L + j))
    k.e("s_nop 0")
    k.e("v_add_f32 v24, v%d, v%d" % (L, L + 1))
    k.e("v_add_f32 v25, v%d, v%d" % (L + 2, L + 3))
    k.e("v_add_f32 v24, v24, v25")
    k.e("s_nop 1")
    k.e("v_add_f32 v24, v24, v24 quad_perm:[1,0,3,2] row_mask:0xf bank_mask:0xf")
    k.e("v_rcp_f32 v24, v24")
    k.e("s_nop 0")
    for j in range(4):
        k.e("v_mul_f32 v%d, v%d, v24" % (L + j, L + j))
    for j in range(4):
        k.wait_lds(("v", j))
        b = KV + j * 18
        for d in range(18):
            if j == 0:
                k.e("v_mul_f32 v%d, v%d, v%d" % (O + d, L, b + d))
            else:
                k.e("v_fmac_f32 v%d, v%d, v%d" % (O + d, L + j, b + d))
    k.e("s_nop 1")
    for d in range(18):
        k.e("v_add_f32 v%d, v%d, v%d quad_perm:[1,0,3,2] row_mask:0xf bank_mask:0xf" % (KV + d, O + d, O + d))
    for d in range(9):
        k.e("v_cvt_pk_bf16_f32 v%d, v%d, v%d" % (Q + d, KV + 2 * d, KV + 2 * d + 1))
    k.e("v_cmp_eq_u32 vcc, 1, v26")
    k.e("v_lshrrev_b32 v23, 4, v22")
    k.e("v_mul_u32_u24 v23, 18432, v23")
    k.e("v_and_b32 v24, 15, v22")
    k.e("v_lshlrev_b32 v24, 4, v24")
    k.e("v_add_u32 v23, v23, v24")
    k.e("v_mul_u32_u24 v21, 18, v19")
    k.e("s_mul_i32 s60, s9, 72")
    k.e("v_add_u32 v21, s60, v21")
    k.e("v_lshlrev_b32 v24, 3, v26")
    k.e("v_add_u32 v21, v21, v24")
    for d in range(5):
        k.e("v_cndmask_b32 v%d, v%d, v%d, vcc" % (O + d, Q + d, Q + d + 4))
        k.e("v_add_u32 v24, %d, v21" % (2 * d))
        k.e("v_lshrrev_b32 v25, 3, v24")
        k.e("v_lshlrev_b32 v25, 8, v25")
        k.e("v_and_b32 v24, 7, v24")
        k.e("v_lshlrev_b32 v24, 1, v24")
        k.e("v_add3_u32 v%d, v23, v24, v25" % (O + 8 + d))
        k.e("buffer_store_dword v%d, v%d, %s, 0 offen" % (O + d, O + 8 + d, sr(SO, 4)))
    if "k1fine" not in EXP:
        stamp(k, 3)
        stamp_flush(k, 6)
    k.label(lab_cs3)
    footer(k)
    return k, 256


def main():
    ks = [
        (gen_k1, 512, 5 * 24576 + 3 * 10240, 232),
        (gen_k2, 512, 4 * 40960, 256),
    ]
    hdr = open("sequential_preLN__sliding_local_dilated__geglu_ffn__prompt.s.ref").read().split("\n")
    out = []
    for line in hdr:
        if line.startswith("; Override") or line.startswith("; grid=") or line.startswith("; @launch"):
            continue
        if not line.startswith(";"):
            break
        out.append(line)
    body = []
    desc = []
    for fn, block, lds, nv in ks:
        k, nwg = fn()
        name = k.name + "_kernel"
        out.append("; @launch kernel=%s grid=(%d,1,1) block=(%d,1,1) lds=%d" % (name, nwg, block, lds))
        body += [".globl %s" % name, ".p2align 8", ".type %s,@function" % name, "%s:" % name] + k.L
        desc += [".p2align 6", ".amdhsa_kernel %s" % name,
                 "  .amdhsa_next_free_vgpr %d" % nv, "  .amdhsa_next_free_sgpr 102",
                 "  .amdhsa_accum_offset %d" % nv,
                 "  .amdhsa_group_segment_fixed_size 0", "  .amdhsa_kernarg_size 80",
                 "  .amdhsa_user_sgpr_count 2", "  .amdhsa_user_sgpr_kernarg_segment_ptr 1",
                 "  .amdhsa_system_sgpr_workgroup_id_x 1", ".end_amdhsa_kernel"]
    out += ['.amdgcn_target "amdgcn-amd-amdhsa--gfx950"', ".text"] + body + ['.section .rodata,"a"'] + desc
    path = sys.argv[1] if len(sys.argv) > 1 else "sequential_preLN__sliding_local_dilated__geglu_ffn__prompt.s"
    open(path, "w").write("\n".join(out) + "\n")


main()
```

```python
import sys, struct

S, D, F = 2048, 576, 4608
O_OFF = 0x0000000
H_OFF = 0x0400000
ST_OFF = 0x0800000
CP_OFF = 0x0A00000
CS_OFF = 0x0860000
FLG_OFF = 0x0880000
ACT_OFF = 0x1000000
PART_OFF = 0x3000000


def f2u(x):
    return struct.unpack("<I", struct.pack("<f", x))[0]


EXP = __import__("os").environ.get("EXP", "")


class K:
    def __init__(s, name):
        s.name = name
        s.L = []
        s.lq = []
        s.vq = []
        s.nlab = 0

    def e(s, t):
        if "nomfma" in EXP and t.startswith("v_mfma"):
            return
        if "noldsrd" in EXP and (t.startswith("ds_read_b128") or t.startswith("ds_read_b64_tr")):
            return
        if "nodma" in EXP and t.endswith(" lds"):
            return
        if "nox" in EXP and t.endswith(" lds") and "s[36:39]" in t and s.name == "qkv":
            return
        if "now" in EXP and t.endswith(" lds") and "s[40:43]" in t and s.name == "qkv":
            return
        s.L.append("    " + t)

    def c(s, t):
        s.L.append("    ; " + t)

    def label(s, n):
        s.L.append(n + ":")

    def newlab(s, base):
        s.nlab += 1
        return "L_%s_%s_%d" % (s.name, base, s.nlab)

    def lds(s, t, tag=None):
        s.e(t)
        s.lq.append(tag)

    def vm(s, t, tag=None):
        s.e(t)
        s.vq.append(tag)

    def _need(s, q, tag):
        idx = -1
        for i, x in enumerate(q):
            if x == tag:
                idx = i
        return idx

    def wait_lds(s, tag):
        idx = s._need(s.lq, tag)
        if idx < 0:
            return
        n = len(s.lq) - idx - 1
        n = min(n, 15)
        s.e("s_waitcnt lgkmcnt(%d)" % n)
        s.lq = s.lq[len(s.lq) - n:] if n else []

    def wait_vm(s, tag):
        idx = s._need(s.vq, tag)
        if idx < 0:
            return
        n = len(s.vq) - idx - 1
        n = min(n, 63)
        s.e("s_waitcnt vmcnt(%d)" % n)
        s.vq = s.vq[len(s.vq) - n:] if n else []

    def wait_all(s):
        s.e("s_waitcnt vmcnt(0) lgkmcnt(0)")
        s.lq = []
        s.vq = []

    def wait_lds_all(s):
        s.e("s_waitcnt lgkmcnt(0)")
        s.lq = []

    def wait_vm_all(s):
        s.e("s_waitcnt vmcnt(0)")
        s.vq = []


STAMP = int(__import__("os").environ.get("STAMP", "0"))


def stamp(k, idx):
    if STAMP:
        k.e("s_memtime s[%d:%d]" % (70 + 2 * idx, 71 + 2 * idx))
        if idx in (0, 3):
            k.e("s_memrealtime s[%d:%d]" % (78 + (2 if idx else 0), 79 + (2 if idx else 0)))
        k.e("s_waitcnt lgkmcnt(0)")
        k.lq = []


def stamp_flush(k, n):
    if STAMP == 2:
        slot = getattr(k, "stamp_slot", 0)
        lab = k.newlab("nost")
        k.e("s_cmp_lg_u32 s2, 5")
        k.e("s_cbranch_scc1 %s" % lab)
        k.e("s_cmp_lg_u32 s4, 0")
        k.e("s_cbranch_scc1 %s" % lab)
        if not slot:
            k.e("s_add_u32 s92, s%d, 512" % P_DBG)
            k.e("s_addc_u32 s93, s%d, 0" % (P_DBG + 1))
        else:
            k.e("s_mov_b32 s92, s%d" % P_DBG)
            k.e("s_mov_b32 s93, s%d" % (P_DBG + 1))
        k.e("s_mov_b32 s94, 256")
        k.e("s_mov_b32 s95, 0x00020000")
        k.e("v_mov_b32 v1, 0")
        k.e("s_mov_b64 exec, 1")
        for i, r in enumerate((78, 80)):
            k.e("v_mov_b32 v2, s%d" % r)
            k.e("buffer_store_dword v2, v1, s[92:95], 0 offen offset:%d" % (8 * slot + 4 * i))
        k.label(lab)
        return
    if STAMP:
        lab = k.newlab("nost")
        k.e("s_and_b32 s90, s2, 127")
        k.e("s_cmp_lg_u32 s90, 5")
        k.e("s_cbranch_scc1 %s" % lab)
        k.e("s_cmp_lg_u32 s4, 0")
        k.e("s_cbranch_scc1 %s" % lab)
        srd(k, 92, P_WS, 0x900000 + 512 * getattr(k, "stamp_slot", 0), 256)
        k.e("s_lshr_b32 s90, s2, 7")
        k.e("s_lshl_b32 s90, s90, 6")
        k.e("v_mov_b32 v1, s90")
        k.e("s_mov_b64 exec, 1")
        for i in range(n):
            k.e("v_mov_b32 v2, s%d" % (70 + 2 * i))
            k.e("buffer_store_dword v2, v1, s[92:95], 0 offen offset:%d" % (4 * i))
        k.label(lab)


def vr(b, n):
    return "v[%d:%d]" % (b, b + n - 1)


def sr(b, n):
    return "s[%d:%d]" % (b, b + n - 1)


P_X, P_WQKV, P_WO, P_BX, P_WG, P_WU, P_WD, P_OUT, P_DBG, P_WS = 16, 18, 20, 22, 24, 26, 28, 30, 32, 34


def header(k, nwg):
    k.e("s_cmp_ge_u32 s2, %d" % nwg)
    k.e("s_cbranch_scc1 L_%s_end" % k.name)
    k.e("s_load_dwordx16 s[16:31], s[0:1], 0")
    k.e("s_load_dwordx4 s[32:35], s[0:1], 64")
    k.e("v_lshrrev_b32 v1, 6, v0")
    k.e("v_and_b32 v0, 63, v0")
    k.e("s_nop 0")
    k.e("v_readfirstlane_b32 s4, v1")
    k.e("s_waitcnt lgkmcnt(0)")


def srd(k, d, ptr, off, nbytes):
    if off:
        k.e("s_add_u32 s%d, s%d, 0x%x" % (d, ptr, off))
        k.e("s_addc_u32 s%d, s%d, 0" % (d + 1, ptr + 1))
    else:
        k.e("s_mov_b32 s%d, s%d" % (d, ptr))
        k.e("s_mov_b32 s%d, s%d" % (d + 1, ptr + 1))
    k.e("s_mov_b32 s%d, 0x%x" % (d + 2, nbytes))
    k.e("s_mov_b32 s%d, 0x00020000" % (d + 3))


def footer(k):
    k.label("L_%s_end" % k.name)
    k.e("s_endpgm")


def swap23_lane_rowpos(k, vdst, vlane, vt, vt2):
    k.e("v_lshrrev_b32 v%d, 5, v%d" % (vt, vlane))
    k.e("v_lshlrev_b32 v%d, 4, v%d" % (vdst, vt))
    k.e("v_bfe_u32 v%d, v%d, 4, 1" % (vt, vlane))
    k.e("v_lshlrev_b32 v%d, 2, v%d" % (vt, vt))
    k.e("v_add_u32 v%d, v%d, v%d" % (vdst, vdst, vt))
    k.e("v_bfe_u32 v%d, v%d, 2, 2" % (vt2, vlane))
    k.e("v_add_u32 v%d, v%d, v%d" % (vdst, vdst, vt2))


def swap23(k, vdst, vp, vt, vt2):
    k.e("v_and_b32 v%d, 0x33, v%d" % (vdst, vp))
    k.e("v_bfe_u32 v%d, v%d, 2, 1" % (vt, vp))
    k.e("v_lshlrev_b32 v%d, 3, v%d" % (vt, vt))
    k.e("v_bfe_u32 v%d, v%d, 3, 1" % (vt2, vp))
    k.e("v_lshlrev_b32 v%d, 2, v%d" % (vt2, vt2))
    k.e("v_or3_b32 v%d, v%d, v%d, v%d" % (vdst, vdst, vt, vt2))


def gemm_core(k, nst, nbuf, MI, acc, afr, bring, PD, a_rd, b_rd, dma, zero_init, NJ=9, sub=1, extra=None):
    RB = len(bring)
    nm = MI * NJ
    nsteps = nst * sub

    def rdB(t):
        sp, nj = divmod(t, NJ)
        if sp >= nsteps:
            return []
        st, kk = divmod(sp, sub)
        slot = bring[t % RB]
        out = []
        for j in range(2):
            v, off = b_rd(st % nbuf, nj, j, kk) if sub > 1 else b_rd(st % nbuf, nj, j)
            out.append(("ds_read_b64_tr_b16 %s, v%d offset:%d" % (vr(slot + 2 * j, 2), v, off), ("B", t)))
        return out

    def rdA(sp, i):
        if sp >= nsteps:
            return []
        st, kk = divmod(sp, sub)
        v, off = a_rd(st % nbuf, i, kk) if sub > 1 else a_rd(st % nbuf, i)
        return [("ds_read_b128 %s, v%d offset:%d" % (vr(afr[sp % 2][i], 4), v, off), ("A", sp))]

    k.wait_vm(("dma", 0))
    k.e("s_barrier")
    for i in range(MI):
        for (t, tag) in rdA(0, i):
            k.lds(t, tag)
    for t in range(PD):
        for (x, tag) in rdB(t):
            k.lds(x, tag)
    for s in range(nsteps):
        k.c("---- step %d" % s)
        groups = []
        st = s // sub
        if (s + 1) % sub == 0 and st + 1 < nst:
            k.wait_vm(("dma", st + 1))
            k.e("s_barrier")
            if st + nbuf - 1 < nst:
                groups = dma(st + nbuf - 1)
        ev = {}

        def add(idx, fn):
            ev.setdefault(min(idx, nm - 1), []).append(fn)
        for nj in range(NJ):
            t = s * NJ + nj
            add(nj * MI, (lambda tt: (lambda: [k.lds(x, tag) for (x, tag) in rdB(tt)]))(t + PD))
        for i in range(MI):
            add((2 + i) * MI + min(1, MI - 1), (lambda ii: (lambda: [k.lds(x, tag) for (x, tag) in rdA(s + 1, ii)]))(i))
        for gi, g in enumerate(groups):
            def mk(g):
                def f():
                    for (x, tag) in g:
                        if tag is None:
                            k.e(x)
                        else:
                            k.vm(x, tag)
                return f
            add(gi * MI + min(2, MI - 1), mk(g))
        for nj in range(NJ):
            t = s * NJ + nj
            if nj == 0:
                k.wait_lds(("A", s))
            k.wait_lds(("B", t))
            for i in range(MI):
                a = acc(i, nj)
                cc = "0" if (zero_init and s == 0) else vr(a, 4)
                k.e("v_mfma_f32_16x16x32_bf16 %s, %s, %s, %s" % (vr(a, 4), vr(bring[t % RB], 4), vr(afr[s % 2][i], 4), cc))
                for fn in ev.get(nj * MI + i, []):
                    fn()
            if extra:
                extra(s, nj, bring[t % RB])


def fl_lane(k, vdst, vt):
    k.e("v_lshrrev_b32 v%d, 1, v17" % vt)
    k.e("v_lshlrev_b32 v%d, 8, v%d" % (vdst, vt))
    k.e("v_lshlrev_b32 v%d, 4, v16" % vt)
    k.e("v_add_u32 v%d, v%d, v%d" % (vdst, vdst, vt))
    k.e("v_and_b32 v%d, 1, v17" % vt)
    k.e("v_lshlrev_b32 v%d, 3, v%d" % (vt, vt))
    k.e("v_add_u32 v%d, v%d, v%d" % (vdst, vdst, vt))


def b_dma_addr(k, vdst, sL0, iofs, NL, spitch, scol, reg_row=0, reg_col=0):
    k.e("v_lshrrev_b32 v18, 3, v0")
    k.e("v_add_u32 v18, s%d, v18" % sL0)
    if iofs:
        k.e("v_add_u32 v18, %d, v18" % iofs)
    if NL == 3:
        k.e("v_mul_u32_u24 v19, 21846, v18")
        k.e("v_lshrrev_b32 v19, 16, v19")
        k.e("v_mul_u32_u24 v20, 3, v19")
        k.e("v_sub_u32 v18, v18, v20")
    else:
        k.e("v_lshrrev_b32 v19, 1, v18")
        k.e("v_xor_b32 v18, v18, v19")
        k.e("v_and_b32 v18, 1, v18")
    k.e("v_lshlrev_b32 v18, 7, v18")
    k.e("v_bfe_u32 v20, v19, 1, 2")
    k.e("v_bfe_u32 v21, v0, 1, 2")
    k.e("v_xor_b32 v20, v20, v21")
    k.e("v_lshlrev_b32 v20, 5, v20")
    k.e("v_and_b32 v21, 1, v0")
    k.e("v_lshlrev_b32 v21, 4, v21")
    k.e("v_add3_u32 v18, v18, v20, v21")
    k.e("v_lshrrev_b32 v23, 5, v19")
    k.e("v_and_b32 v19, 31, v19")
    swap23(k, 20, 19, 21, 22)
    if reg_row:
        k.e("v_mul_u32_u24 v21, %d, v23" % reg_row)
        k.e("v_add_u32 v20, v20, v21")
    k.e("v_mul_lo_u32 v20, v20, s%d" % spitch)
    if reg_col:
        k.e("v_mul_u32_u24 v23, %d, v23" % reg_col)
        k.e("v_add_u32 v18, v18, v23")
    k.e("v_add3_u32 v%d, v20, v18, s%d" % (vdst, scol))


def b_rd_addr3(k, vq, sn0p, sbase):
    swap23_lane_rowpos(k, 18, 0, 19, 20)
    k.e("v_bfe_u32 v19, v18, 1, 2")
    k.e("v_mul_u32_u24 v18, 384, v18")
    k.e("v_and_b32 v20, 3, v0")
    k.e("v_lshlrev_b32 v20, 3, v20")
    k.e("v_add3_u32 v18, v18, v20, s%d" % sbase)
    for q in range(4):
        k.e("s_add_u32 s60, s%d, %d" % (sn0p, q))
        k.e("s_and_b32 s61, s60, 3")
        k.e("s_lshr_b32 s60, s60, 2")
        k.e("s_lshl_b32 s60, s60, 7")
        k.e("v_xor_b32 v20, s61, v19")
        k.e("v_lshlrev_b32 v20, 5, v20")
        k.e("v_add3_u32 v%d, v18, v20, s60" % (vq + q))


def touch(k, ssrd, ptr, nbytes, nwaves_total, wpw, vtmp, vdst):
    nlines = nbytes // 128
    per = (nlines + nwaves_total - 1) // nwaves_total
    assert per <= 64
    srd(k, ssrd, ptr, 0, nbytes)
    k.e("s_mul_i32 s60, s2, %d" % wpw)
    k.e("s_add_u32 s60, s60, s4")
    k.e("s_mul_i32 s60, s60, %d" % per)
    k.e("v_add_u32 v%d, s60, v0" % vtmp)
    k.e("v_lshlrev_b32 v%d, 7, v%d" % (vtmp, vtmp))
    if per < 64:
        m = (1 << per) - 1
        k.e("s_mov_b32 exec_lo, 0x%x" % (m & 0xffffffff))
        k.e("s_mov_b32 exec_hi, 0x%x" % (m >> 32))
    k.vm("buffer_load_dword v%d, v%d, %s, 0 offen" % (vdst, vtmp, sr(ssrd, 4)), "touch")
    k.e("s_mov_b64 exec, -1")


def issue_groups(k, groups):
    for g in groups:
        for (x, tag) in g:
            if tag is None:
                k.e(x)
            else:
                k.vm(x, tag)


def gen_k3(k):
    SB = 40960
    NBUF = 4
    k.stamp_slot = 2
    stamp(k, 0)
    SA, SBd, SST, SCS, SO = 36, 40, 44, 48, 52
    sKA, sKB, sMA, sMB = 56, 57, 58, 59
    k.e("s_and_b32 s60, s2, 7")
    k.e("s_lshr_b32 s61, s2, 3")
    k.e("s_and_b32 s62, s61, 3")
    k.e("s_lshl_b32 s60, s60, 2")
    k.e("s_add_u32 s9, s60, s62")
    k.e("s_lshr_b32 s61, s61, 2")
    k.e("s_lshl_b32 s7, s61, 8")
    k.e("s_mul_i32 s8, s9, 144")
    k.e("s_and_b32 s5, s4, 3")
    k.e("s_lshr_b32 s6, s4, 2")
    srd(k, SA, P_WS, H_OFF, S * D * 2)
    k.e("s_cmp_lt_u32 s4, 4")
    k.e("s_cselect_b32 s%d, s%d, s%d" % (SBd, P_WG, P_WU))
    k.e("s_cselect_b32 s%d, s%d, s%d" % (SBd + 1, P_WG + 1, P_WU + 1))
    k.e("s_mov_b32 s%d, 0x%x" % (SBd + 2, D * F * 2))
    k.e("s_mov_b32 s%d, 0x00020000" % (SBd + 3))
    srd(k, SST, P_WS, ST_OFF, S * 32)
    srd(k, SO, P_WS, ACT_OFF, S * F * 2)
    vOA0, vOA1, vOB = 2, 3, 4
    vA, vB = 8, 24
    vR, vM = 40, 44
    ACC = 96
    afr = [[48 + 4 * i for i in range(4)], [64 + 4 * i for i in range(4)]]
    bring = [80, 84, 88, 92]
    k.e("v_and_b32 v16, 15, v0")
    k.e("v_lshrrev_b32 v17, 4, v0")
    k.e("s_lshr_b32 s60, s7, 4")
    k.e("s_lshl_b32 s61, s4, 1")
    k.e("s_add_u32 s60, s60, s61")
    k.e("s_mul_i32 s60, s60, 18432")
    k.e("v_lshlrev_b32 v19, 4, v0")
    k.e("v_add_u32 v%d, s60, v19" % vOA0)
    k.e("v_add_u32 v%d, 18432, v%d" % (vOA1, vOA0))
    k.e("s_and_b32 s60, s4, 3")
    k.e("s_mul_i32 s68, s60, 24")
    k.e("s_lshl_b32 s62, s8, 1")
    k.e("s_and_b32 s62, s62, 0xffffff80")
    k.e("s_movk_i32 s63, 9216")
    for i in range(3):
        b_dma_addr(k, vOB + i, 68, 8 * i, 3, 63, 62)
    k.e("s_mov_b32 s%d, 0" % sKA)
    k.e("s_mov_b32 s%d, 0" % sKB)
    k.e("s_lshl_b32 s%d, s4, 11" % sMA)
    k.e("s_mul_i32 s%d, s4, 3072" % sMB)
    k.e("s_add_u32 s%d, s%d, 16384" % (sMB, sMB))

    def dmaA(st):
        b = (st % NBUF) * SB
        tag = ("dma", st)
        g = []
        for i in range(2):
            x = [("s_add_u32 m0, s%d, %d" % (sMA, b + i * 1024), None), ("s_nop 0", None),
                 ("buffer_load_dwordx4 v%d, %s, s%d offen sc1 lds" % (vOA0 + i, sr(SA, 4), sKA), tag)]
            if i == 1:
                x.append(("s_add_u32 s%d, s%d, 1024" % (sKA, sKA), None))
            g.append(x)
        return g

    def dmaB(st):
        b = (st % NBUF) * SB
        tag = ("dma", st)
        g = []
        for i in range(3):
            x = [("s_add_u32 m0, s%d, %d" % (sMB, b + i * 1024), None), ("s_nop 0", None)]
            x.append(("buffer_load_dwordx4 v%d, %s, s%d offen lds" % (vOB + i, sr(SBd, 4), sKB), tag))
            if i == 2:
                x.append(("s_add_u32 s%d, s%d, %d" % (sKB, sKB, 32 * 9216), None))
            g.append(x)
        return g

    def dma(st):
        return dmaA(st) + dmaB(st)
    for st in range(NBUF - 1):
        issue_groups(k, dmaB(st))
    srd(k, 64, P_WS, FLG_OFF + 32768 + 1024, 1024)
    k.e("s_lshr_b32 s60, s7, 3")
    k.e("v_and_b32 v18, 31, v0")
    k.e("v_add_u32 v18, s60, v18")
    k.e("v_lshlrev_b32 v18, 2, v18")
    lab_p = k.newlab("pollH")
    lab_g = k.newlab("goH")
    k.label(lab_p)
    k.e("buffer_load_dword v19, v18, s[64:67], 0 offen sc1")
    k.e("s_waitcnt vmcnt(0)")
    k.e("v_cmp_ne_u32 vcc, 1, v19")
    k.e("s_nop 1")
    k.e("s_cmp_eq_u64 vcc, 0")
    k.e("s_cbranch_scc1 %s" % lab_g)
    k.e("s_sleep %d" % (0 if "sleep0" in EXP else 2))
    k.e("s_branch %s" % lab_p)
    k.label(lab_g)
    k.vq = []
    k.e("s_lshl_b32 s60, s5, 6")
    k.e("s_add_u32 s60, s60, s7")
    k.e("v_add_u32 v18, s60, v16")
    k.e("v_lshlrev_b32 v18, 5, v18")
    for i in range(4):
        for h in range(2):
            k.vm("buffer_load_dwordx4 %s, v18, %s, 0 offen offset:%d" % (vr(ACC + i * 8 + h * 4, 4), sr(SST, 4), i * 512 + h * 16) + " sc1", "st")
    for st in range(NBUF - 1):
        issue_groups(k, dmaA(st))
    if "notouchwd" not in EXP:
        touch(k, 64, P_WD, F * D * 2, 2048, 8, 18, 1)
    k.e("s_lshl_b32 s60, s5, 12")
    k.e("v_lshlrev_b32 v18, 4, v0")
    k.e("v_add_u32 v%d, s60, v18" % vA)
    k.e("v_add_u32 v%d, %d, v%d" % (vA + 1, 2 * SB, vA))
    k.e("s_bfe_u32 s62, s8, 0x20004")
    k.e("s_mul_i32 s63, s6, 5")
    k.e("s_add_u32 s62, s62, s63")
    k.e("s_movk_i32 s63, 16384")
    b_rd_addr3(k, vB, 62, 63)
    for q in range(4):
        k.e("v_add_u32 v%d, %d, v%d" % (vB + 4 + q, 2 * SB, vB + q))
    k.e("v_lshrrev_b32 v18, 1, v17")
    k.e("v_lshlrev_b32 v14, 8, v18")
    k.e("v_lshlrev_b32 v18, 4, v16")
    k.e("v_add_u32 v14, v14, v18")
    k.e("v_and_b32 v18, 1, v17")
    k.e("v_mul_u32_u24 v15, 147456, v18")
    k.e("v_add_u32 v15, v15, v14")
    k.e("v_lshlrev_b32 v18, 9, v18")
    k.e("v_add_u32 v14, v14, v18")
    k.e("s_lshr_b32 s60, s7, 4")
    k.e("s_lshl_b32 s61, s5, 2")
    k.e("s_add_u32 s60, s60, s61")
    k.e("s_mul_i32 s60, s60, 147456")
    k.e("s_mul_i32 s61, s9, 9")
    k.e("s_mul_i32 s62, s6, 5")
    k.e("s_add_u32 s61, s61, s62")
    k.e("s_lshl_b32 s61, s61, 9")
    k.e("s_add_u32 s60, s60, s61")
    k.e("v_add_u32 v14, s60, v14")
    k.e("v_add_u32 v15, s60, v15")
    k.wait_vm("st")
    k.e("s_mov_b32 s60, 0x%x" % f2u(1.0 / 576.0))
    k.e("s_mov_b32 s61, 0x%x" % f2u(1e-5))
    for i in range(4):
        b = ACC + i * 8
        k.e("v_add_f32 v18, v%d, v%d" % (b, b + 2))
        k.e("v_add_f32 v19, v%d, v%d" % (b + 4, b + 6))
        k.e("v_add_f32 v20, v%d, v%d" % (b + 1, b + 3))
        k.e("v_add_f32 v21, v%d, v%d" % (b + 5, b + 7))
        k.e("v_add_f32 v18, v18, v19")
        k.e("v_add_f32 v20, v20, v21")
        k.e("v_mul_f32 v18, s60, v18")
        k.e("v_mul_f32 v20, s60, v20")
        k.e("v_fma_f32 v20, -v18, v18, v20")
        k.e("v_max_f32 v20, 0, v20")
        k.e("v_add_f32 v20, s61, v20")
        k.e("v_rsq_f32 v%d, v20" % (vR + i))
        k.e("v_sub_f32 v%d, 0, v18" % (vM + i))
    lab1 = k.newlab("wn1")
    lab_done = k.newlab("done")
    k.e("s_cmp_eq_u32 s6, 1")
    k.e("s_cbranch_scc1 %s" % lab1)
    st_l, st_v = list(k.lq), list(k.vq)
    c1 = -2.0 * 0.7978845608028654 * 1.4426950408889634
    for wn in range(2):
        NF = 5 if wn == 0 else 4
        NJ = 2 * NF
        if wn == 1:
            k.e("s_branch %s" % lab_done)
            k.label(lab1)
            k.lq, k.vq = list(st_l), list(st_v)
        acc = lambda i, c: ACC + (i * NJ + c) * 4
        CW = {0: 32, 1: 36, 8: 10, 9: 16}
        ONES = 20
        for r in range(4):
            k.e("v_mov_b32 v%d, 0x3f803f80" % (ONES + r))
        prevb = [None]

        def cwreg(c):
            return CW[(c & 1) + 8 * (c >> 3)]

        def extra(s_, c, breg):
            if c & 1 == 0:
                prevb[0] = breg
                return
            lab = k.newlab("cw")
            k.e("s_cmp_eq_u32 s5, %d" % ((c >> 1) & 3))
            k.e("s_cbranch_scc0 %s" % lab)
            for cc, br in ((c - 1, prevb[0]), (c, breg)):
                k.e("v_mfma_f32_16x16x32_bf16 %s, %s, %s, %s" % (vr(cwreg(cc), 4), vr(br, 4), vr(ONES, 4), "0" if s_ == 0 else vr(cwreg(cc), 4)))
            k.label(lab)

        def a_rd(buf, i):
            return vA + (buf >> 1), (buf & 1) * SB + i * 1024

        def b_rd(buf, c, j):
            f = c >> 1
            return vB + 4 * (buf >> 1) + (f & 3), (buf & 1) * SB + (c & 1) * 12288 + j * 3072 + (f >> 2) * 128
        if wn == 0:
            stamp(k, 1)
        gemm_core(k, 18, NBUF, 4, acc, afr, bring, 2, a_rd, b_rd, dma, True, NJ=NJ, extra=extra)
        if wn == 0:
            stamp(k, 2)
        k.c("---- epilogue")
        k.e("s_nop 7")
        k.e("s_barrier")
        k.e("v_lshlrev_b32 v1, 4, v0")
        k.e("v_add_u32 v1, %d, v1" % (wn * 10240))
        for c in range(0, NJ, 2):
            lab = k.newlab("cww")
            k.e("s_cmp_eq_u32 s5, %d" % ((c >> 1) & 3))
            k.e("s_cbranch_scc0 %s" % lab)
            k.e("ds_write_b128 v1, %s offset:%d" % (vr(cwreg(c), 4), c * 1024))
            k.e("ds_write_b128 v1, %s offset:%d" % (vr(cwreg(c + 1), 4), c * 1024 + 1024))
            k.label(lab)
        k.e("s_waitcnt lgkmcnt(0)")
        k.e("s_barrier")
        CSR = 48
        for c in range(NJ):
            k.e("ds_read_b128 %s, v1 offset:%d" % (vr(CSR + 4 * c, 4), c * 1024))
        k.e("s_waitcnt lgkmcnt(0)")
        k.lq = []
        k.e("v_mov_b32 v20, 1.0")
        k.e("v_mov_b32 v21, 1.0")
        k.e("s_mov_b32 s60, 0x%x" % f2u(c1))
        k.e("s_mov_b32 s61, 0x%x" % f2u(c1 * 0.044715))
        k.e("s_mov_b32 s62, 0")
        k.e("s_nop 7")
        for i in range(4):
            k.e("v_mul_f32 v22, s60, v%d" % (vR + i))
            k.e("v_mul_f32 v26, v%d, v%d" % (vR + i, vR + i))
            k.e("v_mul_f32 v24, s61, v%d" % (vR + i))
            k.e("v_mul_f32 v24, v24, v26")
            k.e("v_mov_b32 v23, v22")
            k.e("v_mov_b32 v25, v24")
            k.e("v_mov_b32 v27, v26")
            k.e("v_mov_b32 v36, v%d" % (vM + i))
            k.e("v_mov_b32 v37, v%d" % (vM + i))
            for f in range(NF):
                G, U = acc(i, 2 * f), acc(i, 2 * f + 1)
                T, P = 28, 32
                for h in range(2):
                    k.e("v_pk_fma_f32 %s, %s, v[36:37], %s" % (vr(G + 2 * h, 2), vr(CSR + 8 * f + 2 * h, 2), vr(G + 2 * h, 2)))
                    k.e("v_pk_fma_f32 %s, %s, v[36:37], %s" % (vr(U + 2 * h, 2), vr(CSR + 8 * f + 4 + 2 * h, 2), vr(U + 2 * h, 2)))
                for h in range(2):
                    k.e("v_pk_mul_f32 %s, %s, %s" % (vr(T + 2 * h, 2), vr(G + 2 * h, 2), vr(G + 2 * h, 2)))
                for h in range(2):
                    k.e("v_pk_fma_f32 %s, %s, v[24:25], v[22:23]" % (vr(T + 2 * h, 2), vr(T + 2 * h, 2)))
                for h in range(2):
                    k.e("v_pk_mul_f32 %s, %s, %s" % (vr(T + 2 * h, 2), vr(T + 2 * h, 2), vr(G + 2 * h, 2)))
                for r in range(4):
                    k.e("v_exp_f32 v%d, v%d" % (T + r, T + r))
                for h in range(2):
                    k.e("v_pk_mul_f32 %s, %s, %s" % (vr(P + 2 * h, 2), vr(G + 2 * h, 2), vr(U + 2 * h, 2)))
                for h in range(2):
                    k.e("v_pk_add_f32 %s, %s, v[20:21]" % (vr(T + 2 * h, 2), vr(T + 2 * h, 2)))
                for r in range(4):
                    k.e("v_rcp_f32 v%d, v%d" % (T + r, T + r))
                for h in range(2):
                    k.e("v_pk_mul_f32 %s, %s, v[26:27]" % (vr(P + 2 * h, 2), vr(P + 2 * h, 2)))
                for h in range(2):
                    k.e("v_pk_mul_f32 %s, %s, %s" % (vr(P + 2 * h, 2), vr(P + 2 * h, 2), vr(T + 2 * h, 2)))
                if f < 4:
                    R = acc(i, 2 * (f & ~1)) + 2 * (f & 1)
                else:
                    R = acc(i & ~1, 8) + 2 * (i & 1)
                k.e("v_cvt_pk_bf16_f32 v%d, v%d, v%d" % (R, P, P + 1))
                k.e("v_cvt_pk_bf16_f32 v%d, v%d, v%d" % (R + 1, P + 2, P + 3))
                if (f < 4 and f & 1) or (f == 4 and i & 1):
                    B0 = R - 2
                    k.e("s_nop 1")
                    k.e("v_permlane16_swap_b32 v%d, v%d" % (B0, B0 + 2))
                    k.e("v_permlane16_swap_b32 v%d, v%d" % (B0 + 1, B0 + 3))
                    if f < 4:
                        k.vm("buffer_store_dwordx4 %s, v14, %s, s62 offen offset:%d sc1" % (vr(B0, 4), sr(SO, 4), (f - 1) * 512))
                    else:
                        k.e("s_sub_u32 s63, s62, 147456")
                        k.vm("buffer_store_dwordx4 %s, v15, %s, s63 offen offset:%d sc1" % (vr(B0, 4), sr(SO, 4), 4 * 512))
            k.e("s_add_u32 s62, s62, 147456")
    k.label(lab_done)
    srd(k, 64, P_WS, FLG_OFF + 32768, 1024)
    k.e("s_lshr_b32 s60, s7, 8")
    k.e("s_lshl_b32 s60, s60, 5")
    k.e("s_add_u32 s60, s60, s9")
    k.e("s_lshl_b32 s60, s60, 2")
    k.e("v_mov_b32 v1, s60")
    k.e("v_mov_b32 v2, 1")
    k.e("s_waitcnt vmcnt(0)")
    k.e("s_barrier")
    lab_nf = k.newlab("nf")
    k.e("s_cmp_lg_u32 s4, 0")
    k.e("s_cbranch_scc1 %s" % lab_nf)
    k.e("s_mov_b64 exec, 1")
    k.e("buffer_store_dword v2, v1, s[64:67], 0 offen sc1")
    k.e("s_mov_b64 exec, -1")
    k.label(lab_nf)
    k.lq, k.vq = [], []
    stamp(k, 3)
    stamp_flush(k, 6)
    k.e("s_mov_b64 exec, -1")
    return gen_k4(k)


def gen_k4(k):
    SB = 40960
    NBUF = 4
    k.stamp_slot = 3
    stamp(k, 0)
    SA, SBd, SP, SO, SH, SD = 36, 40, 44, 48, 52, 64
    sKA, sKB, sMA, sMB = 56, 57, 58, 59
    k.e("s_and_b32 s9, s2, 3")
    k.e("s_bfe_u32 s60, s2, 0x10002")
    k.e("s_lshr_b32 s61, s2, 3")
    k.e("s_lshr_b32 s62, s61, 2")
    k.e("s_lshl_b32 s60, s60, 3")
    k.e("s_add_u32 s60, s60, s62")
    k.e("s_lshl_b32 s7, s60, 7")
    k.e("s_and_b32 s61, s61, 3")
    k.e("s_mul_i32 s8, s61, 144")
    k.e("s_lshl_b32 s10, s60, 2")
    k.e("s_add_u32 s10, s10, s61")
    k.e("s_and_b32 s11, s4, 3")
    k.e("s_lshr_b32 s5, s11, 1")
    k.e("s_and_b32 s6, s11, 1")
    k.e("v_and_b32 v16, 15, v0")
    k.e("v_lshrrev_b32 v17, 4, v0")
    lab_comp = k.newlab("comp")
    k.e("s_cmp_lt_u32 s4, 4")
    k.e("s_cbranch_scc1 %s" % lab_comp)
    srd(k, SA, P_WS, ACT_OFF, S * F * 2)
    srd(k, SBd, P_WD, 0, F * D * 2)
    vOA, vOB = 2, 8
    k.e("s_lshr_b32 s60, s7, 4")
    k.e("s_lshl_b32 s61, s11, 1")
    k.e("s_add_u32 s60, s60, s61")
    k.e("s_mul_i32 s60, s60, 147456")
    k.e("s_mul_i32 s61, s9, 36864")
    k.e("s_add_u32 s60, s60, s61")
    k.e("v_lshlrev_b32 v19, 4, v0")
    k.e("v_add_u32 v%d, s60, v19" % vOA)
    k.e("v_add_u32 v%d, 1024, v%d" % (vOA + 1, vOA))
    k.e("v_add_u32 v%d, %d, v%d" % (vOA + 2, 147456, vOA))
    k.e("v_add_u32 v%d, %d, v%d" % (vOA + 3, 147456 + 1024, vOA))
    k.e("s_mul_i32 s64, s11, 48")
    k.e("s_lshl_b32 s62, s8, 1")
    k.e("s_and_b32 s62, s62, 0xffffff80")
    k.e("s_mul_i32 s61, s9, 1152 * 1152")
    k.e("s_add_u32 s62, s62, s61")
    k.e("s_movk_i32 s63, 1152")
    for i in range(6):
        b_dma_addr(k, vOB + i, 64, 8 * i, 3, 63, 62, reg_row=32)
    k.e("s_mov_b32 s%d, 0" % sKA)
    k.e("s_mov_b32 s%d, 0" % sKB)
    k.e("s_lshl_b32 s%d, s11, 12" % sMA)
    k.e("s_mul_i32 s%d, s11, 6144" % sMB)
    k.e("s_add_u32 s%d, s%d, 16384" % (sMB, sMB))

    def dmaA(st):
        b = (st % NBUF) * SB
        tag = ("dma", st)
        g = []
        for i in range(4):
            x = [("s_add_u32 m0, s%d, %d" % (sMA, b + i * 1024), None), ("s_nop 0", None),
                 ("buffer_load_dwordx4 v%d, %s, s%d offen sc1 lds" % (vOA + i, sr(SA, 4), sKA), tag)]
            if i == 3:
                x.append(("s_add_u32 s%d, s%d, 2048" % (sKA, sKA), None))
            g.append(x)
        return g

    def dmaB(st):
        b = (st % NBUF) * SB
        tag = ("dma", st)
        g = []
        for i in range(6):
            x = [("s_add_u32 m0, s%d, %d" % (sMB, b + i * 1024), None), ("s_nop 0", None)]
            x.append(("buffer_load_dwordx4 v%d, %s, s%d offen lds" % (vOB + i, sr(SBd, 4), sKB), tag))
            if i == 5:
                x.append(("s_add_u32 s%d, s%d, %d" % (sKB, sKB, 64 * 1152), None))
            g.append(x)
        return g

    def dma(st):
        return dmaA(st) + dmaB(st)
    for st in range(NBUF - 1):
        issue_groups(k, dmaB(st))
    srd(k, 84, P_WS, FLG_OFF + 32768, 1024)
    k.e("s_lshr_b32 s60, s7, 8")
    k.e("s_lshl_b32 s60, s60, 7")
    k.e("s_lshl_b32 s61, s9, 5")
    k.e("s_add_u32 s60, s60, s61")
    k.e("v_mov_b32 v20, s60")
    lab_p = k.newlab("pollA")
    lab_g = k.newlab("goA")
    k.label(lab_p)
    k.e("buffer_load_dwordx4 v[24:27], v20, s[84:87], 0 offen sc1")
    k.e("buffer_load_dwordx4 v[28:31], v20, s[84:87], 0 offen offset:16 sc1")
    k.e("s_waitcnt vmcnt(0)")
    k.e("v_add3_u32 v24, v24, v25, v26")
    k.e("v_add3_u32 v24, v24, v27, v28")
    k.e("v_add3_u32 v24, v24, v29, v30")
    k.e("v_add_u32 v24, v24, v31")
    k.e("s_nop 0")
    k.e("v_readfirstlane_b32 s61, v24")
    k.e("s_cmp_ge_u32 s61, 8")
    k.e("s_cbranch_scc1 %s" % lab_g)
    k.e("s_sleep %d" % (0 if "sleep0" in EXP else 2))
    k.e("s_branch %s" % lab_p)
    k.label(lab_g)
    k.vq = []
    for st in range(NBUF - 1):
        issue_groups(k, dmaA(st))
    k.wait_vm(("dma", 0))
    k.e("s_barrier")
    for s_ in range(17):
        k.wait_vm(("dma", s_ + 1))
        k.e("s_barrier")
        if s_ + NBUF - 1 < 18:
            issue_groups(k, dma(s_ + NBUF - 1))
    k.e("s_endpgm")
    k.label(lab_comp)
    k.lq, k.vq = [], []
    srd(k, SP, P_WS, PART_OFF, 64 * 16 * 18432)
    srd(k, SO, P_OUT, 0, S * D * 2)
    srd(k, SH, P_WS, H_OFF, S * D * 2)
    srd(k, SD, P_WS, FLG_OFF, 256 * 128)
    vA, vB = 2, 24
    ACC = 112
    afr = [[48, 52], [56, 60]]
    bring = [64 + 4 * q for q in range(8)]
    acc = lambda i, nj: ACC + (i * 9 + nj) * 4
    k.e("s_lshl_b32 s60, s4, 12")
    k.e("v_lshlrev_b32 v18, 4, v0")
    k.e("v_add_u32 v%d, s60, v18" % vA)
    for b_ in range(1, 4):
        k.e("v_add_u32 v%d, %d, v%d" % (vA + b_, b_ * SB, vA))
    k.e("s_bfe_u32 s62, s8, 0x20004")
    k.e("s_movk_i32 s63, 16384")
    b_rd_addr3(k, vB, 62, 63)
    for b_ in range(1, 4):
        for q in range(4):
            k.e("v_add_u32 v%d, %d, v%d" % (vB + 4 * b_ + q, b_ * SB, vB + q))

    def a_rd(buf, i, kk):
        return vA + buf, i * 2048 + kk * 1024

    def b_rd(buf, nj, j, kk):
        return vB + 4 * buf + (nj & 3), kk * 12288 + j * 3072 + (nj >> 2) * 128
    gemm_core(k, 18, NBUF, 2, acc, afr, bring, 6, a_rd, b_rd, lambda st: [], True, sub=2)
    stamp(k, 1)
    k.c("---- epilogue: cross-workgroup reduction")
    k.e("v_lshlrev_b32 v18, 4, v0")
    k.e("s_lshl_b32 s60, s10, 2")
    k.e("s_add_u32 s60, s60, s9")
    k.e("s_lshl_b32 s60, s60, 2")
    k.e("s_add_u32 s60, s60, s4")
    k.e("s_mul_i32 s60, s60, 9216")
    k.e("v_add_u32 v21, s60, v18")
    k.e("s_lshl_b32 s60, s10, 2")
    k.e("s_add_u32 s61, s60, s4")
    k.e("s_lshl_b32 s61, s61, 7")
    k.e("s_lshl_b32 s62, s9, 2")
    k.e("s_add_u32 s61, s61, s62")
    k.e("v_mov_b32 v23, s61")
    k.e("s_add_u32 s60, s60, s9")
    k.e("s_lshl_b32 s60, s60, 7")
    k.e("v_mov_b32 v26, s60")
    k.e("v_mov_b32 v24, 1")
    k.e("s_nop 7")
    k.e("s_barrier")
    lab_own = k.newlab("own")
    lab_j = k.newlab("j")
    k.e("s_cmp_eq_u32 s4, s9")
    k.e("s_cbranch_scc1 %s" % lab_own)
    for t in range(9):
        a = ACC + 8 * t
        for d in range(4):
            k.e("v_cvt_pk_bf16_f32 v%d, v%d, v%d" % (a + d, a + 2 * d, a + 2 * d + 1))
        sreg = "0"
        off = t * 1024
        if off >= 4096:
            k.e("s_movk_i32 s61, %d" % (off & ~4095))
            sreg = "s61"
        k.e("buffer_store_dwordx4 %s, v21, %s, %s offen offset:%d sc1" % (vr(a, 4), sr(SP, 4), sreg, off & 4095))
    k.e("s_barrier")
    k.e("s_branch %s" % lab_j)
    k.label(lab_own)
    for t in range(18):
        k.e("ds_write_b128 v18, %s offset:%d" % (vr(ACC + 4 * t, 4), t * 1024))
    k.e("s_waitcnt lgkmcnt(0)")
    k.e("s_barrier")
    k.e("s_branch L_%s_end" % k.name)
    k.label(lab_j)
    k.e("s_sub_u32 s62, s4, s9")
    k.e("s_sub_u32 s62, s62, 1")
    k.e("s_and_b32 s62, s62, 3")
    k.e("s_mul_i32 s63, s62, 6144")
    k.e("v_add_u32 v22, s63, v18")
    OWN = 48
    for t in range(6):
        k.lds("ds_read_b128 %s, v22 offset:%d" % (vr(OWN + 4 * t, 4), t * 1024), "own")
    k.e("s_lshl_b32 s60, s9, 5")
    k.e("s_add_u32 s60, s60, s7")
    k.e("v_add_u32 v19, s60, v16")
    k.e("v_mul_u32_u24 v19, 1152, v19")
    k.e("v_lshlrev_b32 v20, 3, v17")
    k.e("s_lshl_b32 s60, s8, 1")
    k.e("v_add3_u32 v19, v19, v20, s60")
    fl_lane(k, 44, 45)
    k.e("s_lshr_b32 s60, s7, 4")
    k.e("s_lshl_b32 s61, s9, 1")
    k.e("s_add_u32 s60, s60, s61")
    k.e("s_mul_i32 s60, s60, 18432")
    k.e("s_lshl_b32 s61, s8, 5")
    k.e("s_add_u32 s60, s60, s61")
    k.e("v_add_u32 v44, s60, v44")
    k.e("s_waitcnt vmcnt(0)")
    k.e("s_mov_b64 exec, 1")
    k.e("buffer_store_dword v24, v23, %s, 0 offen sc1" % sr(SD, 4))
    k.e("s_mov_b64 exec, -1")
    k.e("s_mul_i32 s62, s62, 6")
    HR = 96
    for t in range(6):
        k.e("s_add_u32 s60, s62, %d" % t)
        k.e("s_cmp_ge_u32 s60, 9")
        k.e("s_cselect_b32 s61, %d, 0" % (16 * 1152 - 9 * 32))
        k.e("s_cselect_b32 s69, %d, 0" % (18432 - 9 * 512))
        k.e("s_lshl_b32 s68, s60, 9")
        k.e("s_add_u32 s68, s68, s69")
        k.e("s_lshl_b32 s60, s60, 5")
        k.e("s_add_u32 s%d, s60, s61" % (84 + t))
        k.e("buffer_load_dwordx2 %s, v44, %s, s68 offen sc1" % (vr(HR + 2 * t, 2), sr(SH, 4)))
    stamp(k, 2)
    lab_poll = k.newlab("poll")
    lab_go = k.newlab("go")
    k.label(lab_poll)
    k.e("buffer_load_dwordx4 v[28:31], v26, %s, 0 offen sc1" % sr(SD, 4))
    k.e("s_waitcnt vmcnt(0)")
    k.e("v_add_u32 v28, v28, v29")
    k.e("v_add3_u32 v28, v28, v30, v31")
    k.e("s_nop 0")
    k.e("v_readfirstlane_b32 s61, v28")
    k.e("s_cmp_ge_u32 s61, 3")
    k.e("s_cbranch_scc1 %s" % lab_go)
    k.e("s_sleep 1")
    k.e("s_branch %s" % lab_poll)
    k.label(lab_go)
    if STAMP:
        k.e("s_memtime s[82:83]")
        k.e("s_waitcnt lgkmcnt(0)")
        k.lq = []
    k.e("s_lshl_b32 s60, s10, 4")
    k.e("s_add_u32 s60, s60, s9")
    k.e("s_mul_i32 s60, s60, 9216")
    k.e("s_lshr_b32 s63, s63, 1")
    k.e("s_add_u32 s60, s60, s63")
    k.e("v_add_u32 v21, s60, v18")
    k.vq = []
    for o in range(1, 4):
        k.e("s_add_u32 s61, s9, %d" % o)
        k.e("s_and_b32 s61, s61, 3")
        k.e("s_mul_i32 s61, s61, %d" % (4 * 9216))
        for t in range(3):
            k.vm("buffer_load_dwordx4 %s, v21, %s, s61 offen offset:%d sc1" % (vr(ACC + 12 * (o - 1) + 4 * t, 4), sr(SP, 4), t * 1024), ("p", o, t))
    k.wait_lds("own")
    for t in range(6):
        a = OWN + 4 * t
        for d in range(2):
            k.e("v_lshlrev_b32 v42, 16, v%d" % (HR + 2 * t + d))
            k.e("v_and_b32 v43, 0xffff0000, v%d" % (HR + 2 * t + d))
            k.e("v_add_f32 v%d, v%d, v42" % (a + 2 * d, a + 2 * d))
            k.e("v_add_f32 v%d, v%d, v43" % (a + 2 * d + 1, a + 2 * d + 1))
    for o in range(1, 4):
        for t in range(6):
            a = OWN + 4 * t
            k.wait_vm(("p", o, t >> 1))
            for d in range(2):
                x = ACC + 12 * (o - 1) + 2 * t + d
                k.e("v_lshlrev_b32 v42, 16, v%d" % x)
                k.e("v_and_b32 v43, 0xffff0000, v%d" % x)
                k.e("v_add_f32 v%d, v%d, v42" % (a + 2 * d, a + 2 * d))
                k.e("v_add_f32 v%d, v%d, v43" % (a + 2 * d + 1, a + 2 * d + 1))
            if o == 3:
                k.e("v_cvt_pk_bf16_f32 v%d, v%d, v%d" % (HR + 2 * t, a, a + 1))
                k.e("v_cvt_pk_bf16_f32 v%d, v%d, v%d" % (HR + 1 + 2 * t, a + 2, a + 3))
                k.vm("buffer_store_dwordx2 %s, v19, %s, s%d offen" % (vr(HR + 2 * t, 2), sr(SO, 4), 84 + t))
    stamp(k, 3)
    stamp_flush(k, 7)
    footer(k)
    return k, 256


def gen_k5():
    k = K("red")
    nwg = S * D // 8 // 256
    k.e("s_cmp_ge_u32 s2, %d" % nwg)
    k.e("s_cbranch_scc1 L_%s_end" % k.name)
    k.e("s_load_dwordx16 s[16:31], s[0:1], 0")
    k.e("s_load_dwordx4 s[32:35], s[0:1], 64")
    k.e("s_lshl_b32 s3, s2, 8")
    k.e("v_add_u32 v1, s3, v0")
    k.e("v_lshlrev_b32 v2, 4, v1")
    k.e("v_lshlrev_b32 v3, 5, v1")
    k.e("s_waitcnt lgkmcnt(0)")
    srd(k, 36, P_WS, H_OFF, S * D * 2)
    srd(k, 40, P_WS, PART_OFF, 4 * S * D * 4)
    srd(k, 44, P_OUT, 0, S * D * 2)
    k.e("buffer_load_dwordx4 v[4:7], v2, s[36:39], 0 offen")
    for p in range(4):
        k.e("s_mov_b32 s48, 0x%x" % (p * S * D * 4))
        k.e("buffer_load_dwordx4 %s, v3, s[40:43], s48 offen" % vr(8 + p * 8, 4))
        k.e("buffer_load_dwordx4 %s, v3, s[40:43], s48 offen offset:16" % vr(12 + p * 8, 4))
    k.e("s_waitcnt vmcnt(0)")
    for r in range(8):
        k.e("v_add_f32 v%d, v%d, v%d" % (8 + r, 8 + r, 16 + r))
        k.e("v_add_f32 v%d, v%d, v%d" % (24 + r, 24 + r, 32 + r))
    for r in range(8):
        k.e("v_add_f32 v%d, v%d, v%d" % (8 + r, 8 + r, 24 + r))
    for d in range(4):
        k.e("v_lshlrev_b32 v40, 16, v%d" % (4 + d))
        k.e("v_and_b32 v41, 0xffff0000, v%d" % (4 + d))
        k.e("v_add_f32 v%d, v%d, v40" % (8 + 2 * d, 8 + 2 * d))
        k.e("v_add_f32 v%d, v%d, v41" % (9 + 2 * d, 9 + 2 * d))
    for d in range(4):
        k.e("v_cvt_pk_bf16_f32 v%d, v%d, v%d" % (4 + d, 8 + 2 * d, 9 + 2 * d))
    k.e("buffer_store_dwordx4 v[4:7], v2, s[44:47], 0 offen")
    footer(k)
    return k, nwg


def gen_k2():
    k = K("ffn")
    k.stamp_slot = 1
    SB = 4096 + 24576
    NBUF = 5
    header(k, 256)
    stamp(k, 0)
    SA, SBd, SX, SH, SST, SCP, SCS = 36, 40, 44, 48, 52, 64, 96
    sKA, sKB, sMA, sMB = 56, 57, 58, 59
    k.e("s_and_b32 s9, s2, 3")
    k.e("s_lshr_b32 s60, s2, 2")
    k.e("s_lshl_b32 s7, s60, 5")
    k.e("s_mul_i32 s8, s9, 144")
    k.e("s_lshr_b32 s5, s4, 1")
    k.e("s_and_b32 s6, s4, 1")
    srd(k, SA, P_WS, O_OFF, S * D * 2)
    srd(k, SBd, P_WO, 0, D * D * 2)
    srd(k, SX, P_X, 0, S * D * 2)
    srd(k, SH, P_WS, H_OFF, S * D * 2)
    srd(k, SST, P_WS, ST_OFF, S * 32)
    lab_idle = k.newlab("idle")
    lab_p2done = k.newlab("p2done")
    k.e("s_cmp_ge_u32 s4, 4")
    k.e("s_cbranch_scc1 %s" % lab_idle)
    vOA, vOB = 2, 8
    vA, vB = 24, 28
    ACC = 112
    afr = [[48], [52]]
    bring = [56, 60, 64, 68, 72, 76]
    acc = lambda i, nj: ACC + nj * 4
    XR = 80
    CPR = 184
    k.e("v_and_b32 v16, 15, v0")
    k.e("v_lshrrev_b32 v17, 4, v0")
    k.e("s_lshl_b32 s60, s5, 4")
    k.e("s_add_u32 s60, s60, s7")
    k.e("v_add_u32 v31, s60, v16")
    k.e("s_movk_i32 s63, 1152")
    k.e("v_mul_lo_u32 v18, v31, s63")
    k.e("v_lshlrev_b32 v19, 3, v17")
    k.e("s_lshl_b32 s62, s8, 1")
    k.e("v_add3_u32 v32, v18, v19, s62")
    for nj in range(9):
        k.vm("buffer_load_dwordx2 %s, v32, %s, 0 offen offset:%d" % (vr(XR + 2 * nj, 2), sr(SX, 4), nj * 32), "x")
    k.e("s_lshr_b32 s60, s7, 4")
    k.e("s_add_u32 s60, s60, s5")
    k.e("s_mul_i32 s60, s60, 18432")
    k.e("s_lshl_b32 s61, s6, 10")
    k.e("s_add_u32 s61, s60, s61")
    k.e("v_lshlrev_b32 v19, 4, v0")
    k.e("v_add_u32 v%d, s61, v19" % vOA)
    fl_lane(k, 37, 18)
    k.e("s_lshl_b32 s61, s8, 5")
    k.e("s_add_u32 s60, s60, s61")
    k.e("v_add_u32 v37, s60, v37")
    k.e("s_mul_i32 s88, s4, 48")
    k.e("s_lshl_b32 s62, s8, 1")
    k.e("s_and_b32 s62, s62, 0xffffff80")
    k.e("s_movk_i32 s63, 1152")
    for i in range(6):
        b_dma_addr(k, vOB + i, 88, 8 * i, 3, 63, 62, reg_row=32)
    k.e("s_mov_b32 s%d, 0" % sKA)
    k.e("s_mov_b32 s%d, 0" % sKB)
    k.e("s_lshl_b32 s%d, s4, 10" % sMA)
    k.e("s_mul_i32 s%d, s4, 6144" % sMB)
    k.e("s_add_u32 s%d, s%d, 4096" % (sMB, sMB))

    def dma(st):
        b = (st % NBUF) * SB
        tag = ("dma", st)
        g = [[("s_add_u32 m0, s%d, %d" % (sMA, b), None), ("s_nop 0", None),
              ("buffer_load_dwordx4 v%d, %s, s%d offen lds" % (vOA, sr(SA, 4), sKA), tag)]]
        for i in range(6):
            x = [("s_add_u32 m0, s%d, %d" % (sMB, b + i * 1024), None), ("s_nop 0", None)]
            x.append(("buffer_load_dwordx4 v%d, %s, s%d offen lds" % (vOB + i, sr(SBd, 4), sKB), tag))
            if i == 5:
                x.append(("s_add_u32 s%d, s%d, 2048" % (sKA, sKA), None))
                x.append(("s_add_u32 s%d, s%d, %d" % (sKB, sKB, 64 * 1152), None))
            g.append(x)
        return g
    for st in range(NBUF - 1):
        issue_groups(k, dma(st))
    k.e("v_lshlrev_b32 v18, 4, v0")
    k.e("v_add_u32 v%d, s%d, v18" % (vA, sMA))
    for q in range(1, 3):
        k.e("v_add_u32 v%d, %d, v%d" % (vA + q, 2 * SB * q, vA))
    vB = 100
    k.e("s_bfe_u32 s62, s8, 0x20004")
    k.e("s_mul_i32 s63, s6, 12288")
    k.e("s_add_u32 s63, s63, 4096")
    b_rd_addr3(k, vB, 62, 63)
    for b_ in range(1, 3):
        for q in range(4):
            k.e("v_add_u32 v%d, %d, v%d" % (vB + 4 * b_ + q, 2 * b_ * SB, vB + q))

    def a_rd(buf, i):
        return vA + (buf >> 1), (buf & 1) * SB

    def b_rd(buf, nj, j):
        return vB + 4 * (buf >> 1) + (nj & 3), (buf & 1) * SB + j * 3072 + (nj >> 2) * 128
    stamp(k, 1)
    gemm_core(k, 9, NBUF, 1, acc, afr, bring, 4, a_rd, b_rd, dma, True)
    stamp(k, 2)
    k.c("---- epilogue")
    k.e("s_nop 7")
    k.e("s_nop 7")
    k.e("s_barrier")
    k.wait_vm("x")
    k.e("s_mul_i32 s60, s5, 9216")
    k.e("v_lshlrev_b32 v18, 4, v0")
    k.e("v_add_u32 v19, s60, v18")
    lab_recv = k.newlab("recv")
    k.e("s_cmp_eq_u32 s6, 0")
    k.e("s_cbranch_scc1 %s" % lab_recv)
    for nj in range(9):
        k.lds("ds_write_b128 v19, %s offset:%d" % (vr(acc(0, nj), 4), nj * 1024))
    k.wait_lds_all()
    k.e("s_barrier")
    k.e("s_branch %s" % lab_p2done)
    k.label(lab_recv)
    k.e("s_barrier")
    R = 48
    RX = 148
    for nj in range(9):
        k.lds("ds_read_b128 %s, v19 offset:%d" % (vr(RX + nj * 4, 4), nj * 1024), ("x", nj))
    k.e("v_mov_b32 v40, 0")
    k.e("v_mov_b32 v41, 0")
    for nj in range(9):
        k.wait_lds(("x", nj))
        a = acc(0, nj)
        for r in range(4):
            k.e("v_add_f32 v%d, v%d, v%d" % (a + r, a + r, RX + nj * 4 + r))
        for d in range(2):
            k.e("v_lshlrev_b32 v42, 16, v%d" % (XR + 2 * nj + d))
            k.e("v_and_b32 v43, 0xffff0000, v%d" % (XR + 2 * nj + d))
            k.e("v_add_f32 v%d, v%d, v42" % (a + 2 * d, a + 2 * d))
            k.e("v_add_f32 v%d, v%d, v43" % (a + 2 * d + 1, a + 2 * d + 1))
        k.e("v_cvt_pk_bf16_f32 v%d, v%d, v%d" % (XR + 2 * nj, a, a + 1))
        k.e("v_cvt_pk_bf16_f32 v%d, v%d, v%d" % (XR + 2 * nj + 1, a + 2, a + 3))
        if nj == 8:
            k.e("s_movk_i32 s60, 4096")
        k.vm("buffer_store_dwordx2 %s, v37, %s, %s offen offset:%d" % (vr(XR + 2 * nj, 2), sr(SH, 4), "s60" if nj == 8 else "0", (nj * 512) & 4095) + " sc1")
        for d in range(2):
            k.e("v_lshlrev_b32 v42, 16, v%d" % (XR + 2 * nj + d))
            k.e("v_and_b32 v43, 0xffff0000, v%d" % (XR + 2 * nj + d))
            k.e("v_add_f32 v40, v40, v42")
            k.e("v_fmac_f32 v41, v42, v42")
            k.e("v_add_f32 v40, v40, v43")
            k.e("v_fmac_f32 v41, v43, v43")
    k.e("v_xor_b32 v44, 16, v0")
    k.e("v_lshlrev_b32 v44, 2, v44")
    k.e("v_xor_b32 v45, 32, v0")
    k.e("v_lshlrev_b32 v45, 2, v45")
    for a in (44, 45):
        k.e("ds_bpermute_b32 v42, v%d, v40" % a)
        k.e("ds_bpermute_b32 v43, v%d, v41" % a)
        k.e("s_waitcnt lgkmcnt(0)")
        k.e("v_add_f32 v40, v40, v42")
        k.e("v_add_f32 v41, v41, v43")
    k.e("v_lshlrev_b32 v42, 5, v31")
    k.e("s_lshl_b32 s60, s9, 3")
    k.e("v_add_u32 v42, s60, v42")
    k.e("s_mov_b64 exec, 0xffff")
    k.e("buffer_store_dwordx2 v[40:41], v42, %s, 0 offen sc1" % sr(SST, 4))
    k.e("s_mov_b64 exec, -1")
    stamp(k, 3)
    stamp_flush(k, 6)
    k.e("s_mov_b64 exec, -1")
    k.e("s_branch %s" % lab_p2done)
    k.label(lab_idle)
    for _ in range(11):
        k.e("s_barrier")
    k.label(lab_p2done)
    srd(k, 64, P_WS, FLG_OFF + 32768 + 1024, 1024)
    k.e("s_lshl_b32 s60, s2, 2")
    k.e("v_mov_b32 v1, s60")
    k.e("v_mov_b32 v2, 1")
    k.e("s_waitcnt vmcnt(0) lgkmcnt(0)")
    k.e("s_barrier")
    lab_nf = k.newlab("nf")
    k.e("s_cmp_lg_u32 s4, 0")
    k.e("s_cbranch_scc1 %s" % lab_nf)
    k.e("s_mov_b64 exec, 1")
    k.e("buffer_store_dword v2, v1, s[64:67], 0 offen sc1")
    k.e("s_mov_b64 exec, -1")
    k.label(lab_nf)
    k.lq, k.vq = [], []
    return gen_k3(k)


def gen_k1():
    k = K("qkv")
    WS_, NW = 24576, 5
    XS_, NX = 10240, 3
    XB = WS_ * NW
    QP = 976
    STO = 80 * QP
    header(k, 256)
    stamp(k, 0)
    SX, SW, SO, SG, SCP = 36, 40, 44, 48, 52
    sKW, sKX, sMW, sMX = 56, 57, 58, 59
    k.e("s_and_b32 s9, s2, 7")
    k.e("s_lshr_b32 s10, s2, 3")
    srd(k, SX, P_X, 0, S * D * 2)
    srd(k, SW, P_WQKV, 0, D * 3 * D * 2)
    srd(k, SO, P_WS, O_OFF, S * D * 2)
    k.e("v_and_b32 v16, 15, v0")
    k.e("v_lshrrev_b32 v17, 4, v0")
    vO = 2
    k.e("s_mul_i32 s64, s4, 24")
    k.e("s_mul_i32 s65, s9, 144")
    k.e("s_and_b32 s62, s65, 0xffffff80")
    k.e("s_movk_i32 s63, 3456")
    for t in range(3):
        b_dma_addr(k, vO + t, 64, 8 * t, 2, 63, 62, reg_col=1152)
    k.e("s_lshl_b32 s60, s10, 6")
    k.e("s_lshl_b32 s61, s4, 4")
    k.e("s_add_u32 s60, s60, s61")
    k.e("s_sub_u32 s60, s60, 16")
    k.e("v_add_u32 v18, s60, v16")
    k.e("s_movk_i32 s63, 1152")
    k.e("v_mul_lo_u32 v18, v18, s63")
    k.e("v_lshlrev_b32 v19, 4, v17")
    k.e("v_add_u32 v%d, v18, v19" % (vO + 3))
    k.e("v_add_u32 v%d, 64, v%d" % (vO + 4, vO + 3))
    k.e("s_mov_b32 s%d, 0" % sKW)
    k.e("s_mov_b32 s%d, 0" % sKX)
    k.e("s_mul_i32 s%d, s4, 3072" % sMW)
    k.e("s_lshl_b32 s%d, s4, 11" % sMX)

    def dmaW(st):
        b = (st % NW) * WS_
        g = []
        for t in range(3):
            x = [("s_add_u32 m0, s%d, %d" % (sMW, b + t * 1024), None), ("s_nop 0", None),
                 ("buffer_load_dwordx4 v%d, %s, s%d offen lds" % (vO + t, sr(SW, 4), sKW), ("dma", st))]
            if t == 2:
                x.append(("s_add_u32 s%d, s%d, %d" % (sKW, sKW, 32 * 3456), None))
            g.append(x)
        return g

    def dmaX(xs):
        b = XB + (xs % NX) * XS_
        g = []
        for t in range(2):
            x = [("s_add_u32 m0, s%d, %d" % (sMX, b + t * 1024), None), ("s_nop 0", None),
                 ("buffer_load_dwordx4 v%d, %s, s%d offen lds" % (vO + 3 + t, sr(SX, 4), sKX), ("dma", 2 * xs))]
            if t == 1:
                x.append(("s_add_u32 s%d, s%d, 128" % (sKX, sKX), None))
            g.append(x)
        return g
    lab_nx = k.newlab("nx")
    k.e("s_cmp_ge_u32 s4, 5")
    k.e("s_cbranch_scc1 %s" % lab_nx)
    issue_groups(k, dmaX(0) + dmaX(1))
    k.label(lab_nx)
    issue_groups(k, dmaW(0) + dmaW(1) + dmaW(2) + dmaW(3))
    srd(k, 84, P_WS, FLG_OFF, 32768 + 2048)
    k.e("s_lshl_b32 s60, s2, 7")
    k.e("v_mov_b32 v8, s60")
    k.e("s_lshl_b32 s60, s2, 2")
    k.e("s_add_u32 s60, s60, 32768")
    k.e("v_mov_b32 v9, s60")
    for r in range(4):
        k.e("v_mov_b32 v%d, 0" % (20 + r))
    k.e("s_mov_b64 exec, 1")
    k.e("buffer_store_dwordx4 v[20:23], v8, s[84:87], 0 offen")
    k.e("buffer_store_dword v20, v9, s[84:87], 0 offen")
    k.e("buffer_store_dword v20, v9, s[84:87], 0 offen offset:1024")
    k.e("s_mov_b64 exec, -1")
    k.e("s_nop 1")
    if "newtouch" not in EXP:
        touch(k, 96, P_WQKV, D * 3 * D * 2, 2048, 8, 18, 1)
        touch(k, 96, P_X, S * D * 2, 2048, 8, 18, 1)
    else:
        k.e("s_lshl_b32 s60, s10, 6")
        k.e("s_sub_u32 s60, s60, 16")
        k.e("s_mul_i32 s60, s60, 1152")
        k.e("s_mul_i32 s61, s4, 90 * 128")
        k.e("s_add_u32 s60, s60, s61")
        k.e("v_lshlrev_b32 v18, 7, v0")
        k.e("v_add_u32 v18, s60, v18")
        k.e("v_add_u32 v19, 8192, v18")
        k.vm("buffer_load_dword v1, v18, %s, 0 offen" % sr(SX, 4), "touch")
        k.e("s_mov_b64 exec, 0x3ffffff")
        k.vm("buffer_load_dword v1, v19, %s, 0 offen" % sr(SX, 4), "touch")
        k.e("s_mov_b64 exec, -1")
        k.e("s_mul_i32 s60, s4, 14")
        k.e("v_add_u32 v18, s60, v0")
        k.e("v_mul_u32_u24 v19, 10923, v18")
        k.e("v_lshrrev_b32 v19, 16, v19")
        k.e("v_mul_u32_u24 v20, 6, v19")
        k.e("v_sub_u32 v18, v18, v20")
        k.e("v_lshrrev_b32 v20, 1, v18")
        k.e("v_mul_u32_u24 v20, 1152, v20")
        k.e("v_and_b32 v18, 1, v18")
        k.e("v_lshlrev_b32 v18, 7, v18")
        k.e("s_mul_i32 s60, s10, 18")
        k.e("v_add_u32 v19, s60, v19")
        k.e("v_mul_u32_u24 v19, 3456, v19")
        k.e("s_mul_i32 s60, s9, 144")
        k.e("s_and_b32 s60, s60, 0xffffff80")
        k.e("v_add3_u32 v18, v18, v19, v20")
        k.e("v_add_u32 v18, s60, v18")
        k.e("s_mov_b64 exec, 0x3fff")
        k.vm("buffer_load_dword v1, v18, %s, 0 offen" % sr(SW, 4), "touch")
        k.e("s_mov_b64 exec, -1")
    touch(k, 96, P_WO, D * D * 2, 2048, 8, 18, 1)
    CX = 144
    lab_cs3 = k.newlab("cs3")
    k.e("s_mul_i32 s13, s2, 3")
    k.e("s_add_u32 s13, s13, s4")
    k.e("s_sub_u32 s13, s13, 5")
    k.e("s_mul_i32 s14, s13, 3641")
    k.e("s_lshr_b32 s14, s14, 16")
    k.e("s_mul_i32 s15, s14, 18")
    k.e("s_sub_u32 s15, s13, s15")
    k.e("s_lshl_b32 s60, s4, 5")
    k.e("s_add_u32 s61, s60, 160")
    k.e("s_add_u32 s62, s60, 320")
    k.e("s_sub_u32 s60, s4, 5")
    k.e("s_lshl_b32 s60, s60, 6")
    k.e("s_add_u32 s63, s60, 32")
    k.e("s_min_u32 s63, s63, 128")
    k.e("s_cmp_lt_u32 s4, 5")
    k.e("s_cselect_b32 s11, s61, s60")
    k.e("s_cselect_b32 s12, s62, s63")
    k.e("s_cselect_b32 s66, 8192, 0")
    k.e("s_cselect_b32 s67, 16384, 0")
    k.e("s_cselect_b32 s68, 160, 0")
    k.e("s_cselect_b32 s69, 320, 0")
    vB0, vB1, vA, vS = 20, 25, 30, 33
    swap23_lane_rowpos(k, 8, 0, 18, 19)
    k.e("v_bfe_u32 v9, v8, 1, 2")
    k.e("v_and_b32 v10, 1, v8")
    k.e("v_lshlrev_b32 v8, 8, v8")
    k.e("v_and_b32 v11, 3, v0")
    k.e("v_lshlrev_b32 v11, 3, v11")
    k.e("s_and_b32 s65, s65, 127")
    for (vd, sreg, sreb, ssub) in ((vB0, 11, 66, 68), (vB1, 12, 67, 69)):
        k.e("s_sub_u32 s60, s%d, s%d" % (sreg, ssub))
        k.e("s_add_u32 s60, s60, s65")
        k.e("v_add_u32 v18, s60, v11")
        k.e("v_bfe_u32 v19, v18, 7, 1")
        k.e("v_xor_b32 v19, v19, v10")
        k.e("v_lshlrev_b32 v19, 7, v19")
        k.e("v_bfe_u32 v12, v18, 5, 2")
        k.e("v_xor_b32 v12, v12, v9")
        k.e("v_lshlrev_b32 v12, 5, v12")
        k.e("v_and_b32 v18, 31, v18")
        k.e("v_add3_u32 v18, v18, v19, v12")
        k.e("v_add3_u32 v%d, v18, v8, s%d" % (vd, sreb))
    k.e("v_lshlrev_b32 v%d, 4, v0" % vA)
    k.e("v_add_u32 v%d, %d, v%d" % (vA, XB, vA))
    k.e("v_add_u32 v%d, s%d, v%d" % (vS, sMX, vA))
    for b in range(1, NW):
        for v in (vB0, vB1):
            k.e("v_add_u32 v%d, %d, v%d" % (v + b, b * WS_, v))
    for b in range(1, NX):
        for v in (vA, vS):
            k.e("v_add_u32 v%d, %d, v%d" % (v + b, b * XS_, v))
    ONES = 36
    for r in range(4):
        k.e("v_mov_b32 v%d, 0x3f803f80" % (ONES + r))
    ACC = 40
    acc = lambda sl, mi: ACC + (sl * 6 + mi) * 4
    SACC = 88
    AF = [[96 + 4 * mi for mi in range(6)], [120 + 4 * mi for mi in range(6)]]
    BF = [[216, 220], [224, 228]]
    lab_q = k.newlab("qpath")
    lab_post = k.newlab("post")
    k.e("s_cmp_ge_u32 s4, 5")
    k.e("s_cbranch_scc1 %s" % lab_q)
    for path in range(2):
        if path == 1:
            k.e("s_branch %s" % lab_post)
            k.label(lab_q)
        k.lq, k.vq = [], []
        mis = [0, 1, 2, 3, 4] if path == 0 else [1, 2, 3, 4]
        k.vq = [("dma", 0)] * 3 + [("dma", 1)] * 3 + [("dma", 2)] * 3 + [("dma", 3)] * 3 + ["z"] * 6
        def rdl(s):
            xs, kk = divmod(s, 2)
            out = []
            for sl in range(2):
                for j in range(2):
                    out.append("ds_read_b64_tr_b16 %s, v%d offset:%d" % (vr(BF[s % 2][sl] + 2 * j, 2), (vB0, vB1)[sl] + s % NW, j * 2048))
            for mi in mis:
                out.append("ds_read_b128 %s, v%d offset:%d" % (vr(AF[s % 2][mi], 4), vA + xs % NX, (mi * 2 + kk) * 1024))
            if path == 0:
                out.append("ds_read_b128 %s, v%d offset:%d" % (vr(AF[s % 2][5], 4), vS + xs % NX, kk * 1024))
            return out
        if path == 0 and "k1fine" not in EXP:
            stamp(k, 1)
        k.wait_vm(("dma", 0))
        k.e("s_barrier")
        for x in rdl(0):
            k.lds(x, ("f", 0))
        for s in range(18):
            k.c("---- step %d" % s)
            if STAMP and "k1fine" in EXP and path == 0 and s in (1, 6):
                k.e("s_memtime s[%d:%d]" % ((72, 73) if s == 1 else (74, 75)))
            groups = []
            reads = []
            if s + 1 < 18:
                k.wait_vm(("dma", s + 1))
                k.e("s_barrier")
                if path == 0 and s % 2 == 0 and s // 2 + 2 < 9:
                    groups += dmaX(s // 2 + 2)
                if s + NW - 1 < 18:
                    groups += dmaW(s + NW - 1)
                reads = rdl(s + 1)
            if False:
                groups.append([("buffer_load_dwordx4 %s, v7, %s, s88 offen" % (vr(CX + 4 * s, 4), sr(SG, 4)), "cs"),
                               ("s_add_u32 s88, s88, 9216", None)])
            k.wait_lds(("f", s))
            mf = []
            for sl in range(2):
                for mi in mis + [5]:
                    a = acc(sl, mi)
                    cc = "0" if s == 0 else vr(a, 4)
                    bop = vr(AF[s % 2][mi], 4) if mi < 5 else vr(ONES, 4)
                    mf.append("v_mfma_f32_16x16x32_bf16 %s, %s, %s, %s" % (vr(a, 4), vr(BF[s % 2][sl], 4), bop, cc))
            if path == 0:
                sf = vr(AF[s % 2][5], 4)
                mf.append("v_mfma_f32_16x16x32_bf16 %s, %s, %s, %s" % (vr(SACC, 4), vr(ONES, 4), sf, "0" if s == 0 else vr(SACC, 4)))
                mf.append("v_mfma_f32_16x16x32_bf16 %s, %s, %s, %s" % (vr(SACC + 4, 4), sf, sf, "0" if s == 0 else vr(SACC + 4, 4)))
            for n, m in enumerate(mf):
                k.e(m)
                if n < len(reads):
                    k.lds(reads[n], ("f", s + 1))
                g0 = len(mf) - len(groups)
                if n >= g0:
                    issue_groups(k, [groups[n - g0]])
    k.label(lab_post)
    k.lq, k.vq = [], []
    if "k1fine" in EXP:
        k.e("s_waitcnt lgkmcnt(0)")
        stamp(k, 3)
        stamp_flush(k, 6)
        k.e("s_mov_b64 exec, -1")
    else:
        stamp(k, 2)
    k.e("s_nop 7")
    k.e("s_nop 7")
    k.e("s_barrier")
    k.e("v_and_b32 v18, 3, v0")
    k.e("v_cmp_eq_u32 vcc, 1, v18")
    k.e("v_mov_b32 v19, v%d" % (SACC + 4))
    k.e("s_nop 0")
    k.e("v_cndmask_b32 v19, v19, v%d, vcc" % (SACC + 5))
    k.e("v_cmp_eq_u32 vcc, 2, v18")
    k.e("s_nop 1")
    k.e("v_cndmask_b32 v19, v19, v%d, vcc" % (SACC + 6))
    k.e("v_cmp_eq_u32 vcc, 3, v18")
    k.e("s_nop 1")
    k.e("v_cndmask_b32 v19, v19, v%d, vcc" % (SACC + 7))
    k.e("s_mov_b32 s60, 0x%x" % f2u(1.0 / 576.0))
    k.e("s_mov_b32 s61, 0x%x" % f2u(1e-5))
    k.e("v_mul_f32 v8, s60, v%d" % SACC)
    k.e("v_mul_f32 v19, s60, v19")
    k.e("v_fma_f32 v19, -v8, v8, v19")
    k.e("v_max_f32 v19, 0, v19")
    k.e("v_add_f32 v19, s61, v19")
    k.e("v_rsq_f32 v9, v19")
    k.e("v_sub_f32 v8, 0, v8")
    k.e("v_lshrrev_b32 v18, 2, v16")
    k.e("v_cmp_eq_u32 vcc, v18, v17")
    k.e("s_lshl_b32 s60, s4, 7")
    k.e("v_lshlrev_b32 v18, 3, v16")
    k.e("v_add_u32 v18, s60, v18")
    k.e("v_add_u32 v18, %d, v18" % STO)
    k.e("s_and_saveexec_b64 s[60:61], vcc")
    k.e("ds_write_b64 v18, v[8:9]")
    k.e("s_mov_b64 exec, -1")
    k.e("s_waitcnt lgkmcnt(0)")
    k.e("s_barrier")
    k.e("v_lshlrev_b32 v18, 3, v16")
    k.e("v_add_u32 v18, %d, v18" % STO)
    for mi in range(5):
        k.lds("ds_read_b64 %s, v18 offset:%d" % (vr(96 + 2 * mi, 2), mi * 128), "st")
    for sl, sreg in ((0, 11), (1, 12)):
        k.e("s_lshl_b32 s60, s%d, 1" % sreg)
        k.e("v_mul_u32_u24 v18, %d, v16" % QP)
        k.e("v_lshlrev_b32 v19, 4, v17")
        k.e("v_add3_u32 v%d, v18, v19, s60" % (8 + sl))
    k.wait_lds("st")
    for sl in range(2):
        cw = acc(sl, 5)
        for mi in range(5):
            a = acc(sl, mi)
            for r in range(4):
                k.e("v_fma_f32 v%d, v%d, v%d, v%d" % (a + r, 96 + 2 * mi, cw + r, a + r))
            for r in range(4):
                k.e("v_mul_f32 v%d, v%d, v%d" % (a + r, 97 + 2 * mi, a + r))
            k.e("v_cvt_pk_bf16_f32 v18, v%d, v%d" % (a, a + 1))
            k.e("v_cvt_pk_bf16_f32 v19, v%d, v%d" % (a + 2, a + 3))
            k.e("v_lshlrev_b32 v%d, 16, v18" % a)
            k.e("v_and_b32 v%d, 0xffff0000, v18" % (a + 1))
            k.e("v_lshlrev_b32 v%d, 16, v19" % (a + 2))
            k.e("v_and_b32 v%d, 0xffff0000, v19" % (a + 3))
            k.lds("ds_write_b128 v%d, %s offset:%d" % (8 + sl, vr(a, 4), mi * 16 * QP))
    k.wait_lds_all()
    k.e("s_barrier")
    k.e("v_lshrrev_b32 v18, 3, v0")
    k.e("s_lshl_b32 s60, s4, 3")
    k.e("v_add_u32 v18, s60, v18")
    k.e("v_bfe_u32 v19, v0, 1, 2")
    k.e("v_and_b32 v26, 1, v0")
    k.e("v_mul_u32_u24 v20, %d, v18" % QP)
    k.e("v_mul_u32_u24 v21, 72, v19")
    k.e("v_add_u32 v20, v20, v21")
    k.e("v_mul_u32_u24 v21, %d, v26" % (8 * QP))
    k.e("v_sub_u32 v27, v20, v21")
    k.e("v_add_u32 v27, %d, v27" % (10 * QP))
    Q = 32
    KV = 52
    L = 124
    O = 128
    for d in range(9):
        k.lds("ds_read_b64 %s, v20 offset:%d" % (vr(Q + 2 * d, 2), 16 * QP + d * 8), "q")
    seq = [("k", j) for j in range(4)] + [("v", j) for j in range(4)]

    def rdkv(n):
        kind, j = seq[n]
        col = 320 if kind == "k" else 640
        for d in range(9):
            k.lds("ds_read_b64 %s, v27 offset:%d" % (vr(KV + (n % 4) * 18 + 2 * d, 2), (3 - j) * 2 * QP + col + d * 8), seq[n])
    rdkv(0)
    rdkv(1)
    rdkv(2)
    for j in range(4):
        rdkv(j + 3)
        k.wait_lds(("k", j))
        b = KV + j * 18
        k.e("v_mul_f32 v%d, v%d, v%d" % (L + j, Q, b))
        k.e("v_mul_f32 v24, v%d, v%d" % (Q + 1, b + 1))
        for d in range(2, 18, 2):
            k.e("v_fmac_f32 v%d, v%d, v%d" % (L + j, Q + d, b + d))
            k.e("v_fmac_f32 v24, v%d, v%d" % (Q + d + 1, b + d + 1))
        k.e("v_add_f32 v%d, v%d, v24" % (L + j, L + j))
    rdkv(7)
    k.e("s_mov_b32 s60, 0x%x" % f2u(18 ** -0.5))
    k.e("s_lshl_b32 s61, s10, 6")
    k.e("v_add_u32 v22, s61, v18")
    k.e("v_lshlrev_b32 v25, 3, v26")
    k.e("v_sub_u32 v25, v22, v25")
    k.e("v_mov_b32 v23, 0x%x" % f2u(-1e9))
    for j in range(4):
        k.e("v_mul_f32 v%d, s60, v%d" % (L + j, L + j))
    for j in range(4):
        k.e("v_cmp_le_i32 vcc, %d, v25" % (2 * j))
        k.e("s_nop 1")
        k.e("v_cndmask_b32 v%d, v23, v%d, vcc" % (L + j, L + j))
    k.e("v_max3_f32 v24, v%d, v%d, v%d" % (L, L + 1, L + 2))
    k.e("v_max_f32 v24, v24, v%d" % (L + 3))
    k.e("s_nop 1")
    k.e("v_max_f32 v24, v24, v24 quad_perm:[1,0,3,2] row_mask:0xf bank_mask:0xf")
    k.e("s_mov_b32 s60, 0x%x" % f2u(1.4426950408889634))
    for j in range(4):
        k.e("v_sub_f32 v%d, v%d, v24" % (L + j, L + j))
    for j in range(4):
        k.e("v_mul_f32 v%d, s60, v%d" % (L + j, L + j))
    for j in range(4):
        k.e("v_exp_f32 v%d, v%d" % (L + j, L + j))
    k.e("s_nop 0")
    k.e("v_add_f32 v24, v%d, v%d" % (L, L + 1))
    k.e("v_add_f32 v25, v%d, v%d" % (L + 2, L + 3))
    k.e("v_add_f32 v24, v24, v25")
    k.e("s_nop 1")
    k.e("v_add_f32 v24, v24, v24 quad_perm:[1,0,3,2] row_mask:0xf bank_mask:0xf")
    k.e("v_rcp_f32 v24, v24")
    k.e("s_nop 0")
    for j in range(4):
        k.e("v_mul_f32 v%d, v%d, v24" % (L + j, L + j))
    for j in range(4):
        k.wait_lds(("v", j))
        b = KV + j * 18
        for d in range(18):
            if j == 0:
                k.e("v_mul_f32 v%d, v%d, v%d" % (O + d, L, b + d))
            else:
                k.e("v_fmac_f32 v%d, v%d, v%d" % (O + d, L + j, b + d))
    k.e("s_nop 1")
    for d in range(18):
        k.e("v_add_f32 v%d, v%d, v%d quad_perm:[1,0,3,2] row_mask:0xf bank_mask:0xf" % (KV + d, O + d, O + d))
    for d in range(9):
        k.e("v_cvt_pk_bf16_f32 v%d, v%d, v%d" % (Q + d, KV + 2 * d, KV + 2 * d + 1))
    k.e("v_cmp_eq_u32 vcc, 1, v26")
    k.e("v_lshrrev_b32 v23, 4, v22")
    k.e("v_mul_u32_u24 v23, 18432, v23")
    k.e("v_and_b32 v24, 15, v22")
    k.e("v_lshlrev_b32 v24, 4, v24")
    k.e("v_add_u32 v23, v23, v24")
    k.e("v_mul_u32_u24 v21, 18, v19")
    k.e("s_mul_i32 s60, s9, 72")
    k.e("v_add_u32 v21, s60, v21")
    k.e("v_lshlrev_b32 v24, 3, v26")
    k.e("v_add_u32 v21, v21, v24")
    for d in range(5):
        k.e("v_cndmask_b32 v%d, v%d, v%d, vcc" % (O + d, Q + d, Q + d + 4))
        k.e("v_add_u32 v24, %d, v21" % (2 * d))
        k.e("v_lshrrev_b32 v25, 3, v24")
        k.e("v_lshlrev_b32 v25, 8, v25")
        k.e("v_and_b32 v24, 7, v24")
        k.e("v_lshlrev_b32 v24, 1, v24")
        k.e("v_add3_u32 v%d, v23, v24, v25" % (O + 8 + d))
        k.e("buffer_store_dword v%d, v%d, %s, 0 offen" % (O + d, O + 8 + d, sr(SO, 4)))
    if "k1fine" not in EXP:
        stamp(k, 3)
        stamp_flush(k, 6)
    k.label(lab_cs3)
    footer(k)
    return k, 256


def main():
    ks = [
        (gen_k1, 512, 5 * 24576 + 3 * 10240, 232),
        (gen_k2, 512, 4 * 40960, 256),
    ]
    hdr = open("sequential_preLN__sliding_local_dilated__geglu_ffn__prompt.s.ref").read().split("\n")
    out = []
    for line in hdr:
        if line.startswith("; Override") or line.startswith("; grid=") or line.startswith("; @launch"):
            continue
        if not line.startswith(";"):
            break
        out.append(line)
    body = []
    desc = []
    for fn, block, lds, nv in ks:
        k, nwg = fn()
        name = k.name + "_kernel"
        out.append("; @launch kernel=%s grid=(%d,1,1) block=(%d,1,1) lds=%d" % (name, nwg, block, lds))
        body += [".globl %s" % name, ".p2align 8", ".type %s,@function" % name, "%s:" % name] + k.L
        desc += [".p2align 6", ".amdhsa_kernel %s" % name,
                 "  .amdhsa_next_free_vgpr %d" % nv, "  .amdhsa_next_free_sgpr 102",
                 "  .amdhsa_accum_offset %d" % nv,
                 "  .amdhsa_group_segment_fixed_size 0", "  .amdhsa_kernarg_size 80",
                 "  .amdhsa_user_sgpr_count 2", "  .amdhsa_user_sgpr_kernarg_segment_ptr 1",
                 "  .amdhsa_system_sgpr_workgroup_id_x 1", ".end_amdhsa_kernel"]
    out += ['.amdgcn_target "amdgcn-amd-amdhsa--gfx950"', ".text"] + body + ['.section .rodata,"a"'] + desc
    path = sys.argv[1] if len(sys.argv) > 1 else "sequential_preLN__sliding_local_dilated__geglu_ffn__prompt.s"
    open(path, "w").write("\n".join(out) + "\n")


main()
```

```python
import sys, struct

S, D, F = 2048, 576, 4608
O_OFF = 0x0000000
H_OFF = 0x0400000
ST_OFF = 0x0800000
CP_OFF = 0x0A00000
CS_OFF = 0x0860000
FLG_OFF = 0x0880000
ACT_OFF = 0x1000000
PART_OFF = 0x3000000


def f2u(x):
    return struct.unpack("<I", struct.pack("<f", x))[0]


EXP = __import__("os").environ.get("EXP", "")


class K:
    def __init__(s, name):
        s.name = name
        s.L = []
        s.lq = []
        s.vq = []
        s.nlab = 0

    def e(s, t):
        if "nomfma" in EXP and t.startswith("v_mfma"):
            return
        if "noldsrd" in EXP and (t.startswith("ds_read_b128") or t.startswith("ds_read_b64_tr")):
            return
        if "nodma" in EXP and t.endswith(" lds"):
            return
        if "nox" in EXP and t.endswith(" lds") and "s[36:39]" in t and s.name == "qkv":
            return
        if "now" in EXP and t.endswith(" lds") and "s[40:43]" in t and s.name == "qkv":
            return
        s.L.append("    " + t)

    def c(s, t):
        s.L.append("    ; " + t)

    def label(s, n):
        s.L.append(n + ":")

    def newlab(s, base):
        s.nlab += 1
        return "L_%s_%s_%d" % (s.name, base, s.nlab)

    def lds(s, t, tag=None):
        s.e(t)
        s.lq.append(tag)

    def vm(s, t, tag=None):
        s.e(t)
        s.vq.append(tag)

    def _need(s, q, tag):
        idx = -1
        for i, x in enumerate(q):
            if x == tag:
                idx = i
        return idx

    def wait_lds(s, tag):
        idx = s._need(s.lq, tag)
        if idx < 0:
            return
        n = len(s.lq) - idx - 1
        n = min(n, 15)
        s.e("s_waitcnt lgkmcnt(%d)" % n)
        s.lq = s.lq[len(s.lq) - n:] if n else []

    def wait_vm(s, tag):
        idx = s._need(s.vq, tag)
        if idx < 0:
            return
        n = len(s.vq) - idx - 1
        n = min(n, 63)
        s.e("s_waitcnt vmcnt(%d)" % n)
        s.vq = s.vq[len(s.vq) - n:] if n else []

    def wait_all(s):
        s.e("s_waitcnt vmcnt(0) lgkmcnt(0)")
        s.lq = []
        s.vq = []

    def wait_lds_all(s):
        s.e("s_waitcnt lgkmcnt(0)")
        s.lq = []

    def wait_vm_all(s):
        s.e("s_waitcnt vmcnt(0)")
        s.vq = []


STAMP = int(__import__("os").environ.get("STAMP", "0"))


def stamp(k, idx):
    if STAMP:
        k.e("s_memtime s[%d:%d]" % (70 + 2 * idx, 71 + 2 * idx))
        if idx in (0, 3):
            k.e("s_memrealtime s[%d:%d]" % (78 + (2 if idx else 0), 79 + (2 if idx else 0)))
        k.e("s_waitcnt lgkmcnt(0)")
        k.lq = []


def stamp_flush(k, n):
    if STAMP == 2:
        slot = getattr(k, "stamp_slot", 0)
        lab = k.newlab("nost")
        k.e("s_cmp_lg_u32 s2, 5")
        k.e("s_cbranch_scc1 %s" % lab)
        k.e("s_cmp_lg_u32 s4, 0")
        k.e("s_cbranch_scc1 %s" % lab)
        if not slot:
            k.e("s_add_u32 s92, s%d, 512" % P_DBG)
            k.e("s_addc_u32 s93, s%d, 0" % (P_DBG + 1))
        else:
            k.e("s_mov_b32 s92, s%d" % P_DBG)
            k.e("s_mov_b32 s93, s%d" % (P_DBG + 1))
        k.e("s_mov_b32 s94, 256")
        k.e("s_mov_b32 s95, 0x00020000")
        k.e("v_mov_b32 v1, 0")
        k.e("s_mov_b64 exec, 1")
        for i, r in enumerate((78, 80)):
            k.e("v_mov_b32 v2, s%d" % r)
            k.e("buffer_store_dword v2, v1, s[92:95], 0 offen offset:%d" % (8 * slot + 4 * i))
        k.label(lab)
        return
    if STAMP:
        lab = k.newlab("nost")
        k.e("s_and_b32 s90, s2, 127")
        k.e("s_cmp_lg_u32 s90, 5")
        k.e("s_cbranch_scc1 %s" % lab)
        k.e("s_cmp_lg_u32 s4, 0")
        k.e("s_cbranch_scc1 %s" % lab)
        srd(k, 92, P_WS, 0x900000 + 512 * getattr(k, "stamp_slot", 0), 256)
        k.e("s_lshr_b32 s90, s2, 7")
        k.e("s_lshl_b32 s90, s90, 6")
        k.e("v_mov_b32 v1, s90")
        k.e("s_mov_b64 exec, 1")
        for i in range(n):
            k.e("v_mov_b32 v2, s%d" % (70 + 2 * i))
            k.e("buffer_store_dword v2, v1, s[92:95], 0 offen offset:%d" % (4 * i))
        k.label(lab)


def vr(b, n):
    return "v[%d:%d]" % (b, b + n - 1)


def sr(b, n):
    return "s[%d:%d]" % (b, b + n - 1)


P_X, P_WQKV, P_WO, P_BX, P_WG, P_WU, P_WD, P_OUT, P_DBG, P_WS = 16, 18, 20, 22, 24, 26, 28, 30, 32, 34


def header(k, nwg):
    k.e("s_cmp_ge_u32 s2, %d" % nwg)
    k.e("s_cbranch_scc1 L_%s_end" % k.name)
    k.e("s_load_dwordx16 s[16:31], s[0:1], 0")
    k.e("s_load_dwordx4 s[32:35], s[0:1], 64")
    k.e("v_lshrrev_b32 v1, 6, v0")
    k.e("v_and_b32 v0, 63, v0")
    k.e("s_nop 0")
    k.e("v_readfirstlane_b32 s4, v1")
    k.e("s_waitcnt lgkmcnt(0)")


def srd(k, d, ptr, off, nbytes):
    if off:
        k.e("s_add_u32 s%d, s%d, 0x%x" % (d, ptr, off))
        k.e("s_addc_u32 s%d, s%d, 0" % (d + 1, ptr + 1))
    else:
        k.e("s_mov_b32 s%d, s%d" % (d, ptr))
        k.e("s_mov_b32 s%d, s%d" % (d + 1, ptr + 1))
    k.e("s_mov_b32 s%d, 0x%x" % (d + 2, nbytes))
    k.e("s_mov_b32 s%d, 0x00020000" % (d + 3))


def footer(k):
    k.label("L_%s_end" % k.name)
    k.e("s_endpgm")


def swap23_lane_rowpos(k, vdst, vlane, vt, vt2):
    k.e("v_lshrrev_b32 v%d, 5, v%d" % (vt, vlane))
    k.e("v_lshlrev_b32 v%d, 4, v%d" % (vdst, vt))
    k.e("v_bfe_u32 v%d, v%d, 4, 1" % (vt, vlane))
    k.e("v_lshlrev_b32 v%d, 2, v%d" % (vt, vt))
    k.e("v_add_u32 v%d, v%d, v%d" % (vdst, vdst, vt))
    k.e("v_bfe_u32 v%d, v%d, 2, 2" % (vt2, vlane))
    k.e("v_add_u32 v%d, v%d, v%d" % (vdst, vdst, vt2))


def swap23(k, vdst, vp, vt, vt2):
    k.e("v_and_b32 v%d, 0x33, v%d" % (vdst, vp))
    k.e("v_bfe_u32 v%d, v%d, 2, 1" % (vt, vp))
    k.e("v_lshlrev_b32 v%d, 3, v%d" % (vt, vt))
    k.e("v_bfe_u32 v%d, v%d, 3, 1" % (vt2, vp))
    k.e("v_lshlrev_b32 v%d, 2, v%d" % (vt2, vt2))
    k.e("v_or3_b32 v%d, v%d, v%d, v%d" % (vdst, vdst, vt, vt2))


def gemm_core(k, nst, nbuf, MI, acc, afr, bring, PD, a_rd, b_rd, dma, zero_init, NJ=9, sub=1, extra=None):
    RB = len(bring)
    nm = MI * NJ
    nsteps = nst * sub

    def rdB(t):
        sp, nj = divmod(t, NJ)
        if sp >= nsteps:
            return []
        st, kk = divmod(sp, sub)
        slot = bring[t % RB]
        out = []
        for j in range(2):
            v, off = b_rd(st % nbuf, nj, j, kk) if sub > 1 else b_rd(st % nbuf, nj, j)
            out.append(("ds_read_b64_tr_b16 %s, v%d offset:%d" % (vr(slot + 2 * j, 2), v, off), ("B", t)))
        return out

    def rdA(sp, i):
        if sp >= nsteps:
            return []
        st, kk = divmod(sp, sub)
        v, off = a_rd(st % nbuf, i, kk) if sub > 1 else a_rd(st % nbuf, i)
        return [("ds_read_b128 %s, v%d offset:%d" % (vr(afr[sp % 2][i], 4), v, off), ("A", sp))]

    k.wait_vm(("dma", 0))
    k.e("s_barrier")
    for i in range(MI):
        for (t, tag) in rdA(0, i):
            k.lds(t, tag)
    for t in range(PD):
        for (x, tag) in rdB(t):
            k.lds(x, tag)
    for s in range(nsteps):
        k.c("---- step %d" % s)
        groups = []
        st = s // sub
        if (s + 1) % sub == 0 and st + 1 < nst:
            k.wait_vm(("dma", st + 1))
            k.e("s_barrier")
            if st + nbuf - 1 < nst:
                groups = dma(st + nbuf - 1)
        ev = {}

        def add(idx, fn):
            ev.setdefault(min(idx, nm - 1), []).append(fn)
        for nj in range(NJ):
            t = s * NJ + nj
            add(nj * MI, (lambda tt: (lambda: [k.lds(x, tag) for (x, tag) in rdB(tt)]))(t + PD))
        for i in range(MI):
            add((2 + i) * MI + min(1, MI - 1), (lambda ii: (lambda: [k.lds(x, tag) for (x, tag) in rdA(s + 1, ii)]))(i))
        for gi, g in enumerate(groups):
            def mk(g):
                def f():
                    for (x, tag) in g:
                        if tag is None:
                            k.e(x)
                        else:
                            k.vm(x, tag)
                return f
            add(gi * MI + min(2, MI - 1), mk(g))
        for nj in range(NJ):
            t = s * NJ + nj
            if nj == 0:
                k.wait_lds(("A", s))
            k.wait_lds(("B", t))
            for i in range(MI):
                a = acc(i, nj)
                cc = "0" if (zero_init and s == 0) else vr(a, 4)
                k.e("v_mfma_f32_16x16x32_bf16 %s, %s, %s, %s" % (vr(a, 4), vr(bring[t % RB], 4), vr(afr[s % 2][i], 4), cc))
                for fn in ev.get(nj * MI + i, []):
                    fn()
            if extra:
                extra(s, nj, bring[t % RB])


def fl_lane(k, vdst, vt):
    k.e("v_lshrrev_b32 v%d, 1, v17" % vt)
    k.e("v_lshlrev_b32 v%d, 8, v%d" % (vdst, vt))
    k.e("v_lshlrev_b32 v%d, 4, v16" % vt)
    k.e("v_add_u32 v%d, v%d, v%d" % (vdst, vdst, vt))
    k.e("v_and_b32 v%d, 1, v17" % vt)
    k.e("v_lshlrev_b32 v%d, 3, v%d" % (vt, vt))
    k.e("v_add_u32 v%d, v%d, v%d" % (vdst, vdst, vt))


def b_dma_addr(k, vdst, sL0, iofs, NL, spitch, scol, reg_row=0, reg_col=0):
    k.e("v_lshrrev_b32 v18, 3, v0")
    k.e("v_add_u32 v18, s%d, v18" % sL0)
    if iofs:
        k.e("v_add_u32 v18, %d, v18" % iofs)
    if NL == 3:
        k.e("v_mul_u32_u24 v19, 21846, v18")
        k.e("v_lshrrev_b32 v19, 16, v19")
        k.e("v_mul_u32_u24 v20, 3, v19")
        k.e("v_sub_u32 v18, v18, v20")
    else:
        k.e("v_lshrrev_b32 v19, 1, v18")
        k.e("v_xor_b32 v18, v18, v19")
        k.e("v_and_b32 v18, 1, v18")
    k.e("v_lshlrev_b32 v18, 7, v18")
    k.e("v_bfe_u32 v20, v19, 1, 2")
    k.e("v_bfe_u32 v21, v0, 1, 2")
    k.e("v_xor_b32 v20, v20, v21")
    k.e("v_lshlrev_b32 v20, 5, v20")
    k.e("v_and_b32 v21, 1, v0")
    k.e("v_lshlrev_b32 v21, 4, v21")
    k.e("v_add3_u32 v18, v18, v20, v21")
    k.e("v_lshrrev_b32 v23, 5, v19")
    k.e("v_and_b32 v19, 31, v19")
    swap23(k, 20, 19, 21, 22)
    if reg_row:
        k.e("v_mul_u32_u24 v21, %d, v23" % reg_row)
        k.e("v_add_u32 v20, v20, v21")
    k.e("v_mul_lo_u32 v20, v20, s%d" % spitch)
    if reg_col:
        k.e("v_mul_u32_u24 v23, %d, v23" % reg_col)
        k.e("v_add_u32 v18, v18, v23")
    k.e("v_add3_u32 v%d, v20, v18, s%d" % (vdst, scol))


def b_rd_addr3(k, vq, sn0p, sbase):
    swap23_lane_rowpos(k, 18, 0, 19, 20)
    k.e("v_bfe_u32 v19, v18, 1, 2")
    k.e("v_mul_u32_u24 v18, 384, v18")
    k.e("v_and_b32 v20, 3, v0")
    k.e("v_lshlrev_b32 v20, 3, v20")
    k.e("v_add3_u32 v18, v18, v20, s%d" % sbase)
    for q in range(4):
        k.e("s_add_u32 s60, s%d, %d" % (sn0p, q))
        k.e("s_and_b32 s61, s60, 3")
        k.e("s_lshr_b32 s60, s60, 2")
        k.e("s_lshl_b32 s60, s60, 7")
        k.e("v_xor_b32 v20, s61, v19")
        k.e("v_lshlrev_b32 v20, 5, v20")
        k.e("v_add3_u32 v%d, v18, v20, s60" % (vq + q))


def touch(k, ssrd, ptr, nbytes, nwaves_total, wpw, vtmp, vdst):
    if "notouchall" in EXP:
        return
    nlines = nbytes // 128
    per = (nlines + nwaves_total - 1) // nwaves_total
    assert per <= 64
    srd(k, ssrd, ptr, 0, nbytes)
    k.e("s_mul_i32 s60, s2, %d" % wpw)
    k.e("s_add_u32 s60, s60, s4")
    k.e("s_mul_i32 s60, s60, %d" % per)
    k.e("v_add_u32 v%d, s60, v0" % vtmp)
    k.e("v_lshlrev_b32 v%d, 7, v%d" % (vtmp, vtmp))
    if per < 64:
        m = (1 << per) - 1
        k.e("s_mov_b32 exec_lo, 0x%x" % (m & 0xffffffff))
        k.e("s_mov_b32 exec_hi, 0x%x" % (m >> 32))
    k.vm("buffer_load_dword v%d, v%d, %s, 0 offen" % (vdst, vtmp, sr(ssrd, 4)), "touch")
    k.e("s_mov_b64 exec, -1")


def issue_groups(k, groups):
    for g in groups:
        for (x, tag) in g:
            if tag is None:
                k.e(x)
            else:
                k.vm(x, tag)


def gen_k3(k):
    SB = 40960
    NBUF = 4
    k.stamp_slot = 2
    stamp(k, 0)
    SA, SBd, SST, SCS, SO = 36, 40, 44, 48, 52
    sKA, sKB, sMA, sMB = 56, 57, 58, 59
    k.e("s_and_b32 s60, s2, 7")
    k.e("s_lshr_b32 s61, s2, 3")
    k.e("s_and_b32 s62, s61, 3")
    k.e("s_lshl_b32 s60, s60, 2")
    k.e("s_add_u32 s9, s60, s62")
    k.e("s_lshr_b32 s61, s61, 2")
    k.e("s_lshl_b32 s7, s61, 8")
    k.e("s_mul_i32 s8, s9, 144")
    k.e("s_and_b32 s5, s4, 3")
    k.e("s_lshr_b32 s6, s4, 2")
    srd(k, SA, P_WS, H_OFF, S * D * 2)
    k.e("s_cmp_lt_u32 s4, 4")
    k.e("s_cselect_b32 s%d, s%d, s%d" % (SBd, P_WG, P_WU))
    k.e("s_cselect_b32 s%d, s%d, s%d" % (SBd + 1, P_WG + 1, P_WU + 1))
    k.e("s_mov_b32 s%d, 0x%x" % (SBd + 2, D * F * 2))
    k.e("s_mov_b32 s%d, 0x00020000" % (SBd + 3))
    srd(k, SST, P_WS, ST_OFF, S * 32)
    srd(k, SO, P_WS, ACT_OFF, S * F * 2)
    vOA0, vOA1, vOB = 2, 3, 4
    vA, vB = 8, 24
    vR, vM = 40, 44
    ACC = 96
    afr = [[48 + 4 * i for i in range(4)], [64 + 4 * i for i in range(4)]]
    bring = [80, 84, 88, 92]
    k.e("v_and_b32 v16, 15, v0")
    k.e("v_lshrrev_b32 v17, 4, v0")
    k.e("s_lshr_b32 s60, s7, 4")
    k.e("s_lshl_b32 s61, s4, 1")
    k.e("s_add_u32 s60, s60, s61")
    k.e("s_mul_i32 s60, s60, 18432")
    k.e("v_lshlrev_b32 v19, 4, v0")
    k.e("v_add_u32 v%d, s60, v19" % vOA0)
    k.e("v_add_u32 v%d, 18432, v%d" % (vOA1, vOA0))
    k.e("s_and_b32 s60, s4, 3")
    k.e("s_mul_i32 s68, s60, 24")
    k.e("s_lshl_b32 s62, s8, 1")
    k.e("s_and_b32 s62, s62, 0xffffff80")
    k.e("s_movk_i32 s63, 9216")
    for i in range(3):
        b_dma_addr(k, vOB + i, 68, 8 * i, 3, 63, 62)
    k.e("s_mov_b32 s%d, 0" % sKA)
    k.e("s_mov_b32 s%d, 0" % sKB)
    k.e("s_lshl_b32 s%d, s4, 11" % sMA)
    k.e("s_mul_i32 s%d, s4, 3072" % sMB)
    k.e("s_add_u32 s%d, s%d, 16384" % (sMB, sMB))

    def dmaA(st):
        b = (st % NBUF) * SB
        tag = ("dma", st)
        g = []
        for i in range(2):
            x = [("s_add_u32 m0, s%d, %d" % (sMA, b + i * 1024), None), ("s_nop 0", None),
                 ("buffer_load_dwordx4 v%d, %s, s%d offen sc1 lds" % (vOA0 + i, sr(SA, 4), sKA), tag)]
            if i == 1:
                x.append(("s_add_u32 s%d, s%d, 1024" % (sKA, sKA), None))
            g.append(x)
        return g

    def dmaB(st):
        b = (st % NBUF) * SB
        tag = ("dma", st)
        g = []
        for i in range(3):
            x = [("s_add_u32 m0, s%d, %d" % (sMB, b + i * 1024), None), ("s_nop 0", None)]
            x.append(("buffer_load_dwordx4 v%d, %s, s%d offen lds" % (vOB + i, sr(SBd, 4), sKB), tag))
            if i == 2:
                x.append(("s_add_u32 s%d, s%d, %d" % (sKB, sKB, 32 * 9216), None))
            g.append(x)
        return g

    def dma(st):
        return dmaA(st) + dmaB(st)
    for st in range(NBUF - 1):
        issue_groups(k, dmaB(st))
    srd(k, 64, P_WS, FLG_OFF + 32768 + 1024, 1024)
    k.e("s_lshr_b32 s60, s7, 3")
    k.e("v_and_b32 v18, 31, v0")
    k.e("v_add_u32 v18, s60, v18")
    k.e("v_lshlrev_b32 v18, 2, v18")
    lab_p = k.newlab("pollH")
    lab_g = k.newlab("goH")
    k.label(lab_p)
    k.e("buffer_load_dword v19, v18, s[64:67], 0 offen sc1")
    k.e("s_waitcnt vmcnt(0)")
    k.e("v_cmp_ne_u32 vcc, 1, v19")
    k.e("s_nop 1")
    k.e("s_cmp_eq_u64 vcc, 0")
    k.e("s_cbranch_scc1 %s" % lab_g)
    k.e("s_sleep %d" % (0 if "sleep0" in EXP else 2))
    k.e("s_branch %s" % lab_p)
    k.label(lab_g)
    k.vq = []
    k.e("s_lshl_b32 s60, s5, 6")
    k.e("s_add_u32 s60, s60, s7")
    k.e("v_add_u32 v18, s60, v16")
    k.e("v_lshlrev_b32 v18, 5, v18")
    for i in range(4):
        for h in range(2):
            k.vm("buffer_load_dwordx4 %s, v18, %s, 0 offen offset:%d" % (vr(ACC + i * 8 + h * 4, 4), sr(SST, 4), i * 512 + h * 16) + " sc1", "st")
    for st in range(NBUF - 1):
        issue_groups(k, dmaA(st))
    if "notouchwd" not in EXP:
        touch(k, 64, P_WD, F * D * 2, 2048, 8, 18, 1)
    k.e("s_lshl_b32 s60, s5, 12")
    k.e("v_lshlrev_b32 v18, 4, v0")
    k.e("v_add_u32 v%d, s60, v18" % vA)
    k.e("v_add_u32 v%d, %d, v%d" % (vA + 1, 2 * SB, vA))
    k.e("s_bfe_u32 s62, s8, 0x20004")
    k.e("s_mul_i32 s63, s6, 5")
    k.e("s_add_u32 s62, s62, s63")
    k.e("s_movk_i32 s63, 16384")
    b_rd_addr3(k, vB, 62, 63)
    for q in range(4):
        k.e("v_add_u32 v%d, %d, v%d" % (vB + 4 + q, 2 * SB, vB + q))
    k.e("v_lshrrev_b32 v18, 1, v17")
    k.e("v_lshlrev_b32 v14, 8, v18")
    k.e("v_lshlrev_b32 v18, 4, v16")
    k.e("v_add_u32 v14, v14, v18")
    k.e("v_and_b32 v18, 1, v17")
    k.e("v_mul_u32_u24 v15, 147456, v18")
    k.e("v_add_u32 v15, v15, v14")
    k.e("v_lshlrev_b32 v18, 9, v18")
    k.e("v_add_u32 v14, v14, v18")
    k.e("s_lshr_b32 s60, s7, 4")
    k.e("s_lshl_b32 s61, s5, 2")
    k.e("s_add_u32 s60, s60, s61")
    k.e("s_mul_i32 s60, s60, 147456")
    k.e("s_mul_i32 s61, s9, 9")
    k.e("s_mul_i32 s62, s6, 5")
    k.e("s_add_u32 s61, s61, s62")
    k.e("s_lshl_b32 s61, s61, 9")
    k.e("s_add_u32 s60, s60, s61")
    k.e("v_add_u32 v14, s60, v14")
    k.e("v_add_u32 v15, s60, v15")
    k.wait_vm("st")
    k.e("s_mov_b32 s60, 0x%x" % f2u(1.0 / 576.0))
    k.e("s_mov_b32 s61, 0x%x" % f2u(1e-5))
    for i in range(4):
        b = ACC + i * 8
        k.e("v_add_f32 v18, v%d, v%d" % (b, b + 2))
        k.e("v_add_f32 v19, v%d, v%d" % (b + 4, b + 6))
        k.e("v_add_f32 v20, v%d, v%d" % (b + 1, b + 3))
        k.e("v_add_f32 v21, v%d, v%d" % (b + 5, b + 7))
        k.e("v_add_f32 v18, v18, v19")
        k.e("v_add_f32 v20, v20, v21")
        k.e("v_mul_f32 v18, s60, v18")
        k.e("v_mul_f32 v20, s60, v20")
        k.e("v_fma_f32 v20, -v18, v18, v20")
        k.e("v_max_f32 v20, 0, v20")
        k.e("v_add_f32 v20, s61, v20")
        k.e("v_rsq_f32 v%d, v20" % (vR + i))
        k.e("v_sub_f32 v%d, 0, v18" % (vM + i))
    lab1 = k.newlab("wn1")
    lab_done = k.newlab("done")
    k.e("s_cmp_eq_u32 s6, 1")
    k.e("s_cbranch_scc1 %s" % lab1)
    st_l, st_v = list(k.lq), list(k.vq)
    c1 = -2.0 * 0.7978845608028654 * 1.4426950408889634
    for wn in range(2):
        NF = 5 if wn == 0 else 4
        NJ = 2 * NF
        if wn == 1:
            k.e("s_branch %s" % lab_done)
            k.label(lab1)
            k.lq, k.vq = list(st_l), list(st_v)
        acc = lambda i, c: ACC + (i * NJ + c) * 4
        CW = {0: 32, 1: 36, 8: 10, 9: 16}
        ONES = 20
        for r in range(4):
            k.e("v_mov_b32 v%d, 0x3f803f80" % (ONES + r))
        prevb = [None]

        def cwreg(c):
            return CW[(c & 1) + 8 * (c >> 3)]

        def extra(s_, c, breg):
            if c & 1 == 0:
                prevb[0] = breg
                return
            lab = k.newlab("cw")
            k.e("s_cmp_eq_u32 s5, %d" % ((c >> 1) & 3))
            k.e("s_cbranch_scc0 %s" % lab)
            for cc, br in ((c - 1, prevb[0]), (c, breg)):
                k.e("v_mfma_f32_16x16x32_bf16 %s, %s, %s, %s" % (vr(cwreg(cc), 4), vr(br, 4), vr(ONES, 4), "0" if s_ == 0 else vr(cwreg(cc), 4)))
            k.label(lab)

        def a_rd(buf, i):
            return vA + (buf >> 1), (buf & 1) * SB + i * 1024

        def b_rd(buf, c, j):
            f = c >> 1
            return vB + 4 * (buf >> 1) + (f & 3), (buf & 1) * SB + (c & 1) * 12288 + j * 3072 + (f >> 2) * 128
        if wn == 0:
            stamp(k, 1)
        gemm_core(k, 18, NBUF, 4, acc, afr, bring, 2, a_rd, b_rd, dma, True, NJ=NJ, extra=extra)
        if wn == 0:
            stamp(k, 2)
        k.c("---- epilogue")
        k.e("s_nop 7")
        k.e("s_barrier")
        k.e("v_lshlrev_b32 v1, 4, v0")
        k.e("v_add_u32 v1, %d, v1" % (wn * 10240))
        for c in range(0, NJ, 2):
            lab = k.newlab("cww")
            k.e("s_cmp_eq_u32 s5, %d" % ((c >> 1) & 3))
            k.e("s_cbranch_scc0 %s" % lab)
            k.e("ds_write_b128 v1, %s offset:%d" % (vr(cwreg(c), 4), c * 1024))
            k.e("ds_write_b128 v1, %s offset:%d" % (vr(cwreg(c + 1), 4), c * 1024 + 1024))
            k.label(lab)
        k.e("s_waitcnt lgkmcnt(0)")
        k.e("s_barrier")
        CSR = 48
        for c in range(NJ):
            k.e("ds_read_b128 %s, v1 offset:%d" % (vr(CSR + 4 * c, 4), c * 1024))
        k.e("s_waitcnt lgkmcnt(0)")
        k.lq = []
        k.e("v_mov_b32 v20, 1.0")
        k.e("v_mov_b32 v21, 1.0")
        k.e("s_mov_b32 s60, 0x%x" % f2u(c1))
        k.e("s_mov_b32 s61, 0x%x" % f2u(c1 * 0.044715))
        k.e("s_mov_b32 s62, 0")
        k.e("s_nop 7")
        for i in range(4):
            k.e("v_mul_f32 v22, s60, v%d" % (vR + i))
            k.e("v_mul_f32 v26, v%d, v%d" % (vR + i, vR + i))
            k.e("v_mul_f32 v24, s61, v%d" % (vR + i))
            k.e("v_mul_f32 v24, v24, v26")
            k.e("v_mov_b32 v23, v22")
            k.e("v_mov_b32 v25, v24")
            k.e("v_mov_b32 v27, v26")
            k.e("v_mov_b32 v36, v%d" % (vM + i))
            k.e("v_mov_b32 v37, v%d" % (vM + i))
            for f in range(NF):
                G, U = acc(i, 2 * f), acc(i, 2 * f + 1)
                T, P = 28, 32
                for h in range(2):
                    k.e("v_pk_fma_f32 %s, %s, v[36:37], %s" % (vr(G + 2 * h, 2), vr(CSR + 8 * f + 2 * h, 2), vr(G + 2 * h, 2)))
                    k.e("v_pk_fma_f32 %s, %s, v[36:37], %s" % (vr(U + 2 * h, 2), vr(CSR + 8 * f + 4 + 2 * h, 2), vr(U + 2 * h, 2)))
                for h in range(2):
                    k.e("v_pk_mul_f32 %s, %s, %s" % (vr(T + 2 * h, 2), vr(G + 2 * h, 2), vr(G + 2 * h, 2)))
                for h in range(2):
                    k.e("v_pk_fma_f32 %s, %s, v[24:25], v[22:23]" % (vr(T + 2 * h, 2), vr(T + 2 * h, 2)))
                for h in range(2):
                    k.e("v_pk_mul_f32 %s, %s, %s" % (vr(T + 2 * h, 2), vr(T + 2 * h, 2), vr(G + 2 * h, 2)))
                for r in range(4):
                    k.e("v_exp_f32 v%d, v%d" % (T + r, T + r))
                for h in range(2):
                    k.e("v_pk_mul_f32 %s, %s, %s" % (vr(P + 2 * h, 2), vr(G + 2 * h, 2), vr(U + 2 * h, 2)))
                for h in range(2):
                    k.e("v_pk_add_f32 %s, %s, v[20:21]" % (vr(T + 2 * h, 2), vr(T + 2 * h, 2)))
                for r in range(4):
                    k.e("v_rcp_f32 v%d, v%d" % (T + r, T + r))
                for h in range(2):
                    k.e("v_pk_mul_f32 %s, %s, v[26:27]" % (vr(P + 2 * h, 2), vr(P + 2 * h, 2)))
                for h in range(2):
                    k.e("v_pk_mul_f32 %s, %s, %s" % (vr(P + 2 * h, 2), vr(P + 2 * h, 2), vr(T + 2 * h, 2)))
                if f < 4:
                    R = acc(i, 2 * (f & ~1)) + 2 * (f & 1)
                else:
                    R = acc(i & ~1, 8) + 2 * (i & 1)
                k.e("v_cvt_pk_bf16_f32 v%d, v%d, v%d" % (R, P, P + 1))
                k.e("v_cvt_pk_bf16_f32 v%d, v%d, v%d" % (R + 1, P + 2, P + 3))
                if (f < 4 and f & 1) or (f == 4 and i & 1):
                    B0 = R - 2
                    k.e("s_nop 1")
                    k.e("v_permlane16_swap_b32 v%d, v%d" % (B0, B0 + 2))
                    k.e("v_permlane16_swap_b32 v%d, v%d" % (B0 + 1, B0 + 3))
                    if f < 4:
                        k.vm("buffer_store_dwordx4 %s, v14, %s, s62 offen offset:%d sc1" % (vr(B0, 4), sr(SO, 4), (f - 1) * 512))
                    else:
                        k.e("s_sub_u32 s63, s62, 147456")
                        k.vm("buffer_store_dwordx4 %s, v15, %s, s63 offen offset:%d sc1" % (vr(B0, 4), sr(SO, 4), 4 * 512))
            k.e("s_add_u32 s62, s62, 147456")
    k.label(lab_done)
    srd(k, 64, P_WS, FLG_OFF + 32768, 1024)
    k.e("s_lshr_b32 s60, s7, 8")
    k.e("s_lshl_b32 s60, s60, 5")
    k.e("s_add_u32 s60, s60, s9")
    k.e("s_lshl_b32 s60, s60, 2")
    k.e("v_mov_b32 v1, s60")
    k.e("v_mov_b32 v2, 1")
    k.e("s_waitcnt vmcnt(0)")
    k.e("s_barrier")
    lab_nf = k.newlab("nf")
    k.e("s_cmp_lg_u32 s4, 0")
    k.e("s_cbranch_scc1 %s" % lab_nf)
    k.e("s_mov_b64 exec, 1")
    k.e("buffer_store_dword v2, v1, s[64:67], 0 offen sc1")
    k.e("s_mov_b64 exec, -1")
    k.label(lab_nf)
    k.lq, k.vq = [], []
    stamp(k, 3)
    stamp_flush(k, 6)
    k.e("s_mov_b64 exec, -1")
    return gen_k4(k)


def gen_k4(k):
    SB = 40960
    NBUF = 4
    k.stamp_slot = 3
    stamp(k, 0)
    SA, SBd, SP, SO, SH, SD = 36, 40, 44, 48, 52, 64
    sKA, sKB, sMA, sMB = 56, 57, 58, 59
    k.e("s_and_b32 s9, s2, 3")
    k.e("s_bfe_u32 s60, s2, 0x10002")
    k.e("s_lshr_b32 s61, s2, 3")
    k.e("s_lshr_b32 s62, s61, 2")
    k.e("s_lshl_b32 s60, s60, 3")
    k.e("s_add_u32 s60, s60, s62")
    k.e("s_lshl_b32 s7, s60, 7")
    k.e("s_and_b32 s61, s61, 3")
    k.e("s_mul_i32 s8, s61, 144")
    k.e("s_lshl_b32 s10, s60, 2")
    k.e("s_add_u32 s10, s10, s61")
    k.e("s_and_b32 s11, s4, 3")
    k.e("s_lshr_b32 s5, s11, 1")
    k.e("s_and_b32 s6, s11, 1")
    k.e("v_and_b32 v16, 15, v0")
    k.e("v_lshrrev_b32 v17, 4, v0")
    lab_comp = k.newlab("comp")
    k.e("s_cmp_lt_u32 s4, 4")
    k.e("s_cbranch_scc1 %s" % lab_comp)
    srd(k, SA, P_WS, ACT_OFF, S * F * 2)
    srd(k, SBd, P_WD, 0, F * D * 2)
    vOA, vOB = 2, 8
    k.e("s_lshr_b32 s60, s7, 4")
    k.e("s_lshl_b32 s61, s11, 1")
    k.e("s_add_u32 s60, s60, s61")
    k.e("s_mul_i32 s60, s60, 147456")
    k.e("s_mul_i32 s61, s9, 36864")
    k.e("s_add_u32 s60, s60, s61")
    k.e("v_lshlrev_b32 v19, 4, v0")
    k.e("v_add_u32 v%d, s60, v19" % vOA)
    k.e("v_add_u32 v%d, 1024, v%d" % (vOA + 1, vOA))
    k.e("v_add_u32 v%d, %d, v%d" % (vOA + 2, 147456, vOA))
    k.e("v_add_u32 v%d, %d, v%d" % (vOA + 3, 147456 + 1024, vOA))
    k.e("s_mul_i32 s64, s11, 48")
    k.e("s_lshl_b32 s62, s8, 1")
    k.e("s_and_b32 s62, s62, 0xffffff80")
    k.e("s_mul_i32 s61, s9, 1152 * 1152")
    k.e("s_add_u32 s62, s62, s61")
    k.e("s_movk_i32 s63, 1152")
    for i in range(6):
        b_dma_addr(k, vOB + i, 64, 8 * i, 3, 63, 62, reg_row=32)
    k.e("s_mov_b32 s%d, 0" % sKA)
    k.e("s_mov_b32 s%d, 0" % sKB)
    k.e("s_lshl_b32 s%d, s11, 12" % sMA)
    k.e("s_mul_i32 s%d, s11, 6144" % sMB)
    k.e("s_add_u32 s%d, s%d, 16384" % (sMB, sMB))

    def dmaA(st):
        b = (st % NBUF) * SB
        tag = ("dma", st)
        g = []
        for i in range(4):
            x = [("s_add_u32 m0, s%d, %d" % (sMA, b + i * 1024), None), ("s_nop 0", None),
                 ("buffer_load_dwordx4 v%d, %s, s%d offen sc1 lds" % (vOA + i, sr(SA, 4), sKA), tag)]
            if i == 3:
                x.append(("s_add_u32 s%d, s%d, 2048" % (sKA, sKA), None))
            g.append(x)
        return g

    def dmaB(st):
        b = (st % NBUF) * SB
        tag = ("dma", st)
        g = []
        for i in range(6):
            x = [("s_add_u32 m0, s%d, %d" % (sMB, b + i * 1024), None), ("s_nop 0", None)]
            x.append(("buffer_load_dwordx4 v%d, %s, s%d offen lds" % (vOB + i, sr(SBd, 4), sKB), tag))
            if i == 5:
                x.append(("s_add_u32 s%d, s%d, %d" % (sKB, sKB, 64 * 1152), None))
            g.append(x)
        return g

    def dma(st):
        return dmaA(st) + dmaB(st)
    for st in range(NBUF - 1):
        issue_groups(k, dmaB(st))
    srd(k, 84, P_WS, FLG_OFF + 32768, 1024)
    k.e("s_lshr_b32 s60, s7, 8")
    k.e("s_lshl_b32 s60, s60, 7")
    k.e("s_lshl_b32 s61, s9, 5")
    k.e("s_add_u32 s60, s60, s61")
    k.e("v_mov_b32 v20, s60")
    lab_p = k.newlab("pollA")
    lab_g = k.newlab("goA")
    k.label(lab_p)
    k.e("buffer_load_dwordx4 v[24:27], v20, s[84:87], 0 offen sc1")
    k.e("buffer_load_dwordx4 v[28:31], v20, s[84:87], 0 offen offset:16 sc1")
    k.e("s_waitcnt vmcnt(0)")
    k.e("v_add3_u32 v24, v24, v25, v26")
    k.e("v_add3_u32 v24, v24, v27, v28")
    k.e("v_add3_u32 v24, v24, v29, v30")
    k.e("v_add_u32 v24, v24, v31")
    k.e("s_nop 0")
    k.e("v_readfirstlane_b32 s61, v24")
    k.e("s_cmp_ge_u32 s61, 8")
    k.e("s_cbranch_scc1 %s" % lab_g)
    k.e("s_sleep %d" % (0 if "sleep0" in EXP else 2))
    k.e("s_branch %s" % lab_p)
    k.label(lab_g)
    k.vq = []
    for st in range(NBUF - 1):
        issue_groups(k, dmaA(st))
    k.wait_vm(("dma", 0))
    k.e("s_barrier")
    for s_ in range(17):
        k.wait_vm(("dma", s_ + 1))
        k.e("s_barrier")
        if s_ + NBUF - 1 < 18:
            issue_groups(k, dma(s_ + NBUF - 1))
    k.e("s_endpgm")
    k.label(lab_comp)
    k.lq, k.vq = [], []
    srd(k, SP, P_WS, PART_OFF, 64 * 16 * 18432)
    srd(k, SO, P_OUT, 0, S * D * 2)
    srd(k, SH, P_WS, H_OFF, S * D * 2)
    srd(k, SD, P_WS, FLG_OFF, 256 * 128)
    vA, vB = 2, 24
    ACC = 112
    afr = [[48, 52], [56, 60]]
    bring = [64 + 4 * q for q in range(8)]
    acc = lambda i, nj: ACC + (i * 9 + nj) * 4
    k.e("s_lshl_b32 s60, s4, 12")
    k.e("v_lshlrev_b32 v18, 4, v0")
    k.e("v_add_u32 v%d, s60, v18" % vA)
    for b_ in range(1, 4):
        k.e("v_add_u32 v%d, %d, v%d" % (vA + b_, b_ * SB, vA))
    k.e("s_bfe_u32 s62, s8, 0x20004")
    k.e("s_movk_i32 s63, 16384")
    b_rd_addr3(k, vB, 62, 63)
    for b_ in range(1, 4):
        for q in range(4):
            k.e("v_add_u32 v%d, %d, v%d" % (vB + 4 * b_ + q, b_ * SB, vB + q))

    def a_rd(buf, i, kk):
        return vA + buf, i * 2048 + kk * 1024

    def b_rd(buf, nj, j, kk):
        return vB + 4 * buf + (nj & 3), kk * 12288 + j * 3072 + (nj >> 2) * 128
    gemm_core(k, 18, NBUF, 2, acc, afr, bring, 6, a_rd, b_rd, lambda st: [], True, sub=2)
    stamp(k, 1)
    k.c("---- epilogue: cross-workgroup reduction")
    k.e("v_lshlrev_b32 v18, 4, v0")
    k.e("s_lshl_b32 s60, s10, 2")
    k.e("s_add_u32 s60, s60, s9")
    k.e("s_lshl_b32 s60, s60, 2")
    k.e("s_add_u32 s60, s60, s4")
    k.e("s_mul_i32 s60, s60, 9216")
    k.e("v_add_u32 v21, s60, v18")
    k.e("s_lshl_b32 s60, s10, 2")
    k.e("s_add_u32 s61, s60, s4")
    k.e("s_lshl_b32 s61, s61, 7")
    k.e("s_lshl_b32 s62, s9, 2")
    k.e("s_add_u32 s61, s61, s62")
    k.e("v_mov_b32 v23, s61")
    k.e("s_add_u32 s60, s60, s9")
    k.e("s_lshl_b32 s60, s60, 7")
    k.e("v_mov_b32 v26, s60")
    k.e("v_mov_b32 v24, 1")
    k.e("s_nop 7")
    k.e("s_barrier")
    lab_own = k.newlab("own")
    lab_j = k.newlab("j")
    k.e("s_cmp_eq_u32 s4, s9")
    k.e("s_cbranch_scc1 %s" % lab_own)
    for t in range(9):
        a = ACC + 8 * t
        for d in range(4):
            k.e("v_cvt_pk_bf16_f32 v%d, v%d, v%d" % (a + d, a + 2 * d, a + 2 * d + 1))
        sreg = "0"
        off = t * 1024
        if off >= 4096:
            k.e("s_movk_i32 s61, %d" % (off & ~4095))
            sreg = "s61"
        k.e("buffer_store_dwordx4 %s, v21, %s, %s offen offset:%d sc1" % (vr(a, 4), sr(SP, 4), sreg, off & 4095))
    k.e("s_barrier")
    k.e("s_branch %s" % lab_j)
    k.label(lab_own)
    for t in range(18):
        k.e("ds_write_b128 v18, %s offset:%d" % (vr(ACC + 4 * t, 4), t * 1024))
    k.e("s_waitcnt lgkmcnt(0)")
    k.e("s_barrier")
    k.e("s_branch L_%s_end" % k.name)
    k.label(lab_j)
    k.e("s_sub_u32 s62, s4, s9")
    k.e("s_sub_u32 s62, s62, 1")
    k.e("s_and_b32 s62, s62, 3")
    k.e("s_mul_i32 s63, s62, 6144")
    k.e("v_add_u32 v22, s63, v18")
    OWN = 48
    for t in range(6):
        k.lds("ds_read_b128 %s, v22 offset:%d" % (vr(OWN + 4 * t, 4), t * 1024), "own")
    k.e("s_lshl_b32 s60, s9, 5")
    k.e("s_add_u32 s60, s60, s7")
    k.e("v_add_u32 v19, s60, v16")
    k.e("v_mul_u32_u24 v19, 1152, v19")
    k.e("v_lshlrev_b32 v20, 3, v17")
    k.e("s_lshl_b32 s60, s8, 1")
    k.e("v_add3_u32 v19, v19, v20, s60")
    fl_lane(k, 44, 45)
    k.e("s_lshr_b32 s60, s7, 4")
    k.e("s_lshl_b32 s61, s9, 1")
    k.e("s_add_u32 s60, s60, s61")
    k.e("s_mul_i32 s60, s60, 18432")
    k.e("s_lshl_b32 s61, s8, 5")
    k.e("s_add_u32 s60, s60, s61")
    k.e("v_add_u32 v44, s60, v44")
    k.e("s_waitcnt vmcnt(0)")
    k.e("s_mov_b64 exec, 1")
    k.e("buffer_store_dword v24, v23, %s, 0 offen sc1" % sr(SD, 4))
    k.e("s_mov_b64 exec, -1")
    k.e("s_mul_i32 s62, s62, 6")
    HR = 96
    for t in range(6):
        k.e("s_add_u32 s60, s62, %d" % t)
        k.e("s_cmp_ge_u32 s60, 9")
        k.e("s_cselect_b32 s61, %d, 0" % (16 * 1152 - 9 * 32))
        k.e("s_cselect_b32 s69, %d, 0" % (18432 - 9 * 512))
        k.e("s_lshl_b32 s68, s60, 9")
        k.e("s_add_u32 s68, s68, s69")
        k.e("s_lshl_b32 s60, s60, 5")
        k.e("s_add_u32 s%d, s60, s61" % (84 + t))
        k.e("buffer_load_dwordx2 %s, v44, %s, s68 offen sc1" % (vr(HR + 2 * t, 2), sr(SH, 4)))
    stamp(k, 2)
    lab_poll = k.newlab("poll")
    lab_go = k.newlab("go")
    k.label(lab_poll)
    k.e("buffer_load_dwordx4 v[28:31], v26, %s, 0 offen sc1" % sr(SD, 4))
    k.e("s_waitcnt vmcnt(0)")
    k.e("v_add_u32 v28, v28, v29")
    k.e("v_add3_u32 v28, v28, v30, v31")
    k.e("s_nop 0")
    k.e("v_readfirstlane_b32 s61, v28")
    k.e("s_cmp_ge_u32 s61, 3")
    k.e("s_cbranch_scc1 %s" % lab_go)
    k.e("s_sleep 1")
    k.e("s_branch %s" % lab_poll)
    k.label(lab_go)
    if STAMP:
        k.e("s_memtime s[82:83]")
        k.e("s_waitcnt lgkmcnt(0)")
        k.lq = []
    k.e("s_lshl_b32 s60, s10, 4")
    k.e("s_add_u32 s60, s60, s9")
    k.e("s_mul_i32 s60, s60, 9216")
    k.e("s_lshr_b32 s63, s63, 1")
    k.e("s_add_u32 s60, s60, s63")
    k.e("v_add_u32 v21, s60, v18")
    k.vq = []
    for o in range(1, 4):
        k.e("s_add_u32 s61, s9, %d" % o)
        k.e("s_and_b32 s61, s61, 3")
        k.e("s_mul_i32 s61, s61, %d" % (4 * 9216))
        for t in range(3):
            k.vm("buffer_load_dwordx4 %s, v21, %s, s61 offen offset:%d sc1" % (vr(ACC + 12 * (o - 1) + 4 * t, 4), sr(SP, 4), t * 1024), ("p", o, t))
    k.wait_lds("own")
    for t in range(6):
        a = OWN + 4 * t
        for d in range(2):
            k.e("v_lshlrev_b32 v42, 16, v%d" % (HR + 2 * t + d))
            k.e("v_and_b32 v43, 0xffff0000, v%d" % (HR + 2 * t + d))
            k.e("v_add_f32 v%d, v%d, v42" % (a + 2 * d, a + 2 * d))
            k.e("v_add_f32 v%d, v%d, v43" % (a + 2 * d + 1, a + 2 * d + 1))
    for o in range(1, 4):
        for t in range(6):
            a = OWN + 4 * t
            k.wait_vm(("p", o, t >> 1))
            for d in range(2):
                x = ACC + 12 * (o - 1) + 2 * t + d
                k.e("v_lshlrev_b32 v42, 16, v%d" % x)
                k.e("v_and_b32 v43, 0xffff0000, v%d" % x)
                k.e("v_add_f32 v%d, v%d, v42" % (a + 2 * d, a + 2 * d))
                k.e("v_add_f32 v%d, v%d, v43" % (a + 2 * d + 1, a + 2 * d + 1))
            if o == 3:
                k.e("v_cvt_pk_bf16_f32 v%d, v%d, v%d" % (HR + 2 * t, a, a + 1))
                k.e("v_cvt_pk_bf16_f32 v%d, v%d, v%d" % (HR + 1 + 2 * t, a + 2, a + 3))
                k.vm("buffer_store_dwordx2 %s, v19, %s, s%d offen" % (vr(HR + 2 * t, 2), sr(SO, 4), 84 + t))
    stamp(k, 3)
    stamp_flush(k, 7)
    footer(k)
    return k, 256


def gen_k5():
    k = K("red")
    nwg = S * D // 8 // 256
    k.e("s_cmp_ge_u32 s2, %d" % nwg)
    k.e("s_cbranch_scc1 L_%s_end" % k.name)
    k.e("s_load_dwordx16 s[16:31], s[0:1], 0")
    k.e("s_load_dwordx4 s[32:35], s[0:1], 64")
    k.e("s_lshl_b32 s3, s2, 8")
    k.e("v_add_u32 v1, s3, v0")
    k.e("v_lshlrev_b32 v2, 4, v1")
    k.e("v_lshlrev_b32 v3, 5, v1")
    k.e("s_waitcnt lgkmcnt(0)")
    srd(k, 36, P_WS, H_OFF, S * D * 2)
    srd(k, 40, P_WS, PART_OFF, 4 * S * D * 4)
    srd(k, 44, P_OUT, 0, S * D * 2)
    k.e("buffer_load_dwordx4 v[4:7], v2, s[36:39], 0 offen")
    for p in range(4):
        k.e("s_mov_b32 s48, 0x%x" % (p * S * D * 4))
        k.e("buffer_load_dwordx4 %s, v3, s[40:43], s48 offen" % vr(8 + p * 8, 4))
        k.e("buffer_load_dwordx4 %s, v3, s[40:43], s48 offen offset:16" % vr(12 + p * 8, 4))
    k.e("s_waitcnt vmcnt(0)")
    for r in range(8):
        k.e("v_add_f32 v%d, v%d, v%d" % (8 + r, 8 + r, 16 + r))
        k.e("v_add_f32 v%d, v%d, v%d" % (24 + r, 24 + r, 32 + r))
    for r in range(8):
        k.e("v_add_f32 v%d, v%d, v%d" % (8 + r, 8 + r, 24 + r))
    for d in range(4):
        k.e("v_lshlrev_b32 v40, 16, v%d" % (4 + d))
        k.e("v_and_b32 v41, 0xffff0000, v%d" % (4 + d))
        k.e("v_add_f32 v%d, v%d, v40" % (8 + 2 * d, 8 + 2 * d))
        k.e("v_add_f32 v%d, v%d, v41" % (9 + 2 * d, 9 + 2 * d))
    for d in range(4):
        k.e("v_cvt_pk_bf16_f32 v%d, v%d, v%d" % (4 + d, 8 + 2 * d, 9 + 2 * d))
    k.e("buffer_store_dwordx4 v[4:7], v2, s[44:47], 0 offen")
    footer(k)
    return k, nwg


def gen_k2():
    k = K("ffn")
    k.stamp_slot = 1
    SB = 4096 + 24576
    NBUF = 5
    header(k, 256)
    stamp(k, 0)
    SA, SBd, SX, SH, SST, SCP, SCS = 36, 40, 44, 48, 52, 64, 96
    sKA, sKB, sMA, sMB = 56, 57, 58, 59
    k.e("s_and_b32 s9, s2, 3")
    k.e("s_lshr_b32 s60, s2, 2")
    k.e("s_lshl_b32 s7, s60, 5")
    k.e("s_mul_i32 s8, s9, 144")
    k.e("s_lshr_b32 s5, s4, 1")
    k.e("s_and_b32 s6, s4, 1")
    srd(k, SA, P_WS, O_OFF, S * D * 2)
    srd(k, SBd, P_WO, 0, D * D * 2)
    srd(k, SX, P_X, 0, S * D * 2)
    srd(k, SH, P_WS, H_OFF, S * D * 2)
    srd(k, SST, P_WS, ST_OFF, S * 32)
    lab_idle = k.newlab("idle")
    lab_p2done = k.newlab("p2done")
    k.e("s_cmp_ge_u32 s4, 4")
    k.e("s_cbranch_scc1 %s" % lab_idle)
    vOA, vOB = 2, 8
    vA, vB = 24, 28
    ACC = 112
    afr = [[48], [52]]
    bring = [56, 60, 64, 68, 72, 76]
    acc = lambda i, nj: ACC + nj * 4
    XR = 80
    CPR = 184
    k.e("v_and_b32 v16, 15, v0")
    k.e("v_lshrrev_b32 v17, 4, v0")
    k.e("s_lshl_b32 s60, s5, 4")
    k.e("s_add_u32 s60, s60, s7")
    k.e("v_add_u32 v31, s60, v16")
    k.e("s_movk_i32 s63, 1152")
    k.e("v_mul_lo_u32 v18, v31, s63")
    k.e("v_lshlrev_b32 v19, 3, v17")
    k.e("s_lshl_b32 s62, s8, 1")
    k.e("v_add3_u32 v32, v18, v19, s62")
    for nj in range(9):
        k.vm("buffer_load_dwordx2 %s, v32, %s, 0 offen offset:%d" % (vr(XR + 2 * nj, 2), sr(SX, 4), nj * 32), "x")
    k.e("s_lshr_b32 s60, s7, 4")
    k.e("s_add_u32 s60, s60, s5")
    k.e("s_mul_i32 s60, s60, 18432")
    k.e("s_lshl_b32 s61, s6, 10")
    k.e("s_add_u32 s61, s60, s61")
    k.e("v_lshlrev_b32 v19, 4, v0")
    k.e("v_add_u32 v%d, s61, v19" % vOA)
    fl_lane(k, 37, 18)
    k.e("s_lshl_b32 s61, s8, 5")
    k.e("s_add_u32 s60, s60, s61")
    k.e("v_add_u32 v37, s60, v37")
    k.e("s_mul_i32 s88, s4, 48")
    k.e("s_lshl_b32 s62, s8, 1")
    k.e("s_and_b32 s62, s62, 0xffffff80")
    k.e("s_movk_i32 s63, 1152")
    for i in range(6):
        b_dma_addr(k, vOB + i, 88, 8 * i, 3, 63, 62, reg_row=32)
    k.e("s_mov_b32 s%d, 0" % sKA)
    k.e("s_mov_b32 s%d, 0" % sKB)
    k.e("s_lshl_b32 s%d, s4, 10" % sMA)
    k.e("s_mul_i32 s%d, s4, 6144" % sMB)
    k.e("s_add_u32 s%d, s%d, 4096" % (sMB, sMB))

    def dma(st):
        b = (st % NBUF) * SB
        tag = ("dma", st)
        g = [[("s_add_u32 m0, s%d, %d" % (sMA, b), None), ("s_nop 0", None),
              ("buffer_load_dwordx4 v%d, %s, s%d offen lds" % (vOA, sr(SA, 4), sKA), tag)]]
        for i in range(6):
            x = [("s_add_u32 m0, s%d, %d" % (sMB, b + i * 1024), None), ("s_nop 0", None)]
            x.append(("buffer_load_dwordx4 v%d, %s, s%d offen lds" % (vOB + i, sr(SBd, 4), sKB), tag))
            if i == 5:
                x.append(("s_add_u32 s%d, s%d, 2048" % (sKA, sKA), None))
                x.append(("s_add_u32 s%d, s%d, %d" % (sKB, sKB, 64 * 1152), None))
            g.append(x)
        return g
    for st in range(NBUF - 1):
        issue_groups(k, dma(st))
    k.e("v_lshlrev_b32 v18, 4, v0")
    k.e("v_add_u32 v%d, s%d, v18" % (vA, sMA))
    for q in range(1, 3):
        k.e("v_add_u32 v%d, %d, v%d" % (vA + q, 2 * SB * q, vA))
    vB = 100
    k.e("s_bfe_u32 s62, s8, 0x20004")
    k.e("s_mul_i32 s63, s6, 12288")
    k.e("s_add_u32 s63, s63, 4096")
    b_rd_addr3(k, vB, 62, 63)
    for b_ in range(1, 3):
        for q in range(4):
            k.e("v_add_u32 v%d, %d, v%d" % (vB + 4 * b_ + q, 2 * b_ * SB, vB + q))

    def a_rd(buf, i):
        return vA + (buf >> 1), (buf & 1) * SB

    def b_rd(buf, nj, j):
        return vB + 4 * (buf >> 1) + (nj & 3), (buf & 1) * SB + j * 3072 + (nj >> 2) * 128
    stamp(k, 1)
    gemm_core(k, 9, NBUF, 1, acc, afr, bring, 4, a_rd, b_rd, dma, True)
    stamp(k, 2)
    k.c("---- epilogue")
    k.e("s_nop 7")
    k.e("s_nop 7")
    k.e("s_barrier")
    k.wait_vm("x")
    k.e("s_mul_i32 s60, s5, 9216")
    k.e("v_lshlrev_b32 v18, 4, v0")
    k.e("v_add_u32 v19, s60, v18")
    lab_recv = k.newlab("recv")
    k.e("s_cmp_eq_u32 s6, 0")
    k.e("s_cbranch_scc1 %s" % lab_recv)
    for nj in range(9):
        k.lds("ds_write_b128 v19, %s offset:%d" % (vr(acc(0, nj), 4), nj * 1024))
    k.wait_lds_all()
    k.e("s_barrier")
    k.e("s_branch %s" % lab_p2done)
    k.label(lab_recv)
    k.e("s_barrier")
    R = 48
    RX = 148
    for nj in range(9):
        k.lds("ds_read_b128 %s, v19 offset:%d" % (vr(RX + nj * 4, 4), nj * 1024), ("x", nj))
    k.e("v_mov_b32 v40, 0")
    k.e("v_mov_b32 v41, 0")
    for nj in range(9):
        k.wait_lds(("x", nj))
        a = acc(0, nj)
        for r in range(4):
            k.e("v_add_f32 v%d, v%d, v%d" % (a + r, a + r, RX + nj * 4 + r))
        for d in range(2):
            k.e("v_lshlrev_b32 v42, 16, v%d" % (XR + 2 * nj + d))
            k.e("v_and_b32 v43, 0xffff0000, v%d" % (XR + 2 * nj + d))
            k.e("v_add_f32 v%d, v%d, v42" % (a + 2 * d, a + 2 * d))
            k.e("v_add_f32 v%d, v%d, v43" % (a + 2 * d + 1, a + 2 * d + 1))
        k.e("v_cvt_pk_bf16_f32 v%d, v%d, v%d" % (XR + 2 * nj, a, a + 1))
        k.e("v_cvt_pk_bf16_f32 v%d, v%d, v%d" % (XR + 2 * nj + 1, a + 2, a + 3))
        if nj == 8:
            k.e("s_movk_i32 s60, 4096")
        k.vm("buffer_store_dwordx2 %s, v37, %s, %s offen offset:%d" % (vr(XR + 2 * nj, 2), sr(SH, 4), "s60" if nj == 8 else "0", (nj * 512) & 4095) + " sc1")
        for d in range(2):
            k.e("v_lshlrev_b32 v42, 16, v%d" % (XR + 2 * nj + d))
            k.e("v_and_b32 v43, 0xffff0000, v%d" % (XR + 2 * nj + d))
            k.e("v_add_f32 v40, v40, v42")
            k.e("v_fmac_f32 v41, v42, v42")
            k.e("v_add_f32 v40, v40, v43")
            k.e("v_fmac_f32 v41, v43, v43")
    k.e("v_xor_b32 v44, 16, v0")
    k.e("v_lshlrev_b32 v44, 2, v44")
    k.e("v_xor_b32 v45, 32, v0")
    k.e("v_lshlrev_b32 v45, 2, v45")
    for a in (44, 45):
        k.e("ds_bpermute_b32 v42, v%d, v40" % a)
        k.e("ds_bpermute_b32 v43, v%d, v41" % a)
        k.e("s_waitcnt lgkmcnt(0)")
        k.e("v_add_f32 v40, v40, v42")
        k.e("v_add_f32 v41, v41, v43")
    k.e("v_lshlrev_b32 v42, 5, v31")
    k.e("s_lshl_b32 s60, s9, 3")
    k.e("v_add_u32 v42, s60, v42")
    k.e("s_mov_b64 exec, 0xffff")
    k.e("buffer_store_dwordx2 v[40:41], v42, %s, 0 offen sc1" % sr(SST, 4))
    k.e("s_mov_b64 exec, -1")
    stamp(k, 3)
    stamp_flush(k, 6)
    k.e("s_mov_b64 exec, -1")
    k.e("s_branch %s" % lab_p2done)
    k.label(lab_idle)
    if "tidle" in EXP:
        k.e("s_sub_u32 s4, s4, 4")
        touch(k, 96, P_WG, D * F * 2, 1024, 4, 18, 1)
        touch(k, 96, P_WU, D * F * 2, 1024, 4, 18, 1)
        k.e("s_add_u32 s4, s4, 4")
    for _ in range(11):
        k.e("s_barrier")
    k.label(lab_p2done)
    srd(k, 64, P_WS, FLG_OFF + 32768 + 1024, 1024)
    k.e("s_lshl_b32 s60, s2, 2")
    k.e("v_mov_b32 v1, s60")
    k.e("v_mov_b32 v2, 1")
    k.e("s_waitcnt vmcnt(0) lgkmcnt(0)")
    k.e("s_barrier")
    lab_nf = k.newlab("nf")
    k.e("s_cmp_lg_u32 s4, 0")
    k.e("s_cbranch_scc1 %s" % lab_nf)
    k.e("s_mov_b64 exec, 1")
    k.e("buffer_store_dword v2, v1, s[64:67], 0 offen sc1")
    k.e("s_mov_b64 exec, -1")
    k.label(lab_nf)
    k.lq, k.vq = [], []
    return gen_k3(k)


def gen_k1():
    k = K("qkv")
    WS_, NW = 24576, 5
    XS_, NX = 10240, 3
    XB = WS_ * NW
    QP = 976
    STO = 80 * QP
    header(k, 256)
    stamp(k, 0)
    SX, SW, SO, SG, SCP = 36, 40, 44, 48, 52
    sKW, sKX, sMW, sMX = 56, 57, 58, 59
    k.e("s_and_b32 s9, s2, 7")
    k.e("s_lshr_b32 s10, s2, 3")
    srd(k, SX, P_X, 0, S * D * 2)
    srd(k, SW, P_WQKV, 0, D * 3 * D * 2)
    srd(k, SO, P_WS, O_OFF, S * D * 2)
    k.e("v_and_b32 v16, 15, v0")
    k.e("v_lshrrev_b32 v17, 4, v0")
    vO = 2
    k.e("s_mul_i32 s64, s4, 24")
    k.e("s_mul_i32 s65, s9, 144")
    k.e("s_and_b32 s62, s65, 0xffffff80")
    k.e("s_movk_i32 s63, 3456")
    for t in range(3):
        b_dma_addr(k, vO + t, 64, 8 * t, 2, 63, 62, reg_col=1152)
    k.e("s_lshl_b32 s60, s10, 6")
    k.e("s_lshl_b32 s61, s4, 4")
    k.e("s_add_u32 s60, s60, s61")
    k.e("s_sub_u32 s60, s60, 16")
    k.e("v_add_u32 v18, s60, v16")
    k.e("s_movk_i32 s63, 1152")
    k.e("v_mul_lo_u32 v18, v18, s63")
    k.e("v_lshlrev_b32 v19, 4, v17")
    k.e("v_add_u32 v%d, v18, v19" % (vO + 3))
    k.e("v_add_u32 v%d, 64, v%d" % (vO + 4, vO + 3))
    k.e("s_mov_b32 s%d, 0" % sKW)
    k.e("s_mov_b32 s%d, 0" % sKX)
    k.e("s_mul_i32 s%d, s4, 3072" % sMW)
    k.e("s_lshl_b32 s%d, s4, 11" % sMX)

    def dmaW(st):
        b = (st % NW) * WS_
        g = []
        for t in range(3):
            x = [("s_add_u32 m0, s%d, %d" % (sMW, b + t * 1024), None), ("s_nop 0", None),
                 ("buffer_load_dwordx4 v%d, %s, s%d offen lds" % (vO + t, sr(SW, 4), sKW), ("dma", st))]
            if t == 2:
                x.append(("s_add_u32 s%d, s%d, %d" % (sKW, sKW, 32 * 3456), None))
            g.append(x)
        return g

    def dmaX(xs):
        b = XB + (xs % NX) * XS_
        g = []
        for t in range(2):
            x = [("s_add_u32 m0, s%d, %d" % (sMX, b + t * 1024), None), ("s_nop 0", None),
                 ("buffer_load_dwordx4 v%d, %s, s%d offen lds" % (vO + 3 + t, sr(SX, 4), sKX), ("dma", 2 * xs))]
            if t == 1:
                x.append(("s_add_u32 s%d, s%d, 128" % (sKX, sKX), None))
            g.append(x)
        return g
    lab_nx = k.newlab("nx")
    k.e("s_cmp_ge_u32 s4, 5")
    k.e("s_cbranch_scc1 %s" % lab_nx)
    issue_groups(k, dmaX(0) + dmaX(1))
    k.label(lab_nx)
    issue_groups(k, dmaW(0) + dmaW(1) + dmaW(2) + dmaW(3))
    srd(k, 84, P_WS, FLG_OFF, 32768 + 2048)
    k.e("s_lshl_b32 s60, s2, 7")
    k.e("v_mov_b32 v8, s60")
    k.e("s_lshl_b32 s60, s2, 2")
    k.e("s_add_u32 s60, s60, 32768")
    k.e("v_mov_b32 v9, s60")
    for r in range(4):
        k.e("v_mov_b32 v%d, 0" % (20 + r))
    k.e("s_mov_b64 exec, 1")
    k.e("buffer_store_dwordx4 v[20:23], v8, s[84:87], 0 offen")
    k.e("buffer_store_dword v20, v9, s[84:87], 0 offen")
    k.e("buffer_store_dword v20, v9, s[84:87], 0 offen offset:1024")
    k.e("s_mov_b64 exec, -1")
    k.e("s_nop 1")
    if "newtouch" not in EXP:
        touch(k, 96, P_WQKV, D * 3 * D * 2, 2048, 8, 18, 1)
        touch(k, 96, P_X, S * D * 2, 2048, 8, 18, 1)
    else:
        k.e("s_lshl_b32 s60, s10, 6")
        k.e("s_sub_u32 s60, s60, 16")
        k.e("s_mul_i32 s60, s60, 1152")
        k.e("s_mul_i32 s61, s4, 90 * 128")
        k.e("s_add_u32 s60, s60, s61")
        k.e("v_lshlrev_b32 v18, 7, v0")
        k.e("v_add_u32 v18, s60, v18")
        k.e("v_add_u32 v19, 8192, v18")
        k.vm("buffer_load_dword v1, v18, %s, 0 offen" % sr(SX, 4), "touch")
        k.e("s_mov_b64 exec, 0x3ffffff")
        k.vm("buffer_load_dword v1, v19, %s, 0 offen" % sr(SX, 4), "touch")
        k.e("s_mov_b64 exec, -1")
        k.e("s_mul_i32 s60, s4, 14")
        k.e("v_add_u32 v18, s60, v0")
        k.e("v_mul_u32_u24 v19, 10923, v18")
        k.e("v_lshrrev_b32 v19, 16, v19")
        k.e("v_mul_u32_u24 v20, 6, v19")
        k.e("v_sub_u32 v18, v18, v20")
        k.e("v_lshrrev_b32 v20, 1, v18")
        k.e("v_mul_u32_u24 v20, 1152, v20")
        k.e("v_and_b32 v18, 1, v18")
        k.e("v_lshlrev_b32 v18, 7, v18")
        k.e("s_mul_i32 s60, s10, 18")
        k.e("v_add_u32 v19, s60, v19")
        k.e("v_mul_u32_u24 v19, 3456, v19")
        k.e("s_mul_i32 s60, s9, 144")
        k.e("s_and_b32 s60, s60, 0xffffff80")
        k.e("v_add3_u32 v18, v18, v19, v20")
        k.e("v_add_u32 v18, s60, v18")
        k.e("s_mov_b64 exec, 0x3fff")
        k.vm("buffer_load_dword v1, v18, %s, 0 offen" % sr(SW, 4), "touch")
        k.e("s_mov_b64 exec, -1")
    touch(k, 96, P_WO, D * D * 2, 2048, 8, 18, 1)
    CX = 144
    lab_cs3 = k.newlab("cs3")
    k.e("s_mul_i32 s13, s2, 3")
    k.e("s_add_u32 s13, s13, s4")
    k.e("s_sub_u32 s13, s13, 5")
    k.e("s_mul_i32 s14, s13, 3641")
    k.e("s_lshr_b32 s14, s14, 16")
    k.e("s_mul_i32 s15, s14, 18")
    k.e("s_sub_u32 s15, s13, s15")
    k.e("s_lshl_b32 s60, s4, 5")
    k.e("s_add_u32 s61, s60, 160")
    k.e("s_add_u32 s62, s60, 320")
    k.e("s_sub_u32 s60, s4, 5")
    k.e("s_lshl_b32 s60, s60, 6")
    k.e("s_add_u32 s63, s60, 32")
    k.e("s_min_u32 s63, s63, 128")
    k.e("s_cmp_lt_u32 s4, 5")
    k.e("s_cselect_b32 s11, s61, s60")
    k.e("s_cselect_b32 s12, s62, s63")
    k.e("s_cselect_b32 s66, 8192, 0")
    k.e("s_cselect_b32 s67, 16384, 0")
    k.e("s_cselect_b32 s68, 160, 0")
    k.e("s_cselect_b32 s69, 320, 0")
    vB0, vB1, vA, vS = 20, 25, 30, 33
    swap23_lane_rowpos(k, 8, 0, 18, 19)
    k.e("v_bfe_u32 v9, v8, 1, 2")
    k.e("v_and_b32 v10, 1, v8")
    k.e("v_lshlrev_b32 v8, 8, v8")
    k.e("v_and_b32 v11, 3, v0")
    k.e("v_lshlrev_b32 v11, 3, v11")
    k.e("s_and_b32 s65, s65, 127")
    for (vd, sreg, sreb, ssub) in ((vB0, 11, 66, 68), (vB1, 12, 67, 69)):
        k.e("s_sub_u32 s60, s%d, s%d" % (sreg, ssub))
        k.e("s_add_u32 s60, s60, s65")
        k.e("v_add_u32 v18, s60, v11")
        k.e("v_bfe_u32 v19, v18, 7, 1")
        k.e("v_xor_b32 v19, v19, v10")
        k.e("v_lshlrev_b32 v19, 7, v19")
        k.e("v_bfe_u32 v12, v18, 5, 2")
        k.e("v_xor_b32 v12, v12, v9")
        k.e("v_lshlrev_b32 v12, 5, v12")
        k.e("v_and_b32 v18, 31, v18")
        k.e("v_add3_u32 v18, v18, v19, v12")
        k.e("v_add3_u32 v%d, v18, v8, s%d" % (vd, sreb))
    k.e("v_lshlrev_b32 v%d, 4, v0" % vA)
    k.e("v_add_u32 v%d, %d, v%d" % (vA, XB, vA))
    k.e("v_add_u32 v%d, s%d, v%d" % (vS, sMX, vA))
    for b in range(1, NW):
        for v in (vB0, vB1):
            k.e("v_add_u32 v%d, %d, v%d" % (v + b, b * WS_, v))
    for b in range(1, NX):
        for v in (vA, vS):
            k.e("v_add_u32 v%d, %d, v%d" % (v + b, b * XS_, v))
    ONES = 36
    for r in range(4):
        k.e("v_mov_b32 v%d, 0x3f803f80" % (ONES + r))
    ACC = 40
    acc = lambda sl, mi: ACC + (sl * 6 + mi) * 4
    SACC = 88
    AF = [[96 + 4 * mi for mi in range(6)], [120 + 4 * mi for mi in range(6)]]
    BF = [[216, 220], [224, 228]]
    lab_q = k.newlab("qpath")
    lab_post = k.newlab("post")
    k.e("s_cmp_ge_u32 s4, 5")
    k.e("s_cbranch_scc1 %s" % lab_q)
    for path in range(2):
        if path == 1:
            k.e("s_branch %s" % lab_post)
            k.label(lab_q)
        k.lq, k.vq = [], []
        mis = [0, 1, 2, 3, 4] if path == 0 else [1, 2, 3, 4]
        k.vq = [("dma", 0)] * 3 + [("dma", 1)] * 3 + [("dma", 2)] * 3 + [("dma", 3)] * 3 + ["z"] * (3 if "notouchall" in EXP else 6)
        def rdl(s):
            xs, kk = divmod(s, 2)
            out = []
            for sl in range(2):
                for j in range(2):
                    out.append("ds_read_b64_tr_b16 %s, v%d offset:%d" % (vr(BF[s % 2][sl] + 2 * j, 2), (vB0, vB1)[sl] + s % NW, j * 2048))
            for mi in mis:
                out.append("ds_read_b128 %s, v%d offset:%d" % (vr(AF[s % 2][mi], 4), vA + xs % NX, (mi * 2 + kk) * 1024))
            if path == 0:
                out.append("ds_read_b128 %s, v%d offset:%d" % (vr(AF[s % 2][5], 4), vS + xs % NX, kk * 1024))
            return out
        if path == 0 and "k1fine" not in EXP:
            stamp(k, 1)
        k.wait_vm(("dma", 0))
        k.e("s_barrier")
        for x in rdl(0):
            k.lds(x, ("f", 0))
        for s in range(18):
            k.c("---- step %d" % s)
            if STAMP and "k1fine" in EXP and path == 0 and s in (1, 6):
                k.e("s_memtime s[%d:%d]" % ((72, 73) if s == 1 else (74, 75)))
            groups = []
            reads = []
            if s + 1 < 18:
                k.wait_vm(("dma", s + 1))
                k.e("s_barrier")
                if path == 0 and s % 2 == 0 and s // 2 + 2 < 9:
                    groups += dmaX(s // 2 + 2)
                if s + NW - 1 < 18:
                    groups += dmaW(s + NW - 1)
                reads = rdl(s + 1)
            if False:
                groups.append([("buffer_load_dwordx4 %s, v7, %s, s88 offen" % (vr(CX + 4 * s, 4), sr(SG, 4)), "cs"),
                               ("s_add_u32 s88, s88, 9216", None)])
            k.wait_lds(("f", s))
            mf = []
            for sl in range(2):
                for mi in mis + [5]:
                    a = acc(sl, mi)
                    cc = "0" if s == 0 else vr(a, 4)
                    bop = vr(AF[s % 2][mi], 4) if mi < 5 else vr(ONES, 4)
                    mf.append("v_mfma_f32_16x16x32_bf16 %s, %s, %s, %s" % (vr(a, 4), vr(BF[s % 2][sl], 4), bop, cc))
            if path == 0:
                sf = vr(AF[s % 2][5], 4)
                mf.append("v_mfma_f32_16x16x32_bf16 %s, %s, %s, %s" % (vr(SACC, 4), vr(ONES, 4), sf, "0" if s == 0 else vr(SACC, 4)))
                mf.append("v_mfma_f32_16x16x32_bf16 %s, %s, %s, %s" % (vr(SACC + 4, 4), sf, sf, "0" if s == 0 else vr(SACC + 4, 4)))
            for n, m in enumerate(mf):
                k.e(m)
                if n < len(reads):
                    k.lds(reads[n], ("f", s + 1))
                g0 = len(mf) - len(groups)
                if n >= g0:
                    issue_groups(k, [groups[n - g0]])
    k.label(lab_post)
    k.lq, k.vq = [], []
    if "tmid" in EXP:
        touch(k, 96, P_WG, D * F * 2, 2048, 8, 2, 1)
        touch(k, 96, P_WU, D * F * 2, 2048, 8, 2, 1)
        k.vq = []
    if "k1fine" in EXP:
        k.e("s_waitcnt lgkmcnt(0)")
        stamp(k, 3)
        stamp_flush(k, 6)
        k.e("s_mov_b64 exec, -1")
    else:
        stamp(k, 2)
    k.e("s_nop 7")
    k.e("s_nop 7")
    k.e("s_barrier")
    k.e("v_and_b32 v18, 3, v0")
    k.e("v_cmp_eq_u32 vcc, 1, v18")
    k.e("v_mov_b32 v19, v%d" % (SACC + 4))
    k.e("s_nop 0")
    k.e("v_cndmask_b32 v19, v19, v%d, vcc" % (SACC + 5))
    k.e("v_cmp_eq_u32 vcc, 2, v18")
    k.e("s_nop 1")
    k.e("v_cndmask_b32 v19, v19, v%d, vcc" % (SACC + 6))
    k.e("v_cmp_eq_u32 vcc, 3, v18")
    k.e("s_nop 1")
    k.e("v_cndmask_b32 v19, v19, v%d, vcc" % (SACC + 7))
    k.e("s_mov_b32 s60, 0x%x" % f2u(1.0 / 576.0))
    k.e("s_mov_b32 s61, 0x%x" % f2u(1e-5))
    k.e("v_mul_f32 v8, s60, v%d" % SACC)
    k.e("v_mul_f32 v19, s60, v19")
    k.e("v_fma_f32 v19, -v8, v8, v19")
    k.e("v_max_f32 v19, 0, v19")
    k.e("v_add_f32 v19, s61, v19")
    k.e("v_rsq_f32 v9, v19")
    k.e("v_sub_f32 v8, 0, v8")
    k.e("v_lshrrev_b32 v18, 2, v16")
    k.e("v_cmp_eq_u32 vcc, v18, v17")
    k.e("s_lshl_b32 s60, s4, 7")
    k.e("v_lshlrev_b32 v18, 3, v16")
    k.e("v_add_u32 v18, s60, v18")
    k.e("v_add_u32 v18, %d, v18" % STO)
    k.e("s_and_saveexec_b64 s[60:61], vcc")
    k.e("ds_write_b64 v18, v[8:9]")
    k.e("s_mov_b64 exec, -1")
    k.e("s_waitcnt lgkmcnt(0)")
    k.e("s_barrier")
    k.e("v_lshlrev_b32 v18, 3, v16")
    k.e("v_add_u32 v18, %d, v18" % STO)
    for mi in range(5):
        k.lds("ds_read_b64 %s, v18 offset:%d" % (vr(96 + 2 * mi, 2), mi * 128), "st")
    for sl, sreg in ((0, 11), (1, 12)):
        k.e("s_lshl_b32 s60, s%d, 1" % sreg)
        k.e("v_mul_u32_u24 v18, %d, v16" % QP)
        k.e("v_lshlrev_b32 v19, 4, v17")
        k.e("v_add3_u32 v%d, v18, v19, s60" % (8 + sl))
    k.wait_lds("st")
    for sl in range(2):
        cw = acc(sl, 5)
        for mi in range(5):
            a = acc(sl, mi)
            for r in range(4):
                k.e("v_fma_f32 v%d, v%d, v%d, v%d" % (a + r, 96 + 2 * mi, cw + r, a + r))
            for r in range(4):
                k.e("v_mul_f32 v%d, v%d, v%d" % (a + r, 97 + 2 * mi, a + r))
            k.e("v_cvt_pk_bf16_f32 v18, v%d, v%d" % (a, a + 1))
            k.e("v_cvt_pk_bf16_f32 v19, v%d, v%d" % (a + 2, a + 3))
            k.e("v_lshlrev_b32 v%d, 16, v18" % a)
            k.e("v_and_b32 v%d, 0xffff0000, v18" % (a + 1))
            k.e("v_lshlrev_b32 v%d, 16, v19" % (a + 2))
            k.e("v_and_b32 v%d, 0xffff0000, v19" % (a + 3))
            k.lds("ds_write_b128 v%d, %s offset:%d" % (8 + sl, vr(a, 4), mi * 16 * QP))
    k.wait_lds_all()
    k.e("s_barrier")
    k.e("v_lshrrev_b32 v18, 3, v0")
    k.e("s_lshl_b32 s60, s4, 3")
    k.e("v_add_u32 v18, s60, v18")
    k.e("v_bfe_u32 v19, v0, 1, 2")
    k.e("v_and_b32 v26, 1, v0")
    k.e("v_mul_u32_u24 v20, %d, v18" % QP)
    k.e("v_mul_u32_u24 v21, 72, v19")
    k.e("v_add_u32 v20, v20, v21")
    k.e("v_mul_u32_u24 v21, %d, v26" % (8 * QP))
    k.e("v_sub_u32 v27, v20, v21")
    k.e("v_add_u32 v27, %d, v27" % (10 * QP))
    Q = 32
    KV = 52
    L = 124
    O = 128
    for d in range(9):
        k.lds("ds_read_b64 %s, v20 offset:%d" % (vr(Q + 2 * d, 2), 16 * QP + d * 8), "q")
    seq = [("k", j) for j in range(4)] + [("v", j) for j in range(4)]

    def rdkv(n):
        kind, j = seq[n]
        col = 320 if kind == "k" else 640
        for d in range(9):
            k.lds("ds_read_b64 %s, v27 offset:%d" % (vr(KV + (n % 4) * 18 + 2 * d, 2), (3 - j) * 2 * QP + col + d * 8), seq[n])
    rdkv(0)
    rdkv(1)
    rdkv(2)
    for j in range(4):
        rdkv(j + 3)
        k.wait_lds(("k", j))
        b = KV + j * 18
        k.e("v_mul_f32 v%d, v%d, v%d" % (L + j, Q, b))
        k.e("v_mul_f32 v24, v%d, v%d" % (Q + 1, b + 1))
        for d in range(2, 18, 2):
            k.e("v_fmac_f32 v%d, v%d, v%d" % (L + j, Q + d, b + d))
            k.e("v_fmac_f32 v24, v%d, v%d" % (Q + d + 1, b + d + 1))
        k.e("v_add_f32 v%d, v%d, v24" % (L + j, L + j))
    rdkv(7)
    k.e("s_mov_b32 s60, 0x%x" % f2u(18 ** -0.5))
    k.e("s_lshl_b32 s61, s10, 6")
    k.e("v_add_u32 v22, s61, v18")
    k.e("v_lshlrev_b32 v25, 3, v26")
    k.e("v_sub_u32 v25, v22, v25")
    k.e("v_mov_b32 v23, 0x%x" % f2u(-1e9))
    for j in range(4):
        k.e("v_mul_f32 v%d, s60, v%d" % (L + j, L + j))
    for j in range(4):
        k.e("v_cmp_le_i32 vcc, %d, v25" % (2 * j))
        k.e("s_nop 1")
        k.e("v_cndmask_b32 v%d, v23, v%d, vcc" % (L + j, L + j))
    k.e("v_max3_f32 v24, v%d, v%d, v%d" % (L, L + 1, L + 2))
    k.e("v_max_f32 v24, v24, v%d" % (L + 3))
    k.e("s_nop 1")
    k.e("v_max_f32 v24, v24, v24 quad_perm:[1,0,3,2] row_mask:0xf bank_mask:0xf")
    k.e("s_mov_b32 s60, 0x%x" % f2u(1.4426950408889634))
    for j in range(4):
        k.e("v_sub_f32 v%d, v%d, v24" % (L + j, L + j))
    for j in range(4):
        k.e("v_mul_f32 v%d, s60, v%d" % (L + j, L + j))
    for j in range(4):
        k.e("v_exp_f32 v%d, v%d" % (L + j, L + j))
    k.e("s_nop 0")
    k.e("v_add_f32 v24, v%d, v%d" % (L, L + 1))
    k.e("v_add_f32 v25, v%d, v%d" % (L + 2, L + 3))
    k.e("v_add_f32 v24, v24, v25")
    k.e("s_nop 1")
    k.e("v_add_f32 v24, v24, v24 quad_perm:[1,0,3,2] row_mask:0xf bank_mask:0xf")
    k.e("v_rcp_f32 v24, v24")
    k.e("s_nop 0")
    for j in range(4):
        k.e("v_mul_f32 v%d, v%d, v24" % (L + j, L + j))
    for j in range(4):
        k.wait_lds(("v", j))
        b = KV + j * 18
        for d in range(18):
            if j == 0:
                k.e("v_mul_f32 v%d, v%d, v%d" % (O + d, L, b + d))
            else:
                k.e("v_fmac_f32 v%d, v%d, v%d" % (O + d, L + j, b + d))
    k.e("s_nop 1")
    for d in range(18):
        k.e("v_add_f32 v%d, v%d, v%d quad_perm:[1,0,3,2] row_mask:0xf bank_mask:0xf" % (KV + d, O + d, O + d))
    for d in range(9):
        k.e("v_cvt_pk_bf16_f32 v%d, v%d, v%d" % (Q + d, KV + 2 * d, KV + 2 * d + 1))
    k.e("v_cmp_eq_u32 vcc, 1, v26")
    k.e("v_lshrrev_b32 v23, 4, v22")
    k.e("v_mul_u32_u24 v23, 18432, v23")
    k.e("v_and_b32 v24, 15, v22")
    k.e("v_lshlrev_b32 v24, 4, v24")
    k.e("v_add_u32 v23, v23, v24")
    k.e("v_mul_u32_u24 v21, 18, v19")
    k.e("s_mul_i32 s60, s9, 72")
    k.e("v_add_u32 v21, s60, v21")
    k.e("v_lshlrev_b32 v24, 3, v26")
    k.e("v_add_u32 v21, v21, v24")
    for d in range(5):
        k.e("v_cndmask_b32 v%d, v%d, v%d, vcc" % (O + d, Q + d, Q + d + 4))
        k.e("v_add_u32 v24, %d, v21" % (2 * d))
        k.e("v_lshrrev_b32 v25, 3, v24")
        k.e("v_lshlrev_b32 v25, 8, v25")
        k.e("v_and_b32 v24, 7, v24")
        k.e("v_lshlrev_b32 v24, 1, v24")
        k.e("v_add3_u32 v%d, v23, v24, v25" % (O + 8 + d))
        k.e("buffer_store_dword v%d, v%d, %s, 0 offen" % (O + d, O + 8 + d, sr(SO, 4)))
    if "tend" in EXP:
        k.e("s_mov_b64 exec, -1")
        touch(k, 96, P_WG, D * F * 2, 2048, 8, 18, 1)
        touch(k, 96, P_WU, D * F * 2, 2048, 8, 18, 1)
    if "k1fine" not in EXP:
        stamp(k, 3)
        stamp_flush(k, 6)
    k.label(lab_cs3)
    footer(k)
    return k, 256


def main():
    ks = [
        (gen_k1, 512, 5 * 24576 + 3 * 10240, 232),
        (gen_k2, 512, 4 * 40960, 256),
    ]
    hdr = open("sequential_preLN__sliding_local_dilated__geglu_ffn__prompt.s.ref").read().split("\n")
    out = []
    for line in hdr:
        if line.startswith("; Override") or line.startswith("; grid=") or line.startswith("; @launch"):
            continue
        if not line.startswith(";"):
            break
        out.append(line)
    body = []
    desc = []
    for fn, block, lds, nv in ks:
        k, nwg = fn()
        name = k.name + "_kernel"
        out.append("; @launch kernel=%s grid=(%d,1,1) block=(%d,1,1) lds=%d" % (name, nwg, block, lds))
        body += [".globl %s" % name, ".p2align 8", ".type %s,@function" % name, "%s:" % name] + k.L
        desc += [".p2align 6", ".amdhsa_kernel %s" % name,
                 "  .amdhsa_next_free_vgpr %d" % nv, "  .amdhsa_next_free_sgpr 102",
                 "  .amdhsa_accum_offset %d" % nv,
                 "  .amdhsa_group_segment_fixed_size 0", "  .amdhsa_kernarg_size 80",
                 "  .amdhsa_user_sgpr_count 2", "  .amdhsa_user_sgpr_kernarg_segment_ptr 1",
                 "  .amdhsa_system_sgpr_workgroup_id_x 1", ".end_amdhsa_kernel"]
    out += ['.amdgcn_target "amdgcn-amd-amdhsa--gfx950"', ".text"] + body + ['.section .rodata,"a"'] + desc
    path = sys.argv[1] if len(sys.argv) > 1 else "sequential_preLN__sliding_local_dilated__geglu_ffn__prompt.s"
    open(path, "w").write("\n".join(out) + "\n")


main()
```

```python
import sys, struct

S, D, F = 2048, 576, 4608
O_OFF = 0x0000000
H_OFF = 0x0400000
ST_OFF = 0x0800000
CP_OFF = 0x0A00000
CS_OFF = 0x0860000
FLG_OFF = 0x0880000
ACT_OFF = 0x1000000
PART_OFF = 0x3000000


def f2u(x):
    return struct.unpack("<I", struct.pack("<f", x))[0]


EXP = __import__("os").environ.get("EXP", "")


class K:
    def __init__(s, name):
        s.name = name
        s.L = []
        s.lq = []
        s.vq = []
        s.nlab = 0

    def e(s, t):
        if "nomfma" in EXP and t.startswith("v_mfma"):
            return
        if "noldsrd" in EXP and (t.startswith("ds_read_b128") or t.startswith("ds_read_b64_tr")):
            return
        if "nodma" in EXP and t.endswith(" lds"):
            return
        if "nox" in EXP and t.endswith(" lds") and "s[36:39]" in t and s.name == "qkv":
            return
        if "now" in EXP and t.endswith(" lds") and "s[40:43]" in t and s.name == "qkv":
            return
        s.L.append("    " + t)

    def c(s, t):
        s.L.append("    ; " + t)

    def label(s, n):
        s.L.append(n + ":")

    def newlab(s, base):
        s.nlab += 1
        return "L_%s_%s_%d" % (s.name, base, s.nlab)

    def lds(s, t, tag=None):
        s.e(t)
        s.lq.append(tag)

    def vm(s, t, tag=None):
        s.e(t)
        s.vq.append(tag)

    def _need(s, q, tag):
        idx = -1
        for i, x in enumerate(q):
            if x == tag:
                idx = i
        return idx

    def wait_lds(s, tag):
        idx = s._need(s.lq, tag)
        if idx < 0:
            return
        n = len(s.lq) - idx - 1
        n = min(n, 15)
        s.e("s_waitcnt lgkmcnt(%d)" % n)
        s.lq = s.lq[len(s.lq) - n:] if n else []

    def wait_vm(s, tag):
        idx = s._need(s.vq, tag)
        if idx < 0:
            return
        n = len(s.vq) - idx - 1
        n = min(n, 63)
        s.e("s_waitcnt vmcnt(%d)" % n)
        s.vq = s.vq[len(s.vq) - n:] if n else []

    def wait_all(s):
        s.e("s_waitcnt vmcnt(0) lgkmcnt(0)")
        s.lq = []
        s.vq = []

    def wait_lds_all(s):
        s.e("s_waitcnt lgkmcnt(0)")
        s.lq = []

    def wait_vm_all(s):
        s.e("s_waitcnt vmcnt(0)")
        s.vq = []


STAMP = int(__import__("os").environ.get("STAMP", "0"))


def stamp(k, idx):
    if STAMP:
        k.e("s_memtime s[%d:%d]" % (70 + 2 * idx, 71 + 2 * idx))
        if idx in (0, 3):
            k.e("s_memrealtime s[%d:%d]" % (78 + (2 if idx else 0), 79 + (2 if idx else 0)))
        k.e("s_waitcnt lgkmcnt(0)")
        k.lq = []


def stamp_flush(k, n):
    if STAMP == 2:
        slot = getattr(k, "stamp_slot", 0)
        lab = k.newlab("nost")
        k.e("s_cmp_lg_u32 s2, 5")
        k.e("s_cbranch_scc1 %s" % lab)
        k.e("s_cmp_lg_u32 s4, 0")
        k.e("s_cbranch_scc1 %s" % lab)
        if not slot:
            k.e("s_add_u32 s92, s%d, 512" % P_DBG)
            k.e("s_addc_u32 s93, s%d, 0" % (P_DBG + 1))
        else:
            k.e("s_mov_b32 s92, s%d" % P_DBG)
            k.e("s_mov_b32 s93, s%d" % (P_DBG + 1))
        k.e("s_mov_b32 s94, 256")
        k.e("s_mov_b32 s95, 0x00020000")
        k.e("v_mov_b32 v1, 0")
        k.e("s_mov_b64 exec, 1")
        for i, r in enumerate((78, 80)):
            k.e("v_mov_b32 v2, s%d" % r)
            k.e("buffer_store_dword v2, v1, s[92:95], 0 offen offset:%d" % (8 * slot + 4 * i))
        k.label(lab)
        return
    if STAMP:
        lab = k.newlab("nost")
        k.e("s_and_b32 s90, s2, 127")
        k.e("s_cmp_lg_u32 s90, 5")
        k.e("s_cbranch_scc1 %s" % lab)
        k.e("s_cmp_lg_u32 s4, 0")
        k.e("s_cbranch_scc1 %s" % lab)
        srd(k, 92, P_WS, 0x900000 + 512 * getattr(k, "stamp_slot", 0), 256)
        k.e("s_lshr_b32 s90, s2, 7")
        k.e("s_lshl_b32 s90, s90, 6")
        k.e("v_mov_b32 v1, s90")
        k.e("s_mov_b64 exec, 1")
        for i in range(n):
            k.e("v_mov_b32 v2, s%d" % (70 + 2 * i))
            k.e("buffer_store_dword v2, v1, s[92:95], 0 offen offset:%d" % (4 * i))
        k.label(lab)


def vr(b, n):
    return "v[%d:%d]" % (b, b + n - 1)


def sr(b, n):
    return "s[%d:%d]" % (b, b + n - 1)


P_X, P_WQKV, P_WO, P_BX, P_WG, P_WU, P_WD, P_OUT, P_DBG, P_WS = 16, 18, 20, 22, 24, 26, 28, 30, 32, 34


def header(k, nwg):
    k.e("s_cmp_ge_u32 s2, %d" % nwg)
    k.e("s_cbranch_scc1 L_%s_end" % k.name)
    k.e("s_load_dwordx16 s[16:31], s[0:1], 0")
    k.e("s_load_dwordx4 s[32:35], s[0:1], 64")
    k.e("v_lshrrev_b32 v1, 6, v0")
    k.e("v_and_b32 v0, 63, v0")
    k.e("s_nop 0")
    k.e("v_readfirstlane_b32 s4, v1")
    k.e("s_waitcnt lgkmcnt(0)")


def srd(k, d, ptr, off, nbytes):
    if off:
        k.e("s_add_u32 s%d, s%d, 0x%x" % (d, ptr, off))
        k.e("s_addc_u32 s%d, s%d, 0" % (d + 1, ptr + 1))
    else:
        k.e("s_mov_b32 s%d, s%d" % (d, ptr))
        k.e("s_mov_b32 s%d, s%d" % (d + 1, ptr + 1))
    k.e("s_mov_b32 s%d, 0x%x" % (d + 2, nbytes))
    k.e("s_mov_b32 s%d, 0x00020000" % (d + 3))


def footer(k):
    k.label("L_%s_end" % k.name)
    k.e("s_endpgm")


def swap23_lane_rowpos(k, vdst, vlane, vt, vt2):
    k.e("v_lshrrev_b32 v%d, 5, v%d" % (vt, vlane))
    k.e("v_lshlrev_b32 v%d, 4, v%d" % (vdst, vt))
    k.e("v_bfe_u32 v%d, v%d, 4, 1" % (vt, vlane))
    k.e("v_lshlrev_b32 v%d, 2, v%d" % (vt, vt))
    k.e("v_add_u32 v%d, v%d, v%d" % (vdst, vdst, vt))
    k.e("v_bfe_u32 v%d, v%d, 2, 2" % (vt2, vlane))
    k.e("v_add_u32 v%d, v%d, v%d" % (vdst, vdst, vt2))


def swap23(k, vdst, vp, vt, vt2):
    k.e("v_and_b32 v%d, 0x33, v%d" % (vdst, vp))
    k.e("v_bfe_u32 v%d, v%d, 2, 1" % (vt, vp))
    k.e("v_lshlrev_b32 v%d, 3, v%d" % (vt, vt))
    k.e("v_bfe_u32 v%d, v%d, 3, 1" % (vt2, vp))
    k.e("v_lshlrev_b32 v%d, 2, v%d" % (vt2, vt2))
    k.e("v_or3_b32 v%d, v%d, v%d, v%d" % (vdst, vdst, vt, vt2))


def gemm_core(k, nst, nbuf, MI, acc, afr, bring, PD, a_rd, b_rd, dma, zero_init, NJ=9, sub=1, extra=None):
    RB = len(bring)
    nm = MI * NJ
    nsteps = nst * sub

    def rdB(t):
        sp, nj = divmod(t, NJ)
        if sp >= nsteps:
            return []
        st, kk = divmod(sp, sub)
        slot = bring[t % RB]
        out = []
        for j in range(2):
            v, off = b_rd(st % nbuf, nj, j, kk) if sub > 1 else b_rd(st % nbuf, nj, j)
            out.append(("ds_read_b64_tr_b16 %s, v%d offset:%d" % (vr(slot + 2 * j, 2), v, off), ("B", t)))
        return out

    def rdA(sp, i):
        if sp >= nsteps:
            return []
        st, kk = divmod(sp, sub)
        v, off = a_rd(st % nbuf, i, kk) if sub > 1 else a_rd(st % nbuf, i)
        return [("ds_read_b128 %s, v%d offset:%d" % (vr(afr[sp % 2][i], 4), v, off), ("A", sp))]

    k.wait_vm(("dma", 0))
    k.e("s_barrier")
    for i in range(MI):
        for (t, tag) in rdA(0, i):
            k.lds(t, tag)
    for t in range(PD):
        for (x, tag) in rdB(t):
            k.lds(x, tag)
    for s in range(nsteps):
        k.c("---- step %d" % s)
        groups = []
        st = s // sub
        if (s + 1) % sub == 0 and st + 1 < nst:
            k.wait_vm(("dma", st + 1))
            k.e("s_barrier")
            if st + nbuf - 1 < nst:
                groups = dma(st + nbuf - 1)
        ev = {}

        def add(idx, fn):
            ev.setdefault(min(idx, nm - 1), []).append(fn)
        for nj in range(NJ):
            t = s * NJ + nj
            add(nj * MI, (lambda tt: (lambda: [k.lds(x, tag) for (x, tag) in rdB(tt)]))(t + PD))
        for i in range(MI):
            add((2 + i) * MI + min(1, MI - 1), (lambda ii: (lambda: [k.lds(x, tag) for (x, tag) in rdA(s + 1, ii)]))(i))
        for gi, g in enumerate(groups):
            def mk(g):
                def f():
                    for (x, tag) in g:
                        if tag is None:
                            k.e(x)
                        else:
                            k.vm(x, tag)
                return f
            add(gi * MI + min(2, MI - 1), mk(g))
        for nj in range(NJ):
            t = s * NJ + nj
            if nj == 0:
                k.wait_lds(("A", s))
            k.wait_lds(("B", t))
            for i in range(MI):
                a = acc(i, nj)
                cc = "0" if (zero_init and s == 0) else vr(a, 4)
                k.e("v_mfma_f32_16x16x32_bf16 %s, %s, %s, %s" % (vr(a, 4), vr(bring[t % RB], 4), vr(afr[s % 2][i], 4), cc))
                for fn in ev.get(nj * MI + i, []):
                    fn()
            if extra:
                extra(s, nj, bring[t % RB])


def fl_lane(k, vdst, vt):
    k.e("v_lshrrev_b32 v%d, 1, v17" % vt)
    k.e("v_lshlrev_b32 v%d, 8, v%d" % (vdst, vt))
    k.e("v_lshlrev_b32 v%d, 4, v16" % vt)
    k.e("v_add_u32 v%d, v%d, v%d" % (vdst, vdst, vt))
    k.e("v_and_b32 v%d, 1, v17" % vt)
    k.e("v_lshlrev_b32 v%d, 3, v%d" % (vt, vt))
    k.e("v_add_u32 v%d, v%d, v%d" % (vdst, vdst, vt))


def b_dma_addr(k, vdst, sL0, iofs, NL, spitch, scol, reg_row=0, reg_col=0):
    k.e("v_lshrrev_b32 v18, 3, v0")
    k.e("v_add_u32 v18, s%d, v18" % sL0)
    if iofs:
        k.e("v_add_u32 v18, %d, v18" % iofs)
    if NL == 3:
        k.e("v_mul_u32_u24 v19, 21846, v18")
        k.e("v_lshrrev_b32 v19, 16, v19")
        k.e("v_mul_u32_u24 v20, 3, v19")
        k.e("v_sub_u32 v18, v18, v20")
    else:
        k.e("v_lshrrev_b32 v19, 1, v18")
        k.e("v_xor_b32 v18, v18, v19")
        k.e("v_and_b32 v18, 1, v18")
    k.e("v_lshlrev_b32 v18, 7, v18")
    k.e("v_bfe_u32 v20, v19, 1, 2")
    k.e("v_bfe_u32 v21, v0, 1, 2")
    k.e("v_xor_b32 v20, v20, v21")
    k.e("v_lshlrev_b32 v20, 5, v20")
    k.e("v_and_b32 v21, 1, v0")
    k.e("v_lshlrev_b32 v21, 4, v21")
    k.e("v_add3_u32 v18, v18, v20, v21")
    k.e("v_lshrrev_b32 v23, 5, v19")
    k.e("v_and_b32 v19, 31, v19")
    swap23(k, 20, 19, 21, 22)
    if reg_row:
        k.e("v_mul_u32_u24 v21, %d, v23" % reg_row)
        k.e("v_add_u32 v20, v20, v21")
    k.e("v_mul_lo_u32 v20, v20, s%d" % spitch)
    if reg_col:
        k.e("v_mul_u32_u24 v23, %d, v23" % reg_col)
        k.e("v_add_u32 v18, v18, v23")
    k.e("v_add3_u32 v%d, v20, v18, s%d" % (vdst, scol))


def b_rd_addr3(k, vq, sn0p, sbase):
    swap23_lane_rowpos(k, 18, 0, 19, 20)
    k.e("v_bfe_u32 v19, v18, 1, 2")
    k.e("v_mul_u32_u24 v18, 384, v18")
    k.e("v_and_b32 v20, 3, v0")
    k.e("v_lshlrev_b32 v20, 3, v20")
    k.e("v_add3_u32 v18, v18, v20, s%d" % sbase)
    for q in range(4):
        k.e("s_add_u32 s60, s%d, %d" % (sn0p, q))
        k.e("s_and_b32 s61, s60, 3")
        k.e("s_lshr_b32 s60, s60, 2")
        k.e("s_lshl_b32 s60, s60, 7")
        k.e("v_xor_b32 v20, s61, v19")
        k.e("v_lshlrev_b32 v20, 5, v20")
        k.e("v_add3_u32 v%d, v18, v20, s60" % (vq + q))


def touch(k, ssrd, ptr, nbytes, nwaves_total, wpw, vtmp, vdst):
    if "notouchall" in EXP:
        return
    nlines = nbytes // 128
    per = (nlines + nwaves_total - 1) // nwaves_total
    assert per <= 64
    srd(k, ssrd, ptr, 0, nbytes)
    k.e("s_mul_i32 s60, s2, %d" % wpw)
    k.e("s_add_u32 s60, s60, s4")
    k.e("s_mul_i32 s60, s60, %d" % per)
    k.e("v_add_u32 v%d, s60, v0" % vtmp)
    k.e("v_lshlrev_b32 v%d, 7, v%d" % (vtmp, vtmp))
    if per < 64:
        m = (1 << per) - 1
        k.e("s_mov_b32 exec_lo, 0x%x" % (m & 0xffffffff))
        k.e("s_mov_b32 exec_hi, 0x%x" % (m >> 32))
    k.vm("buffer_load_dword v%d, v%d, %s, 0 offen" % (vdst, vtmp, sr(ssrd, 4)), "touch")
    k.e("s_mov_b64 exec, -1")


def issue_groups(k, groups):
    for g in groups:
        for (x, tag) in g:
            if tag is None:
                k.e(x)
            else:
                k.vm(x, tag)


def gen_k3(k):
    SB = 40960
    NBUF = 4
    k.stamp_slot = 2
    stamp(k, 0)
    SA, SBd, SST, SCS, SO = 36, 40, 44, 48, 52
    sKA, sKB, sMA, sMB = 56, 57, 58, 59
    k.e("s_and_b32 s60, s2, 7")
    k.e("s_lshr_b32 s61, s2, 3")
    k.e("s_and_b32 s62, s61, 3")
    k.e("s_lshl_b32 s60, s60, 2")
    k.e("s_add_u32 s9, s60, s62")
    k.e("s_lshr_b32 s61, s61, 2")
    k.e("s_lshl_b32 s7, s61, 8")
    k.e("s_mul_i32 s8, s9, 144")
    k.e("s_and_b32 s5, s4, 3")
    k.e("s_lshr_b32 s6, s4, 2")
    srd(k, SA, P_WS, H_OFF, S * D * 2)
    k.e("s_cmp_lt_u32 s4, 4")
    k.e("s_cselect_b32 s%d, s%d, s%d" % (SBd, P_WG, P_WU))
    k.e("s_cselect_b32 s%d, s%d, s%d" % (SBd + 1, P_WG + 1, P_WU + 1))
    k.e("s_mov_b32 s%d, 0x%x" % (SBd + 2, D * F * 2))
    k.e("s_mov_b32 s%d, 0x00020000" % (SBd + 3))
    srd(k, SST, P_WS, ST_OFF, S * 32)
    srd(k, SO, P_WS, ACT_OFF, S * F * 2)
    vOA0, vOA1, vOB = 2, 3, 4
    vA, vB = 8, 24
    vR, vM = 40, 44
    ACC = 96
    afr = [[48 + 4 * i for i in range(4)], [64 + 4 * i for i in range(4)]]
    bring = [80, 84, 88, 92]
    k.e("v_and_b32 v16, 15, v0")
    k.e("v_lshrrev_b32 v17, 4, v0")
    k.e("s_lshr_b32 s60, s7, 4")
    k.e("s_lshl_b32 s61, s4, 1")
    k.e("s_add_u32 s60, s60, s61")
    k.e("s_mul_i32 s60, s60, 18432")
    k.e("v_lshlrev_b32 v19, 4, v0")
    k.e("v_add_u32 v%d, s60, v19" % vOA0)
    k.e("v_add_u32 v%d, 18432, v%d" % (vOA1, vOA0))
    k.e("s_and_b32 s60, s4, 3")
    k.e("s_mul_i32 s68, s60, 24")
    k.e("s_lshl_b32 s62, s8, 1")
    k.e("s_and_b32 s62, s62, 0xffffff80")
    k.e("s_movk_i32 s63, 9216")
    for i in range(3):
        b_dma_addr(k, vOB + i, 68, 8 * i, 3, 63, 62)
    k.e("s_mov_b32 s%d, 0" % sKA)
    k.e("s_mov_b32 s%d, 0" % sKB)
    k.e("s_lshl_b32 s%d, s4, 11" % sMA)
    k.e("s_mul_i32 s%d, s4, 3072" % sMB)
    k.e("s_add_u32 s%d, s%d, 16384" % (sMB, sMB))

    def dmaA(st):
        b = (st % NBUF) * SB
        tag = ("dma", st)
        g = []
        for i in range(2):
            x = [("s_add_u32 m0, s%d, %d" % (sMA, b + i * 1024), None), ("s_nop 0", None),
                 ("buffer_load_dwordx4 v%d, %s, s%d offen sc1 lds" % (vOA0 + i, sr(SA, 4), sKA), tag)]
            if i == 1:
                x.append(("s_add_u32 s%d, s%d, 1024" % (sKA, sKA), None))
            g.append(x)
        return g

    def dmaB(st):
        b = (st % NBUF) * SB
        tag = ("dma", st)
        g = []
        for i in range(3):
            x = [("s_add_u32 m0, s%d, %d" % (sMB, b + i * 1024), None), ("s_nop 0", None)]
            x.append(("buffer_load_dwordx4 v%d, %s, s%d offen lds" % (vOB + i, sr(SBd, 4), sKB), tag))
            if i == 2:
                x.append(("s_add_u32 s%d, s%d, %d" % (sKB, sKB, 32 * 9216), None))
            g.append(x)
        return g

    def dma(st):
        return dmaA(st) + dmaB(st)
    for st in range(NBUF - 1):
        issue_groups(k, dmaB(st))
    srd(k, 64, P_WS, FLG_OFF + 32768 + 1024, 1024)
    k.e("s_lshr_b32 s60, s7, 3")
    k.e("v_and_b32 v18, 31, v0")
    k.e("v_add_u32 v18, s60, v18")
    k.e("v_lshlrev_b32 v18, 2, v18")
    lab_p = k.newlab("pollH")
    lab_g = k.newlab("goH")
    k.label(lab_p)
    k.e("buffer_load_dword v19, v18, s[64:67], 0 offen sc1")
    k.e("s_waitcnt vmcnt(0)")
    k.e("v_cmp_ne_u32 vcc, 1, v19")
    k.e("s_nop 1")
    k.e("s_cmp_eq_u64 vcc, 0")
    k.e("s_cbranch_scc1 %s" % lab_g)
    k.e("s_sleep %d" % (0 if "sleep0" in EXP else 2))
    k.e("s_branch %s" % lab_p)
    k.label(lab_g)
    k.vq = []
    k.e("s_lshl_b32 s60, s5, 6")
    k.e("s_add_u32 s60, s60, s7")
    k.e("v_add_u32 v18, s60, v16")
    k.e("v_lshlrev_b32 v18, 5, v18")
    for i in range(4):
        for h in range(2):
            k.vm("buffer_load_dwordx4 %s, v18, %s, 0 offen offset:%d" % (vr(ACC + i * 8 + h * 4, 4), sr(SST, 4), i * 512 + h * 16) + " sc1", "st")
    for st in range(NBUF - 1):
        issue_groups(k, dmaA(st))
    if "notouchwd" not in EXP:
        touch(k, 64, P_WD, F * D * 2, 2048, 8, 18, 1)
    k.e("s_lshl_b32 s60, s5, 12")
    k.e("v_lshlrev_b32 v18, 4, v0")
    k.e("v_add_u32 v%d, s60, v18" % vA)
    k.e("v_add_u32 v%d, %d, v%d" % (vA + 1, 2 * SB, vA))
    k.e("s_bfe_u32 s62, s8, 0x20004")
    k.e("s_mul_i32 s63, s6, 5")
    k.e("s_add_u32 s62, s62, s63")
    k.e("s_movk_i32 s63, 16384")
    b_rd_addr3(k, vB, 62, 63)
    for q in range(4):
        k.e("v_add_u32 v%d, %d, v%d" % (vB + 4 + q, 2 * SB, vB + q))
    k.e("v_lshrrev_b32 v18, 1, v17")
    k.e("v_lshlrev_b32 v14, 8, v18")
    k.e("v_lshlrev_b32 v18, 4, v16")
    k.e("v_add_u32 v14, v14, v18")
    k.e("v_and_b32 v18, 1, v17")
    k.e("v_mul_u32_u24 v15, 147456, v18")
    k.e("v_add_u32 v15, v15, v14")
    k.e("v_lshlrev_b32 v18, 9, v18")
    k.e("v_add_u32 v14, v14, v18")
    k.e("s_lshr_b32 s60, s7, 4")
    k.e("s_lshl_b32 s61, s5, 2")
    k.e("s_add_u32 s60, s60, s61")
    k.e("s_mul_i32 s60, s60, 147456")
    k.e("s_mul_i32 s61, s9, 9")
    k.e("s_mul_i32 s62, s6, 5")
    k.e("s_add_u32 s61, s61, s62")
    k.e("s_lshl_b32 s61, s61, 9")
    k.e("s_add_u32 s60, s60, s61")
    k.e("v_add_u32 v14, s60, v14")
    k.e("v_add_u32 v15, s60, v15")
    k.wait_vm("st")
    k.e("s_mov_b32 s60, 0x%x" % f2u(1.0 / 576.0))
    k.e("s_mov_b32 s61, 0x%x" % f2u(1e-5))
    for i in range(4):
        b = ACC + i * 8
        k.e("v_add_f32 v18, v%d, v%d" % (b, b + 2))
        k.e("v_add_f32 v19, v%d, v%d" % (b + 4, b + 6))
        k.e("v_add_f32 v20, v%d, v%d" % (b + 1, b + 3))
        k.e("v_add_f32 v21, v%d, v%d" % (b + 5, b + 7))
        k.e("v_add_f32 v18, v18, v19")
        k.e("v_add_f32 v20, v20, v21")
        k.e("v_mul_f32 v18, s60, v18")
        k.e("v_mul_f32 v20, s60, v20")
        k.e("v_fma_f32 v20, -v18, v18, v20")
        k.e("v_max_f32 v20, 0, v20")
        k.e("v_add_f32 v20, s61, v20")
        k.e("v_rsq_f32 v%d, v20" % (vR + i))
        k.e("v_sub_f32 v%d, 0, v18" % (vM + i))
    lab1 = k.newlab("wn1")
    lab_done = k.newlab("done")
    k.e("s_cmp_eq_u32 s6, 1")
    k.e("s_cbranch_scc1 %s" % lab1)
    st_l, st_v = list(k.lq), list(k.vq)
    c1 = -2.0 * 0.7978845608028654 * 1.4426950408889634
    for wn in range(2):
        NF = 5 if wn == 0 else 4
        NJ = 2 * NF
        if wn == 1:
            k.e("s_branch %s" % lab_done)
            k.label(lab1)
            k.lq, k.vq = list(st_l), list(st_v)
        acc = lambda i, c: ACC + (i * NJ + c) * 4
        CW = {0: 32, 1: 36, 8: 10, 9: 16}
        ONES = 20
        for r in range(4):
            k.e("v_mov_b32 v%d, 0x3f803f80" % (ONES + r))
        prevb = [None]

        def cwreg(c):
            return CW[(c & 1) + 8 * (c >> 3)]

        def extra(s_, c, breg):
            if c & 1 == 0:
                prevb[0] = breg
                return
            lab = k.newlab("cw")
            k.e("s_cmp_eq_u32 s5, %d" % ((c >> 1) & 3))
            k.e("s_cbranch_scc0 %s" % lab)
            for cc, br in ((c - 1, prevb[0]), (c, breg)):
                k.e("v_mfma_f32_16x16x32_bf16 %s, %s, %s, %s" % (vr(cwreg(cc), 4), vr(br, 4), vr(ONES, 4), "0" if s_ == 0 else vr(cwreg(cc), 4)))
            k.label(lab)

        def a_rd(buf, i):
            return vA + (buf >> 1), (buf & 1) * SB + i * 1024

        def b_rd(buf, c, j):
            f = c >> 1
            return vB + 4 * (buf >> 1) + (f & 3), (buf & 1) * SB + (c & 1) * 12288 + j * 3072 + (f >> 2) * 128
        if wn == 0:
            stamp(k, 1)
        gemm_core(k, 18, NBUF, 4, acc, afr, bring, 2, a_rd, b_rd, dma, True, NJ=NJ, extra=extra)
        if wn == 0:
            stamp(k, 2)
        k.c("---- epilogue")
        k.e("s_nop 7")
        k.e("s_barrier")
        k.e("v_lshlrev_b32 v1, 4, v0")
        k.e("v_add_u32 v1, %d, v1" % (wn * 10240))
        for c in range(0, NJ, 2):
            lab = k.newlab("cww")
            k.e("s_cmp_eq_u32 s5, %d" % ((c >> 1) & 3))
            k.e("s_cbranch_scc0 %s" % lab)
            k.e("ds_write_b128 v1, %s offset:%d" % (vr(cwreg(c), 4), c * 1024))
            k.e("ds_write_b128 v1, %s offset:%d" % (vr(cwreg(c + 1), 4), c * 1024 + 1024))
            k.label(lab)
        k.e("s_waitcnt lgkmcnt(0)")
        k.e("s_barrier")
        CSR = 48
        for c in range(NJ):
            k.e("ds_read_b128 %s, v1 offset:%d" % (vr(CSR + 4 * c, 4), c * 1024))
        k.e("s_waitcnt lgkmcnt(0)")
        k.lq = []
        k.e("v_mov_b32 v20, 1.0")
        k.e("v_mov_b32 v21, 1.0")
        k.e("s_mov_b32 s60, 0x%x" % f2u(c1))
        k.e("s_mov_b32 s61, 0x%x" % f2u(c1 * 0.044715))
        k.e("s_mov_b32 s62, 0")
        k.e("s_nop 7")
        for i in range(4):
            k.e("v_mul_f32 v22, s60, v%d" % (vR + i))
            k.e("v_mul_f32 v26, v%d, v%d" % (vR + i, vR + i))
            k.e("v_mul_f32 v24, s61, v%d" % (vR + i))
            k.e("v_mul_f32 v24, v24, v26")
            k.e("v_mov_b32 v23, v22")
            k.e("v_mov_b32 v25, v24")
            k.e("v_mov_b32 v27, v26")
            k.e("v_mov_b32 v36, v%d" % (vM + i))
            k.e("v_mov_b32 v37, v%d" % (vM + i))
            for f in range(NF):
                G, U = acc(i, 2 * f), acc(i, 2 * f + 1)
                T, P = 28, 32
                for h in range(2):
                    k.e("v_pk_fma_f32 %s, %s, v[36:37], %s" % (vr(G + 2 * h, 2), vr(CSR + 8 * f + 2 * h, 2), vr(G + 2 * h, 2)))
                    k.e("v_pk_fma_f32 %s, %s, v[36:37], %s" % (vr(U + 2 * h, 2), vr(CSR + 8 * f + 4 + 2 * h, 2), vr(U + 2 * h, 2)))
                for h in range(2):
                    k.e("v_pk_mul_f32 %s, %s, %s" % (vr(T + 2 * h, 2), vr(G + 2 * h, 2), vr(G + 2 * h, 2)))
                for h in range(2):
                    k.e("v_pk_fma_f32 %s, %s, v[24:25], v[22:23]" % (vr(T + 2 * h, 2), vr(T + 2 * h, 2)))
                for h in range(2):
                    k.e("v_pk_mul_f32 %s, %s, %s" % (vr(T + 2 * h, 2), vr(T + 2 * h, 2), vr(G + 2 * h, 2)))
                for r in range(4):
                    k.e("v_exp_f32 v%d, v%d" % (T + r, T + r))
                for h in range(2):
                    k.e("v_pk_mul_f32 %s, %s, %s" % (vr(P + 2 * h, 2), vr(G + 2 * h, 2), vr(U + 2 * h, 2)))
                for h in range(2):
                    k.e("v_pk_add_f32 %s, %s, v[20:21]" % (vr(T + 2 * h, 2), vr(T + 2 * h, 2)))
                for r in range(4):
                    k.e("v_rcp_f32 v%d, v%d" % (T + r, T + r))
                for h in range(2):
                    k.e("v_pk_mul_f32 %s, %s, v[26:27]" % (vr(P + 2 * h, 2), vr(P + 2 * h, 2)))
                for h in range(2):
                    k.e("v_pk_mul_f32 %s, %s, %s" % (vr(P + 2 * h, 2), vr(P + 2 * h, 2), vr(T + 2 * h, 2)))
                if f < 4:
                    R = acc(i, 2 * (f & ~1)) + 2 * (f & 1)
                else:
                    R = acc(i & ~1, 8) + 2 * (i & 1)
                k.e("v_cvt_pk_bf16_f32 v%d, v%d, v%d" % (R, P, P + 1))
                k.e("v_cvt_pk_bf16_f32 v%d, v%d, v%d" % (R + 1, P + 2, P + 3))
                if (f < 4 and f & 1) or (f == 4 and i & 1):
                    B0 = R - 2
                    k.e("s_nop 1")
                    k.e("v_permlane16_swap_b32 v%d, v%d" % (B0, B0 + 2))
                    k.e("v_permlane16_swap_b32 v%d, v%d" % (B0 + 1, B0 + 3))
                    if f < 4:
                        k.vm("buffer_store_dwordx4 %s, v14, %s, s62 offen offset:%d sc1" % (vr(B0, 4), sr(SO, 4), (f - 1) * 512))
                    else:
                        k.e("s_sub_u32 s63, s62, 147456")
                        k.vm("buffer_store_dwordx4 %s, v15, %s, s63 offen offset:%d sc1" % (vr(B0, 4), sr(SO, 4), 4 * 512))
            k.e("s_add_u32 s62, s62, 147456")
    k.label(lab_done)
    srd(k, 64, P_WS, FLG_OFF + 32768, 1024)
    k.e("s_lshr_b32 s60, s7, 8")
    k.e("s_lshl_b32 s60, s60, 5")
    k.e("s_add_u32 s60, s60, s9")
    k.e("s_lshl_b32 s60, s60, 2")
    k.e("v_mov_b32 v1, s60")
    k.e("v_mov_b32 v2, 1")
    k.e("s_waitcnt vmcnt(0)")
    k.e("s_barrier")
    lab_nf = k.newlab("nf")
    k.e("s_cmp_lg_u32 s4, 0")
    k.e("s_cbranch_scc1 %s" % lab_nf)
    k.e("s_mov_b64 exec, 1")
    k.e("buffer_store_dword v2, v1, s[64:67], 0 offen sc1")
    k.e("s_mov_b64 exec, -1")
    k.label(lab_nf)
    k.lq, k.vq = [], []
    stamp(k, 3)
    stamp_flush(k, 6)
    k.e("s_mov_b64 exec, -1")
    return gen_k4(k)


def gen_k4(k):
    SB = 40960
    NBUF = 4
    k.stamp_slot = 3
    stamp(k, 0)
    SA, SBd, SP, SO, SH, SD = 36, 40, 44, 48, 52, 64
    sKA, sKB, sMA, sMB = 56, 57, 58, 59
    k.e("s_and_b32 s9, s2, 3")
    k.e("s_bfe_u32 s60, s2, 0x10002")
    k.e("s_lshr_b32 s61, s2, 3")
    k.e("s_lshr_b32 s62, s61, 2")
    k.e("s_lshl_b32 s60, s60, 3")
    k.e("s_add_u32 s60, s60, s62")
    k.e("s_lshl_b32 s7, s60, 7")
    k.e("s_and_b32 s61, s61, 3")
    k.e("s_mul_i32 s8, s61, 144")
    k.e("s_lshl_b32 s10, s60, 2")
    k.e("s_add_u32 s10, s10, s61")
    k.e("s_and_b32 s11, s4, 3")
    k.e("s_lshr_b32 s5, s11, 1")
    k.e("s_and_b32 s6, s11, 1")
    k.e("v_and_b32 v16, 15, v0")
    k.e("v_lshrrev_b32 v17, 4, v0")
    lab_comp = k.newlab("comp")
    k.e("s_cmp_lt_u32 s4, 4")
    k.e("s_cbranch_scc1 %s" % lab_comp)
    srd(k, SA, P_WS, ACT_OFF, S * F * 2)
    srd(k, SBd, P_WD, 0, F * D * 2)
    vOA, vOB = 2, 8
    k.e("s_lshr_b32 s60, s7, 4")
    k.e("s_lshl_b32 s61, s11, 1")
    k.e("s_add_u32 s60, s60, s61")
    k.e("s_mul_i32 s60, s60, 147456")
    k.e("s_mul_i32 s61, s9, 36864")
    k.e("s_add_u32 s60, s60, s61")
    k.e("v_lshlrev_b32 v19, 4, v0")
    k.e("v_add_u32 v%d, s60, v19" % vOA)
    k.e("v_add_u32 v%d, 1024, v%d" % (vOA + 1, vOA))
    k.e("v_add_u32 v%d, %d, v%d" % (vOA + 2, 147456, vOA))
    k.e("v_add_u32 v%d, %d, v%d" % (vOA + 3, 147456 + 1024, vOA))
    k.e("s_mul_i32 s64, s11, 48")
    k.e("s_lshl_b32 s62, s8, 1")
    k.e("s_and_b32 s62, s62, 0xffffff80")
    k.e("s_mul_i32 s61, s9, 1152 * 1152")
    k.e("s_add_u32 s62, s62, s61")
    k.e("s_movk_i32 s63, 1152")
    for i in range(6):
        b_dma_addr(k, vOB + i, 64, 8 * i, 3, 63, 62, reg_row=32)
    k.e("s_mov_b32 s%d, 0" % sKA)
    k.e("s_mov_b32 s%d, 0" % sKB)
    k.e("s_lshl_b32 s%d, s11, 12" % sMA)
    k.e("s_mul_i32 s%d, s11, 6144" % sMB)
    k.e("s_add_u32 s%d, s%d, 16384" % (sMB, sMB))

    def dmaA(st):
        b = (st % NBUF) * SB
        tag = ("dma", st)
        g = []
        for i in range(4):
            x = [("s_add_u32 m0, s%d, %d" % (sMA, b + i * 1024), None), ("s_nop 0", None),
                 ("buffer_load_dwordx4 v%d, %s, s%d offen sc1 lds" % (vOA + i, sr(SA, 4), sKA), tag)]
            if i == 3:
                x.append(("s_add_u32 s%d, s%d, 2048" % (sKA, sKA), None))
            g.append(x)
        return g

    def dmaB(st):
        b = (st % NBUF) * SB
        tag = ("dma", st)
        g = []
        for i in range(6):
            x = [("s_add_u32 m0, s%d, %d" % (sMB, b + i * 1024), None), ("s_nop 0", None)]
            x.append(("buffer_load_dwordx4 v%d, %s, s%d offen lds" % (vOB + i, sr(SBd, 4), sKB), tag))
            if i == 5:
                x.append(("s_add_u32 s%d, s%d, %d" % (sKB, sKB, 64 * 1152), None))
            g.append(x)
        return g

    def dma(st):
        return dmaA(st) + dmaB(st)
    for st in range(NBUF - 1):
        issue_groups(k, dmaB(st))
    srd(k, 84, P_WS, FLG_OFF + 32768, 1024)
    k.e("s_lshr_b32 s60, s7, 8")
    k.e("s_lshl_b32 s60, s60, 7")
    k.e("s_lshl_b32 s61, s9, 5")
    k.e("s_add_u32 s60, s60, s61")
    k.e("v_mov_b32 v20, s60")
    lab_p = k.newlab("pollA")
    lab_g = k.newlab("goA")
    k.label(lab_p)
    k.e("buffer_load_dwordx4 v[24:27], v20, s[84:87], 0 offen sc1")
    k.e("buffer_load_dwordx4 v[28:31], v20, s[84:87], 0 offen offset:16 sc1")
    k.e("s_waitcnt vmcnt(0)")
    k.e("v_add3_u32 v24, v24, v25, v26")
    k.e("v_add3_u32 v24, v24, v27, v28")
    k.e("v_add3_u32 v24, v24, v29, v30")
    k.e("v_add_u32 v24, v24, v31")
    k.e("s_nop 0")
    k.e("v_readfirstlane_b32 s61, v24")
    k.e("s_cmp_ge_u32 s61, 8")
    k.e("s_cbranch_scc1 %s" % lab_g)
    k.e("s_sleep %d" % (0 if "sleep0" in EXP else 2))
    k.e("s_branch %s" % lab_p)
    k.label(lab_g)
    k.vq = []
    for st in range(NBUF - 1):
        issue_groups(k, dmaA(st))
    k.wait_vm(("dma", 0))
    k.e("s_barrier")
    for s_ in range(17):
        k.wait_vm(("dma", s_ + 1))
        k.e("s_barrier")
        if s_ + NBUF - 1 < 18:
            issue_groups(k, dma(s_ + NBUF - 1))
    k.e("s_endpgm")
    k.label(lab_comp)
    k.lq, k.vq = [], []
    srd(k, SP, P_WS, PART_OFF, 64 * 16 * 18432)
    srd(k, SO, P_OUT, 0, S * D * 2)
    srd(k, SH, P_WS, H_OFF, S * D * 2)
    srd(k, SD, P_WS, FLG_OFF, 256 * 128)
    vA, vB = 2, 24
    ACC = 112
    afr = [[48, 52], [56, 60]]
    bring = [64 + 4 * q for q in range(8)]
    acc = lambda i, nj: ACC + (i * 9 + nj) * 4
    k.e("s_lshl_b32 s60, s4, 12")
    k.e("v_lshlrev_b32 v18, 4, v0")
    k.e("v_add_u32 v%d, s60, v18" % vA)
    for b_ in range(1, 4):
        k.e("v_add_u32 v%d, %d, v%d" % (vA + b_, b_ * SB, vA))
    k.e("s_bfe_u32 s62, s8, 0x20004")
    k.e("s_movk_i32 s63, 16384")
    b_rd_addr3(k, vB, 62, 63)
    for b_ in range(1, 4):
        for q in range(4):
            k.e("v_add_u32 v%d, %d, v%d" % (vB + 4 * b_ + q, b_ * SB, vB + q))

    def a_rd(buf, i, kk):
        return vA + buf, i * 2048 + kk * 1024

    def b_rd(buf, nj, j, kk):
        return vB + 4 * buf + (nj & 3), kk * 12288 + j * 3072 + (nj >> 2) * 128
    gemm_core(k, 18, NBUF, 2, acc, afr, bring, 6, a_rd, b_rd, lambda st: [], True, sub=2)
    stamp(k, 1)
    k.c("---- epilogue: cross-workgroup reduction")
    k.e("v_lshlrev_b32 v18, 4, v0")
    k.e("s_lshl_b32 s60, s10, 2")
    k.e("s_add_u32 s60, s60, s9")
    k.e("s_lshl_b32 s60, s60, 2")
    k.e("s_add_u32 s60, s60, s4")
    k.e("s_mul_i32 s60, s60, 9216")
    k.e("v_add_u32 v21, s60, v18")
    k.e("s_lshl_b32 s60, s10, 2")
    k.e("s_add_u32 s61, s60, s4")
    k.e("s_lshl_b32 s61, s61, 7")
    k.e("s_lshl_b32 s62, s9, 2")
    k.e("s_add_u32 s61, s61, s62")
    k.e("v_mov_b32 v23, s61")
    k.e("s_add_u32 s60, s60, s9")
    k.e("s_lshl_b32 s60, s60, 7")
    k.e("v_mov_b32 v26, s60")
    k.e("v_mov_b32 v24, 1")
    k.e("s_nop 7")
    k.e("s_barrier")
    lab_own = k.newlab("own")
    lab_j = k.newlab("j")
    k.e("s_cmp_eq_u32 s4, s9")
    k.e("s_cbranch_scc1 %s" % lab_own)
    for t in range(9):
        a = ACC + 8 * t
        for d in range(4):
            k.e("v_cvt_pk_bf16_f32 v%d, v%d, v%d" % (a + d, a + 2 * d, a + 2 * d + 1))
        sreg = "0"
        off = t * 1024
        if off >= 4096:
            k.e("s_movk_i32 s61, %d" % (off & ~4095))
            sreg = "s61"
        k.e("buffer_store_dwordx4 %s, v21, %s, %s offen offset:%d sc1" % (vr(a, 4), sr(SP, 4), sreg, off & 4095))
    k.e("s_barrier")
    k.e("s_branch %s" % lab_j)
    k.label(lab_own)
    for t in range(18):
        k.e("ds_write_b128 v18, %s offset:%d" % (vr(ACC + 4 * t, 4), t * 1024))
    k.e("s_waitcnt lgkmcnt(0)")
    k.e("s_barrier")
    k.e("s_branch L_%s_end" % k.name)
    k.label(lab_j)
    k.e("s_sub_u32 s62, s4, s9")
    k.e("s_sub_u32 s62, s62, 1")
    k.e("s_and_b32 s62, s62, 3")
    k.e("s_mul_i32 s63, s62, 6144")
    k.e("v_add_u32 v22, s63, v18")
    OWN = 48
    for t in range(6):
        k.lds("ds_read_b128 %s, v22 offset:%d" % (vr(OWN + 4 * t, 4), t * 1024), "own")
    k.e("s_lshl_b32 s60, s9, 5")
    k.e("s_add_u32 s60, s60, s7")
    k.e("v_add_u32 v19, s60, v16")
    k.e("v_mul_u32_u24 v19, 1152, v19")
    k.e("v_lshlrev_b32 v20, 3, v17")
    k.e("s_lshl_b32 s60, s8, 1")
    k.e("v_add3_u32 v19, v19, v20, s60")
    fl_lane(k, 44, 45)
    k.e("s_lshr_b32 s60, s7, 4")
    k.e("s_lshl_b32 s61, s9, 1")
    k.e("s_add_u32 s60, s60, s61")
    k.e("s_mul_i32 s60, s60, 18432")
    k.e("s_lshl_b32 s61, s8, 5")
    k.e("s_add_u32 s60, s60, s61")
    k.e("v_add_u32 v44, s60, v44")
    k.e("s_waitcnt vmcnt(0)")
    k.e("s_mov_b64 exec, 1")
    k.e("buffer_store_dword v24, v23, %s, 0 offen sc1" % sr(SD, 4))
    k.e("s_mov_b64 exec, -1")
    k.e("s_mul_i32 s62, s62, 6")
    HR = 96
    for t in range(6):
        k.e("s_add_u32 s60, s62, %d" % t)
        k.e("s_cmp_ge_u32 s60, 9")
        k.e("s_cselect_b32 s61, %d, 0" % (16 * 1152 - 9 * 32))
        k.e("s_cselect_b32 s69, %d, 0" % (18432 - 9 * 512))
        k.e("s_lshl_b32 s68, s60, 9")
        k.e("s_add_u32 s68, s68, s69")
        k.e("s_lshl_b32 s60, s60, 5")
        k.e("s_add_u32 s%d, s60, s61" % (84 + t))
        k.e("buffer_load_dwordx2 %s, v44, %s, s68 offen sc1" % (vr(HR + 2 * t, 2), sr(SH, 4)))
    stamp(k, 2)
    lab_poll = k.newlab("poll")
    lab_go = k.newlab("go")
    k.label(lab_poll)
    k.e("buffer_load_dwordx4 v[28:31], v26, %s, 0 offen sc1" % sr(SD, 4))
    k.e("s_waitcnt vmcnt(0)")
    k.e("v_add_u32 v28, v28, v29")
    k.e("v_add3_u32 v28, v28, v30, v31")
    k.e("s_nop 0")
    k.e("v_readfirstlane_b32 s61, v28")
    k.e("s_cmp_ge_u32 s61, 3")
    k.e("s_cbranch_scc1 %s" % lab_go)
    k.e("s_sleep 1")
    k.e("s_branch %s" % lab_poll)
    k.label(lab_go)
    if STAMP:
        k.e("s_memtime s[82:83]")
        k.e("s_waitcnt lgkmcnt(0)")
        k.lq = []
    k.e("s_lshl_b32 s60, s10, 4")
    k.e("s_add_u32 s60, s60, s9")
    k.e("s_mul_i32 s60, s60, 9216")
    k.e("s_lshr_b32 s63, s63, 1")
    k.e("s_add_u32 s60, s60, s63")
    k.e("v_add_u32 v21, s60, v18")
    k.vq = []
    for o in range(1, 4):
        k.e("s_add_u32 s61, s9, %d" % o)
        k.e("s_and_b32 s61, s61, 3")
        k.e("s_mul_i32 s61, s61, %d" % (4 * 9216))
        for t in range(3):
            k.vm("buffer_load_dwordx4 %s, v21, %s, s61 offen offset:%d sc1" % (vr(ACC + 12 * (o - 1) + 4 * t, 4), sr(SP, 4), t * 1024), ("p", o, t))
    k.wait_lds("own")
    for t in range(6):
        a = OWN + 4 * t
        for d in range(2):
            k.e("v_lshlrev_b32 v42, 16, v%d" % (HR + 2 * t + d))
            k.e("v_and_b32 v43, 0xffff0000, v%d" % (HR + 2 * t + d))
            k.e("v_add_f32 v%d, v%d, v42" % (a + 2 * d, a + 2 * d))
            k.e("v_add_f32 v%d, v%d, v43" % (a + 2 * d + 1, a + 2 * d + 1))
    for o in range(1, 4):
        for t in range(6):
            a = OWN + 4 * t
            k.wait_vm(("p", o, t >> 1))
            for d in range(2):
                x = ACC + 12 * (o - 1) + 2 * t + d
                k.e("v_lshlrev_b32 v42, 16, v%d" % x)
                k.e("v_and_b32 v43, 0xffff0000, v%d" % x)
                k.e("v_add_f32 v%d, v%d, v42" % (a + 2 * d, a + 2 * d))
                k.e("v_add_f32 v%d, v%d, v43" % (a + 2 * d + 1, a + 2 * d + 1))
            if o == 3:
                k.e("v_cvt_pk_bf16_f32 v%d, v%d, v%d" % (HR + 2 * t, a, a + 1))
                k.e("v_cvt_pk_bf16_f32 v%d, v%d, v%d" % (HR + 1 + 2 * t, a + 2, a + 3))
                k.vm("buffer_store_dwordx2 %s, v19, %s, s%d offen" % (vr(HR + 2 * t, 2), sr(SO, 4), 84 + t))
    stamp(k, 3)
    stamp_flush(k, 7)
    footer(k)
    return k, 256


def gen_k5():
    k = K("red")
    nwg = S * D // 8 // 256
    k.e("s_cmp_ge_u32 s2, %d" % nwg)
    k.e("s_cbranch_scc1 L_%s_end" % k.name)
    k.e("s_load_dwordx16 s[16:31], s[0:1], 0")
    k.e("s_load_dwordx4 s[32:35], s[0:1], 64")
    k.e("s_lshl_b32 s3, s2, 8")
    k.e("v_add_u32 v1, s3, v0")
    k.e("v_lshlrev_b32 v2, 4, v1")
    k.e("v_lshlrev_b32 v3, 5, v1")
    k.e("s_waitcnt lgkmcnt(0)")
    srd(k, 36, P_WS, H_OFF, S * D * 2)
    srd(k, 40, P_WS, PART_OFF, 4 * S * D * 4)
    srd(k, 44, P_OUT, 0, S * D * 2)
    k.e("buffer_load_dwordx4 v[4:7], v2, s[36:39], 0 offen")
    for p in range(4):
        k.e("s_mov_b32 s48, 0x%x" % (p * S * D * 4))
        k.e("buffer_load_dwordx4 %s, v3, s[40:43], s48 offen" % vr(8 + p * 8, 4))
        k.e("buffer_load_dwordx4 %s, v3, s[40:43], s48 offen offset:16" % vr(12 + p * 8, 4))
    k.e("s_waitcnt vmcnt(0)")
    for r in range(8):
        k.e("v_add_f32 v%d, v%d, v%d" % (8 + r, 8 + r, 16 + r))
        k.e("v_add_f32 v%d, v%d, v%d" % (24 + r, 24 + r, 32 + r))
    for r in range(8):
        k.e("v_add_f32 v%d, v%d, v%d" % (8 + r, 8 + r, 24 + r))
    for d in range(4):
        k.e("v_lshlrev_b32 v40, 16, v%d" % (4 + d))
        k.e("v_and_b32 v41, 0xffff0000, v%d" % (4 + d))
        k.e("v_add_f32 v%d, v%d, v40" % (8 + 2 * d, 8 + 2 * d))
        k.e("v_add_f32 v%d, v%d, v41" % (9 + 2 * d, 9 + 2 * d))
    for d in range(4):
        k.e("v_cvt_pk_bf16_f32 v%d, v%d, v%d" % (4 + d, 8 + 2 * d, 9 + 2 * d))
    k.e("buffer_store_dwordx4 v[4:7], v2, s[44:47], 0 offen")
    footer(k)
    return k, nwg


def gen_k2():
    k = K("ffn")
    k.stamp_slot = 1
    SB = 4096 + 24576
    NBUF = 5
    header(k, 256)
    stamp(k, 0)
    SA, SBd, SX, SH, SST, SCP, SCS = 36, 40, 44, 48, 52, 64, 96
    sKA, sKB, sMA, sMB = 56, 57, 58, 59
    k.e("s_and_b32 s9, s2, 3")
    k.e("s_lshr_b32 s60, s2, 2")
    k.e("s_lshl_b32 s7, s60, 5")
    k.e("s_mul_i32 s8, s9, 144")
    k.e("s_lshr_b32 s5, s4, 1")
    k.e("s_and_b32 s6, s4, 1")
    srd(k, SA, P_WS, O_OFF, S * D * 2)
    srd(k, SBd, P_WO, 0, D * D * 2)
    srd(k, SX, P_X, 0, S * D * 2)
    srd(k, SH, P_WS, H_OFF, S * D * 2)
    srd(k, SST, P_WS, ST_OFF, S * 32)
    lab_idle = k.newlab("idle")
    lab_p2done = k.newlab("p2done")
    k.e("s_cmp_ge_u32 s4, 4")
    k.e("s_cbranch_scc1 %s" % lab_idle)
    vOA, vOB = 2, 8
    vA, vB = 24, 28
    ACC = 112
    afr = [[48], [52]]
    bring = [56, 60, 64, 68, 72, 76]
    acc = lambda i, nj: ACC + nj * 4
    XR = 80
    CPR = 184
    k.e("v_and_b32 v16, 15, v0")
    k.e("v_lshrrev_b32 v17, 4, v0")
    k.e("s_lshl_b32 s60, s5, 4")
    k.e("s_add_u32 s60, s60, s7")
    k.e("v_add_u32 v31, s60, v16")
    k.e("s_movk_i32 s63, 1152")
    k.e("v_mul_lo_u32 v18, v31, s63")
    k.e("v_lshlrev_b32 v19, 3, v17")
    k.e("s_lshl_b32 s62, s8, 1")
    k.e("v_add3_u32 v32, v18, v19, s62")
    for nj in range(9):
        k.vm("buffer_load_dwordx2 %s, v32, %s, 0 offen offset:%d" % (vr(XR + 2 * nj, 2), sr(SX, 4), nj * 32), "x")
    k.e("s_lshr_b32 s60, s7, 4")
    k.e("s_add_u32 s60, s60, s5")
    k.e("s_mul_i32 s60, s60, 18432")
    k.e("s_lshl_b32 s61, s6, 10")
    k.e("s_add_u32 s61, s60, s61")
    k.e("v_lshlrev_b32 v19, 4, v0")
    k.e("v_add_u32 v%d, s61, v19" % vOA)
    fl_lane(k, 37, 18)
    k.e("s_lshl_b32 s61, s8, 5")
    k.e("s_add_u32 s60, s60, s61")
    k.e("v_add_u32 v37, s60, v37")
    k.e("s_mul_i32 s88, s4, 48")
    k.e("s_lshl_b32 s62, s8, 1")
    k.e("s_and_b32 s62, s62, 0xffffff80")
    k.e("s_movk_i32 s63, 1152")
    for i in range(6):
        b_dma_addr(k, vOB + i, 88, 8 * i, 3, 63, 62, reg_row=32)
    k.e("s_mov_b32 s%d, 0" % sKA)
    k.e("s_mov_b32 s%d, 0" % sKB)
    k.e("s_lshl_b32 s%d, s4, 10" % sMA)
    k.e("s_mul_i32 s%d, s4, 6144" % sMB)
    k.e("s_add_u32 s%d, s%d, 4096" % (sMB, sMB))

    def dma(st):
        b = (st % NBUF) * SB
        tag = ("dma", st)
        g = [[("s_add_u32 m0, s%d, %d" % (sMA, b), None), ("s_nop 0", None),
              ("buffer_load_dwordx4 v%d, %s, s%d offen lds" % (vOA, sr(SA, 4), sKA), tag)]]
        for i in range(6):
            x = [("s_add_u32 m0, s%d, %d" % (sMB, b + i * 1024), None), ("s_nop 0", None)]
            x.append(("buffer_load_dwordx4 v%d, %s, s%d offen lds" % (vOB + i, sr(SBd, 4), sKB), tag))
            if i == 5:
                x.append(("s_add_u32 s%d, s%d, 2048" % (sKA, sKA), None))
                x.append(("s_add_u32 s%d, s%d, %d" % (sKB, sKB, 64 * 1152), None))
            g.append(x)
        return g
    for st in range(NBUF - 1):
        issue_groups(k, dma(st))
    k.e("v_lshlrev_b32 v18, 4, v0")
    k.e("v_add_u32 v%d, s%d, v18" % (vA, sMA))
    for q in range(1, 3):
        k.e("v_add_u32 v%d, %d, v%d" % (vA + q, 2 * SB * q, vA))
    vB = 100
    k.e("s_bfe_u32 s62, s8, 0x20004")
    k.e("s_mul_i32 s63, s6, 12288")
    k.e("s_add_u32 s63, s63, 4096")
    b_rd_addr3(k, vB, 62, 63)
    for b_ in range(1, 3):
        for q in range(4):
            k.e("v_add_u32 v%d, %d, v%d" % (vB + 4 * b_ + q, 2 * b_ * SB, vB + q))

    def a_rd(buf, i):
        return vA + (buf >> 1), (buf & 1) * SB

    def b_rd(buf, nj, j):
        return vB + 4 * (buf >> 1) + (nj & 3), (buf & 1) * SB + j * 3072 + (nj >> 2) * 128
    stamp(k, 1)
    gemm_core(k, 9, NBUF, 1, acc, afr, bring, 4, a_rd, b_rd, dma, True)
    stamp(k, 2)
    k.c("---- epilogue")
    k.e("s_nop 7")
    k.e("s_nop 7")
    k.e("s_barrier")
    k.wait_vm("x")
    k.e("s_mul_i32 s60, s5, 9216")
    k.e("v_lshlrev_b32 v18, 4, v0")
    k.e("v_add_u32 v19, s60, v18")
    lab_recv = k.newlab("recv")
    k.e("s_cmp_eq_u32 s6, 0")
    k.e("s_cbranch_scc1 %s" % lab_recv)
    for nj in range(9):
        k.lds("ds_write_b128 v19, %s offset:%d" % (vr(acc(0, nj), 4), nj * 1024))
    k.wait_lds_all()
    k.e("s_barrier")
    k.e("s_branch %s" % lab_p2done)
    k.label(lab_recv)
    k.e("s_barrier")
    R = 48
    RX = 148
    for nj in range(9):
        k.lds("ds_read_b128 %s, v19 offset:%d" % (vr(RX + nj * 4, 4), nj * 1024), ("x", nj))
    k.e("v_mov_b32 v40, 0")
    k.e("v_mov_b32 v41, 0")
    for nj in range(9):
        k.wait_lds(("x", nj))
        a = acc(0, nj)
        for r in range(4):
            k.e("v_add_f32 v%d, v%d, v%d" % (a + r, a + r, RX + nj * 4 + r))
        for d in range(2):
            k.e("v_lshlrev_b32 v42, 16, v%d" % (XR + 2 * nj + d))
            k.e("v_and_b32 v43, 0xffff0000, v%d" % (XR + 2 * nj + d))
            k.e("v_add_f32 v%d, v%d, v42" % (a + 2 * d, a + 2 * d))
            k.e("v_add_f32 v%d, v%d, v43" % (a + 2 * d + 1, a + 2 * d + 1))
        k.e("v_cvt_pk_bf16_f32 v%d, v%d, v%d" % (XR + 2 * nj, a, a + 1))
        k.e("v_cvt_pk_bf16_f32 v%d, v%d, v%d" % (XR + 2 * nj + 1, a + 2, a + 3))
        if nj == 8:
            k.e("s_movk_i32 s60, 4096")
        k.vm("buffer_store_dwordx2 %s, v37, %s, %s offen offset:%d" % (vr(XR + 2 * nj, 2), sr(SH, 4), "s60" if nj == 8 else "0", (nj * 512) & 4095) + " sc1")
        for d in range(2):
            k.e("v_lshlrev_b32 v42, 16, v%d" % (XR + 2 * nj + d))
            k.e("v_and_b32 v43, 0xffff0000, v%d" % (XR + 2 * nj + d))
            k.e("v_add_f32 v40, v40, v42")
            k.e("v_fmac_f32 v41, v42, v42")
            k.e("v_add_f32 v40, v40, v43")
            k.e("v_fmac_f32 v41, v43, v43")
    k.e("v_xor_b32 v44, 16, v0")
    k.e("v_lshlrev_b32 v44, 2, v44")
    k.e("v_xor_b32 v45, 32, v0")
    k.e("v_lshlrev_b32 v45, 2, v45")
    for a in (44, 45):
        k.e("ds_bpermute_b32 v42, v%d, v40" % a)
        k.e("ds_bpermute_b32 v43, v%d, v41" % a)
        k.e("s_waitcnt lgkmcnt(0)")
        k.e("v_add_f32 v40, v40, v42")
        k.e("v_add_f32 v41, v41, v43")
    k.e("v_lshlrev_b32 v42, 5, v31")
    k.e("s_lshl_b32 s60, s9, 3")
    k.e("v_add_u32 v42, s60, v42")
    k.e("s_mov_b64 exec, 0xffff")
    k.e("buffer_store_dwordx2 v[40:41], v42, %s, 0 offen sc1" % sr(SST, 4))
    k.e("s_mov_b64 exec, -1")
    stamp(k, 3)
    stamp_flush(k, 6)
    k.e("s_mov_b64 exec, -1")
    k.e("s_branch %s" % lab_p2done)
    k.label(lab_idle)
    if "tidle" in EXP:
        k.e("s_sub_u32 s4, s4, 4")
        touch(k, 96, P_WG, D * F * 2, 1024, 4, 18, 1)
        touch(k, 96, P_WU, D * F * 2, 1024, 4, 18, 1)
        k.e("s_add_u32 s4, s4, 4")
    for _ in range(11):
        k.e("s_barrier")
    k.label(lab_p2done)
    srd(k, 64, P_WS, FLG_OFF + 32768 + 1024, 1024)
    k.e("s_lshl_b32 s60, s2, 2")
    k.e("v_mov_b32 v1, s60")
    k.e("v_mov_b32 v2, 1")
    k.e("s_waitcnt vmcnt(0) lgkmcnt(0)")
    k.e("s_barrier")
    lab_nf = k.newlab("nf")
    k.e("s_cmp_lg_u32 s4, 0")
    k.e("s_cbranch_scc1 %s" % lab_nf)
    k.e("s_mov_b64 exec, 1")
    k.e("buffer_store_dword v2, v1, s[64:67], 0 offen sc1")
    k.e("s_mov_b64 exec, -1")
    k.label(lab_nf)
    k.lq, k.vq = [], []
    return gen_k3(k)


def gen_k1():
    k = K("qkv")
    WS_, NW = 24576, 5
    XS_, NX = 10240, 3
    XB = WS_ * NW
    QP = 976
    STO = 80 * QP
    header(k, 256)
    stamp(k, 0)
    SX, SW, SO, SG, SCP = 36, 40, 44, 48, 52
    sKW, sKX, sMW, sMX = 56, 57, 58, 59
    k.e("s_and_b32 s9, s2, 7")
    k.e("s_lshr_b32 s10, s2, 3")
    srd(k, SX, P_X, 0, S * D * 2)
    srd(k, SW, P_WQKV, 0, D * 3 * D * 2)
    srd(k, SO, P_WS, O_OFF, S * D * 2)
    if "tfirst" in EXP:
        touch(k, 96, P_X, S * D * 2, 2048, 8, 18, 1)
        touch(k, 96, P_WQKV, D * 3 * D * 2, 2048, 8, 18, 1)
    k.e("v_and_b32 v16, 15, v0")
    k.e("v_lshrrev_b32 v17, 4, v0")
    vO = 2
    k.e("s_mul_i32 s64, s4, 24")
    k.e("s_mul_i32 s65, s9, 144")
    k.e("s_and_b32 s62, s65, 0xffffff80")
    k.e("s_movk_i32 s63, 3456")
    for t in range(3):
        b_dma_addr(k, vO + t, 64, 8 * t, 2, 63, 62, reg_col=1152)
    k.e("s_lshl_b32 s60, s10, 6")
    k.e("s_lshl_b32 s61, s4, 4")
    k.e("s_add_u32 s60, s60, s61")
    k.e("s_sub_u32 s60, s60, 16")
    k.e("v_add_u32 v18, s60, v16")
    k.e("s_movk_i32 s63, 1152")
    k.e("v_mul_lo_u32 v18, v18, s63")
    k.e("v_lshlrev_b32 v19, 4, v17")
    k.e("v_add_u32 v%d, v18, v19" % (vO + 3))
    k.e("v_add_u32 v%d, 64, v%d" % (vO + 4, vO + 3))
    k.e("s_mov_b32 s%d, 0" % sKW)
    k.e("s_mov_b32 s%d, 0" % sKX)
    k.e("s_mul_i32 s%d, s4, 3072" % sMW)
    k.e("s_lshl_b32 s%d, s4, 11" % sMX)

    def dmaW(st):
        b = (st % NW) * WS_
        g = []
        for t in range(3):
            x = [("s_add_u32 m0, s%d, %d" % (sMW, b + t * 1024), None), ("s_nop 0", None),
                 ("buffer_load_dwordx4 v%d, %s, s%d offen lds" % (vO + t, sr(SW, 4), sKW), ("dma", st))]
            if t == 2:
                x.append(("s_add_u32 s%d, s%d, %d" % (sKW, sKW, 32 * 3456), None))
            g.append(x)
        return g

    def dmaX(xs):
        b = XB + (xs % NX) * XS_
        g = []
        for t in range(2):
            x = [("s_add_u32 m0, s%d, %d" % (sMX, b + t * 1024), None), ("s_nop 0", None),
                 ("buffer_load_dwordx4 v%d, %s, s%d offen lds" % (vO + 3 + t, sr(SX, 4), sKX), ("dma", 2 * xs))]
            if t == 1:
                x.append(("s_add_u32 s%d, s%d, 128" % (sKX, sKX), None))
            g.append(x)
        return g
    lab_nx = k.newlab("nx")
    k.e("s_cmp_ge_u32 s4, 5")
    k.e("s_cbranch_scc1 %s" % lab_nx)
    issue_groups(k, dmaX(0) + dmaX(1))
    k.label(lab_nx)
    issue_groups(k, dmaW(0) + dmaW(1) + dmaW(2) + dmaW(3))
    srd(k, 84, P_WS, FLG_OFF, 32768 + 2048)
    k.e("s_lshl_b32 s60, s2, 7")
    k.e("v_mov_b32 v8, s60")
    k.e("s_lshl_b32 s60, s2, 2")
    k.e("s_add_u32 s60, s60, 32768")
    k.e("v_mov_b32 v9, s60")
    for r in range(4):
        k.e("v_mov_b32 v%d, 0" % (20 + r))
    k.e("s_mov_b64 exec, 1")
    k.e("buffer_store_dwordx4 v[20:23], v8, s[84:87], 0 offen")
    k.e("buffer_store_dword v20, v9, s[84:87], 0 offen")
    k.e("buffer_store_dword v20, v9, s[84:87], 0 offen offset:1024")
    k.e("s_mov_b64 exec, -1")
    k.e("s_nop 1")
    if "tfirst" in EXP:
        pass
    elif "newtouch" not in EXP:
        touch(k, 96, P_WQKV, D * 3 * D * 2, 2048, 8, 18, 1)
        touch(k, 96, P_X, S * D * 2, 2048, 8, 18, 1)
    else:
        k.e("s_lshl_b32 s60, s10, 6")
        k.e("s_sub_u32 s60, s60, 16")
        k.e("s_mul_i32 s60, s60, 1152")
        k.e("s_mul_i32 s61, s4, 90 * 128")
        k.e("s_add_u32 s60, s60, s61")
        k.e("v_lshlrev_b32 v18, 7, v0")
        k.e("v_add_u32 v18, s60, v18")
        k.e("v_add_u32 v19, 8192, v18")
        k.vm("buffer_load_dword v1, v18, %s, 0 offen" % sr(SX, 4), "touch")
        k.e("s_mov_b64 exec, 0x3ffffff")
        k.vm("buffer_load_dword v1, v19, %s, 0 offen" % sr(SX, 4), "touch")
        k.e("s_mov_b64 exec, -1")
        k.e("s_mul_i32 s60, s4, 14")
        k.e("v_add_u32 v18, s60, v0")
        k.e("v_mul_u32_u24 v19, 10923, v18")
        k.e("v_lshrrev_b32 v19, 16, v19")
        k.e("v_mul_u32_u24 v20, 6, v19")
        k.e("v_sub_u32 v18, v18, v20")
        k.e("v_lshrrev_b32 v20, 1, v18")
        k.e("v_mul_u32_u24 v20, 1152, v20")
        k.e("v_and_b32 v18, 1, v18")
        k.e("v_lshlrev_b32 v18, 7, v18")
        k.e("s_mul_i32 s60, s10, 18")
        k.e("v_add_u32 v19, s60, v19")
        k.e("v_mul_u32_u24 v19, 3456, v19")
        k.e("s_mul_i32 s60, s9, 144")
        k.e("s_and_b32 s60, s60, 0xffffff80")
        k.e("v_add3_u32 v18, v18, v19, v20")
        k.e("v_add_u32 v18, s60, v18")
        k.e("s_mov_b64 exec, 0x3fff")
        k.vm("buffer_load_dword v1, v18, %s, 0 offen" % sr(SW, 4), "touch")
        k.e("s_mov_b64 exec, -1")
    touch(k, 96, P_WO, D * D * 2, 2048, 8, 18, 1)
    if "tcode" in EXP:
        k.e("s_getpc_b64 s[88:89]")
        k.label("L_qkv_pc")
        k.e("s_add_u32 s88, s88, ffn_kernel-L_qkv_pc")
        k.e("s_addc_u32 s89, s89, 0")
        touch(k, 96, 88, 63232, 64, 8, 18, 1)
    CX = 144
    lab_cs3 = k.newlab("cs3")
    k.e("s_mul_i32 s13, s2, 3")
    k.e("s_add_u32 s13, s13, s4")
    k.e("s_sub_u32 s13, s13, 5")
    k.e("s_mul_i32 s14, s13, 3641")
    k.e("s_lshr_b32 s14, s14, 16")
    k.e("s_mul_i32 s15, s14, 18")
    k.e("s_sub_u32 s15, s13, s15")
    k.e("s_lshl_b32 s60, s4, 5")
    k.e("s_add_u32 s61, s60, 160")
    k.e("s_add_u32 s62, s60, 320")
    k.e("s_sub_u32 s60, s4, 5")
    k.e("s_lshl_b32 s60, s60, 6")
    k.e("s_add_u32 s63, s60, 32")
    k.e("s_min_u32 s63, s63, 128")
    k.e("s_cmp_lt_u32 s4, 5")
    k.e("s_cselect_b32 s11, s61, s60")
    k.e("s_cselect_b32 s12, s62, s63")
    k.e("s_cselect_b32 s66, 8192, 0")
    k.e("s_cselect_b32 s67, 16384, 0")
    k.e("s_cselect_b32 s68, 160, 0")
    k.e("s_cselect_b32 s69, 320, 0")
    vB0, vB1, vA, vS = 20, 25, 30, 33
    swap23_lane_rowpos(k, 8, 0, 18, 19)
    k.e("v_bfe_u32 v9, v8, 1, 2")
    k.e("v_and_b32 v10, 1, v8")
    k.e("v_lshlrev_b32 v8, 8, v8")
    k.e("v_and_b32 v11, 3, v0")
    k.e("v_lshlrev_b32 v11, 3, v11")
    k.e("s_and_b32 s65, s65, 127")
    for (vd, sreg, sreb, ssub) in ((vB0, 11, 66, 68), (vB1, 12, 67, 69)):
        k.e("s_sub_u32 s60, s%d, s%d" % (sreg, ssub))
        k.e("s_add_u32 s60, s60, s65")
        k.e("v_add_u32 v18, s60, v11")
        k.e("v_bfe_u32 v19, v18, 7, 1")
        k.e("v_xor_b32 v19, v19, v10")
        k.e("v_lshlrev_b32 v19, 7, v19")
        k.e("v_bfe_u32 v12, v18, 5, 2")
        k.e("v_xor_b32 v12, v12, v9")
        k.e("v_lshlrev_b32 v12, 5, v12")
        k.e("v_and_b32 v18, 31, v18")
        k.e("v_add3_u32 v18, v18, v19, v12")
        k.e("v_add3_u32 v%d, v18, v8, s%d" % (vd, sreb))
    k.e("v_lshlrev_b32 v%d, 4, v0" % vA)
    k.e("v_add_u32 v%d, %d, v%d" % (vA, XB, vA))
    k.e("v_add_u32 v%d, s%d, v%d" % (vS, sMX, vA))
    for b in range(1, NW):
        for v in (vB0, vB1):
            k.e("v_add_u32 v%d, %d, v%d" % (v + b, b * WS_, v))
    for b in range(1, NX):
        for v in (vA, vS):
            k.e("v_add_u32 v%d, %d, v%d" % (v + b, b * XS_, v))
    ONES = 36
    for r in range(4):
        k.e("v_mov_b32 v%d, 0x3f803f80" % (ONES + r))
    ACC = 40
    acc = lambda sl, mi: ACC + (sl * 6 + mi) * 4
    SACC = 88
    AF = [[96 + 4 * mi for mi in range(6)], [120 + 4 * mi for mi in range(6)]]
    BF = [[216, 220], [224, 228]]
    lab_q = k.newlab("qpath")
    lab_post = k.newlab("post")
    k.e("s_cmp_ge_u32 s4, 5")
    k.e("s_cbranch_scc1 %s" % lab_q)
    for path in range(2):
        if path == 1:
            k.e("s_branch %s" % lab_post)
            k.label(lab_q)
        k.lq, k.vq = [], []
        mis = [0, 1, 2, 3, 4] if path == 0 else [1, 2, 3, 4]
        k.vq = [("dma", 0)] * 3 + [("dma", 1)] * 3 + [("dma", 2)] * 3 + [("dma", 3)] * 3 + ["z"] * (3 if "notouchall" in EXP else (4 if "tfirst" in EXP else (7 if "tcode" in EXP else 6)))
        def rdl(s):
            xs, kk = divmod(s, 2)
            out = []
            for sl in range(2):
                for j in range(2):
                    out.append("ds_read_b64_tr_b16 %s, v%d offset:%d" % (vr(BF[s % 2][sl] + 2 * j, 2), (vB0, vB1)[sl] + s % NW, j * 2048))
            for mi in mis:
                out.append("ds_read_b128 %s, v%d offset:%d" % (vr(AF[s % 2][mi], 4), vA + xs % NX, (mi * 2 + kk) * 1024))
            if path == 0:
                out.append("ds_read_b128 %s, v%d offset:%d" % (vr(AF[s % 2][5], 4), vS + xs % NX, kk * 1024))
            return out
        if path == 0 and "k1fine" not in EXP:
            stamp(k, 1)
        k.wait_vm(("dma", 0))
        k.e("s_barrier")
        for x in rdl(0):
            k.lds(x, ("f", 0))
        for s in range(18):
            k.c("---- step %d" % s)
            if STAMP and "k1fine" in EXP and path == 0 and s in (1, 6):
                k.e("s_memtime s[%d:%d]" % ((72, 73) if s == 1 else (74, 75)))
            groups = []
            reads = []
            if s + 1 < 18:
                k.wait_vm(("dma", s + 1))
                k.e("s_barrier")
                if path == 0 and s % 2 == 0 and s // 2 + 2 < 9:
                    groups += dmaX(s // 2 + 2)
                if s + NW - 1 < 18:
                    groups += dmaW(s + NW - 1)
                reads = rdl(s + 1)
            if False:
                groups.append([("buffer_load_dwordx4 %s, v7, %s, s88 offen" % (vr(CX + 4 * s, 4), sr(SG, 4)), "cs"),
                               ("s_add_u32 s88, s88, 9216", None)])
            k.wait_lds(("f", s))
            mf = []
            for sl in range(2):
                for mi in mis + [5]:
                    a = acc(sl, mi)
                    cc = "0" if s == 0 else vr(a, 4)
                    bop = vr(AF[s % 2][mi], 4) if mi < 5 else vr(ONES, 4)
                    mf.append("v_mfma_f32_16x16x32_bf16 %s, %s, %s, %s" % (vr(a, 4), vr(BF[s % 2][sl], 4), bop, cc))
            if path == 0:
                sf = vr(AF[s % 2][5], 4)
                mf.append("v_mfma_f32_16x16x32_bf16 %s, %s, %s, %s" % (vr(SACC, 4), vr(ONES, 4), sf, "0" if s == 0 else vr(SACC, 4)))
                mf.append("v_mfma_f32_16x16x32_bf16 %s, %s, %s, %s" % (vr(SACC + 4, 4), sf, sf, "0" if s == 0 else vr(SACC + 4, 4)))
            for n, m in enumerate(mf):
                k.e(m)
                if n < len(reads):
                    k.lds(reads[n], ("f", s + 1))
                g0 = len(mf) - len(groups)
                if n >= g0:
                    issue_groups(k, [groups[n - g0]])
    k.label(lab_post)
    k.lq, k.vq = [], []
    if "tmid" in EXP:
        touch(k, 96, P_WG, D * F * 2, 2048, 8, 2, 1)
        touch(k, 96, P_WU, D * F * 2, 2048, 8, 2, 1)
        k.vq = []
    if "k1fine" in EXP:
        k.e("s_waitcnt lgkmcnt(0)")
        stamp(k, 3)
        stamp_flush(k, 6)
        k.e("s_mov_b64 exec, -1")
    else:
        stamp(k, 2)
    k.e("s_nop 7")
    k.e("s_nop 7")
    k.e("s_barrier")
    k.e("v_and_b32 v18, 3, v0")
    k.e("v_cmp_eq_u32 vcc, 1, v18")
    k.e("v_mov_b32 v19, v%d" % (SACC + 4))
    k.e("s_nop 0")
    k.e("v_cndmask_b32 v19, v19, v%d, vcc" % (SACC + 5))
    k.e("v_cmp_eq_u32 vcc, 2, v18")
    k.e("s_nop 1")
    k.e("v_cndmask_b32 v19, v19, v%d, vcc" % (SACC + 6))
    k.e("v_cmp_eq_u32 vcc, 3, v18")
    k.e("s_nop 1")
    k.e("v_cndmask_b32 v19, v19, v%d, vcc" % (SACC + 7))
    k.e("s_mov_b32 s60, 0x%x" % f2u(1.0 / 576.0))
    k.e("s_mov_b32 s61, 0x%x" % f2u(1e-5))
    k.e("v_mul_f32 v8, s60, v%d" % SACC)
    k.e("v_mul_f32 v19, s60, v19")
    k.e("v_fma_f32 v19, -v8, v8, v19")
    k.e("v_max_f32 v19, 0, v19")
    k.e("v_add_f32 v19, s61, v19")
    k.e("v_rsq_f32 v9, v19")
    k.e("v_sub_f32 v8, 0, v8")
    k.e("v_lshrrev_b32 v18, 2, v16")
    k.e("v_cmp_eq_u32 vcc, v18, v17")
    k.e("s_lshl_b32 s60, s4, 7")
    k.e("v_lshlrev_b32 v18, 3, v16")
    k.e("v_add_u32 v18, s60, v18")
    k.e("v_add_u32 v18, %d, v18" % STO)
    k.e("s_and_saveexec_b64 s[60:61], vcc")
    k.e("ds_write_b64 v18, v[8:9]")
    k.e("s_mov_b64 exec, -1")
    k.e("s_waitcnt lgkmcnt(0)")
    k.e("s_barrier")
    k.e("v_lshlrev_b32 v18, 3, v16")
    k.e("v_add_u32 v18, %d, v18" % STO)
    for mi in range(5):
        k.lds("ds_read_b64 %s, v18 offset:%d" % (vr(96 + 2 * mi, 2), mi * 128), "st")
    for sl, sreg in ((0, 11), (1, 12)):
        k.e("s_lshl_b32 s60, s%d, 1" % sreg)
        k.e("v_mul_u32_u24 v18, %d, v16" % QP)
        k.e("v_lshlrev_b32 v19, 4, v17")
        k.e("v_add3_u32 v%d, v18, v19, s60" % (8 + sl))
    k.wait_lds("st")
    for sl in range(2):
        cw = acc(sl, 5)
        for mi in range(5):
            a = acc(sl, mi)
            for r in range(4):
                k.e("v_fma_f32 v%d, v%d, v%d, v%d" % (a + r, 96 + 2 * mi, cw + r, a + r))
            for r in range(4):
                k.e("v_mul_f32 v%d, v%d, v%d" % (a + r, 97 + 2 * mi, a + r))
            k.e("v_cvt_pk_bf16_f32 v18, v%d, v%d" % (a, a + 1))
            k.e("v_cvt_pk_bf16_f32 v19, v%d, v%d" % (a + 2, a + 3))
            k.e("v_lshlrev_b32 v%d, 16, v18" % a)
            k.e("v_and_b32 v%d, 0xffff0000, v18" % (a + 1))
            k.e("v_lshlrev_b32 v%d, 16, v19" % (a + 2))
            k.e("v_and_b32 v%d, 0xffff0000, v19" % (a + 3))
            k.lds("ds_write_b128 v%d, %s offset:%d" % (8 + sl, vr(a, 4), mi * 16 * QP))
    k.wait_lds_all()
    k.e("s_barrier")
    k.e("v_lshrrev_b32 v18, 3, v0")
    k.e("s_lshl_b32 s60, s4, 3")
    k.e("v_add_u32 v18, s60, v18")
    k.e("v_bfe_u32 v19, v0, 1, 2")
    k.e("v_and_b32 v26, 1, v0")
    k.e("v_mul_u32_u24 v20, %d, v18" % QP)
    k.e("v_mul_u32_u24 v21, 72, v19")
    k.e("v_add_u32 v20, v20, v21")
    k.e("v_mul_u32_u24 v21, %d, v26" % (8 * QP))
    k.e("v_sub_u32 v27, v20, v21")
    k.e("v_add_u32 v27, %d, v27" % (10 * QP))
    Q = 32
    KV = 52
    L = 124
    O = 128
    for d in range(9):
        k.lds("ds_read_b64 %s, v20 offset:%d" % (vr(Q + 2 * d, 2), 16 * QP + d * 8), "q")
    seq = [("k", j) for j in range(4)] + [("v", j) for j in range(4)]

    def rdkv(n):
        kind, j = seq[n]
        col = 320 if kind == "k" else 640
        for d in range(9):
            k.lds("ds_read_b64 %s, v27 offset:%d" % (vr(KV + (n % 4) * 18 + 2 * d, 2), (3 - j) * 2 * QP + col + d * 8), seq[n])
    rdkv(0)
    rdkv(1)
    rdkv(2)
    for j in range(4):
        rdkv(j + 3)
        k.wait_lds(("k", j))
        b = KV + j * 18
        k.e("v_mul_f32 v%d, v%d, v%d" % (L + j, Q, b))
        k.e("v_mul_f32 v24, v%d, v%d" % (Q + 1, b + 1))
        for d in range(2, 18, 2):
            k.e("v_fmac_f32 v%d, v%d, v%d" % (L + j, Q + d, b + d))
            k.e("v_fmac_f32 v24, v%d, v%d" % (Q + d + 1, b + d + 1))
        k.e("v_add_f32 v%d, v%d, v24" % (L + j, L + j))
    rdkv(7)
    k.e("s_mov_b32 s60, 0x%x" % f2u(18 ** -0.5))
    k.e("s_lshl_b32 s61, s10, 6")
    k.e("v_add_u32 v22, s61, v18")
    k.e("v_lshlrev_b32 v25, 3, v26")
    k.e("v_sub_u32 v25, v22, v25")
    k.e("v_mov_b32 v23, 0x%x" % f2u(-1e9))
    for j in range(4):
        k.e("v_mul_f32 v%d, s60, v%d" % (L + j, L + j))
    for j in range(4):
        k.e("v_cmp_le_i32 vcc, %d, v25" % (2 * j))
        k.e("s_nop 1")
        k.e("v_cndmask_b32 v%d, v23, v%d, vcc" % (L + j, L + j))
    k.e("v_max3_f32 v24, v%d, v%d, v%d" % (L, L + 1, L + 2))
    k.e("v_max_f32 v24, v24, v%d" % (L + 3))
    k.e("s_nop 1")
    k.e("v_max_f32 v24, v24, v24 quad_perm:[1,0,3,2] row_mask:0xf bank_mask:0xf")
    k.e("s_mov_b32 s60, 0x%x" % f2u(1.4426950408889634))
    for j in range(4):
        k.e("v_sub_f32 v%d, v%d, v24" % (L + j, L + j))
    for j in range(4):
        k.e("v_mul_f32 v%d, s60, v%d" % (L + j, L + j))
    for j in range(4):
        k.e("v_exp_f32 v%d, v%d" % (L + j, L + j))
    k.e("s_nop 0")
    k.e("v_add_f32 v24, v%d, v%d" % (L, L + 1))
    k.e("v_add_f32 v25, v%d, v%d" % (L + 2, L + 3))
    k.e("v_add_f32 v24, v24, v25")
    k.e("s_nop 1")
    k.e("v_add_f32 v24, v24, v24 quad_perm:[1,0,3,2] row_mask:0xf bank_mask:0xf")
    k.e("v_rcp_f32 v24, v24")
    k.e("s_nop 0")
    for j in range(4):
        k.e("v_mul_f32 v%d, v%d, v24" % (L + j, L + j))
    for j in range(4):
        k.wait_lds(("v", j))
        b = KV + j * 18
        for d in range(18):
            if j == 0:
                k.e("v_mul_f32 v%d, v%d, v%d" % (O + d, L, b + d))
            else:
                k.e("v_fmac_f32 v%d, v%d, v%d" % (O + d, L + j, b + d))
    k.e("s_nop 1")
    for d in range(18):
        k.e("v_add_f32 v%d, v%d, v%d quad_perm:[1,0,3,2] row_mask:0xf bank_mask:0xf" % (KV + d, O + d, O + d))
    for d in range(9):
        k.e("v_cvt_pk_bf16_f32 v%d, v%d, v%d" % (Q + d, KV + 2 * d, KV + 2 * d + 1))
    k.e("v_cmp_eq_u32 vcc, 1, v26")
    k.e("v_lshrrev_b32 v23, 4, v22")
    k.e("v_mul_u32_u24 v23, 18432, v23")
    k.e("v_and_b32 v24, 15, v22")
    k.e("v_lshlrev_b32 v24, 4, v24")
    k.e("v_add_u32 v23, v23, v24")
    k.e("v_mul_u32_u24 v21, 18, v19")
    k.e("s_mul_i32 s60, s9, 72")
    k.e("v_add_u32 v21, s60, v21")
    k.e("v_lshlrev_b32 v24, 3, v26")
    k.e("v_add_u32 v21, v21, v24")
    for d in range(5):
        k.e("v_cndmask_b32 v%d, v%d, v%d, vcc" % (O + d, Q + d, Q + d + 4))
        k.e("v_add_u32 v24, %d, v21" % (2 * d))
        k.e("v_lshrrev_b32 v25, 3, v24")
        k.e("v_lshlrev_b32 v25, 8, v25")
        k.e("v_and_b32 v24, 7, v24")
        k.e("v_lshlrev_b32 v24, 1, v24")
        k.e("v_add3_u32 v%d, v23, v24, v25" % (O + 8 + d))
        k.e("buffer_store_dword v%d, v%d, %s, 0 offen" % (O + d, O + 8 + d, sr(SO, 4)))
    if "tend" in EXP:
        k.e("s_mov_b64 exec, -1")
        touch(k, 96, P_WG, D * F * 2, 2048, 8, 18, 1)
        touch(k, 96, P_WU, D * F * 2, 2048, 8, 18, 1)
    if "k1fine" not in EXP:
        stamp(k, 3)
        stamp_flush(k, 6)
    k.label(lab_cs3)
    footer(k)
    return k, 256


def main():
    ks = [
        (gen_k1, 512, 5 * 24576 + 3 * 10240, 232),
        (gen_k2, 512, 4 * 40960, 256),
    ]
    hdr = open("sequential_preLN__sliding_local_dilated__geglu_ffn__prompt.s.ref").read().split("\n")
    out = []
    for line in hdr:
        if line.startswith("; Override") or line.startswith("; grid=") or line.startswith("; @launch"):
            continue
        if not line.startswith(";"):
            break
        out.append(line)
    body = []
    desc = []
    for fn, block, lds, nv in ks:
        k, nwg = fn()
        name = k.name + "_kernel"
        out.append("; @launch kernel=%s grid=(%d,1,1) block=(%d,1,1) lds=%d" % (name, nwg, block, lds))
        body += [".globl %s" % name, ".p2align 8", ".type %s,@function" % name, "%s:" % name] + k.L
        desc += [".p2align 6", ".amdhsa_kernel %s" % name,
                 "  .amdhsa_next_free_vgpr %d" % nv, "  .amdhsa_next_free_sgpr 102",
                 "  .amdhsa_accum_offset %d" % nv,
                 "  .amdhsa_group_segment_fixed_size 0", "  .amdhsa_kernarg_size 80",
                 "  .amdhsa_user_sgpr_count 2", "  .amdhsa_user_sgpr_kernarg_segment_ptr 1",
                 "  .amdhsa_system_sgpr_workgroup_id_x 1", ".end_amdhsa_kernel"]
    out += ['.amdgcn_target "amdgcn-amd-amdhsa--gfx950"', ".text"] + body + ['.section .rodata,"a"'] + desc
    path = sys.argv[1] if len(sys.argv) > 1 else "sequential_preLN__sliding_local_dilated__geglu_ffn__prompt.s"
    open(path, "w").write("\n".join(out) + "\n")


main()
```

```python
import sys, struct

S, D, F = 2048, 576, 4608
O_OFF = 0x0000000
H_OFF = 0x0400000
ST_OFF = 0x0800000
CP_OFF = 0x0A00000
CS_OFF = 0x0860000
FLG_OFF = 0x0880000
ACT_OFF = 0x1000000
PART_OFF = 0x3000000


def f2u(x):
    return struct.unpack("<I", struct.pack("<f", x))[0]


EXP = __import__("os").environ.get("EXP", "")
FFN_TAIL_BYTES = 55296


class K:
    def __init__(s, name):
        s.name = name
        s.L = []
        s.lq = []
        s.vq = []
        s.nlab = 0

    def e(s, t):
        if "nomfma" in EXP and t.startswith("v_mfma"):
            return
        if "noldsrd" in EXP and (t.startswith("ds_read_b128") or t.startswith("ds_read_b64_tr")):
            return
        if "nodma" in EXP and t.endswith(" lds"):
            return
        if "nox" in EXP and t.endswith(" lds") and "s[36:39]" in t and s.name == "qkv":
            return
        if "now" in EXP and t.endswith(" lds") and "s[40:43]" in t and s.name == "qkv":
            return
        s.L.append("    " + t)

    def c(s, t):
        s.L.append("    ; " + t)

    def label(s, n):
        s.L.append(n + ":")

    def newlab(s, base):
        s.nlab += 1
        return "L_%s_%s_%d" % (s.name, base, s.nlab)

    def lds(s, t, tag=None):
        s.e(t)
        s.lq.append(tag)

    def vm(s, t, tag=None):
        s.e(t)
        s.vq.append(tag)

    def _need(s, q, tag):
        idx = -1
        for i, x in enumerate(q):
            if x == tag:
                idx = i
        return idx

    def wait_lds(s, tag):
        idx = s._need(s.lq, tag)
        if idx < 0:
            return
        n = len(s.lq) - idx - 1
        n = min(n, 15)
        s.e("s_waitcnt lgkmcnt(%d)" % n)
        s.lq = s.lq[len(s.lq) - n:] if n else []

    def wait_vm(s, tag):
        idx = s._need(s.vq, tag)
        if idx < 0:
            return
        n = len(s.vq) - idx - 1
        n = min(n, 63)
        s.e("s_waitcnt vmcnt(%d)" % n)
        s.vq = s.vq[len(s.vq) - n:] if n else []

    def wait_all(s):
        s.e("s_waitcnt vmcnt(0) lgkmcnt(0)")
        s.lq = []
        s.vq = []

    def wait_lds_all(s):
        s.e("s_waitcnt lgkmcnt(0)")
        s.lq = []

    def wait_vm_all(s):
        s.e("s_waitcnt vmcnt(0)")
        s.vq = []


STAMP = int(__import__("os").environ.get("STAMP", "0"))


def stamp(k, idx):
    if STAMP:
        k.e("s_memtime s[%d:%d]" % (70 + 2 * idx, 71 + 2 * idx))
        if idx in (0, 3):
            k.e("s_memrealtime s[%d:%d]" % (78 + (2 if idx else 0), 79 + (2 if idx else 0)))
        k.e("s_waitcnt lgkmcnt(0)")
        k.lq = []


def stamp_flush(k, n):
    if STAMP == 2:
        slot = getattr(k, "stamp_slot", 0)
        lab = k.newlab("nost")
        k.e("s_cmp_lg_u32 s2, 5")
        k.e("s_cbranch_scc1 %s" % lab)
        k.e("s_cmp_lg_u32 s4, 0")
        k.e("s_cbranch_scc1 %s" % lab)
        if not slot:
            k.e("s_add_u32 s92, s%d, 512" % P_DBG)
            k.e("s_addc_u32 s93, s%d, 0" % (P_DBG + 1))
        else:
            k.e("s_mov_b32 s92, s%d" % P_DBG)
            k.e("s_mov_b32 s93, s%d" % (P_DBG + 1))
        k.e("s_mov_b32 s94, 256")
        k.e("s_mov_b32 s95, 0x00020000")
        k.e("v_mov_b32 v1, 0")
        k.e("s_mov_b64 exec, 1")
        for i, r in enumerate((78, 80)):
            k.e("v_mov_b32 v2, s%d" % r)
            k.e("buffer_store_dword v2, v1, s[92:95], 0 offen offset:%d" % (8 * slot + 4 * i))
        k.label(lab)
        return
    if STAMP:
        lab = k.newlab("nost")
        k.e("s_and_b32 s90, s2, 127")
        k.e("s_cmp_lg_u32 s90, 5")
        k.e("s_cbranch_scc1 %s" % lab)
        k.e("s_cmp_lg_u32 s4, 0")
        k.e("s_cbranch_scc1 %s" % lab)
        srd(k, 92, P_WS, 0x900000 + 512 * getattr(k, "stamp_slot", 0), 256)
        k.e("s_lshr_b32 s90, s2, 7")
        k.e("s_lshl_b32 s90, s90, 6")
        k.e("v_mov_b32 v1, s90")
        k.e("s_mov_b64 exec, 1")
        for i in range(n):
            k.e("v_mov_b32 v2, s%d" % (70 + 2 * i))
            k.e("buffer_store_dword v2, v1, s[92:95], 0 offen offset:%d" % (4 * i))
        k.label(lab)


def vr(b, n):
    return "v[%d:%d]" % (b, b + n - 1)


def sr(b, n):
    return "s[%d:%d]" % (b, b + n - 1)


P_X, P_WQKV, P_WO, P_BX, P_WG, P_WU, P_WD, P_OUT, P_DBG, P_WS = 16, 18, 20, 22, 24, 26, 28, 30, 32, 34


def header(k, nwg):
    k.e("s_cmp_ge_u32 s2, %d" % nwg)
    k.e("s_cbranch_scc1 L_%s_end" % k.name)
    k.e("s_load_dwordx16 s[16:31], s[0:1], 0")
    k.e("s_load_dwordx4 s[32:35], s[0:1], 64")
    k.e("v_lshrrev_b32 v1, 6, v0")
    k.e("v_and_b32 v0, 63, v0")
    k.e("s_nop 0")
    k.e("v_readfirstlane_b32 s4, v1")
    k.e("s_waitcnt lgkmcnt(0)")


def srd(k, d, ptr, off, nbytes):
    if off:
        k.e("s_add_u32 s%d, s%d, 0x%x" % (d, ptr, off))
        k.e("s_addc_u32 s%d, s%d, 0" % (d + 1, ptr + 1))
    else:
        k.e("s_mov_b32 s%d, s%d" % (d, ptr))
        k.e("s_mov_b32 s%d, s%d" % (d + 1, ptr + 1))
    k.e("s_mov_b32 s%d, 0x%x" % (d + 2, nbytes))
    k.e("s_mov_b32 s%d, 0x00020000" % (d + 3))


def footer(k):
    k.label("L_%s_end" % k.name)
    k.e("s_endpgm")


def swap23_lane_rowpos(k, vdst, vlane, vt, vt2):
    k.e("v_lshrrev_b32 v%d, 5, v%d" % (vt, vlane))
    k.e("v_lshlrev_b32 v%d, 4, v%d" % (vdst, vt))
    k.e("v_bfe_u32 v%d, v%d, 4, 1" % (vt, vlane))
    k.e("v_lshlrev_b32 v%d, 2, v%d" % (vt, vt))
    k.e("v_add_u32 v%d, v%d, v%d" % (vdst, vdst, vt))
    k.e("v_bfe_u32 v%d, v%d, 2, 2" % (vt2, vlane))
    k.e("v_add_u32 v%d, v%d, v%d" % (vdst, vdst, vt2))


def swap23(k, vdst, vp, vt, vt2):
    k.e("v_and_b32 v%d, 0x33, v%d" % (vdst, vp))
    k.e("v_bfe_u32 v%d, v%d, 2, 1" % (vt, vp))
    k.e("v_lshlrev_b32 v%d, 3, v%d" % (vt, vt))
    k.e("v_bfe_u32 v%d, v%d, 3, 1" % (vt2, vp))
    k.e("v_lshlrev_b32 v%d, 2, v%d" % (vt2, vt2))
    k.e("v_or3_b32 v%d, v%d, v%d, v%d" % (vdst, vdst, vt, vt2))


def gemm_core(k, nst, nbuf, MI, acc, afr, bring, PD, a_rd, b_rd, dma, zero_init, NJ=9, sub=1, extra=None):
    RB = len(bring)
    nm = MI * NJ
    nsteps = nst * sub

    def rdB(t):
        sp, nj = divmod(t, NJ)
        if sp >= nsteps:
            return []
        st, kk = divmod(sp, sub)
        slot = bring[t % RB]
        out = []
        for j in range(2):
            v, off = b_rd(st % nbuf, nj, j, kk) if sub > 1 else b_rd(st % nbuf, nj, j)
            out.append(("ds_read_b64_tr_b16 %s, v%d offset:%d" % (vr(slot + 2 * j, 2), v, off), ("B", t)))
        return out

    def rdA(sp, i):
        if sp >= nsteps:
            return []
        st, kk = divmod(sp, sub)
        v, off = a_rd(st % nbuf, i, kk) if sub > 1 else a_rd(st % nbuf, i)
        return [("ds_read_b128 %s, v%d offset:%d" % (vr(afr[sp % 2][i], 4), v, off), ("A", sp))]

    k.wait_vm(("dma", 0))
    k.e("s_barrier")
    for i in range(MI):
        for (t, tag) in rdA(0, i):
            k.lds(t, tag)
    for t in range(PD):
        for (x, tag) in rdB(t):
            k.lds(x, tag)
    for s in range(nsteps):
        k.c("---- step %d" % s)
        groups = []
        st = s // sub
        if (s + 1) % sub == 0 and st + 1 < nst:
            k.wait_vm(("dma", st + 1))
            k.e("s_barrier")
            if st + nbuf - 1 < nst:
                groups = dma(st + nbuf - 1)
        ev = {}

        def add(idx, fn):
            ev.setdefault(min(idx, nm - 1), []).append(fn)
        for nj in range(NJ):
            t = s * NJ + nj
            add(nj * MI, (lambda tt: (lambda: [k.lds(x, tag) for (x, tag) in rdB(tt)]))(t + PD))
        for i in range(MI):
            add((2 + i) * MI + min(1, MI - 1), (lambda ii: (lambda: [k.lds(x, tag) for (x, tag) in rdA(s + 1, ii)]))(i))
        for gi, g in enumerate(groups):
            def mk(g):
                def f():
                    for (x, tag) in g:
                        if tag is None:
                            k.e(x)
                        else:
                            k.vm(x, tag)
                return f
            add(gi * MI + min(2, MI - 1), mk(g))
        for nj in range(NJ):
            t = s * NJ + nj
            if nj == 0:
                k.wait_lds(("A", s))
            k.wait_lds(("B", t))
            for i in range(MI):
                a = acc(i, nj)
                cc = "0" if (zero_init and s == 0) else vr(a, 4)
                k.e("v_mfma_f32_16x16x32_bf16 %s, %s, %s, %s" % (vr(a, 4), vr(bring[t % RB], 4), vr(afr[s % 2][i], 4), cc))
                for fn in ev.get(nj * MI + i, []):
                    fn()
            if extra:
                extra(s, nj, bring[t % RB])


def fl_lane(k, vdst, vt):
    k.e("v_lshrrev_b32 v%d, 1, v17" % vt)
    k.e("v_lshlrev_b32 v%d, 8, v%d" % (vdst, vt))
    k.e("v_lshlrev_b32 v%d, 4, v16" % vt)
    k.e("v_add_u32 v%d, v%d, v%d" % (vdst, vdst, vt))
    k.e("v_and_b32 v%d, 1, v17" % vt)
    k.e("v_lshlrev_b32 v%d, 3, v%d" % (vt, vt))
    k.e("v_add_u32 v%d, v%d, v%d" % (vdst, vdst, vt))


def b_dma_addr(k, vdst, sL0, iofs, NL, spitch, scol, reg_row=0, reg_col=0):
    k.e("v_lshrrev_b32 v18, 3, v0")
    k.e("v_add_u32 v18, s%d, v18" % sL0)
    if iofs:
        k.e("v_add_u32 v18, %d, v18" % iofs)
    if NL == 3:
        k.e("v_mul_u32_u24 v19, 21846, v18")
        k.e("v_lshrrev_b32 v19, 16, v19")
        k.e("v_mul_u32_u24 v20, 3, v19")
        k.e("v_sub_u32 v18, v18, v20")
    else:
        k.e("v_lshrrev_b32 v19, 1, v18")
        k.e("v_xor_b32 v18, v18, v19")
        k.e("v_and_b32 v18, 1, v18")
    k.e("v_lshlrev_b32 v18, 7, v18")
    k.e("v_bfe_u32 v20, v19, 1, 2")
    k.e("v_bfe_u32 v21, v0, 1, 2")
    k.e("v_xor_b32 v20, v20, v21")
    k.e("v_lshlrev_b32 v20, 5, v20")
    k.e("v_and_b32 v21, 1, v0")
    k.e("v_lshlrev_b32 v21, 4, v21")
    k.e("v_add3_u32 v18, v18, v20, v21")
    k.e("v_lshrrev_b32 v23, 5, v19")
    k.e("v_and_b32 v19, 31, v19")
    swap23(k, 20, 19, 21, 22)
    if reg_row:
        k.e("v_mul_u32_u24 v21, %d, v23" % reg_row)
        k.e("v_add_u32 v20, v20, v21")
    k.e("v_mul_lo_u32 v20, v20, s%d" % spitch)
    if reg_col:
        k.e("v_mul_u32_u24 v23, %d, v23" % reg_col)
        k.e("v_add_u32 v18, v18, v23")
    k.e("v_add3_u32 v%d, v20, v18, s%d" % (vdst, scol))


def b_rd_addr3(k, vq, sn0p, sbase):
    swap23_lane_rowpos(k, 18, 0, 19, 20)
    k.e("v_bfe_u32 v19, v18, 1, 2")
    k.e("v_mul_u32_u24 v18, 384, v18")
    k.e("v_and_b32 v20, 3, v0")
    k.e("v_lshlrev_b32 v20, 3, v20")
    k.e("v_add3_u32 v18, v18, v20, s%d" % sbase)
    for q in range(4):
        k.e("s_add_u32 s60, s%d, %d" % (sn0p, q))
        k.e("s_and_b32 s61, s60, 3")
        k.e("s_lshr_b32 s60, s60, 2")
        k.e("s_lshl_b32 s60, s60, 7")
        k.e("v_xor_b32 v20, s61, v19")
        k.e("v_lshlrev_b32 v20, 5, v20")
        k.e("v_add3_u32 v%d, v18, v20, s60" % (vq + q))


def touch(k, ssrd, ptr, nbytes, nwaves_total, wpw, vtmp, vdst):
    if "notouchall" in EXP:
        return
    nlines = nbytes // 128
    per = (nlines + nwaves_total - 1) // nwaves_total
    assert per <= 64
    srd(k, ssrd, ptr, 0, nbytes)
    k.e("s_mul_i32 s60, s2, %d" % wpw)
    k.e("s_add_u32 s60, s60, s4")
    k.e("s_mul_i32 s60, s60, %d" % per)
    k.e("v_add_u32 v%d, s60, v0" % vtmp)
    k.e("v_lshlrev_b32 v%d, 7, v%d" % (vtmp, vtmp))
    if per < 64:
        m = (1 << per) - 1
        k.e("s_mov_b32 exec_lo, 0x%x" % (m & 0xffffffff))
        k.e("s_mov_b32 exec_hi, 0x%x" % (m >> 32))
    k.vm("buffer_load_dword v%d, v%d, %s, 0 offen" % (vdst, vtmp, sr(ssrd, 4)), "touch")
    k.e("s_mov_b64 exec, -1")


def touch_code(k, label, lab_pc, nbytes, lines_per_wave, wave_base, nw):
    k.e("s_getpc_b64 s[88:89]")
    k.label(lab_pc)
    k.e("s_add_u32 s96, s88, %s-%s" % (label, lab_pc))
    k.e("s_addc_u32 s97, s89, -1" if False else "s_addc_u32 s97, s89, 0")
    k.e("s_mov_b32 s98, %d" % nbytes)
    k.e("s_mov_b32 s99, 0x00020000")
    k.e("s_lshr_b32 s60, s2, 3")
    k.e("s_mul_i32 s60, s60, %d" % nw)
    k.e("s_add_u32 s60, s60, s4")
    k.e("s_sub_u32 s60, s60, %d" % wave_base)
    k.e("s_mul_i32 s60, s60, %d" % lines_per_wave)
    k.e("v_add_u32 v18, s60, v0")
    k.e("v_lshlrev_b32 v18, 7, v18")
    k.e("s_mov_b64 exec, 0x%x" % ((1 << lines_per_wave) - 1))
    k.vm("buffer_load_dword v1, v18, s[96:99], 0 offen", "touch")
    k.e("s_mov_b64 exec, -1")


def issue_groups(k, groups):
    for g in groups:
        for (x, tag) in g:
            if tag is None:
                k.e(x)
            else:
                k.vm(x, tag)


def gen_k3(k):
    k.label("L_ffn_p3start")
    SB = 40960
    NBUF = 4
    k.stamp_slot = 2
    stamp(k, 0)
    SA, SBd, SST, SCS, SO = 36, 40, 44, 48, 52
    sKA, sKB, sMA, sMB = 56, 57, 58, 59
    k.e("s_and_b32 s60, s2, 7")
    k.e("s_lshr_b32 s61, s2, 3")
    k.e("s_and_b32 s62, s61, 3")
    k.e("s_lshl_b32 s60, s60, 2")
    k.e("s_add_u32 s9, s60, s62")
    k.e("s_lshr_b32 s61, s61, 2")
    k.e("s_lshl_b32 s7, s61, 8")
    k.e("s_mul_i32 s8, s9, 144")
    k.e("s_and_b32 s5, s4, 3")
    k.e("s_lshr_b32 s6, s4, 2")
    srd(k, SA, P_WS, H_OFF, S * D * 2)
    k.e("s_cmp_lt_u32 s4, 4")
    k.e("s_cselect_b32 s%d, s%d, s%d" % (SBd, P_WG, P_WU))
    k.e("s_cselect_b32 s%d, s%d, s%d" % (SBd + 1, P_WG + 1, P_WU + 1))
    k.e("s_mov_b32 s%d, 0x%x" % (SBd + 2, D * F * 2))
    k.e("s_mov_b32 s%d, 0x00020000" % (SBd + 3))
    srd(k, SST, P_WS, ST_OFF, S * 32)
    srd(k, SO, P_WS, ACT_OFF, S * F * 2)
    vOA0, vOA1, vOB = 2, 3, 4
    vA, vB = 8, 24
    vR, vM = 40, 44
    ACC = 96
    afr = [[48 + 4 * i for i in range(4)], [64 + 4 * i for i in range(4)]]
    bring = [80, 84, 88, 92]
    k.e("v_and_b32 v16, 15, v0")
    k.e("v_lshrrev_b32 v17, 4, v0")
    k.e("s_lshr_b32 s60, s7, 4")
    k.e("s_lshl_b32 s61, s4, 1")
    k.e("s_add_u32 s60, s60, s61")
    k.e("s_mul_i32 s60, s60, 18432")
    k.e("v_lshlrev_b32 v19, 4, v0")
    k.e("v_add_u32 v%d, s60, v19" % vOA0)
    k.e("v_add_u32 v%d, 18432, v%d" % (vOA1, vOA0))
    k.e("s_and_b32 s60, s4, 3")
    k.e("s_mul_i32 s68, s60, 24")
    k.e("s_lshl_b32 s62, s8, 1")
    k.e("s_and_b32 s62, s62, 0xffffff80")
    k.e("s_movk_i32 s63, 9216")
    for i in range(3):
        b_dma_addr(k, vOB + i, 68, 8 * i, 3, 63, 62)
    k.e("s_mov_b32 s%d, 0" % sKA)
    k.e("s_mov_b32 s%d, 0" % sKB)
    k.e("s_lshl_b32 s%d, s4, 11" % sMA)
    k.e("s_mul_i32 s%d, s4, 3072" % sMB)
    k.e("s_add_u32 s%d, s%d, 16384" % (sMB, sMB))

    def dmaA(st):
        b = (st % NBUF) * SB
        tag = ("dma", st)
        g = []
        for i in range(2):
            x = [("s_add_u32 m0, s%d, %d" % (sMA, b + i * 1024), None), ("s_nop 0", None),
                 ("buffer_load_dwordx4 v%d, %s, s%d offen sc1 lds" % (vOA0 + i, sr(SA, 4), sKA), tag)]
            if i == 1:
                x.append(("s_add_u32 s%d, s%d, 1024" % (sKA, sKA), None))
            g.append(x)
        return g

    def dmaB(st):
        b = (st % NBUF) * SB
        tag = ("dma", st)
        g = []
        for i in range(3):
            x = [("s_add_u32 m0, s%d, %d" % (sMB, b + i * 1024), None), ("s_nop 0", None)]
            x.append(("buffer_load_dwordx4 v%d, %s, s%d offen lds" % (vOB + i, sr(SBd, 4), sKB), tag))
            if i == 2:
                x.append(("s_add_u32 s%d, s%d, %d" % (sKB, sKB, 32 * 9216), None))
            g.append(x)
        return g

    def dma(st):
        return dmaA(st) + dmaB(st)
    for st in range(NBUF - 1):
        issue_groups(k, dmaB(st))
    srd(k, 64, P_WS, FLG_OFF + 32768 + 1024, 1024)
    k.e("s_lshr_b32 s60, s7, 3")
    k.e("v_and_b32 v18, 31, v0")
    k.e("v_add_u32 v18, s60, v18")
    k.e("v_lshlrev_b32 v18, 2, v18")
    lab_p = k.newlab("pollH")
    lab_g = k.newlab("goH")
    k.label(lab_p)
    k.e("buffer_load_dword v19, v18, s[64:67], 0 offen sc1")
    k.e("s_waitcnt vmcnt(0)")
    k.e("v_cmp_ne_u32 vcc, 1, v19")
    k.e("s_nop 1")
    k.e("s_cmp_eq_u64 vcc, 0")
    k.e("s_cbranch_scc1 %s" % lab_g)
    k.e("s_sleep %d" % (0 if "sleep0" in EXP else 2))
    k.e("s_branch %s" % lab_p)
    k.label(lab_g)
    k.vq = []
    k.e("s_lshl_b32 s60, s5, 6")
    k.e("s_add_u32 s60, s60, s7")
    k.e("v_add_u32 v18, s60, v16")
    k.e("v_lshlrev_b32 v18, 5, v18")
    for i in range(4):
        for h in range(2):
            k.vm("buffer_load_dwordx4 %s, v18, %s, 0 offen offset:%d" % (vr(ACC + i * 8 + h * 4, 4), sr(SST, 4), i * 512 + h * 16) + " sc1", "st")
    for st in range(NBUF - 1):
        issue_groups(k, dmaA(st))
    if "notouchwd" not in EXP:
        touch(k, 64, P_WD, F * D * 2, 2048, 8, 18, 1)
    k.e("s_lshl_b32 s60, s5, 12")
    k.e("v_lshlrev_b32 v18, 4, v0")
    k.e("v_add_u32 v%d, s60, v18" % vA)
    k.e("v_add_u32 v%d, %d, v%d" % (vA + 1, 2 * SB, vA))
    k.e("s_bfe_u32 s62, s8, 0x20004")
    k.e("s_mul_i32 s63, s6, 5")
    k.e("s_add_u32 s62, s62, s63")
    k.e("s_movk_i32 s63, 16384")
    b_rd_addr3(k, vB, 62, 63)
    for q in range(4):
        k.e("v_add_u32 v%d, %d, v%d" % (vB + 4 + q, 2 * SB, vB + q))
    k.e("v_lshrrev_b32 v18, 1, v17")
    k.e("v_lshlrev_b32 v14, 8, v18")
    k.e("v_lshlrev_b32 v18, 4, v16")
    k.e("v_add_u32 v14, v14, v18")
    k.e("v_and_b32 v18, 1, v17")
    k.e("v_mul_u32_u24 v15, 147456, v18")
    k.e("v_add_u32 v15, v15, v14")
    k.e("v_lshlrev_b32 v18, 9, v18")
    k.e("v_add_u32 v14, v14, v18")
    k.e("s_lshr_b32 s60, s7, 4")
    k.e("s_lshl_b32 s61, s5, 2")
    k.e("s_add_u32 s60, s60, s61")
    k.e("s_mul_i32 s60, s60, 147456")
    k.e("s_mul_i32 s61, s9, 9")
    k.e("s_mul_i32 s62, s6, 5")
    k.e("s_add_u32 s61, s61, s62")
    k.e("s_lshl_b32 s61, s61, 9")
    k.e("s_add_u32 s60, s60, s61")
    k.e("v_add_u32 v14, s60, v14")
    k.e("v_add_u32 v15, s60, v15")
    k.wait_vm("st")
    k.e("s_mov_b32 s60, 0x%x" % f2u(1.0 / 576.0))
    k.e("s_mov_b32 s61, 0x%x" % f2u(1e-5))
    for i in range(4):
        b = ACC + i * 8
        k.e("v_add_f32 v18, v%d, v%d" % (b, b + 2))
        k.e("v_add_f32 v19, v%d, v%d" % (b + 4, b + 6))
        k.e("v_add_f32 v20, v%d, v%d" % (b + 1, b + 3))
        k.e("v_add_f32 v21, v%d, v%d" % (b + 5, b + 7))
        k.e("v_add_f32 v18, v18, v19")
        k.e("v_add_f32 v20, v20, v21")
        k.e("v_mul_f32 v18, s60, v18")
        k.e("v_mul_f32 v20, s60, v20")
        k.e("v_fma_f32 v20, -v18, v18, v20")
        k.e("v_max_f32 v20, 0, v20")
        k.e("v_add_f32 v20, s61, v20")
        k.e("v_rsq_f32 v%d, v20" % (vR + i))
        k.e("v_sub_f32 v%d, 0, v18" % (vM + i))
    lab1 = k.newlab("wn1")
    lab_done = k.newlab("done")
    k.e("s_cmp_eq_u32 s6, 1")
    k.e("s_cbranch_scc1 %s" % lab1)
    st_l, st_v = list(k.lq), list(k.vq)
    c1 = -2.0 * 0.7978845608028654 * 1.4426950408889634
    for wn in range(2):
        NF = 5 if wn == 0 else 4
        NJ = 2 * NF
        if wn == 1:
            k.e("s_branch %s" % lab_done)
            k.label(lab1)
            k.lq, k.vq = list(st_l), list(st_v)
        acc = lambda i, c: ACC + (i * NJ + c) * 4
        CW = {0: 32, 1: 36, 8: 10, 9: 16}
        ONES = 20
        for r in range(4):
            k.e("v_mov_b32 v%d, 0x3f803f80" % (ONES + r))
        prevb = [None]

        def cwreg(c):
            return CW[(c & 1) + 8 * (c >> 3)]

        def extra(s_, c, breg):
            if c & 1 == 0:
                prevb[0] = breg
                return
            lab = k.newlab("cw")
            k.e("s_cmp_eq_u32 s5, %d" % ((c >> 1) & 3))
            k.e("s_cbranch_scc0 %s" % lab)
            for cc, br in ((c - 1, prevb[0]), (c, breg)):
                k.e("v_mfma_f32_16x16x32_bf16 %s, %s, %s, %s" % (vr(cwreg(cc), 4), vr(br, 4), vr(ONES, 4), "0" if s_ == 0 else vr(cwreg(cc), 4)))
            k.label(lab)

        def a_rd(buf, i):
            return vA + (buf >> 1), (buf & 1) * SB + i * 1024

        def b_rd(buf, c, j):
            f = c >> 1
            return vB + 4 * (buf >> 1) + (f & 3), (buf & 1) * SB + (c & 1) * 12288 + j * 3072 + (f >> 2) * 128
        if wn == 0:
            stamp(k, 1)
        gemm_core(k, 18, NBUF, 4, acc, afr, bring, 2, a_rd, b_rd, dma, True, NJ=NJ, extra=extra)
        if wn == 0:
            stamp(k, 2)
        k.c("---- epilogue")
        k.e("s_nop 7")
        k.e("s_barrier")
        k.e("v_lshlrev_b32 v1, 4, v0")
        k.e("v_add_u32 v1, %d, v1" % (wn * 10240))
        for c in range(0, NJ, 2):
            lab = k.newlab("cww")
            k.e("s_cmp_eq_u32 s5, %d" % ((c >> 1) & 3))
            k.e("s_cbranch_scc0 %s" % lab)
            k.e("ds_write_b128 v1, %s offset:%d" % (vr(cwreg(c), 4), c * 1024))
            k.e("ds_write_b128 v1, %s offset:%d" % (vr(cwreg(c + 1), 4), c * 1024 + 1024))
            k.label(lab)
        k.e("s_waitcnt lgkmcnt(0)")
        k.e("s_barrier")
        CSR = 48
        for c in range(NJ):
            k.e("ds_read_b128 %s, v1 offset:%d" % (vr(CSR + 4 * c, 4), c * 1024))
        k.e("s_waitcnt lgkmcnt(0)")
        k.lq = []
        k.e("v_mov_b32 v20, 1.0")
        k.e("v_mov_b32 v21, 1.0")
        k.e("s_mov_b32 s60, 0x%x" % f2u(c1))
        k.e("s_mov_b32 s61, 0x%x" % f2u(c1 * 0.044715))
        k.e("s_mov_b32 s62, 0")
        k.e("s_nop 7")
        for i in range(4):
            k.e("v_mul_f32 v22, s60, v%d" % (vR + i))
            k.e("v_mul_f32 v26, v%d, v%d" % (vR + i, vR + i))
            k.e("v_mul_f32 v24, s61, v%d" % (vR + i))
            k.e("v_mul_f32 v24, v24, v26")
            k.e("v_mov_b32 v23, v22")
            k.e("v_mov_b32 v25, v24")
            k.e("v_mov_b32 v27, v26")
            k.e("v_mov_b32 v36, v%d" % (vM + i))
            k.e("v_mov_b32 v37, v%d" % (vM + i))
            for f in range(NF):
                G, U = acc(i, 2 * f), acc(i, 2 * f + 1)
                T, P = 28, 32
                for h in range(2):
                    k.e("v_pk_fma_f32 %s, %s, v[36:37], %s" % (vr(G + 2 * h, 2), vr(CSR + 8 * f + 2 * h, 2), vr(G + 2 * h, 2)))
                    k.e("v_pk_fma_f32 %s, %s, v[36:37], %s" % (vr(U + 2 * h, 2), vr(CSR + 8 * f + 4 + 2 * h, 2), vr(U + 2 * h, 2)))
                for h in range(2):
                    k.e("v_pk_mul_f32 %s, %s, %s" % (vr(T + 2 * h, 2), vr(G + 2 * h, 2), vr(G + 2 * h, 2)))
                for h in range(2):
                    k.e("v_pk_fma_f32 %s, %s, v[24:25], v[22:23]" % (vr(T + 2 * h, 2), vr(T + 2 * h, 2)))
                for h in range(2):
                    k.e("v_pk_mul_f32 %s, %s, %s" % (vr(T + 2 * h, 2), vr(T + 2 * h, 2), vr(G + 2 * h, 2)))
                for r in range(4):
                    k.e("v_exp_f32 v%d, v%d" % (T + r, T + r))
                for h in range(2):
                    k.e("v_pk_mul_f32 %s, %s, %s" % (vr(P + 2 * h, 2), vr(G + 2 * h, 2), vr(U + 2 * h, 2)))
                for h in range(2):
                    k.e("v_pk_add_f32 %s, %s, v[20:21]" % (vr(T + 2 * h, 2), vr(T + 2 * h, 2)))
                for r in range(4):
                    k.e("v_rcp_f32 v%d, v%d" % (T + r, T + r))
                for h in range(2):
                    k.e("v_pk_mul_f32 %s, %s, v[26:27]" % (vr(P + 2 * h, 2), vr(P + 2 * h, 2)))
                for h in range(2):
                    k.e("v_pk_mul_f32 %s, %s, %s" % (vr(P + 2 * h, 2), vr(P + 2 * h, 2), vr(T + 2 * h, 2)))
                if f < 4:
                    R = acc(i, 2 * (f & ~1)) + 2 * (f & 1)
                else:
                    R = acc(i & ~1, 8) + 2 * (i & 1)
                k.e("v_cvt_pk_bf16_f32 v%d, v%d, v%d" % (R, P, P + 1))
                k.e("v_cvt_pk_bf16_f32 v%d, v%d, v%d" % (R + 1, P + 2, P + 3))
                if (f < 4 and f & 1) or (f == 4 and i & 1):
                    B0 = R - 2
                    k.e("s_nop 1")
                    k.e("v_permlane16_swap_b32 v%d, v%d" % (B0, B0 + 2))
                    k.e("v_permlane16_swap_b32 v%d, v%d" % (B0 + 1, B0 + 3))
                    if f < 4:
                        k.vm("buffer_store_dwordx4 %s, v14, %s, s62 offen offset:%d sc1" % (vr(B0, 4), sr(SO, 4), (f - 1) * 512))
                    else:
                        k.e("s_sub_u32 s63, s62, 147456")
                        k.vm("buffer_store_dwordx4 %s, v15, %s, s63 offen offset:%d sc1" % (vr(B0, 4), sr(SO, 4), 4 * 512))
            k.e("s_add_u32 s62, s62, 147456")
    k.label(lab_done)
    srd(k, 64, P_WS, FLG_OFF + 32768, 1024)
    k.e("s_lshr_b32 s60, s7, 8")
    k.e("s_lshl_b32 s60, s60, 5")
    k.e("s_add_u32 s60, s60, s9")
    k.e("s_lshl_b32 s60, s60, 2")
    k.e("v_mov_b32 v1, s60")
    k.e("v_mov_b32 v2, 1")
    k.e("s_waitcnt vmcnt(0)")
    k.e("s_barrier")
    lab_nf = k.newlab("nf")
    k.e("s_cmp_lg_u32 s4, 0")
    k.e("s_cbranch_scc1 %s" % lab_nf)
    k.e("s_mov_b64 exec, 1")
    k.e("buffer_store_dword v2, v1, s[64:67], 0 offen sc1")
    k.e("s_mov_b64 exec, -1")
    k.label(lab_nf)
    k.lq, k.vq = [], []
    stamp(k, 3)
    stamp_flush(k, 6)
    k.e("s_mov_b64 exec, -1")
    return gen_k4(k)


def gen_k4(k):
    SB = 40960
    NBUF = 4
    k.stamp_slot = 3
    stamp(k, 0)
    SA, SBd, SP, SO, SH, SD = 36, 40, 44, 48, 52, 64
    sKA, sKB, sMA, sMB = 56, 57, 58, 59
    k.e("s_and_b32 s9, s2, 3")
    k.e("s_bfe_u32 s60, s2, 0x10002")
    k.e("s_lshr_b32 s61, s2, 3")
    k.e("s_lshr_b32 s62, s61, 2")
    k.e("s_lshl_b32 s60, s60, 3")
    k.e("s_add_u32 s60, s60, s62")
    k.e("s_lshl_b32 s7, s60, 7")
    k.e("s_and_b32 s61, s61, 3")
    k.e("s_mul_i32 s8, s61, 144")
    k.e("s_lshl_b32 s10, s60, 2")
    k.e("s_add_u32 s10, s10, s61")
    k.e("s_and_b32 s11, s4, 3")
    k.e("s_lshr_b32 s5, s11, 1")
    k.e("s_and_b32 s6, s11, 1")
    k.e("v_and_b32 v16, 15, v0")
    k.e("v_lshrrev_b32 v17, 4, v0")
    lab_comp = k.newlab("comp")
    k.e("s_cmp_lt_u32 s4, 4")
    k.e("s_cbranch_scc1 %s" % lab_comp)
    srd(k, SA, P_WS, ACT_OFF, S * F * 2)
    srd(k, SBd, P_WD, 0, F * D * 2)
    vOA, vOB = 2, 8
    k.e("s_lshr_b32 s60, s7, 4")
    k.e("s_lshl_b32 s61, s11, 1")
    k.e("s_add_u32 s60, s60, s61")
    k.e("s_mul_i32 s60, s60, 147456")
    k.e("s_mul_i32 s61, s9, 36864")
    k.e("s_add_u32 s60, s60, s61")
    k.e("v_lshlrev_b32 v19, 4, v0")
    k.e("v_add_u32 v%d, s60, v19" % vOA)
    k.e("v_add_u32 v%d, 1024, v%d" % (vOA + 1, vOA))
    k.e("v_add_u32 v%d, %d, v%d" % (vOA + 2, 147456, vOA))
    k.e("v_add_u32 v%d, %d, v%d" % (vOA + 3, 147456 + 1024, vOA))
    k.e("s_mul_i32 s64, s11, 48")
    k.e("s_lshl_b32 s62, s8, 1")
    k.e("s_and_b32 s62, s62, 0xffffff80")
    k.e("s_mul_i32 s61, s9, 1152 * 1152")
    k.e("s_add_u32 s62, s62, s61")
    k.e("s_movk_i32 s63, 1152")
    for i in range(6):
        b_dma_addr(k, vOB + i, 64, 8 * i, 3, 63, 62, reg_row=32)
    k.e("s_mov_b32 s%d, 0" % sKA)
    k.e("s_mov_b32 s%d, 0" % sKB)
    k.e("s_lshl_b32 s%d, s11, 12" % sMA)
    k.e("s_mul_i32 s%d, s11, 6144" % sMB)
    k.e("s_add_u32 s%d, s%d, 16384" % (sMB, sMB))

    def dmaA(st):
        b = (st % NBUF) * SB
        tag = ("dma", st)
        g = []
        for i in range(4):
            x = [("s_add_u32 m0, s%d, %d" % (sMA, b + i * 1024), None), ("s_nop 0", None),
                 ("buffer_load_dwordx4 v%d, %s, s%d offen sc1 lds" % (vOA + i, sr(SA, 4), sKA), tag)]
            if i == 3:
                x.append(("s_add_u32 s%d, s%d, 2048" % (sKA, sKA), None))
            g.append(x)
        return g

    def dmaB(st):
        b = (st % NBUF) * SB
        tag = ("dma", st)
        g = []
        for i in range(6):
            x = [("s_add_u32 m0, s%d, %d" % (sMB, b + i * 1024), None), ("s_nop 0", None)]
            x.append(("buffer_load_dwordx4 v%d, %s, s%d offen lds" % (vOB + i, sr(SBd, 4), sKB), tag))
            if i == 5:
                x.append(("s_add_u32 s%d, s%d, %d" % (sKB, sKB, 64 * 1152), None))
            g.append(x)
        return g

    def dma(st):
        return dmaA(st) + dmaB(st)
    for st in range(NBUF - 1):
        issue_groups(k, dmaB(st))
    srd(k, 84, P_WS, FLG_OFF + 32768, 1024)
    k.e("s_lshr_b32 s60, s7, 8")
    k.e("s_lshl_b32 s60, s60, 7")
    k.e("s_lshl_b32 s61, s9, 5")
    k.e("s_add_u32 s60, s60, s61")
    k.e("v_mov_b32 v20, s60")
    lab_p = k.newlab("pollA")
    lab_g = k.newlab("goA")
    k.label(lab_p)
    k.e("buffer_load_dwordx4 v[24:27], v20, s[84:87], 0 offen sc1")
    k.e("buffer_load_dwordx4 v[28:31], v20, s[84:87], 0 offen offset:16 sc1")
    k.e("s_waitcnt vmcnt(0)")
    k.e("v_add3_u32 v24, v24, v25, v26")
    k.e("v_add3_u32 v24, v24, v27, v28")
    k.e("v_add3_u32 v24, v24, v29, v30")
    k.e("v_add_u32 v24, v24, v31")
    k.e("s_nop 0")
    k.e("v_readfirstlane_b32 s61, v24")
    k.e("s_cmp_ge_u32 s61, 8")
    k.e("s_cbranch_scc1 %s" % lab_g)
    k.e("s_sleep %d" % (0 if "sleep0" in EXP else 2))
    k.e("s_branch %s" % lab_p)
    k.label(lab_g)
    k.vq = []
    for st in range(NBUF - 1):
        issue_groups(k, dmaA(st))
    k.wait_vm(("dma", 0))
    k.e("s_barrier")
    for s_ in range(17):
        k.wait_vm(("dma", s_ + 1))
        k.e("s_barrier")
        if s_ + NBUF - 1 < 18:
            issue_groups(k, dma(s_ + NBUF - 1))
    k.e("s_endpgm")
    k.label(lab_comp)
    k.lq, k.vq = [], []
    srd(k, SP, P_WS, PART_OFF, 64 * 16 * 18432)
    srd(k, SO, P_OUT, 0, S * D * 2)
    srd(k, SH, P_WS, H_OFF, S * D * 2)
    srd(k, SD, P_WS, FLG_OFF, 256 * 128)
    vA, vB = 2, 24
    ACC = 112
    afr = [[48, 52], [56, 60]]
    bring = [64 + 4 * q for q in range(8)]
    acc = lambda i, nj: ACC + (i * 9 + nj) * 4
    k.e("s_lshl_b32 s60, s4, 12")
    k.e("v_lshlrev_b32 v18, 4, v0")
    k.e("v_add_u32 v%d, s60, v18" % vA)
    for b_ in range(1, 4):
        k.e("v_add_u32 v%d, %d, v%d" % (vA + b_, b_ * SB, vA))
    k.e("s_bfe_u32 s62, s8, 0x20004")
    k.e("s_movk_i32 s63, 16384")
    b_rd_addr3(k, vB, 62, 63)
    for b_ in range(1, 4):
        for q in range(4):
            k.e("v_add_u32 v%d, %d, v%d" % (vB + 4 * b_ + q, b_ * SB, vB + q))

    def a_rd(buf, i, kk):
        return vA + buf, i * 2048 + kk * 1024

    def b_rd(buf, nj, j, kk):
        return vB + 4 * buf + (nj & 3), kk * 12288 + j * 3072 + (nj >> 2) * 128
    gemm_core(k, 18, NBUF, 2, acc, afr, bring, 6, a_rd, b_rd, lambda st: [], True, sub=2)
    stamp(k, 1)
    k.c("---- epilogue: cross-workgroup reduction")
    k.e("v_lshlrev_b32 v18, 4, v0")
    k.e("s_lshl_b32 s60, s10, 2")
    k.e("s_add_u32 s60, s60, s9")
    k.e("s_lshl_b32 s60, s60, 2")
    k.e("s_add_u32 s60, s60, s4")
    k.e("s_mul_i32 s60, s60, 9216")
    k.e("v_add_u32 v21, s60, v18")
    k.e("s_lshl_b32 s60, s10, 2")
    k.e("s_add_u32 s61, s60, s4")
    k.e("s_lshl_b32 s61, s61, 7")
    k.e("s_lshl_b32 s62, s9, 2")
    k.e("s_add_u32 s61, s61, s62")
    k.e("v_mov_b32 v23, s61")
    k.e("s_add_u32 s60, s60, s9")
    k.e("s_lshl_b32 s60, s60, 7")
    k.e("v_mov_b32 v26, s60")
    k.e("v_mov_b32 v24, 1")
    k.e("s_nop 7")
    k.e("s_barrier")
    lab_own = k.newlab("own")
    lab_j = k.newlab("j")
    k.e("s_cmp_eq_u32 s4, s9")
    k.e("s_cbranch_scc1 %s" % lab_own)
    for t in range(9):
        a = ACC + 8 * t
        for d in range(4):
            k.e("v_cvt_pk_bf16_f32 v%d, v%d, v%d" % (a + d, a + 2 * d, a + 2 * d + 1))
        sreg = "0"
        off = t * 1024
        if off >= 4096:
            k.e("s_movk_i32 s61, %d" % (off & ~4095))
            sreg = "s61"
        k.e("buffer_store_dwordx4 %s, v21, %s, %s offen offset:%d sc1" % (vr(a, 4), sr(SP, 4), sreg, off & 4095))
    k.e("s_barrier")
    k.e("s_branch %s" % lab_j)
    k.label(lab_own)
    for t in range(18):
        k.e("ds_write_b128 v18, %s offset:%d" % (vr(ACC + 4 * t, 4), t * 1024))
    k.e("s_waitcnt lgkmcnt(0)")
    k.e("s_barrier")
    k.e("s_branch L_%s_end" % k.name)
    k.label(lab_j)
    k.e("s_sub_u32 s62, s4, s9")
    k.e("s_sub_u32 s62, s62, 1")
    k.e("s_and_b32 s62, s62, 3")
    k.e("s_mul_i32 s63, s62, 6144")
    k.e("v_add_u32 v22, s63, v18")
    OWN = 48
    for t in range(6):
        k.lds("ds_read_b128 %s, v22 offset:%d" % (vr(OWN + 4 * t, 4), t * 1024), "own")
    k.e("s_lshl_b32 s60, s9, 5")
    k.e("s_add_u32 s60, s60, s7")
    k.e("v_add_u32 v19, s60, v16")
    k.e("v_mul_u32_u24 v19, 1152, v19")
    k.e("v_lshlrev_b32 v20, 3, v17")
    k.e("s_lshl_b32 s60, s8, 1")
    k.e("v_add3_u32 v19, v19, v20, s60")
    fl_lane(k, 44, 45)
    k.e("s_lshr_b32 s60, s7, 4")
    k.e("s_lshl_b32 s61, s9, 1")
    k.e("s_add_u32 s60, s60, s61")
    k.e("s_mul_i32 s60, s60, 18432")
    k.e("s_lshl_b32 s61, s8, 5")
    k.e("s_add_u32 s60, s60, s61")
    k.e("v_add_u32 v44, s60, v44")
    k.e("s_waitcnt vmcnt(0)")
    k.e("s_mov_b64 exec, 1")
    k.e("buffer_store_dword v24, v23, %s, 0 offen sc1" % sr(SD, 4))
    k.e("s_mov_b64 exec, -1")
    k.e("s_mul_i32 s62, s62, 6")
    HR = 96
    for t in range(6):
        k.e("s_add_u32 s60, s62, %d" % t)
        k.e("s_cmp_ge_u32 s60, 9")
        k.e("s_cselect_b32 s61, %d, 0" % (16 * 1152 - 9 * 32))
        k.e("s_cselect_b32 s69, %d, 0" % (18432 - 9 * 512))
        k.e("s_lshl_b32 s68, s60, 9")
        k.e("s_add_u32 s68, s68, s69")
        k.e("s_lshl_b32 s60, s60, 5")
        k.e("s_add_u32 s%d, s60, s61" % (84 + t))
        k.e("buffer_load_dwordx2 %s, v44, %s, s68 offen sc1" % (vr(HR + 2 * t, 2), sr(SH, 4)))
    stamp(k, 2)
    lab_poll = k.newlab("poll")
    lab_go = k.newlab("go")
    k.label(lab_poll)
    k.e("buffer_load_dwordx4 v[28:31], v26, %s, 0 offen sc1" % sr(SD, 4))
    k.e("s_waitcnt vmcnt(0)")
    k.e("v_add_u32 v28, v28, v29")
    k.e("v_add3_u32 v28, v28, v30, v31")
    k.e("s_nop 0")
    k.e("v_readfirstlane_b32 s61, v28")
    k.e("s_cmp_ge_u32 s61, 3")
    k.e("s_cbranch_scc1 %s" % lab_go)
    k.e("s_sleep 1")
    k.e("s_branch %s" % lab_poll)
    k.label(lab_go)
    if STAMP:
        k.e("s_memtime s[82:83]")
        k.e("s_waitcnt lgkmcnt(0)")
        k.lq = []
    k.e("s_lshl_b32 s60, s10, 4")
    k.e("s_add_u32 s60, s60, s9")
    k.e("s_mul_i32 s60, s60, 9216")
    k.e("s_lshr_b32 s63, s63, 1")
    k.e("s_add_u32 s60, s60, s63")
    k.e("v_add_u32 v21, s60, v18")
    k.vq = []
    for o in range(1, 4):
        k.e("s_add_u32 s61, s9, %d" % o)
        k.e("s_and_b32 s61, s61, 3")
        k.e("s_mul_i32 s61, s61, %d" % (4 * 9216))
        for t in range(3):
            k.vm("buffer_load_dwordx4 %s, v21, %s, s61 offen offset:%d sc1" % (vr(ACC + 12 * (o - 1) + 4 * t, 4), sr(SP, 4), t * 1024), ("p", o, t))
    k.wait_lds("own")
    for t in range(6):
        a = OWN + 4 * t
        for d in range(2):
            k.e("v_lshlrev_b32 v42, 16, v%d" % (HR + 2 * t + d))
            k.e("v_and_b32 v43, 0xffff0000, v%d" % (HR + 2 * t + d))
            k.e("v_add_f32 v%d, v%d, v42" % (a + 2 * d, a + 2 * d))
            k.e("v_add_f32 v%d, v%d, v43" % (a + 2 * d + 1, a + 2 * d + 1))
    for o in range(1, 4):
        for t in range(6):
            a = OWN + 4 * t
            k.wait_vm(("p", o, t >> 1))
            for d in range(2):
                x = ACC + 12 * (o - 1) + 2 * t + d
                k.e("v_lshlrev_b32 v42, 16, v%d" % x)
                k.e("v_and_b32 v43, 0xffff0000, v%d" % x)
                k.e("v_add_f32 v%d, v%d, v42" % (a + 2 * d, a + 2 * d))
                k.e("v_add_f32 v%d, v%d, v43" % (a + 2 * d + 1, a + 2 * d + 1))
            if o == 3:
                k.e("v_cvt_pk_bf16_f32 v%d, v%d, v%d" % (HR + 2 * t, a, a + 1))
                k.e("v_cvt_pk_bf16_f32 v%d, v%d, v%d" % (HR + 1 + 2 * t, a + 2, a + 3))
                k.vm("buffer_store_dwordx2 %s, v19, %s, s%d offen" % (vr(HR + 2 * t, 2), sr(SO, 4), 84 + t))
    stamp(k, 3)
    stamp_flush(k, 7)
    footer(k)
    return k, 256


def gen_k5():
    k = K("red")
    nwg = S * D // 8 // 256
    k.e("s_cmp_ge_u32 s2, %d" % nwg)
    k.e("s_cbranch_scc1 L_%s_end" % k.name)
    k.e("s_load_dwordx16 s[16:31], s[0:1], 0")
    k.e("s_load_dwordx4 s[32:35], s[0:1], 64")
    k.e("s_lshl_b32 s3, s2, 8")
    k.e("v_add_u32 v1, s3, v0")
    k.e("v_lshlrev_b32 v2, 4, v1")
    k.e("v_lshlrev_b32 v3, 5, v1")
    k.e("s_waitcnt lgkmcnt(0)")
    srd(k, 36, P_WS, H_OFF, S * D * 2)
    srd(k, 40, P_WS, PART_OFF, 4 * S * D * 4)
    srd(k, 44, P_OUT, 0, S * D * 2)
    k.e("buffer_load_dwordx4 v[4:7], v2, s[36:39], 0 offen")
    for p in range(4):
        k.e("s_mov_b32 s48, 0x%x" % (p * S * D * 4))
        k.e("buffer_load_dwordx4 %s, v3, s[40:43], s48 offen" % vr(8 + p * 8, 4))
        k.e("buffer_load_dwordx4 %s, v3, s[40:43], s48 offen offset:16" % vr(12 + p * 8, 4))
    k.e("s_waitcnt vmcnt(0)")
    for r in range(8):
        k.e("v_add_f32 v%d, v%d, v%d" % (8 + r, 8 + r, 16 + r))
        k.e("v_add_f32 v%d, v%d, v%d" % (24 + r, 24 + r, 32 + r))
    for r in range(8):
        k.e("v_add_f32 v%d, v%d, v%d" % (8 + r, 8 + r, 24 + r))
    for d in range(4):
        k.e("v_lshlrev_b32 v40, 16, v%d" % (4 + d))
        k.e("v_and_b32 v41, 0xffff0000, v%d" % (4 + d))
        k.e("v_add_f32 v%d, v%d, v40" % (8 + 2 * d, 8 + 2 * d))
        k.e("v_add_f32 v%d, v%d, v41" % (9 + 2 * d, 9 + 2 * d))
    for d in range(4):
        k.e("v_cvt_pk_bf16_f32 v%d, v%d, v%d" % (4 + d, 8 + 2 * d, 9 + 2 * d))
    k.e("buffer_store_dwordx4 v[4:7], v2, s[44:47], 0 offen")
    footer(k)
    return k, nwg


def gen_k2():
    k = K("ffn")
    k.stamp_slot = 1
    SB = 4096 + 24576
    NBUF = 5
    header(k, 256)
    stamp(k, 0)
    SA, SBd, SX, SH, SST, SCP, SCS = 36, 40, 44, 48, 52, 64, 96
    sKA, sKB, sMA, sMB = 56, 57, 58, 59
    k.e("s_and_b32 s9, s2, 3")
    k.e("s_lshr_b32 s60, s2, 2")
    k.e("s_lshl_b32 s7, s60, 5")
    k.e("s_mul_i32 s8, s9, 144")
    k.e("s_lshr_b32 s5, s4, 1")
    k.e("s_and_b32 s6, s4, 1")
    srd(k, SA, P_WS, O_OFF, S * D * 2)
    srd(k, SBd, P_WO, 0, D * D * 2)
    srd(k, SX, P_X, 0, S * D * 2)
    srd(k, SH, P_WS, H_OFF, S * D * 2)
    srd(k, SST, P_WS, ST_OFF, S * 32)
    lab_idle = k.newlab("idle")
    lab_p2done = k.newlab("p2done")
    k.e("s_cmp_ge_u32 s4, 4")
    k.e("s_cbranch_scc1 %s" % lab_idle)
    vOA, vOB = 2, 8
    vA, vB = 24, 28
    ACC = 112
    afr = [[48], [52]]
    bring = [56, 60, 64, 68, 72, 76]
    acc = lambda i, nj: ACC + nj * 4
    XR = 80
    CPR = 184
    k.e("v_and_b32 v16, 15, v0")
    k.e("v_lshrrev_b32 v17, 4, v0")
    k.e("s_lshl_b32 s60, s5, 4")
    k.e("s_add_u32 s60, s60, s7")
    k.e("v_add_u32 v31, s60, v16")
    k.e("s_movk_i32 s63, 1152")
    k.e("v_mul_lo_u32 v18, v31, s63")
    k.e("v_lshlrev_b32 v19, 3, v17")
    k.e("s_lshl_b32 s62, s8, 1")
    k.e("v_add3_u32 v32, v18, v19, s62")
    for nj in range(9):
        k.vm("buffer_load_dwordx2 %s, v32, %s, 0 offen offset:%d" % (vr(XR + 2 * nj, 2), sr(SX, 4), nj * 32), "x")
    k.e("s_lshr_b32 s60, s7, 4")
    k.e("s_add_u32 s60, s60, s5")
    k.e("s_mul_i32 s60, s60, 18432")
    k.e("s_lshl_b32 s61, s6, 10")
    k.e("s_add_u32 s61, s60, s61")
    k.e("v_lshlrev_b32 v19, 4, v0")
    k.e("v_add_u32 v%d, s61, v19" % vOA)
    fl_lane(k, 37, 18)
    k.e("s_lshl_b32 s61, s8, 5")
    k.e("s_add_u32 s60, s60, s61")
    k.e("v_add_u32 v37, s60, v37")
    k.e("s_mul_i32 s88, s4, 48")
    k.e("s_lshl_b32 s62, s8, 1")
    k.e("s_and_b32 s62, s62, 0xffffff80")
    k.e("s_movk_i32 s63, 1152")
    for i in range(6):
        b_dma_addr(k, vOB + i, 88, 8 * i, 3, 63, 62, reg_row=32)
    k.e("s_mov_b32 s%d, 0" % sKA)
    k.e("s_mov_b32 s%d, 0" % sKB)
    k.e("s_lshl_b32 s%d, s4, 10" % sMA)
    k.e("s_mul_i32 s%d, s4, 6144" % sMB)
    k.e("s_add_u32 s%d, s%d, 4096" % (sMB, sMB))

    def dma(st):
        b = (st % NBUF) * SB
        tag = ("dma", st)
        g = [[("s_add_u32 m0, s%d, %d" % (sMA, b), None), ("s_nop 0", None),
              ("buffer_load_dwordx4 v%d, %s, s%d offen lds" % (vOA, sr(SA, 4), sKA), tag)]]
        for i in range(6):
            x = [("s_add_u32 m0, s%d, %d" % (sMB, b + i * 1024), None), ("s_nop 0", None)]
            x.append(("buffer_load_dwordx4 v%d, %s, s%d offen lds" % (vOB + i, sr(SBd, 4), sKB), tag))
            if i == 5:
                x.append(("s_add_u32 s%d, s%d, 2048" % (sKA, sKA), None))
                x.append(("s_add_u32 s%d, s%d, %d" % (sKB, sKB, 64 * 1152), None))
            g.append(x)
        return g
    for st in range(NBUF - 1):
        issue_groups(k, dma(st))
    k.e("v_lshlrev_b32 v18, 4, v0")
    k.e("v_add_u32 v%d, s%d, v18" % (vA, sMA))
    for q in range(1, 3):
        k.e("v_add_u32 v%d, %d, v%d" % (vA + q, 2 * SB * q, vA))
    vB = 100
    k.e("s_bfe_u32 s62, s8, 0x20004")
    k.e("s_mul_i32 s63, s6, 12288")
    k.e("s_add_u32 s63, s63, 4096")
    b_rd_addr3(k, vB, 62, 63)
    for b_ in range(1, 3):
        for q in range(4):
            k.e("v_add_u32 v%d, %d, v%d" % (vB + 4 * b_ + q, 2 * b_ * SB, vB + q))

    def a_rd(buf, i):
        return vA + (buf >> 1), (buf & 1) * SB

    def b_rd(buf, nj, j):
        return vB + 4 * (buf >> 1) + (nj & 3), (buf & 1) * SB + j * 3072 + (nj >> 2) * 128
    stamp(k, 1)
    gemm_core(k, 9, NBUF, 1, acc, afr, bring, 4, a_rd, b_rd, dma, True)
    stamp(k, 2)
    k.c("---- epilogue")
    k.e("s_nop 7")
    k.e("s_nop 7")
    k.e("s_barrier")
    k.wait_vm("x")
    k.e("s_mul_i32 s60, s5, 9216")
    k.e("v_lshlrev_b32 v18, 4, v0")
    k.e("v_add_u32 v19, s60, v18")
    lab_recv = k.newlab("recv")
    k.e("s_cmp_eq_u32 s6, 0")
    k.e("s_cbranch_scc1 %s" % lab_recv)
    for nj in range(9):
        k.lds("ds_write_b128 v19, %s offset:%d" % (vr(acc(0, nj), 4), nj * 1024))
    k.wait_lds_all()
    k.e("s_barrier")
    k.e("s_branch %s" % lab_p2done)
    k.label(lab_recv)
    k.e("s_barrier")
    R = 48
    RX = 148
    for nj in range(9):
        k.lds("ds_read_b128 %s, v19 offset:%d" % (vr(RX + nj * 4, 4), nj * 1024), ("x", nj))
    k.e("v_mov_b32 v40, 0")
    k.e("v_mov_b32 v41, 0")
    for nj in range(9):
        k.wait_lds(("x", nj))
        a = acc(0, nj)
        for r in range(4):
            k.e("v_add_f32 v%d, v%d, v%d" % (a + r, a + r, RX + nj * 4 + r))
        for d in range(2):
            k.e("v_lshlrev_b32 v42, 16, v%d" % (XR + 2 * nj + d))
            k.e("v_and_b32 v43, 0xffff0000, v%d" % (XR + 2 * nj + d))
            k.e("v_add_f32 v%d, v%d, v42" % (a + 2 * d, a + 2 * d))
            k.e("v_add_f32 v%d, v%d, v43" % (a + 2 * d + 1, a + 2 * d + 1))
        k.e("v_cvt_pk_bf16_f32 v%d, v%d, v%d" % (XR + 2 * nj, a, a + 1))
        k.e("v_cvt_pk_bf16_f32 v%d, v%d, v%d" % (XR + 2 * nj + 1, a + 2, a + 3))
        if nj == 8:
            k.e("s_movk_i32 s60, 4096")
        k.vm("buffer_store_dwordx2 %s, v37, %s, %s offen offset:%d" % (vr(XR + 2 * nj, 2), sr(SH, 4), "s60" if nj == 8 else "0", (nj * 512) & 4095) + " sc1")
        for d in range(2):
            k.e("v_lshlrev_b32 v42, 16, v%d" % (XR + 2 * nj + d))
            k.e("v_and_b32 v43, 0xffff0000, v%d" % (XR + 2 * nj + d))
            k.e("v_add_f32 v40, v40, v42")
            k.e("v_fmac_f32 v41, v42, v42")
            k.e("v_add_f32 v40, v40, v43")
            k.e("v_fmac_f32 v41, v43, v43")
    k.e("v_xor_b32 v44, 16, v0")
    k.e("v_lshlrev_b32 v44, 2, v44")
    k.e("v_xor_b32 v45, 32, v0")
    k.e("v_lshlrev_b32 v45, 2, v45")
    for a in (44, 45):
        k.e("ds_bpermute_b32 v42, v%d, v40" % a)
        k.e("ds_bpermute_b32 v43, v%d, v41" % a)
        k.e("s_waitcnt lgkmcnt(0)")
        k.e("v_add_f32 v40, v40, v42")
        k.e("v_add_f32 v41, v41, v43")
    k.e("v_lshlrev_b32 v42, 5, v31")
    k.e("s_lshl_b32 s60, s9, 3")
    k.e("v_add_u32 v42, s60, v42")
    k.e("s_mov_b64 exec, 0xffff")
    k.e("buffer_store_dwordx2 v[40:41], v42, %s, 0 offen sc1" % sr(SST, 4))
    k.e("s_mov_b64 exec, -1")
    stamp(k, 3)
    stamp_flush(k, 6)
    k.e("s_mov_b64 exec, -1")
    k.e("s_branch %s" % lab_p2done)
    k.label(lab_idle)
    if "tself" in EXP:
        touch_code(k, "L_ffn_p3start", "L_ffn_pc", FFN_TAIL_BYTES, 4, 4, 4)
    if "tidle" in EXP:
        k.e("s_sub_u32 s4, s4, 4")
        touch(k, 96, P_WG, D * F * 2, 1024, 4, 18, 1)
        touch(k, 96, P_WU, D * F * 2, 1024, 4, 18, 1)
        k.e("s_add_u32 s4, s4, 4")
    for _ in range(11):
        k.e("s_barrier")
    k.label(lab_p2done)
    srd(k, 64, P_WS, FLG_OFF + 32768 + 1024, 1024)
    k.e("s_lshl_b32 s60, s2, 2")
    k.e("v_mov_b32 v1, s60")
    k.e("v_mov_b32 v2, 1")
    k.e("s_waitcnt vmcnt(0) lgkmcnt(0)")
    k.e("s_barrier")
    lab_nf = k.newlab("nf")
    k.e("s_cmp_lg_u32 s4, 0")
    k.e("s_cbranch_scc1 %s" % lab_nf)
    k.e("s_mov_b64 exec, 1")
    k.e("buffer_store_dword v2, v1, s[64:67], 0 offen sc1")
    k.e("s_mov_b64 exec, -1")
    k.label(lab_nf)
    k.lq, k.vq = [], []
    return gen_k3(k)


def gen_k1():
    k = K("qkv")
    WS_, NW = 24576, 5
    XS_, NX = 10240, 3
    XB = WS_ * NW
    QP = 976
    STO = 80 * QP
    header(k, 256)
    stamp(k, 0)
    SX, SW, SO, SG, SCP = 36, 40, 44, 48, 52
    sKW, sKX, sMW, sMX = 56, 57, 58, 59
    k.e("s_and_b32 s9, s2, 7")
    k.e("s_lshr_b32 s10, s2, 3")
    srd(k, SX, P_X, 0, S * D * 2)
    srd(k, SW, P_WQKV, 0, D * 3 * D * 2)
    srd(k, SO, P_WS, O_OFF, S * D * 2)
    if "tfirst" in EXP:
        touch(k, 96, P_X, S * D * 2, 2048, 8, 18, 1)
        touch(k, 96, P_WQKV, D * 3 * D * 2, 2048, 8, 18, 1)
    k.e("v_and_b32 v16, 15, v0")
    k.e("v_lshrrev_b32 v17, 4, v0")
    vO = 2
    k.e("s_mul_i32 s64, s4, 24")
    k.e("s_mul_i32 s65, s9, 144")
    k.e("s_and_b32 s62, s65, 0xffffff80")
    k.e("s_movk_i32 s63, 3456")
    for t in range(3):
        b_dma_addr(k, vO + t, 64, 8 * t, 2, 63, 62, reg_col=1152)
    k.e("s_lshl_b32 s60, s10, 6")
    k.e("s_lshl_b32 s61, s4, 4")
    k.e("s_add_u32 s60, s60, s61")
    k.e("s_sub_u32 s60, s60, 16")
    k.e("v_add_u32 v18, s60, v16")
    k.e("s_movk_i32 s63, 1152")
    k.e("v_mul_lo_u32 v18, v18, s63")
    k.e("v_lshlrev_b32 v19, 4, v17")
    k.e("v_add_u32 v%d, v18, v19" % (vO + 3))
    k.e("v_add_u32 v%d, 64, v%d" % (vO + 4, vO + 3))
    k.e("s_mov_b32 s%d, 0" % sKW)
    k.e("s_mov_b32 s%d, 0" % sKX)
    k.e("s_mul_i32 s%d, s4, 3072" % sMW)
    k.e("s_lshl_b32 s%d, s4, 11" % sMX)

    def dmaW(st):
        b = (st % NW) * WS_
        g = []
        for t in range(3):
            x = [("s_add_u32 m0, s%d, %d" % (sMW, b + t * 1024), None), ("s_nop 0", None),
                 ("buffer_load_dwordx4 v%d, %s, s%d offen lds" % (vO + t, sr(SW, 4), sKW), ("dma", st))]
            if t == 2:
                x.append(("s_add_u32 s%d, s%d, %d" % (sKW, sKW, 32 * 3456), None))
            g.append(x)
        return g

    def dmaX(xs):
        b = XB + (xs % NX) * XS_
        g = []
        for t in range(2):
            x = [("s_add_u32 m0, s%d, %d" % (sMX, b + t * 1024), None), ("s_nop 0", None),
                 ("buffer_load_dwordx4 v%d, %s, s%d offen lds" % (vO + 3 + t, sr(SX, 4), sKX), ("dma", 2 * xs))]
            if t == 1:
                x.append(("s_add_u32 s%d, s%d, 128" % (sKX, sKX), None))
            g.append(x)
        return g
    lab_nx = k.newlab("nx")
    k.e("s_cmp_ge_u32 s4, 5")
    k.e("s_cbranch_scc1 %s" % lab_nx)
    issue_groups(k, dmaX(0) + dmaX(1))
    k.label(lab_nx)
    issue_groups(k, dmaW(0) + dmaW(1) + dmaW(2) + dmaW(3))
    srd(k, 84, P_WS, FLG_OFF, 32768 + 2048)
    k.e("s_lshl_b32 s60, s2, 7")
    k.e("v_mov_b32 v8, s60")
    k.e("s_lshl_b32 s60, s2, 2")
    k.e("s_add_u32 s60, s60, 32768")
    k.e("v_mov_b32 v9, s60")
    for r in range(4):
        k.e("v_mov_b32 v%d, 0" % (20 + r))
    k.e("s_mov_b64 exec, 1")
    k.e("buffer_store_dwordx4 v[20:23], v8, s[84:87], 0 offen")
    k.e("buffer_store_dword v20, v9, s[84:87], 0 offen")
    k.e("buffer_store_dword v20, v9, s[84:87], 0 offen offset:1024")
    k.e("s_mov_b64 exec, -1")
    k.e("s_nop 1")
    if "tfirst" in EXP:
        pass
    elif "newtouch" not in EXP:
        touch(k, 96, P_WQKV, D * 3 * D * 2, 2048, 8, 18, 1)
        touch(k, 96, P_X, S * D * 2, 2048, 8, 18, 1)
    else:
        k.e("s_lshl_b32 s60, s10, 6")
        k.e("s_sub_u32 s60, s60, 16")
        k.e("s_mul_i32 s60, s60, 1152")
        k.e("s_mul_i32 s61, s4, 90 * 128")
        k.e("s_add_u32 s60, s60, s61")
        k.e("v_lshlrev_b32 v18, 7, v0")
        k.e("v_add_u32 v18, s60, v18")
        k.e("v_add_u32 v19, 8192, v18")
        k.vm("buffer_load_dword v1, v18, %s, 0 offen" % sr(SX, 4), "touch")
        k.e("s_mov_b64 exec, 0x3ffffff")
        k.vm("buffer_load_dword v1, v19, %s, 0 offen" % sr(SX, 4), "touch")
        k.e("s_mov_b64 exec, -1")
        k.e("s_mul_i32 s60, s4, 14")
        k.e("v_add_u32 v18, s60, v0")
        k.e("v_mul_u32_u24 v19, 10923, v18")
        k.e("v_lshrrev_b32 v19, 16, v19")
        k.e("v_mul_u32_u24 v20, 6, v19")
        k.e("v_sub_u32 v18, v18, v20")
        k.e("v_lshrrev_b32 v20, 1, v18")
        k.e("v_mul_u32_u24 v20, 1152, v20")
        k.e("v_and_b32 v18, 1, v18")
        k.e("v_lshlrev_b32 v18, 7, v18")
        k.e("s_mul_i32 s60, s10, 18")
        k.e("v_add_u32 v19, s60, v19")
        k.e("v_mul_u32_u24 v19, 3456, v19")
        k.e("s_mul_i32 s60, s9, 144")
        k.e("s_and_b32 s60, s60, 0xffffff80")
        k.e("v_add3_u32 v18, v18, v19, v20")
        k.e("v_add_u32 v18, s60, v18")
        k.e("s_mov_b64 exec, 0x3fff")
        k.vm("buffer_load_dword v1, v18, %s, 0 offen" % sr(SW, 4), "touch")
        k.e("s_mov_b64 exec, -1")
    touch(k, 96, P_WO, D * D * 2, 2048, 8, 18, 1)
    if "notcode" not in EXP:
        k.e("s_getpc_b64 s[88:89]")
        k.label("L_qkv_pc")
        k.e("s_add_u32 s88, s88, ffn_kernel-L_qkv_pc")
        k.e("s_addc_u32 s89, s89, 0")
        touch(k, 96, 88, 63232, 64, 8, 18, 1)
    CX = 144
    lab_cs3 = k.newlab("cs3")
    k.e("s_mul_i32 s13, s2, 3")
    k.e("s_add_u32 s13, s13, s4")
    k.e("s_sub_u32 s13, s13, 5")
    k.e("s_mul_i32 s14, s13, 3641")
    k.e("s_lshr_b32 s14, s14, 16")
    k.e("s_mul_i32 s15, s14, 18")
    k.e("s_sub_u32 s15, s13, s15")
    k.e("s_lshl_b32 s60, s4, 5")
    k.e("s_add_u32 s61, s60, 160")
    k.e("s_add_u32 s62, s60, 320")
    k.e("s_sub_u32 s60, s4, 5")
    k.e("s_lshl_b32 s60, s60, 6")
    k.e("s_add_u32 s63, s60, 32")
    k.e("s_min_u32 s63, s63, 128")
    k.e("s_cmp_lt_u32 s4, 5")
    k.e("s_cselect_b32 s11, s61, s60")
    k.e("s_cselect_b32 s12, s62, s63")
    k.e("s_cselect_b32 s66, 8192, 0")
    k.e("s_cselect_b32 s67, 16384, 0")
    k.e("s_cselect_b32 s68, 160, 0")
    k.e("s_cselect_b32 s69, 320, 0")
    vB0, vB1, vA, vS = 20, 25, 30, 33
    swap23_lane_rowpos(k, 8, 0, 18, 19)
    k.e("v_bfe_u32 v9, v8, 1, 2")
    k.e("v_and_b32 v10, 1, v8")
    k.e("v_lshlrev_b32 v8, 8, v8")
    k.e("v_and_b32 v11, 3, v0")
    k.e("v_lshlrev_b32 v11, 3, v11")
    k.e("s_and_b32 s65, s65, 127")
    for (vd, sreg, sreb, ssub) in ((vB0, 11, 66, 68), (vB1, 12, 67, 69)):
        k.e("s_sub_u32 s60, s%d, s%d" % (sreg, ssub))
        k.e("s_add_u32 s60, s60, s65")
        k.e("v_add_u32 v18, s60, v11")
        k.e("v_bfe_u32 v19, v18, 7, 1")
        k.e("v_xor_b32 v19, v19, v10")
        k.e("v_lshlrev_b32 v19, 7, v19")
        k.e("v_bfe_u32 v12, v18, 5, 2")
        k.e("v_xor_b32 v12, v12, v9")
        k.e("v_lshlrev_b32 v12, 5, v12")
        k.e("v_and_b32 v18, 31, v18")
        k.e("v_add3_u32 v18, v18, v19, v12")
        k.e("v_add3_u32 v%d, v18, v8, s%d" % (vd, sreb))
    k.e("v_lshlrev_b32 v%d, 4, v0" % vA)
    k.e("v_add_u32 v%d, %d, v%d" % (vA, XB, vA))
    k.e("v_add_u32 v%d, s%d, v%d" % (vS, sMX, vA))
    for b in range(1, NW):
        for v in (vB0, vB1):
            k.e("v_add_u32 v%d, %d, v%d" % (v + b, b * WS_, v))
    for b in range(1, NX):
        for v in (vA, vS):
            k.e("v_add_u32 v%d, %d, v%d" % (v + b, b * XS_, v))
    ONES = 36
    for r in range(4):
        k.e("v_mov_b32 v%d, 0x3f803f80" % (ONES + r))
    ACC = 40
    acc = lambda sl, mi: ACC + (sl * 6 + mi) * 4
    SACC = 88
    AF = [[96 + 4 * mi for mi in range(6)], [120 + 4 * mi for mi in range(6)]]
    BF = [[216, 220], [224, 228]]
    lab_q = k.newlab("qpath")
    lab_post = k.newlab("post")
    k.e("s_cmp_ge_u32 s4, 5")
    k.e("s_cbranch_scc1 %s" % lab_q)
    for path in range(2):
        if path == 1:
            k.e("s_branch %s" % lab_post)
            k.label(lab_q)
        k.lq, k.vq = [], []
        mis = [0, 1, 2, 3, 4] if path == 0 else [1, 2, 3, 4]
        k.vq = [("dma", 0)] * 3 + [("dma", 1)] * 3 + [("dma", 2)] * 3 + [("dma", 3)] * 3 + ["z"] * (3 if "notouchall" in EXP else (4 if "tfirst" in EXP else (6 if "notcode" in EXP else 7)))
        def rdl(s):
            xs, kk = divmod(s, 2)
            out = []
            for sl in range(2):
                for j in range(2):
                    out.append("ds_read_b64_tr_b16 %s, v%d offset:%d" % (vr(BF[s % 2][sl] + 2 * j, 2), (vB0, vB1)[sl] + s % NW, j * 2048))
            for mi in mis:
                out.append("ds_read_b128 %s, v%d offset:%d" % (vr(AF[s % 2][mi], 4), vA + xs % NX, (mi * 2 + kk) * 1024))
            if path == 0:
                out.append("ds_read_b128 %s, v%d offset:%d" % (vr(AF[s % 2][5], 4), vS + xs % NX, kk * 1024))
            return out
        if path == 0 and "k1fine" not in EXP:
            stamp(k, 1)
        k.wait_vm(("dma", 0))
        k.e("s_barrier")
        for x in rdl(0):
            k.lds(x, ("f", 0))
        for s in range(18):
            k.c("---- step %d" % s)
            if STAMP and "k1fine" in EXP and path == 0 and s in (1, 6):
                k.e("s_memtime s[%d:%d]" % ((72, 73) if s == 1 else (74, 75)))
            groups = []
            reads = []
            if s + 1 < 18:
                k.wait_vm(("dma", s + 1))
                k.e("s_barrier")
                if path == 0 and s % 2 == 0 and s // 2 + 2 < 9:
                    groups += dmaX(s // 2 + 2)
                if s + NW - 1 < 18:
                    groups += dmaW(s + NW - 1)
                reads = rdl(s + 1)
            if False:
                groups.append([("buffer_load_dwordx4 %s, v7, %s, s88 offen" % (vr(CX + 4 * s, 4), sr(SG, 4)), "cs"),
                               ("s_add_u32 s88, s88, 9216", None)])
            k.wait_lds(("f", s))
            mf = []
            for sl in range(2):
                for mi in mis + [5]:
                    a = acc(sl, mi)
                    cc = "0" if s == 0 else vr(a, 4)
                    bop = vr(AF[s % 2][mi], 4) if mi < 5 else vr(ONES, 4)
                    mf.append("v_mfma_f32_16x16x32_bf16 %s, %s, %s, %s" % (vr(a, 4), vr(BF[s % 2][sl], 4), bop, cc))
            if path == 0:
                sf = vr(AF[s % 2][5], 4)
                mf.append("v_mfma_f32_16x16x32_bf16 %s, %s, %s, %s" % (vr(SACC, 4), vr(ONES, 4), sf, "0" if s == 0 else vr(SACC, 4)))
                mf.append("v_mfma_f32_16x16x32_bf16 %s, %s, %s, %s" % (vr(SACC + 4, 4), sf, sf, "0" if s == 0 else vr(SACC + 4, 4)))
            for n, m in enumerate(mf):
                k.e(m)
                if n < len(reads):
                    k.lds(reads[n], ("f", s + 1))
                g0 = len(mf) - len(groups)
                if n >= g0:
                    issue_groups(k, [groups[n - g0]])
    k.label(lab_post)
    k.lq, k.vq = [], []
    if "tmid" in EXP:
        touch(k, 96, P_WG, D * F * 2, 2048, 8, 2, 1)
        touch(k, 96, P_WU, D * F * 2, 2048, 8, 2, 1)
        k.vq = []
    if "k1fine" in EXP:
        k.e("s_waitcnt lgkmcnt(0)")
        stamp(k, 3)
        stamp_flush(k, 6)
        k.e("s_mov_b64 exec, -1")
    else:
        stamp(k, 2)
    k.e("s_nop 7")
    k.e("s_nop 7")
    k.e("s_barrier")
    k.e("v_and_b32 v18, 3, v0")
    k.e("v_cmp_eq_u32 vcc, 1, v18")
    k.e("v_mov_b32 v19, v%d" % (SACC + 4))
    k.e("s_nop 0")
    k.e("v_cndmask_b32 v19, v19, v%d, vcc" % (SACC + 5))
    k.e("v_cmp_eq_u32 vcc, 2, v18")
    k.e("s_nop 1")
    k.e("v_cndmask_b32 v19, v19, v%d, vcc" % (SACC + 6))
    k.e("v_cmp_eq_u32 vcc, 3, v18")
    k.e("s_nop 1")
    k.e("v_cndmask_b32 v19, v19, v%d, vcc" % (SACC + 7))
    k.e("s_mov_b32 s60, 0x%x" % f2u(1.0 / 576.0))
    k.e("s_mov_b32 s61, 0x%x" % f2u(1e-5))
    k.e("v_mul_f32 v8, s60, v%d" % SACC)
    k.e("v_mul_f32 v19, s60, v19")
    k.e("v_fma_f32 v19, -v8, v8, v19")
    k.e("v_max_f32 v19, 0, v19")
    k.e("v_add_f32 v19, s61, v19")
    k.e("v_rsq_f32 v9, v19")
    k.e("v_sub_f32 v8, 0, v8")
    k.e("v_lshrrev_b32 v18, 2, v16")
    k.e("v_cmp_eq_u32 vcc, v18, v17")
    k.e("s_lshl_b32 s60, s4, 7")
    k.e("v_lshlrev_b32 v18, 3, v16")
    k.e("v_add_u32 v18, s60, v18")
    k.e("v_add_u32 v18, %d, v18" % STO)
    k.e("s_and_saveexec_b64 s[60:61], vcc")
    k.e("ds_write_b64 v18, v[8:9]")
    k.e("s_mov_b64 exec, -1")
    k.e("s_waitcnt lgkmcnt(0)")
    k.e("s_barrier")
    k.e("v_lshlrev_b32 v18, 3, v16")
    k.e("v_add_u32 v18, %d, v18" % STO)
    for mi in range(5):
        k.lds("ds_read_b64 %s, v18 offset:%d" % (vr(96 + 2 * mi, 2), mi * 128), "st")
    for sl, sreg in ((0, 11), (1, 12)):
        k.e("s_lshl_b32 s60, s%d, 1" % sreg)
        k.e("v_mul_u32_u24 v18, %d, v16" % QP)
        k.e("v_lshlrev_b32 v19, 4, v17")
        k.e("v_add3_u32 v%d, v18, v19, s60" % (8 + sl))
    k.wait_lds("st")
    for sl in range(2):
        cw = acc(sl, 5)
        for mi in range(5):
            a = acc(sl, mi)
            for r in range(4):
                k.e("v_fma_f32 v%d, v%d, v%d, v%d" % (a + r, 96 + 2 * mi, cw + r, a + r))
            for r in range(4):
                k.e("v_mul_f32 v%d, v%d, v%d" % (a + r, 97 + 2 * mi, a + r))
            k.e("v_cvt_pk_bf16_f32 v18, v%d, v%d" % (a, a + 1))
            k.e("v_cvt_pk_bf16_f32 v19, v%d, v%d" % (a + 2, a + 3))
            k.e("v_lshlrev_b32 v%d, 16, v18" % a)
            k.e("v_and_b32 v%d, 0xffff0000, v18" % (a + 1))
            k.e("v_lshlrev_b32 v%d, 16, v19" % (a + 2))
            k.e("v_and_b32 v%d, 0xffff0000, v19" % (a + 3))
            k.lds("ds_write_b128 v%d, %s offset:%d" % (8 + sl, vr(a, 4), mi * 16 * QP))
    k.wait_lds_all()
    k.e("s_barrier")
    k.e("v_lshrrev_b32 v18, 3, v0")
    k.e("s_lshl_b32 s60, s4, 3")
    k.e("v_add_u32 v18, s60, v18")
    k.e("v_bfe_u32 v19, v0, 1, 2")
    k.e("v_and_b32 v26, 1, v0")
    k.e("v_mul_u32_u24 v20, %d, v18" % QP)
    k.e("v_mul_u32_u24 v21, 72, v19")
    k.e("v_add_u32 v20, v20, v21")
    k.e("v_mul_u32_u24 v21, %d, v26" % (8 * QP))
    k.e("v_sub_u32 v27, v20, v21")
    k.e("v_add_u32 v27, %d, v27" % (10 * QP))
    Q = 32
    KV = 52
    L = 124
    O = 128
    for d in range(9):
        k.lds("ds_read_b64 %s, v20 offset:%d" % (vr(Q + 2 * d, 2), 16 * QP + d * 8), "q")
    seq = [("k", j) for j in range(4)] + [("v", j) for j in range(4)]

    def rdkv(n):
        kind, j = seq[n]
        col = 320 if kind == "k" else 640
        for d in range(9):
            k.lds("ds_read_b64 %s, v27 offset:%d" % (vr(KV + (n % 4) * 18 + 2 * d, 2), (3 - j) * 2 * QP + col + d * 8), seq[n])
    rdkv(0)
    rdkv(1)
    rdkv(2)
    for j in range(4):
        rdkv(j + 3)
        k.wait_lds(("k", j))
        b = KV + j * 18
        k.e("v_mul_f32 v%d, v%d, v%d" % (L + j, Q, b))
        k.e("v_mul_f32 v24, v%d, v%d" % (Q + 1, b + 1))
        for d in range(2, 18, 2):
            k.e("v_fmac_f32 v%d, v%d, v%d" % (L + j, Q + d, b + d))
            k.e("v_fmac_f32 v24, v%d, v%d" % (Q + d + 1, b + d + 1))
        k.e("v_add_f32 v%d, v%d, v24" % (L + j, L + j))
    rdkv(7)
    k.e("s_mov_b32 s60, 0x%x" % f2u(18 ** -0.5))
    k.e("s_lshl_b32 s61, s10, 6")
    k.e("v_add_u32 v22, s61, v18")
    k.e("v_lshlrev_b32 v25, 3, v26")
    k.e("v_sub_u32 v25, v22, v25")
    k.e("v_mov_b32 v23, 0x%x" % f2u(-1e9))
    for j in range(4):
        k.e("v_mul_f32 v%d, s60, v%d" % (L + j, L + j))
    for j in range(4):
        k.e("v_cmp_le_i32 vcc, %d, v25" % (2 * j))
        k.e("s_nop 1")
        k.e("v_cndmask_b32 v%d, v23, v%d, vcc" % (L + j, L + j))
    k.e("v_max3_f32 v24, v%d, v%d, v%d" % (L, L + 1, L + 2))
    k.e("v_max_f32 v24, v24, v%d" % (L + 3))
    k.e("s_nop 1")
    k.e("v_max_f32 v24, v24, v24 quad_perm:[1,0,3,2] row_mask:0xf bank_mask:0xf")
    k.e("s_mov_b32 s60, 0x%x" % f2u(1.4426950408889634))
    for j in range(4):
        k.e("v_sub_f32 v%d, v%d, v24" % (L + j, L + j))
    for j in range(4):
        k.e("v_mul_f32 v%d, s60, v%d" % (L + j, L + j))
    for j in range(4):
        k.e("v_exp_f32 v%d, v%d" % (L + j, L + j))
    k.e("s_nop 0")
    k.e("v_add_f32 v24, v%d, v%d" % (L, L + 1))
    k.e("v_add_f32 v25, v%d, v%d" % (L + 2, L + 3))
    k.e("v_add_f32 v24, v24, v25")
    k.e("s_nop 1")
    k.e("v_add_f32 v24, v24, v24 quad_perm:[1,0,3,2] row_mask:0xf bank_mask:0xf")
    k.e("v_rcp_f32 v24, v24")
    k.e("s_nop 0")
    for j in range(4):
        k.e("v_mul_f32 v%d, v%d, v24" % (L + j, L + j))
    for j in range(4):
        k.wait_lds(("v", j))
        b = KV + j * 18
        for d in range(18):
            if j == 0:
                k.e("v_mul_f32 v%d, v%d, v%d" % (O + d, L, b + d))
            else:
                k.e("v_fmac_f32 v%d, v%d, v%d" % (O + d, L + j, b + d))
    k.e("s_nop 1")
    for d in range(18):
        k.e("v_add_f32 v%d, v%d, v%d quad_perm:[1,0,3,2] row_mask:0xf bank_mask:0xf" % (KV + d, O + d, O + d))
    for d in range(9):
        k.e("v_cvt_pk_bf16_f32 v%d, v%d, v%d" % (Q + d, KV + 2 * d, KV + 2 * d + 1))
    k.e("v_cmp_eq_u32 vcc, 1, v26")
    k.e("v_lshrrev_b32 v23, 4, v22")
    k.e("v_mul_u32_u24 v23, 18432, v23")
    k.e("v_and_b32 v24, 15, v22")
    k.e("v_lshlrev_b32 v24, 4, v24")
    k.e("v_add_u32 v23, v23, v24")
    k.e("v_mul_u32_u24 v21, 18, v19")
    k.e("s_mul_i32 s60, s9, 72")
    k.e("v_add_u32 v21, s60, v21")
    k.e("v_lshlrev_b32 v24, 3, v26")
    k.e("v_add_u32 v21, v21, v24")
    for d in range(5):
        k.e("v_cndmask_b32 v%d, v%d, v%d, vcc" % (O + d, Q + d, Q + d + 4))
        k.e("v_add_u32 v24, %d, v21" % (2 * d))
        k.e("v_lshrrev_b32 v25, 3, v24")
        k.e("v_lshlrev_b32 v25, 8, v25")
        k.e("v_and_b32 v24, 7, v24")
        k.e("v_lshlrev_b32 v24, 1, v24")
        k.e("v_add3_u32 v%d, v23, v24, v25" % (O + 8 + d))
        k.e("buffer_store_dword v%d, v%d, %s, 0 offen" % (O + d, O + 8 + d, sr(SO, 4)))
    if "tend" in EXP:
        k.e("s_mov_b64 exec, -1")
        touch(k, 96, P_WG, D * F * 2, 2048, 8, 18, 1)
        touch(k, 96, P_WU, D * F * 2, 2048, 8, 18, 1)
    if "k1fine" not in EXP:
        stamp(k, 3)
        stamp_flush(k, 6)
    k.label(lab_cs3)
    footer(k)
    return k, 256


def main():
    ks = [
        (gen_k1, 512, 5 * 24576 + 3 * 10240, 232),
        (gen_k2, 512, 4 * 40960, 256),
    ]
    hdr = open("sequential_preLN__sliding_local_dilated__geglu_ffn__prompt.s.ref").read().split("\n")
    out = []
    for line in hdr:
        if line.startswith("; Override") or line.startswith("; grid=") or line.startswith("; @launch"):
            continue
        if not line.startswith(";"):
            break
        out.append(line)
    body = []
    desc = []
    for fn, block, lds, nv in ks:
        k, nwg = fn()
        name = k.name + "_kernel"
        out.append("; @launch kernel=%s grid=(%d,1,1) block=(%d,1,1) lds=%d" % (name, nwg, block, lds))
        body += [".globl %s" % name, ".p2align 8", ".type %s,@function" % name, "%s:" % name] + k.L
        desc += [".p2align 6", ".amdhsa_kernel %s" % name,
                 "  .amdhsa_next_free_vgpr %d" % nv, "  .amdhsa_next_free_sgpr 102",
                 "  .amdhsa_accum_offset %d" % nv,
                 "  .amdhsa_group_segment_fixed_size 0", "  .amdhsa_kernarg_size 80",
                 "  .amdhsa_user_sgpr_count 2", "  .amdhsa_user_sgpr_kernarg_segment_ptr 1",
                 "  .amdhsa_system_sgpr_workgroup_id_x 1", ".end_amdhsa_kernel"]
    out += ['.amdgcn_target "amdgcn-amd-amdhsa--gfx950"', ".text"] + body + ['.section .rodata,"a"'] + desc
    path = sys.argv[1] if len(sys.argv) > 1 else "sequential_preLN__sliding_local_dilated__geglu_ffn__prompt.s"
    open(path, "w").write("\n".join(out) + "\n")


main()
```

```python
import sys, struct

S, D, F = 2048, 576, 4608
O_OFF = 0x0000000
H_OFF = 0x0400000
ST_OFF = 0x0800000
CP_OFF = 0x0A00000
CS_OFF = 0x0860000
FLG_OFF = 0x0880000
ACT_OFF = 0x1000000
PART_OFF = 0x3000000


def f2u(x):
    return struct.unpack("<I", struct.pack("<f", x))[0]


EXP = __import__("os").environ.get("EXP", "")
FFN_TAIL_BYTES = 55296


class K:
    def __init__(s, name):
        s.name = name
        s.L = []
        s.lq = []
        s.vq = []
        s.nlab = 0

    def e(s, t):
        if "nomfma" in EXP and t.startswith("v_mfma"):
            return
        if "noldsrd" in EXP and (t.startswith("ds_read_b128") or t.startswith("ds_read_b64_tr")):
            return
        if "nodma" in EXP and t.endswith(" lds"):
            return
        if "nox" in EXP and t.endswith(" lds") and "s[36:39]" in t and s.name == "qkv":
            return
        if "now" in EXP and t.endswith(" lds") and "s[40:43]" in t and s.name == "qkv":
            return
        s.L.append("    " + t)

    def c(s, t):
        s.L.append("    ; " + t)

    def label(s, n):
        s.L.append(n + ":")

    def newlab(s, base):
        s.nlab += 1
        return "L_%s_%s_%d" % (s.name, base, s.nlab)

    def lds(s, t, tag=None):
        s.e(t)
        s.lq.append(tag)

    def vm(s, t, tag=None):
        s.e(t)
        s.vq.append(tag)

    def _need(s, q, tag):
        idx = -1
        for i, x in enumerate(q):
            if x == tag:
                idx = i
        return idx

    def wait_lds(s, tag):
        idx = s._need(s.lq, tag)
        if idx < 0:
            return
        n = len(s.lq) - idx - 1
        n = min(n, 15)
        s.e("s_waitcnt lgkmcnt(%d)" % n)
        s.lq = s.lq[len(s.lq) - n:] if n else []

    def wait_vm(s, tag):
        idx = s._need(s.vq, tag)
        if idx < 0:
            return
        n = len(s.vq) - idx - 1
        n = min(n, 63)
        s.e("s_waitcnt vmcnt(%d)" % n)
        s.vq = s.vq[len(s.vq) - n:] if n else []

    def wait_all(s):
        s.e("s_waitcnt vmcnt(0) lgkmcnt(0)")
        s.lq = []
        s.vq = []

    def wait_lds_all(s):
        s.e("s_waitcnt lgkmcnt(0)")
        s.lq = []

    def wait_vm_all(s):
        s.e("s_waitcnt vmcnt(0)")
        s.vq = []


STAMP = int(__import__("os").environ.get("STAMP", "0"))


def stamp(k, idx):
    if STAMP:
        k.e("s_memtime s[%d:%d]" % (70 + 2 * idx, 71 + 2 * idx))
        if idx in (0, 3):
            k.e("s_memrealtime s[%d:%d]" % (78 + (2 if idx else 0), 79 + (2 if idx else 0)))
        k.e("s_waitcnt lgkmcnt(0)")
        k.lq = []


def stamp_flush(k, n):
    if STAMP == 2:
        slot = getattr(k, "stamp_slot", 0)
        lab = k.newlab("nost")
        k.e("s_cmp_lg_u32 s2, 5")
        k.e("s_cbranch_scc1 %s" % lab)
        k.e("s_cmp_lg_u32 s4, 0")
        k.e("s_cbranch_scc1 %s" % lab)
        if not slot:
            k.e("s_add_u32 s92, s%d, 512" % P_DBG)
            k.e("s_addc_u32 s93, s%d, 0" % (P_DBG + 1))
        else:
            k.e("s_mov_b32 s92, s%d" % P_DBG)
            k.e("s_mov_b32 s93, s%d" % (P_DBG + 1))
        k.e("s_mov_b32 s94, 256")
        k.e("s_mov_b32 s95, 0x00020000")
        k.e("v_mov_b32 v1, 0")
        k.e("s_mov_b64 exec, 1")
        for i, r in enumerate((78, 80)):
            k.e("v_mov_b32 v2, s%d" % r)
            k.e("buffer_store_dword v2, v1, s[92:95], 0 offen offset:%d" % (8 * slot + 4 * i))
        k.label(lab)
        return
    if STAMP:
        lab = k.newlab("nost")
        k.e("s_and_b32 s90, s2, 127")
        k.e("s_cmp_lg_u32 s90, 5")
        k.e("s_cbranch_scc1 %s" % lab)
        k.e("s_cmp_lg_u32 s4, 0")
        k.e("s_cbranch_scc1 %s" % lab)
        srd(k, 92, P_WS, 0x900000 + 512 * getattr(k, "stamp_slot", 0), 256)
        k.e("s_lshr_b32 s90, s2, 7")
        k.e("s_lshl_b32 s90, s90, 6")
        k.e("v_mov_b32 v1, s90")
        k.e("s_mov_b64 exec, 1")
        for i in range(n):
            k.e("v_mov_b32 v2, s%d" % (70 + 2 * i))
            k.e("buffer_store_dword v2, v1, s[92:95], 0 offen offset:%d" % (4 * i))
        k.label(lab)


def vr(b, n):
    return "v[%d:%d]" % (b, b + n - 1)


def sr(b, n):
    return "s[%d:%d]" % (b, b + n - 1)


P_X, P_WQKV, P_WO, P_BX, P_WG, P_WU, P_WD, P_OUT, P_DBG, P_WS = 16, 18, 20, 22, 24, 26, 28, 30, 32, 34


def header(k, nwg):
    k.e("s_cmp_ge_u32 s2, %d" % nwg)
    k.e("s_cbranch_scc1 L_%s_end" % k.name)
    k.e("s_load_dwordx16 s[16:31], s[0:1], 0")
    k.e("s_load_dwordx4 s[32:35], s[0:1], 64")
    k.e("v_lshrrev_b32 v1, 6, v0")
    k.e("v_and_b32 v0, 63, v0")
    k.e("s_nop 0")
    k.e("v_readfirstlane_b32 s4, v1")
    k.e("s_waitcnt lgkmcnt(0)")


def srd(k, d, ptr, off, nbytes):
    if off:
        k.e("s_add_u32 s%d, s%d, 0x%x" % (d, ptr, off))
        k.e("s_addc_u32 s%d, s%d, 0" % (d + 1, ptr + 1))
    else:
        k.e("s_mov_b32 s%d, s%d" % (d, ptr))
        k.e("s_mov_b32 s%d, s%d" % (d + 1, ptr + 1))
    k.e("s_mov_b32 s%d, 0x%x" % (d + 2, nbytes))
    k.e("s_mov_b32 s%d, 0x00020000" % (d + 3))


def footer(k):
    k.label("L_%s_end" % k.name)
    k.e("s_endpgm")


def swap23_lane_rowpos(k, vdst, vlane, vt, vt2):
    k.e("v_lshrrev_b32 v%d, 5, v%d" % (vt, vlane))
    k.e("v_lshlrev_b32 v%d, 4, v%d" % (vdst, vt))
    k.e("v_bfe_u32 v%d, v%d, 4, 1" % (vt, vlane))
    k.e("v_lshlrev_b32 v%d, 2, v%d" % (vt, vt))
    k.e("v_add_u32 v%d, v%d, v%d" % (vdst, vdst, vt))
    k.e("v_bfe_u32 v%d, v%d, 2, 2" % (vt2, vlane))
    k.e("v_add_u32 v%d, v%d, v%d" % (vdst, vdst, vt2))


def swap23(k, vdst, vp, vt, vt2):
    k.e("v_and_b32 v%d, 0x33, v%d" % (vdst, vp))
    k.e("v_bfe_u32 v%d, v%d, 2, 1" % (vt, vp))
    k.e("v_lshlrev_b32 v%d, 3, v%d" % (vt, vt))
    k.e("v_bfe_u32 v%d, v%d, 3, 1" % (vt2, vp))
    k.e("v_lshlrev_b32 v%d, 2, v%d" % (vt2, vt2))
    k.e("v_or3_b32 v%d, v%d, v%d, v%d" % (vdst, vdst, vt, vt2))


def gemm_core(k, nst, nbuf, MI, acc, afr, bring, PD, a_rd, b_rd, dma, zero_init, NJ=9, sub=1, extra=None):
    RB = len(bring)
    nm = MI * NJ
    nsteps = nst * sub

    def rdB(t):
        sp, nj = divmod(t, NJ)
        if sp >= nsteps:
            return []
        st, kk = divmod(sp, sub)
        slot = bring[t % RB]
        out = []
        for j in range(2):
            v, off = b_rd(st % nbuf, nj, j, kk) if sub > 1 else b_rd(st % nbuf, nj, j)
            out.append(("ds_read_b64_tr_b16 %s, v%d offset:%d" % (vr(slot + 2 * j, 2), v, off), ("B", t)))
        return out

    def rdA(sp, i):
        if sp >= nsteps:
            return []
        st, kk = divmod(sp, sub)
        v, off = a_rd(st % nbuf, i, kk) if sub > 1 else a_rd(st % nbuf, i)
        return [("ds_read_b128 %s, v%d offset:%d" % (vr(afr[sp % 2][i], 4), v, off), ("A", sp))]

    k.wait_vm(("dma", 0))
    k.e("s_barrier")
    for i in range(MI):
        for (t, tag) in rdA(0, i):
            k.lds(t, tag)
    for t in range(PD):
        for (x, tag) in rdB(t):
            k.lds(x, tag)
    for s in range(nsteps):
        k.c("---- step %d" % s)
        groups = []
        st = s // sub
        if (s + 1) % sub == 0 and st + 1 < nst:
            k.wait_vm(("dma", st + 1))
            k.e("s_barrier")
            if st + nbuf - 1 < nst:
                groups = dma(st + nbuf - 1)
        ev = {}

        def add(idx, fn):
            ev.setdefault(min(idx, nm - 1), []).append(fn)
        for nj in range(NJ):
            t = s * NJ + nj
            add(nj * MI, (lambda tt: (lambda: [k.lds(x, tag) for (x, tag) in rdB(tt)]))(t + PD))
        for i in range(MI):
            add((2 + i) * MI + min(1, MI - 1), (lambda ii: (lambda: [k.lds(x, tag) for (x, tag) in rdA(s + 1, ii)]))(i))
        for gi, g in enumerate(groups):
            def mk(g):
                def f():
                    for (x, tag) in g:
                        if tag is None:
                            k.e(x)
                        else:
                            k.vm(x, tag)
                return f
            add((gi + (3 if "dmalate" in EXP else 0)) * MI + min(2, MI - 1), mk(g))
        for nj in range(NJ):
            t = s * NJ + nj
            if nj == 0:
                k.wait_lds(("A", s))
            k.wait_lds(("B", t))
            for i in range(MI):
                a = acc(i, nj)
                cc = "0" if (zero_init and s == 0) else vr(a, 4)
                k.e("v_mfma_f32_16x16x32_bf16 %s, %s, %s, %s" % (vr(a, 4), vr(bring[t % RB], 4), vr(afr[s % 2][i], 4), cc))
                for fn in ev.get(nj * MI + i, []):
                    fn()
            if extra:
                extra(s, nj, bring[t % RB])


def fl_lane(k, vdst, vt):
    k.e("v_lshrrev_b32 v%d, 1, v17" % vt)
    k.e("v_lshlrev_b32 v%d, 8, v%d" % (vdst, vt))
    k.e("v_lshlrev_b32 v%d, 4, v16" % vt)
    k.e("v_add_u32 v%d, v%d, v%d" % (vdst, vdst, vt))
    k.e("v_and_b32 v%d, 1, v17" % vt)
    k.e("v_lshlrev_b32 v%d, 3, v%d" % (vt, vt))
    k.e("v_add_u32 v%d, v%d, v%d" % (vdst, vdst, vt))


def b_dma_addr(k, vdst, sL0, iofs, NL, spitch, scol, reg_row=0, reg_col=0):
    k.e("v_lshrrev_b32 v18, 3, v0")
    k.e("v_add_u32 v18, s%d, v18" % sL0)
    if iofs:
        k.e("v_add_u32 v18, %d, v18" % iofs)
    if NL == 3:
        k.e("v_mul_u32_u24 v19, 21846, v18")
        k.e("v_lshrrev_b32 v19, 16, v19")
        k.e("v_mul_u32_u24 v20, 3, v19")
        k.e("v_sub_u32 v18, v18, v20")
    else:
        k.e("v_lshrrev_b32 v19, 1, v18")
        k.e("v_xor_b32 v18, v18, v19")
        k.e("v_and_b32 v18, 1, v18")
    k.e("v_lshlrev_b32 v18, 7, v18")
    k.e("v_bfe_u32 v20, v19, 1, 2")
    k.e("v_bfe_u32 v21, v0, 1, 2")
    k.e("v_xor_b32 v20, v20, v21")
    k.e("v_lshlrev_b32 v20, 5, v20")
    k.e("v_and_b32 v21, 1, v0")
    k.e("v_lshlrev_b32 v21, 4, v21")
    k.e("v_add3_u32 v18, v18, v20, v21")
    k.e("v_lshrrev_b32 v23, 5, v19")
    k.e("v_and_b32 v19, 31, v19")
    swap23(k, 20, 19, 21, 22)
    if reg_row:
        k.e("v_mul_u32_u24 v21, %d, v23" % reg_row)
        k.e("v_add_u32 v20, v20, v21")
    k.e("v_mul_lo_u32 v20, v20, s%d" % spitch)
    if reg_col:
        k.e("v_mul_u32_u24 v23, %d, v23" % reg_col)
        k.e("v_add_u32 v18, v18, v23")
    k.e("v_add3_u32 v%d, v20, v18, s%d" % (vdst, scol))


def b_rd_addr3(k, vq, sn0p, sbase):
    swap23_lane_rowpos(k, 18, 0, 19, 20)
    k.e("v_bfe_u32 v19, v18, 1, 2")
    k.e("v_mul_u32_u24 v18, 384, v18")
    k.e("v_and_b32 v20, 3, v0")
    k.e("v_lshlrev_b32 v20, 3, v20")
    k.e("v_add3_u32 v18, v18, v20, s%d" % sbase)
    for q in range(4):
        k.e("s_add_u32 s60, s%d, %d" % (sn0p, q))
        k.e("s_and_b32 s61, s60, 3")
        k.e("s_lshr_b32 s60, s60, 2")
        k.e("s_lshl_b32 s60, s60, 7")
        k.e("v_xor_b32 v20, s61, v19")
        k.e("v_lshlrev_b32 v20, 5, v20")
        k.e("v_add3_u32 v%d, v18, v20, s60" % (vq + q))


def touch(k, ssrd, ptr, nbytes, nwaves_total, wpw, vtmp, vdst):
    if "notouchall" in EXP:
        return
    nlines = nbytes // 128
    per = (nlines + nwaves_total - 1) // nwaves_total
    assert per <= 64
    srd(k, ssrd, ptr, 0, nbytes)
    k.e("s_mul_i32 s60, s2, %d" % wpw)
    k.e("s_add_u32 s60, s60, s4")
    k.e("s_mul_i32 s60, s60, %d" % per)
    k.e("v_add_u32 v%d, s60, v0" % vtmp)
    k.e("v_lshlrev_b32 v%d, 7, v%d" % (vtmp, vtmp))
    if per < 64:
        m = (1 << per) - 1
        k.e("s_mov_b32 exec_lo, 0x%x" % (m & 0xffffffff))
        k.e("s_mov_b32 exec_hi, 0x%x" % (m >> 32))
    k.vm("buffer_load_dword v%d, v%d, %s, 0 offen" % (vdst, vtmp, sr(ssrd, 4)), "touch")
    k.e("s_mov_b64 exec, -1")


def touch_code(k, label, lab_pc, nbytes, lines_per_wave, wave_base, nw):
    k.e("s_getpc_b64 s[88:89]")
    k.label(lab_pc)
    k.e("s_add_u32 s96, s88, %s-%s" % (label, lab_pc))
    k.e("s_addc_u32 s97, s89, -1" if False else "s_addc_u32 s97, s89, 0")
    k.e("s_mov_b32 s98, %d" % nbytes)
    k.e("s_mov_b32 s99, 0x00020000")
    k.e("s_lshr_b32 s60, s2, 3")
    k.e("s_mul_i32 s60, s60, %d" % nw)
    k.e("s_add_u32 s60, s60, s4")
    k.e("s_sub_u32 s60, s60, %d" % wave_base)
    k.e("s_mul_i32 s60, s60, %d" % lines_per_wave)
    k.e("v_add_u32 v18, s60, v0")
    k.e("v_lshlrev_b32 v18, 7, v18")
    k.e("s_mov_b64 exec, 0x%x" % ((1 << lines_per_wave) - 1))
    k.vm("buffer_load_dword v1, v18, s[96:99], 0 offen", "touch")
    k.e("s_mov_b64 exec, -1")


def issue_groups(k, groups):
    for g in groups:
        for (x, tag) in g:
            if tag is None:
                k.e(x)
            else:
                k.vm(x, tag)


def gen_k3(k):
    k.label("L_ffn_p3start")
    SB = 40960
    NBUF = 4
    k.stamp_slot = 2
    stamp(k, 0)
    SA, SBd, SST, SCS, SO = 36, 40, 44, 48, 52
    sKA, sKB, sMA, sMB = 56, 57, 58, 59
    k.e("s_and_b32 s60, s2, 7")
    k.e("s_lshr_b32 s61, s2, 3")
    k.e("s_and_b32 s62, s61, 3")
    k.e("s_lshl_b32 s60, s60, 2")
    k.e("s_add_u32 s9, s60, s62")
    k.e("s_lshr_b32 s61, s61, 2")
    k.e("s_lshl_b32 s7, s61, 8")
    k.e("s_mul_i32 s8, s9, 144")
    k.e("s_and_b32 s5, s4, 3")
    k.e("s_lshr_b32 s6, s4, 2")
    srd(k, SA, P_WS, H_OFF, S * D * 2)
    k.e("s_cmp_lt_u32 s4, 4")
    k.e("s_cselect_b32 s%d, s%d, s%d" % (SBd, P_WG, P_WU))
    k.e("s_cselect_b32 s%d, s%d, s%d" % (SBd + 1, P_WG + 1, P_WU + 1))
    k.e("s_mov_b32 s%d, 0x%x" % (SBd + 2, D * F * 2))
    k.e("s_mov_b32 s%d, 0x00020000" % (SBd + 3))
    srd(k, SST, P_WS, ST_OFF, S * 32)
    srd(k, SO, P_WS, ACT_OFF, S * F * 2)
    vOA0, vOA1, vOB = 2, 3, 4
    vA, vB = 8, 24
    vR, vM = 40, 44
    ACC = 96
    afr = [[48 + 4 * i for i in range(4)], [64 + 4 * i for i in range(4)]]
    bring = [80, 84, 88, 92]
    k.e("v_and_b32 v16, 15, v0")
    k.e("v_lshrrev_b32 v17, 4, v0")
    k.e("s_lshr_b32 s60, s7, 4")
    k.e("s_lshl_b32 s61, s4, 1")
    k.e("s_add_u32 s60, s60, s61")
    k.e("s_mul_i32 s60, s60, 18432")
    k.e("v_lshlrev_b32 v19, 4, v0")
    k.e("v_add_u32 v%d, s60, v19" % vOA0)
    k.e("v_add_u32 v%d, 18432, v%d" % (vOA1, vOA0))
    k.e("s_and_b32 s60, s4, 3")
    k.e("s_mul_i32 s68, s60, 24")
    k.e("s_lshl_b32 s62, s8, 1")
    k.e("s_and_b32 s62, s62, 0xffffff80")
    k.e("s_movk_i32 s63, 9216")
    for i in range(3):
        b_dma_addr(k, vOB + i, 68, 8 * i, 3, 63, 62)
    k.e("s_mov_b32 s%d, 0" % sKA)
    k.e("s_mov_b32 s%d, 0" % sKB)
    k.e("s_lshl_b32 s%d, s4, 11" % sMA)
    k.e("s_mul_i32 s%d, s4, 3072" % sMB)
    k.e("s_add_u32 s%d, s%d, 16384" % (sMB, sMB))

    def dmaA(st):
        b = (st % NBUF) * SB
        tag = ("dma", st)
        g = []
        for i in range(2):
            x = [("s_add_u32 m0, s%d, %d" % (sMA, b + i * 1024), None), ("s_nop 0", None),
                 ("buffer_load_dwordx4 v%d, %s, s%d offen sc1 lds" % (vOA0 + i, sr(SA, 4), sKA), tag)]
            if i == 1:
                x.append(("s_add_u32 s%d, s%d, 1024" % (sKA, sKA), None))
            g.append(x)
        return g

    def dmaB(st):
        b = (st % NBUF) * SB
        tag = ("dma", st)
        g = []
        for i in range(3):
            x = [("s_add_u32 m0, s%d, %d" % (sMB, b + i * 1024), None), ("s_nop 0", None)]
            x.append(("buffer_load_dwordx4 v%d, %s, s%d offen lds" % (vOB + i, sr(SBd, 4), sKB), tag))
            if i == 2:
                x.append(("s_add_u32 s%d, s%d, %d" % (sKB, sKB, 32 * 9216), None))
            g.append(x)
        return g

    def dma(st):
        return dmaA(st) + dmaB(st)
    for st in range(NBUF - 1):
        issue_groups(k, dmaB(st))
    srd(k, 64, P_WS, FLG_OFF + 32768 + 1024, 1024)
    k.e("s_lshr_b32 s60, s7, 3")
    k.e("v_and_b32 v18, 31, v0")
    k.e("v_add_u32 v18, s60, v18")
    k.e("v_lshlrev_b32 v18, 2, v18")
    lab_p = k.newlab("pollH")
    lab_g = k.newlab("goH")
    k.label(lab_p)
    k.e("buffer_load_dword v19, v18, s[64:67], 0 offen sc1")
    k.e("s_waitcnt vmcnt(0)")
    k.e("v_cmp_ne_u32 vcc, 1, v19")
    k.e("s_nop 1")
    k.e("s_cmp_eq_u64 vcc, 0")
    k.e("s_cbranch_scc1 %s" % lab_g)
    k.e("s_sleep %d" % (0 if "sleep0" in EXP else 2))
    k.e("s_branch %s" % lab_p)
    k.label(lab_g)
    k.vq = []
    k.e("s_lshl_b32 s60, s5, 6")
    k.e("s_add_u32 s60, s60, s7")
    k.e("v_add_u32 v18, s60, v16")
    k.e("v_lshlrev_b32 v18, 5, v18")
    for i in range(4):
        for h in range(2):
            k.vm("buffer_load_dwordx4 %s, v18, %s, 0 offen offset:%d" % (vr(ACC + i * 8 + h * 4, 4), sr(SST, 4), i * 512 + h * 16) + " sc1", "st")
    for st in range(NBUF - 1):
        issue_groups(k, dmaA(st))
    if "notouchwd" not in EXP:
        touch(k, 64, P_WD, F * D * 2, 2048, 8, 18, 1)
    k.e("s_lshl_b32 s60, s5, 12")
    k.e("v_lshlrev_b32 v18, 4, v0")
    k.e("v_add_u32 v%d, s60, v18" % vA)
    k.e("v_add_u32 v%d, %d, v%d" % (vA + 1, 2 * SB, vA))
    k.e("s_bfe_u32 s62, s8, 0x20004")
    k.e("s_mul_i32 s63, s6, 5")
    k.e("s_add_u32 s62, s62, s63")
    k.e("s_movk_i32 s63, 16384")
    b_rd_addr3(k, vB, 62, 63)
    for q in range(4):
        k.e("v_add_u32 v%d, %d, v%d" % (vB + 4 + q, 2 * SB, vB + q))
    k.e("v_lshrrev_b32 v18, 1, v17")
    k.e("v_lshlrev_b32 v14, 8, v18")
    k.e("v_lshlrev_b32 v18, 4, v16")
    k.e("v_add_u32 v14, v14, v18")
    k.e("v_and_b32 v18, 1, v17")
    k.e("v_mul_u32_u24 v15, 147456, v18")
    k.e("v_add_u32 v15, v15, v14")
    k.e("v_lshlrev_b32 v18, 9, v18")
    k.e("v_add_u32 v14, v14, v18")
    k.e("s_lshr_b32 s60, s7, 4")
    k.e("s_lshl_b32 s61, s5, 2")
    k.e("s_add_u32 s60, s60, s61")
    k.e("s_mul_i32 s60, s60, 147456")
    k.e("s_mul_i32 s61, s9, 9")
    k.e("s_mul_i32 s62, s6, 5")
    k.e("s_add_u32 s61, s61, s62")
    k.e("s_lshl_b32 s61, s61, 9")
    k.e("s_add_u32 s60, s60, s61")
    k.e("v_add_u32 v14, s60, v14")
    k.e("v_add_u32 v15, s60, v15")
    if "tact" in EXP:
        for it in range(2):
            k.e("v_add_u32 v18, %d, v0" % (64 * it))
            k.e("v_mul_u32_u24 v19, 3277, v18")
            k.e("v_lshrrev_b32 v19, 16, v19")
            k.e("v_mul_u32_u24 v20, 20, v19")
            k.e("v_sub_u32 v18, v18, v20")
            k.e("s_lshl_b32 s61, s6, 2")
            k.e("s_sub_u32 s61, 20, s61")
            k.e("v_cmp_gt_u32 vcc, s61, v18")
            k.e("v_lshlrev_b32 v18, 7, v18")
            k.e("v_mul_u32_u24 v19, 147456, v19")
            k.e("v_add3_u32 v18, v18, v19, s60")
            if it:
                k.e("s_and_b64 vcc, vcc, 0xffff")
            k.e("s_mov_b64 exec, vcc")
            k.vm("buffer_load_dword v1, v18, %s, 0 offen" % sr(SO, 4), "touch")
            k.e("s_mov_b64 exec, -1")
    k.wait_vm("st")
    k.e("s_mov_b32 s60, 0x%x" % f2u(1.0 / 576.0))
    k.e("s_mov_b32 s61, 0x%x" % f2u(1e-5))
    for i in range(4):
        b = ACC + i * 8
        k.e("v_add_f32 v18, v%d, v%d" % (b, b + 2))
        k.e("v_add_f32 v19, v%d, v%d" % (b + 4, b + 6))
        k.e("v_add_f32 v20, v%d, v%d" % (b + 1, b + 3))
        k.e("v_add_f32 v21, v%d, v%d" % (b + 5, b + 7))
        k.e("v_add_f32 v18, v18, v19")
        k.e("v_add_f32 v20, v20, v21")
        k.e("v_mul_f32 v18, s60, v18")
        k.e("v_mul_f32 v20, s60, v20")
        k.e("v_fma_f32 v20, -v18, v18, v20")
        k.e("v_max_f32 v20, 0, v20")
        k.e("v_add_f32 v20, s61, v20")
        k.e("v_rsq_f32 v%d, v20" % (vR + i))
        k.e("v_sub_f32 v%d, 0, v18" % (vM + i))
    lab1 = k.newlab("wn1")
    lab_done = k.newlab("done")
    k.e("s_cmp_eq_u32 s6, 1")
    k.e("s_cbranch_scc1 %s" % lab1)
    st_l, st_v = list(k.lq), list(k.vq)
    c1 = -2.0 * 0.7978845608028654 * 1.4426950408889634
    for wn in range(2):
        NF = 5 if wn == 0 else 4
        NJ = 2 * NF
        if wn == 1:
            k.e("s_branch %s" % lab_done)
            k.label(lab1)
            k.lq, k.vq = list(st_l), list(st_v)
        if ("prio%d" % wn) in EXP:
            k.e("s_setprio 1")
        acc = lambda i, c: ACC + (i * NJ + c) * 4
        CW = {0: 32, 1: 36, 8: 10, 9: 16}
        ONES = 20
        for r in range(4):
            k.e("v_mov_b32 v%d, 0x3f803f80" % (ONES + r))
        prevb = [None]

        def cwreg(c):
            return CW[(c & 1) + 8 * (c >> 3)]

        def extra(s_, c, breg):
            if c & 1 == 0:
                prevb[0] = breg
                return
            lab = k.newlab("cw")
            k.e("s_cmp_eq_u32 s5, %d" % ((c >> 1) & 3))
            k.e("s_cbranch_scc0 %s" % lab)
            for cc, br in ((c - 1, prevb[0]), (c, breg)):
                k.e("v_mfma_f32_16x16x32_bf16 %s, %s, %s, %s" % (vr(cwreg(cc), 4), vr(br, 4), vr(ONES, 4), "0" if s_ == 0 else vr(cwreg(cc), 4)))
            k.label(lab)

        def a_rd(buf, i):
            return vA + (buf >> 1), (buf & 1) * SB + i * 1024

        def b_rd(buf, c, j):
            f = c >> 1
            return vB + 4 * (buf >> 1) + (f & 3), (buf & 1) * SB + (c & 1) * 12288 + j * 3072 + (f >> 2) * 128
        if wn == 0:
            stamp(k, 1)
        gemm_core(k, 18, NBUF, 4, acc, afr, bring, 2, a_rd, b_rd, dma, True, NJ=NJ, extra=extra)
        if wn == 0:
            stamp(k, 2)
        k.c("---- epilogue")
        k.e("s_nop 7")
        k.e("s_barrier")
        k.e("v_lshlrev_b32 v1, 4, v0")
        k.e("v_add_u32 v1, %d, v1" % (wn * 10240))
        for c in range(0, NJ, 2):
            lab = k.newlab("cww")
            k.e("s_cmp_eq_u32 s5, %d" % ((c >> 1) & 3))
            k.e("s_cbranch_scc0 %s" % lab)
            k.e("ds_write_b128 v1, %s offset:%d" % (vr(cwreg(c), 4), c * 1024))
            k.e("ds_write_b128 v1, %s offset:%d" % (vr(cwreg(c + 1), 4), c * 1024 + 1024))
            k.label(lab)
        k.e("s_waitcnt lgkmcnt(0)")
        k.e("s_barrier")
        CSR = 48
        for c in range(NJ):
            k.e("ds_read_b128 %s, v1 offset:%d" % (vr(CSR + 4 * c, 4), c * 1024))
        k.e("s_waitcnt lgkmcnt(0)")
        k.lq = []
        k.e("v_mov_b32 v20, 1.0")
        k.e("v_mov_b32 v21, 1.0")
        k.e("s_mov_b32 s60, 0x%x" % f2u(c1))
        k.e("s_mov_b32 s61, 0x%x" % f2u(c1 * 0.044715))
        k.e("s_mov_b32 s62, 0")
        k.e("s_nop 7")
        for i in range(4):
            k.e("v_mul_f32 v22, s60, v%d" % (vR + i))
            k.e("v_mul_f32 v26, v%d, v%d" % (vR + i, vR + i))
            k.e("v_mul_f32 v24, s61, v%d" % (vR + i))
            k.e("v_mul_f32 v24, v24, v26")
            k.e("v_mov_b32 v23, v22")
            k.e("v_mov_b32 v25, v24")
            k.e("v_mov_b32 v27, v26")
            k.e("v_mov_b32 v36, v%d" % (vM + i))
            k.e("v_mov_b32 v37, v%d" % (vM + i))
            for f in range(NF):
                G, U = acc(i, 2 * f), acc(i, 2 * f + 1)
                T, P = 28, 32
                for h in range(2):
                    k.e("v_pk_fma_f32 %s, %s, v[36:37], %s" % (vr(G + 2 * h, 2), vr(CSR + 8 * f + 2 * h, 2), vr(G + 2 * h, 2)))
                    k.e("v_pk_fma_f32 %s, %s, v[36:37], %s" % (vr(U + 2 * h, 2), vr(CSR + 8 * f + 4 + 2 * h, 2), vr(U + 2 * h, 2)))
                for h in range(2):
                    k.e("v_pk_mul_f32 %s, %s, %s" % (vr(T + 2 * h, 2), vr(G + 2 * h, 2), vr(G + 2 * h, 2)))
                for h in range(2):
                    k.e("v_pk_fma_f32 %s, %s, v[24:25], v[22:23]" % (vr(T + 2 * h, 2), vr(T + 2 * h, 2)))
                for h in range(2):
                    k.e("v_pk_mul_f32 %s, %s, %s" % (vr(T + 2 * h, 2), vr(T + 2 * h, 2), vr(G + 2 * h, 2)))
                for r in range(4):
                    k.e("v_exp_f32 v%d, v%d" % (T + r, T + r))
                for h in range(2):
                    k.e("v_pk_mul_f32 %s, %s, %s" % (vr(P + 2 * h, 2), vr(G + 2 * h, 2), vr(U + 2 * h, 2)))
                for h in range(2):
                    k.e("v_pk_add_f32 %s, %s, v[20:21]" % (vr(T + 2 * h, 2), vr(T + 2 * h, 2)))
                for r in range(4):
                    k.e("v_rcp_f32 v%d, v%d" % (T + r, T + r))
                for h in range(2):
                    k.e("v_pk_mul_f32 %s, %s, v[26:27]" % (vr(P + 2 * h, 2), vr(P + 2 * h, 2)))
                for h in range(2):
                    k.e("v_pk_mul_f32 %s, %s, %s" % (vr(P + 2 * h, 2), vr(P + 2 * h, 2), vr(T + 2 * h, 2)))
                if f < 4:
                    R = acc(i, 2 * (f & ~1)) + 2 * (f & 1)
                else:
                    R = acc(i & ~1, 8) + 2 * (i & 1)
                k.e("v_cvt_pk_bf16_f32 v%d, v%d, v%d" % (R, P, P + 1))
                k.e("v_cvt_pk_bf16_f32 v%d, v%d, v%d" % (R + 1, P + 2, P + 3))
                if (f < 4 and f & 1) or (f == 4 and i & 1):
                    B0 = R - 2
                    k.e("s_nop 1")
                    k.e("v_permlane16_swap_b32 v%d, v%d" % (B0, B0 + 2))
                    k.e("v_permlane16_swap_b32 v%d, v%d" % (B0 + 1, B0 + 3))
                    if f < 4:
                        k.vm("buffer_store_dwordx4 %s, v14, %s, s62 offen offset:%d sc1" % (vr(B0, 4), sr(SO, 4), (f - 1) * 512))
                    else:
                        k.e("s_sub_u32 s63, s62, 147456")
                        k.vm("buffer_store_dwordx4 %s, v15, %s, s63 offen offset:%d sc1" % (vr(B0, 4), sr(SO, 4), 4 * 512))
            k.e("s_add_u32 s62, s62, 147456")
    k.label(lab_done)
    if "prio" in EXP:
        k.e("s_setprio 0")
    srd(k, 64, P_WS, FLG_OFF + 32768, 1024)
    k.e("s_lshr_b32 s60, s7, 8")
    k.e("s_lshl_b32 s60, s60, 5")
    k.e("s_add_u32 s60, s60, s9")
    k.e("s_lshl_b32 s60, s60, 2")
    k.e("v_mov_b32 v1, s60")
    k.e("v_mov_b32 v2, 1")
    k.e("s_waitcnt vmcnt(0)")
    k.e("s_barrier")
    lab_nf = k.newlab("nf")
    k.e("s_cmp_lg_u32 s4, 0")
    k.e("s_cbranch_scc1 %s" % lab_nf)
    k.e("s_mov_b64 exec, 1")
    k.e("buffer_store_dword v2, v1, s[64:67], 0 offen sc1")
    k.e("s_mov_b64 exec, -1")
    k.label(lab_nf)
    k.lq, k.vq = [], []
    stamp(k, 3)
    stamp_flush(k, 6)
    k.e("s_mov_b64 exec, -1")
    return gen_k4(k)


def gen_k4(k):
    SB = 40960
    NBUF = 4
    k.stamp_slot = 3
    stamp(k, 0)
    SA, SBd, SP, SO, SH, SD = 36, 40, 44, 48, 52, 64
    sKA, sKB, sMA, sMB = 56, 57, 58, 59
    k.e("s_and_b32 s9, s2, 3")
    k.e("s_bfe_u32 s60, s2, 0x10002")
    k.e("s_lshr_b32 s61, s2, 3")
    k.e("s_lshr_b32 s62, s61, 2")
    k.e("s_lshl_b32 s60, s60, 3")
    k.e("s_add_u32 s60, s60, s62")
    k.e("s_lshl_b32 s7, s60, 7")
    k.e("s_and_b32 s61, s61, 3")
    k.e("s_mul_i32 s8, s61, 144")
    k.e("s_lshl_b32 s10, s60, 2")
    k.e("s_add_u32 s10, s10, s61")
    k.e("s_and_b32 s11, s4, 3")
    k.e("s_lshr_b32 s5, s11, 1")
    k.e("s_and_b32 s6, s11, 1")
    k.e("v_and_b32 v16, 15, v0")
    k.e("v_lshrrev_b32 v17, 4, v0")
    lab_comp = k.newlab("comp")
    k.e("s_cmp_lt_u32 s4, 4")
    k.e("s_cbranch_scc1 %s" % lab_comp)
    srd(k, SA, P_WS, ACT_OFF, S * F * 2)
    srd(k, SBd, P_WD, 0, F * D * 2)
    vOA, vOB = 2, 8
    k.e("s_lshr_b32 s60, s7, 4")
    k.e("s_lshl_b32 s61, s11, 1")
    k.e("s_add_u32 s60, s60, s61")
    k.e("s_mul_i32 s60, s60, 147456")
    k.e("s_mul_i32 s61, s9, 36864")
    k.e("s_add_u32 s60, s60, s61")
    k.e("v_lshlrev_b32 v19, 4, v0")
    k.e("v_add_u32 v%d, s60, v19" % vOA)
    k.e("v_add_u32 v%d, 1024, v%d" % (vOA + 1, vOA))
    k.e("v_add_u32 v%d, %d, v%d" % (vOA + 2, 147456, vOA))
    k.e("v_add_u32 v%d, %d, v%d" % (vOA + 3, 147456 + 1024, vOA))
    k.e("s_mul_i32 s64, s11, 48")
    k.e("s_lshl_b32 s62, s8, 1")
    k.e("s_and_b32 s62, s62, 0xffffff80")
    k.e("s_mul_i32 s61, s9, 1152 * 1152")
    k.e("s_add_u32 s62, s62, s61")
    k.e("s_movk_i32 s63, 1152")
    for i in range(6):
        b_dma_addr(k, vOB + i, 64, 8 * i, 3, 63, 62, reg_row=32)
    k.e("s_mov_b32 s%d, 0" % sKA)
    k.e("s_mov_b32 s%d, 0" % sKB)
    k.e("s_lshl_b32 s%d, s11, 12" % sMA)
    k.e("s_mul_i32 s%d, s11, 6144" % sMB)
    k.e("s_add_u32 s%d, s%d, 16384" % (sMB, sMB))

    def dmaA(st):
        b = (st % NBUF) * SB
        tag = ("dma", st)
        g = []
        for i in range(4):
            x = [("s_add_u32 m0, s%d, %d" % (sMA, b + i * 1024), None), ("s_nop 0", None),
                 ("buffer_load_dwordx4 v%d, %s, s%d offen sc1 lds" % (vOA + i, sr(SA, 4), sKA), tag)]
            if i == 3:
                x.append(("s_add_u32 s%d, s%d, 2048" % (sKA, sKA), None))
            g.append(x)
        return g

    def dmaB(st):
        b = (st % NBUF) * SB
        tag = ("dma", st)
        g = []
        for i in range(6):
            x = [("s_add_u32 m0, s%d, %d" % (sMB, b + i * 1024), None), ("s_nop 0", None)]
            x.append(("buffer_load_dwordx4 v%d, %s, s%d offen lds" % (vOB + i, sr(SBd, 4), sKB), tag))
            if i == 5:
                x.append(("s_add_u32 s%d, s%d, %d" % (sKB, sKB, 64 * 1152), None))
            g.append(x)
        return g

    def dma(st):
        return dmaA(st) + dmaB(st)
    for st in range(NBUF - 1):
        issue_groups(k, dmaB(st))
    srd(k, 84, P_WS, FLG_OFF + 32768, 1024)
    k.e("s_lshr_b32 s60, s7, 8")
    k.e("s_lshl_b32 s60, s60, 7")
    k.e("s_lshl_b32 s61, s9, 5")
    k.e("s_add_u32 s60, s60, s61")
    k.e("v_mov_b32 v20, s60")
    lab_p = k.newlab("pollA")
    lab_g = k.newlab("goA")
    k.label(lab_p)
    k.e("buffer_load_dwordx4 v[24:27], v20, s[84:87], 0 offen sc1")
    k.e("buffer_load_dwordx4 v[28:31], v20, s[84:87], 0 offen offset:16 sc1")
    k.e("s_waitcnt vmcnt(0)")
    k.e("v_add3_u32 v24, v24, v25, v26")
    k.e("v_add3_u32 v24, v24, v27, v28")
    k.e("v_add3_u32 v24, v24, v29, v30")
    k.e("v_add_u32 v24, v24, v31")
    k.e("s_nop 0")
    k.e("v_readfirstlane_b32 s61, v24")
    k.e("s_cmp_ge_u32 s61, 8")
    k.e("s_cbranch_scc1 %s" % lab_g)
    k.e("s_sleep %d" % (0 if "sleep0" in EXP else 2))
    k.e("s_branch %s" % lab_p)
    k.label(lab_g)
    k.vq = []
    for st in range(NBUF - 1):
        issue_groups(k, dmaA(st))
    k.wait_vm(("dma", 0))
    k.e("s_barrier")
    for s_ in range(17):
        k.wait_vm(("dma", s_ + 1))
        k.e("s_barrier")
        if s_ + NBUF - 1 < 18:
            issue_groups(k, dma(s_ + NBUF - 1))
    k.e("s_endpgm")
    k.label(lab_comp)
    k.lq, k.vq = [], []
    srd(k, SP, P_WS, PART_OFF, 64 * 16 * 18432)
    srd(k, SO, P_OUT, 0, S * D * 2)
    srd(k, SH, P_WS, H_OFF, S * D * 2)
    srd(k, SD, P_WS, FLG_OFF, 256 * 128)
    vA, vB = 2, 24
    ACC = 112
    afr = [[48, 52], [56, 60]]
    bring = [64 + 4 * q for q in range(8)]
    acc = lambda i, nj: ACC + (i * 9 + nj) * 4
    k.e("s_lshl_b32 s60, s4, 12")
    k.e("v_lshlrev_b32 v18, 4, v0")
    k.e("v_add_u32 v%d, s60, v18" % vA)
    for b_ in range(1, 4):
        k.e("v_add_u32 v%d, %d, v%d" % (vA + b_, b_ * SB, vA))
    k.e("s_bfe_u32 s62, s8, 0x20004")
    k.e("s_movk_i32 s63, 16384")
    b_rd_addr3(k, vB, 62, 63)
    for b_ in range(1, 4):
        for q in range(4):
            k.e("v_add_u32 v%d, %d, v%d" % (vB + 4 * b_ + q, b_ * SB, vB + q))

    def a_rd(buf, i, kk):
        return vA + buf, i * 2048 + kk * 1024

    def b_rd(buf, nj, j, kk):
        return vB + 4 * buf + (nj & 3), kk * 12288 + j * 3072 + (nj >> 2) * 128
    gemm_core(k, 18, NBUF, 2, acc, afr, bring, 6, a_rd, b_rd, lambda st: [], True, sub=2)
    stamp(k, 1)
    k.c("---- epilogue: cross-workgroup reduction")
    k.e("v_lshlrev_b32 v18, 4, v0")
    k.e("s_lshl_b32 s60, s10, 2")
    k.e("s_add_u32 s60, s60, s9")
    k.e("s_lshl_b32 s60, s60, 2")
    k.e("s_add_u32 s60, s60, s4")
    k.e("s_mul_i32 s60, s60, 9216")
    k.e("v_add_u32 v21, s60, v18")
    k.e("s_lshl_b32 s60, s10, 2")
    k.e("s_add_u32 s61, s60, s4")
    k.e("s_lshl_b32 s61, s61, 7")
    k.e("s_lshl_b32 s62, s9, 2")
    k.e("s_add_u32 s61, s61, s62")
    k.e("v_mov_b32 v23, s61")
    k.e("s_add_u32 s60, s60, s9")
    k.e("s_lshl_b32 s60, s60, 7")
    k.e("v_mov_b32 v26, s60")
    k.e("v_mov_b32 v24, 1")
    k.e("s_nop 7")
    k.e("s_barrier")
    lab_own = k.newlab("own")
    lab_j = k.newlab("j")
    k.e("s_cmp_eq_u32 s4, s9")
    k.e("s_cbranch_scc1 %s" % lab_own)
    for t in range(9):
        a = ACC + 8 * t
        for d in range(4):
            k.e("v_cvt_pk_bf16_f32 v%d, v%d, v%d" % (a + d, a + 2 * d, a + 2 * d + 1))
        sreg = "0"
        off = t * 1024
        if off >= 4096:
            k.e("s_movk_i32 s61, %d" % (off & ~4095))
            sreg = "s61"
        k.e("buffer_store_dwordx4 %s, v21, %s, %s offen offset:%d sc1" % (vr(a, 4), sr(SP, 4), sreg, off & 4095))
    k.e("s_barrier")
    k.e("s_branch %s" % lab_j)
    k.label(lab_own)
    for t in range(18):
        k.e("ds_write_b128 v18, %s offset:%d" % (vr(ACC + 4 * t, 4), t * 1024))
    k.e("s_waitcnt lgkmcnt(0)")
    k.e("s_barrier")
    k.e("s_branch L_%s_end" % k.name)
    k.label(lab_j)
    k.e("s_sub_u32 s62, s4, s9")
    k.e("s_sub_u32 s62, s62, 1")
    k.e("s_and_b32 s62, s62, 3")
    k.e("s_mul_i32 s63, s62, 6144")
    k.e("v_add_u32 v22, s63, v18")
    OWN = 48
    for t in range(6):
        k.lds("ds_read_b128 %s, v22 offset:%d" % (vr(OWN + 4 * t, 4), t * 1024), "own")
    k.e("s_lshl_b32 s60, s9, 5")
    k.e("s_add_u32 s60, s60, s7")
    k.e("v_add_u32 v19, s60, v16")
    k.e("v_mul_u32_u24 v19, 1152, v19")
    k.e("v_lshlrev_b32 v20, 3, v17")
    k.e("s_lshl_b32 s60, s8, 1")
    k.e("v_add3_u32 v19, v19, v20, s60")
    fl_lane(k, 44, 45)
    k.e("s_lshr_b32 s60, s7, 4")
    k.e("s_lshl_b32 s61, s9, 1")
    k.e("s_add_u32 s60, s60, s61")
    k.e("s_mul_i32 s60, s60, 18432")
    k.e("s_lshl_b32 s61, s8, 5")
    k.e("s_add_u32 s60, s60, s61")
    k.e("v_add_u32 v44, s60, v44")
    k.e("s_waitcnt vmcnt(0)")
    k.e("s_mov_b64 exec, 1")
    k.e("buffer_store_dword v24, v23, %s, 0 offen sc1" % sr(SD, 4))
    k.e("s_mov_b64 exec, -1")
    k.e("s_mul_i32 s62, s62, 6")
    HR = 96
    for t in range(6):
        k.e("s_add_u32 s60, s62, %d" % t)
        k.e("s_cmp_ge_u32 s60, 9")
        k.e("s_cselect_b32 s61, %d, 0" % (16 * 1152 - 9 * 32))
        k.e("s_cselect_b32 s69, %d, 0" % (18432 - 9 * 512))
        k.e("s_lshl_b32 s68, s60, 9")
        k.e("s_add_u32 s68, s68, s69")
        k.e("s_lshl_b32 s60, s60, 5")
        k.e("s_add_u32 s%d, s60, s61" % (84 + t))
        k.e("buffer_load_dwordx2 %s, v44, %s, s68 offen sc1" % (vr(HR + 2 * t, 2), sr(SH, 4)))
    stamp(k, 2)
    lab_poll = k.newlab("poll")
    lab_go = k.newlab("go")
    k.label(lab_poll)
    k.e("buffer_load_dwordx4 v[28:31], v26, %s, 0 offen sc1" % sr(SD, 4))
    k.e("s_waitcnt vmcnt(0)")
    k.e("v_add_u32 v28, v28, v29")
    k.e("v_add3_u32 v28, v28, v30, v31")
    k.e("s_nop 0")
    k.e("v_readfirstlane_b32 s61, v28")
    k.e("s_cmp_ge_u32 s61, 3")
    k.e("s_cbranch_scc1 %s" % lab_go)
    k.e("s_sleep 1")
    k.e("s_branch %s" % lab_poll)
    k.label(lab_go)
    if STAMP:
        k.e("s_memtime s[82:83]")
        k.e("s_waitcnt lgkmcnt(0)")
        k.lq = []
    k.e("s_lshl_b32 s60, s10, 4")
    k.e("s_add_u32 s60, s60, s9")
    k.e("s_mul_i32 s60, s60, 9216")
    k.e("s_lshr_b32 s63, s63, 1")
    k.e("s_add_u32 s60, s60, s63")
    k.e("v_add_u32 v21, s60, v18")
    k.vq = []
    for o in range(1, 4):
        k.e("s_add_u32 s61, s9, %d" % o)
        k.e("s_and_b32 s61, s61, 3")
        k.e("s_mul_i32 s61, s61, %d" % (4 * 9216))
        for t in range(3):
            k.vm("buffer_load_dwordx4 %s, v21, %s, s61 offen offset:%d sc1" % (vr(ACC + 12 * (o - 1) + 4 * t, 4), sr(SP, 4), t * 1024), ("p", o, t))
    k.wait_lds("own")
    for t in range(6):
        a = OWN + 4 * t
        for d in range(2):
            k.e("v_lshlrev_b32 v42, 16, v%d" % (HR + 2 * t + d))
            k.e("v_and_b32 v43, 0xffff0000, v%d" % (HR + 2 * t + d))
            k.e("v_add_f32 v%d, v%d, v42" % (a + 2 * d, a + 2 * d))
            k.e("v_add_f32 v%d, v%d, v43" % (a + 2 * d + 1, a + 2 * d + 1))
    for o in range(1, 4):
        for t in range(6):
            a = OWN + 4 * t
            k.wait_vm(("p", o, t >> 1))
            for d in range(2):
                x = ACC + 12 * (o - 1) + 2 * t + d
                k.e("v_lshlrev_b32 v42, 16, v%d" % x)
                k.e("v_and_b32 v43, 0xffff0000, v%d" % x)
                k.e("v_add_f32 v%d, v%d, v42" % (a + 2 * d, a + 2 * d))
                k.e("v_add_f32 v%d, v%d, v43" % (a + 2 * d + 1, a + 2 * d + 1))
            if o == 3:
                k.e("v_cvt_pk_bf16_f32 v%d, v%d, v%d" % (HR + 2 * t, a, a + 1))
                k.e("v_cvt_pk_bf16_f32 v%d, v%d, v%d" % (HR + 1 + 2 * t, a + 2, a + 3))
                k.vm("buffer_store_dwordx2 %s, v19, %s, s%d offen" % (vr(HR + 2 * t, 2), sr(SO, 4), 84 + t))
    stamp(k, 3)
    stamp_flush(k, 7)
    footer(k)
    return k, 256


def gen_k5():
    k = K("red")
    nwg = S * D // 8 // 256
    k.e("s_cmp_ge_u32 s2, %d" % nwg)
    k.e("s_cbranch_scc1 L_%s_end" % k.name)
    k.e("s_load_dwordx16 s[16:31], s[0:1], 0")
    k.e("s_load_dwordx4 s[32:35], s[0:1], 64")
    k.e("s_lshl_b32 s3, s2, 8")
    k.e("v_add_u32 v1, s3, v0")
    k.e("v_lshlrev_b32 v2, 4, v1")
    k.e("v_lshlrev_b32 v3, 5, v1")
    k.e("s_waitcnt lgkmcnt(0)")
    srd(k, 36, P_WS, H_OFF, S * D * 2)
    srd(k, 40, P_WS, PART_OFF, 4 * S * D * 4)
    srd(k, 44, P_OUT, 0, S * D * 2)
    k.e("buffer_load_dwordx4 v[4:7], v2, s[36:39], 0 offen")
    for p in range(4):
        k.e("s_mov_b32 s48, 0x%x" % (p * S * D * 4))
        k.e("buffer_load_dwordx4 %s, v3, s[40:43], s48 offen" % vr(8 + p * 8, 4))
        k.e("buffer_load_dwordx4 %s, v3, s[40:43], s48 offen offset:16" % vr(12 + p * 8, 4))
    k.e("s_waitcnt vmcnt(0)")
    for r in range(8):
        k.e("v_add_f32 v%d, v%d, v%d" % (8 + r, 8 + r, 16 + r))
        k.e("v_add_f32 v%d, v%d, v%d" % (24 + r, 24 + r, 32 + r))
    for r in range(8):
        k.e("v_add_f32 v%d, v%d, v%d" % (8 + r, 8 + r, 24 + r))
    for d in range(4):
        k.e("v_lshlrev_b32 v40, 16, v%d" % (4 + d))
        k.e("v_and_b32 v41, 0xffff0000, v%d" % (4 + d))
        k.e("v_add_f32 v%d, v%d, v40" % (8 + 2 * d, 8 + 2 * d))
        k.e("v_add_f32 v%d, v%d, v41" % (9 + 2 * d, 9 + 2 * d))
    for d in range(4):
        k.e("v_cvt_pk_bf16_f32 v%d, v%d, v%d" % (4 + d, 8 + 2 * d, 9 + 2 * d))
    k.e("buffer_store_dwordx4 v[4:7], v2, s[44:47], 0 offen")
    footer(k)
    return k, nwg


def gen_k2():
    k = K("ffn")
    k.stamp_slot = 1
    SB = 4096 + 24576
    NBUF = 5
    header(k, 256)
    stamp(k, 0)
    SA, SBd, SX, SH, SST, SCP, SCS = 36, 40, 44, 48, 52, 64, 96
    sKA, sKB, sMA, sMB = 56, 57, 58, 59
    k.e("s_and_b32 s9, s2, 3")
    k.e("s_lshr_b32 s60, s2, 2")
    k.e("s_lshl_b32 s7, s60, 5")
    k.e("s_mul_i32 s8, s9, 144")
    k.e("s_lshr_b32 s5, s4, 1")
    k.e("s_and_b32 s6, s4, 1")
    srd(k, SA, P_WS, O_OFF, S * D * 2)
    srd(k, SBd, P_WO, 0, D * D * 2)
    srd(k, SX, P_X, 0, S * D * 2)
    srd(k, SH, P_WS, H_OFF, S * D * 2)
    srd(k, SST, P_WS, ST_OFF, S * 32)
    lab_idle = k.newlab("idle")
    lab_p2done = k.newlab("p2done")
    k.e("s_cmp_ge_u32 s4, 4")
    k.e("s_cbranch_scc1 %s" % lab_idle)
    vOA, vOB = 2, 8
    vA, vB = 24, 28
    ACC = 112
    afr = [[48], [52]]
    bring = [56, 60, 64, 68, 72, 76]
    acc = lambda i, nj: ACC + nj * 4
    XR = 80
    CPR = 184
    k.e("v_and_b32 v16, 15, v0")
    k.e("v_lshrrev_b32 v17, 4, v0")
    k.e("s_lshl_b32 s60, s5, 4")
    k.e("s_add_u32 s60, s60, s7")
    k.e("v_add_u32 v31, s60, v16")
    k.e("s_movk_i32 s63, 1152")
    k.e("v_mul_lo_u32 v18, v31, s63")
    k.e("v_lshlrev_b32 v19, 3, v17")
    k.e("s_lshl_b32 s62, s8, 1")
    k.e("v_add3_u32 v32, v18, v19, s62")
    for nj in range(9):
        k.vm("buffer_load_dwordx2 %s, v32, %s, 0 offen offset:%d" % (vr(XR + 2 * nj, 2), sr(SX, 4), nj * 32), "x")
    k.e("s_lshr_b32 s60, s7, 4")
    k.e("s_add_u32 s60, s60, s5")
    k.e("s_mul_i32 s60, s60, 18432")
    k.e("s_lshl_b32 s61, s6, 10")
    k.e("s_add_u32 s61, s60, s61")
    k.e("v_lshlrev_b32 v19, 4, v0")
    k.e("v_add_u32 v%d, s61, v19" % vOA)
    fl_lane(k, 37, 18)
    k.e("s_lshl_b32 s61, s8, 5")
    k.e("s_add_u32 s60, s60, s61")
    k.e("v_add_u32 v37, s60, v37")
    k.e("s_mul_i32 s88, s4, 48")
    k.e("s_lshl_b32 s62, s8, 1")
    k.e("s_and_b32 s62, s62, 0xffffff80")
    k.e("s_movk_i32 s63, 1152")
    for i in range(6):
        b_dma_addr(k, vOB + i, 88, 8 * i, 3, 63, 62, reg_row=32)
    k.e("s_mov_b32 s%d, 0" % sKA)
    k.e("s_mov_b32 s%d, 0" % sKB)
    k.e("s_lshl_b32 s%d, s4, 10" % sMA)
    k.e("s_mul_i32 s%d, s4, 6144" % sMB)
    k.e("s_add_u32 s%d, s%d, 4096" % (sMB, sMB))

    def dma(st):
        b = (st % NBUF) * SB
        tag = ("dma", st)
        g = [[("s_add_u32 m0, s%d, %d" % (sMA, b), None), ("s_nop 0", None),
              ("buffer_load_dwordx4 v%d, %s, s%d offen lds" % (vOA, sr(SA, 4), sKA), tag)]]
        for i in range(6):
            x = [("s_add_u32 m0, s%d, %d" % (sMB, b + i * 1024), None), ("s_nop 0", None)]
            x.append(("buffer_load_dwordx4 v%d, %s, s%d offen lds" % (vOB + i, sr(SBd, 4), sKB), tag))
            if i == 5:
                x.append(("s_add_u32 s%d, s%d, 2048" % (sKA, sKA), None))
                x.append(("s_add_u32 s%d, s%d, %d" % (sKB, sKB, 64 * 1152), None))
            g.append(x)
        return g
    for st in range(NBUF - 1):
        issue_groups(k, dma(st))
    k.e("v_lshlrev_b32 v18, 4, v0")
    k.e("v_add_u32 v%d, s%d, v18" % (vA, sMA))
    for q in range(1, 3):
        k.e("v_add_u32 v%d, %d, v%d" % (vA + q, 2 * SB * q, vA))
    vB = 100
    k.e("s_bfe_u32 s62, s8, 0x20004")
    k.e("s_mul_i32 s63, s6, 12288")
    k.e("s_add_u32 s63, s63, 4096")
    b_rd_addr3(k, vB, 62, 63)
    for b_ in range(1, 3):
        for q in range(4):
            k.e("v_add_u32 v%d, %d, v%d" % (vB + 4 * b_ + q, 2 * b_ * SB, vB + q))

    def a_rd(buf, i):
        return vA + (buf >> 1), (buf & 1) * SB

    def b_rd(buf, nj, j):
        return vB + 4 * (buf >> 1) + (nj & 3), (buf & 1) * SB + j * 3072 + (nj >> 2) * 128
    stamp(k, 1)
    gemm_core(k, 9, NBUF, 1, acc, afr, bring, 4, a_rd, b_rd, dma, True)
    stamp(k, 2)
    k.c("---- epilogue")
    k.e("s_nop 7")
    k.e("s_nop 7")
    k.e("s_barrier")
    k.wait_vm("x")
    k.e("s_mul_i32 s60, s5, 9216")
    k.e("v_lshlrev_b32 v18, 4, v0")
    k.e("v_add_u32 v19, s60, v18")
    lab_recv = k.newlab("recv")
    k.e("s_cmp_eq_u32 s6, 0")
    k.e("s_cbranch_scc1 %s" % lab_recv)
    for nj in range(9):
        k.lds("ds_write_b128 v19, %s offset:%d" % (vr(acc(0, nj), 4), nj * 1024))
    k.wait_lds_all()
    k.e("s_barrier")
    k.e("s_branch %s" % lab_p2done)
    k.label(lab_recv)
    k.e("s_barrier")
    R = 48
    RX = 148
    for nj in range(9):
        k.lds("ds_read_b128 %s, v19 offset:%d" % (vr(RX + nj * 4, 4), nj * 1024), ("x", nj))
    k.e("v_mov_b32 v40, 0")
    k.e("v_mov_b32 v41, 0")
    for nj in range(9):
        k.wait_lds(("x", nj))
        a = acc(0, nj)
        for r in range(4):
            k.e("v_add_f32 v%d, v%d, v%d" % (a + r, a + r, RX + nj * 4 + r))
        for d in range(2):
            k.e("v_lshlrev_b32 v42, 16, v%d" % (XR + 2 * nj + d))
            k.e("v_and_b32 v43, 0xffff0000, v%d" % (XR + 2 * nj + d))
            k.e("v_add_f32 v%d, v%d, v42" % (a + 2 * d, a + 2 * d))
            k.e("v_add_f32 v%d, v%d, v43" % (a + 2 * d + 1, a + 2 * d + 1))
        k.e("v_cvt_pk_bf16_f32 v%d, v%d, v%d" % (XR + 2 * nj, a, a + 1))
        k.e("v_cvt_pk_bf16_f32 v%d, v%d, v%d" % (XR + 2 * nj + 1, a + 2, a + 3))
        if nj == 8:
            k.e("s_movk_i32 s60, 4096")
        k.vm("buffer_store_dwordx2 %s, v37, %s, %s offen offset:%d" % (vr(XR + 2 * nj, 2), sr(SH, 4), "s60" if nj == 8 else "0", (nj * 512) & 4095) + " sc1")
        for d in range(2):
            k.e("v_lshlrev_b32 v42, 16, v%d" % (XR + 2 * nj + d))
            k.e("v_and_b32 v43, 0xffff0000, v%d" % (XR + 2 * nj + d))
            k.e("v_add_f32 v40, v40, v42")
            k.e("v_fmac_f32 v41, v42, v42")
            k.e("v_add_f32 v40, v40, v43")
            k.e("v_fmac_f32 v41, v43, v43")
    k.e("v_xor_b32 v44, 16, v0")
    k.e("v_lshlrev_b32 v44, 2, v44")
    k.e("v_xor_b32 v45, 32, v0")
    k.e("v_lshlrev_b32 v45, 2, v45")
    for a in (44, 45):
        k.e("ds_bpermute_b32 v42, v%d, v40" % a)
        k.e("ds_bpermute_b32 v43, v%d, v41" % a)
        k.e("s_waitcnt lgkmcnt(0)")
        k.e("v_add_f32 v40, v40, v42")
        k.e("v_add_f32 v41, v41, v43")
    k.e("v_lshlrev_b32 v42, 5, v31")
    k.e("s_lshl_b32 s60, s9, 3")
    k.e("v_add_u32 v42, s60, v42")
    k.e("s_mov_b64 exec, 0xffff")
    k.e("buffer_store_dwordx2 v[40:41], v42, %s, 0 offen sc1" % sr(SST, 4))
    k.e("s_mov_b64 exec, -1")
    stamp(k, 3)
    stamp_flush(k, 6)
    k.e("s_mov_b64 exec, -1")
    k.e("s_branch %s" % lab_p2done)
    k.label(lab_idle)
    if "tself" in EXP:
        touch_code(k, "L_ffn_p3start", "L_ffn_pc", FFN_TAIL_BYTES, 4, 4, 4)
    if "tidle" in EXP:
        k.e("s_sub_u32 s4, s4, 4")
        touch(k, 96, P_WG, D * F * 2, 1024, 4, 18, 1)
        touch(k, 96, P_WU, D * F * 2, 1024, 4, 18, 1)
        k.e("s_add_u32 s4, s4, 4")
    for _ in range(11):
        k.e("s_barrier")
    k.label(lab_p2done)
    srd(k, 64, P_WS, FLG_OFF + 32768 + 1024, 1024)
    k.e("s_lshl_b32 s60, s2, 2")
    k.e("v_mov_b32 v1, s60")
    k.e("v_mov_b32 v2, 1")
    k.e("s_waitcnt vmcnt(0) lgkmcnt(0)")
    k.e("s_barrier")
    lab_nf = k.newlab("nf")
    k.e("s_cmp_lg_u32 s4, 0")
    k.e("s_cbranch_scc1 %s" % lab_nf)
    k.e("s_mov_b64 exec, 1")
    k.e("buffer_store_dword v2, v1, s[64:67], 0 offen sc1")
    k.e("s_mov_b64 exec, -1")
    k.label(lab_nf)
    k.lq, k.vq = [], []
    return gen_k3(k)


def gen_k1():
    k = K("qkv")
    WS_, NW = 24576, 5
    XS_, NX = 10240, 3
    XB = WS_ * NW
    QP = 976
    STO = 80 * QP
    header(k, 256)
    if "tk1" in EXP:
        touch_code(k, "L_qkv_pc0", "L_qkv_pc0", 13568, 1, 0, 8)
    stamp(k, 0)
    SX, SW, SO, SG, SCP = 36, 40, 44, 48, 52
    sKW, sKX, sMW, sMX = 56, 57, 58, 59
    k.e("s_and_b32 s9, s2, 7")
    k.e("s_lshr_b32 s10, s2, 3")
    srd(k, SX, P_X, 0, S * D * 2)
    srd(k, SW, P_WQKV, 0, D * 3 * D * 2)
    srd(k, SO, P_WS, O_OFF, S * D * 2)
    if "tfirst" in EXP:
        touch(k, 96, P_X, S * D * 2, 2048, 8, 18, 1)
        touch(k, 96, P_WQKV, D * 3 * D * 2, 2048, 8, 18, 1)
    k.e("v_and_b32 v16, 15, v0")
    k.e("v_lshrrev_b32 v17, 4, v0")
    vO = 2
    k.e("s_mul_i32 s64, s4, 24")
    k.e("s_mul_i32 s65, s9, 144")
    k.e("s_and_b32 s62, s65, 0xffffff80")
    k.e("s_movk_i32 s63, 3456")
    for t in range(3):
        b_dma_addr(k, vO + t, 64, 8 * t, 2, 63, 62, reg_col=1152)
    k.e("s_lshl_b32 s60, s10, 6")
    k.e("s_lshl_b32 s61, s4, 4")
    k.e("s_add_u32 s60, s60, s61")
    k.e("s_sub_u32 s60, s60, 16")
    k.e("v_add_u32 v18, s60, v16")
    k.e("s_movk_i32 s63, 1152")
    k.e("v_mul_lo_u32 v18, v18, s63")
    k.e("v_lshlrev_b32 v19, 4, v17")
    k.e("v_add_u32 v%d, v18, v19" % (vO + 3))
    k.e("v_add_u32 v%d, 64, v%d" % (vO + 4, vO + 3))
    k.e("s_mov_b32 s%d, 0" % sKW)
    k.e("s_mov_b32 s%d, 0" % sKX)
    k.e("s_mul_i32 s%d, s4, 3072" % sMW)
    k.e("s_lshl_b32 s%d, s4, 11" % sMX)

    def dmaW(st):
        b = (st % NW) * WS_
        g = []
        for t in range(3):
            x = [("s_add_u32 m0, s%d, %d" % (sMW, b + t * 1024), None), ("s_nop 0", None),
                 ("buffer_load_dwordx4 v%d, %s, s%d offen lds" % (vO + t, sr(SW, 4), sKW), ("dma", st))]
            if t == 2:
                x.append(("s_add_u32 s%d, s%d, %d" % (sKW, sKW, 32 * 3456), None))
            g.append(x)
        return g

    def dmaX(xs):
        b = XB + (xs % NX) * XS_
        g = []
        for t in range(2):
            x = [("s_add_u32 m0, s%d, %d" % (sMX, b + t * 1024), None), ("s_nop 0", None),
                 ("buffer_load_dwordx4 v%d, %s, s%d offen lds" % (vO + 3 + t, sr(SX, 4), sKX), ("dma", 2 * xs))]
            if t == 1:
                x.append(("s_add_u32 s%d, s%d, 128" % (sKX, sKX), None))
            g.append(x)
        return g
    lab_nx = k.newlab("nx")
    k.e("s_cmp_ge_u32 s4, 5")
    k.e("s_cbranch_scc1 %s" % lab_nx)
    issue_groups(k, dmaX(0) + dmaX(1))
    k.label(lab_nx)
    issue_groups(k, dmaW(0) + dmaW(1) + dmaW(2) + dmaW(3))
    srd(k, 84, P_WS, FLG_OFF, 32768 + 2048)
    k.e("s_lshl_b32 s60, s2, 7")
    k.e("v_mov_b32 v8, s60")
    k.e("s_lshl_b32 s60, s2, 2")
    k.e("s_add_u32 s60, s60, 32768")
    k.e("v_mov_b32 v9, s60")
    for r in range(4):
        k.e("v_mov_b32 v%d, 0" % (20 + r))
    k.e("s_mov_b64 exec, 1")
    k.e("buffer_store_dwordx4 v[20:23], v8, s[84:87], 0 offen")
    k.e("buffer_store_dword v20, v9, s[84:87], 0 offen")
    k.e("buffer_store_dword v20, v9, s[84:87], 0 offen offset:1024")
    k.e("s_mov_b64 exec, -1")
    k.e("s_nop 1")
    if "tfirst" in EXP:
        pass
    elif "newtouch" not in EXP:
        touch(k, 96, P_WQKV, D * 3 * D * 2, 2048, 8, 18, 1)
        touch(k, 96, P_X, S * D * 2, 2048, 8, 18, 1)
    else:
        k.e("s_lshl_b32 s60, s10, 6")
        k.e("s_sub_u32 s60, s60, 16")
        k.e("s_mul_i32 s60, s60, 1152")
        k.e("s_mul_i32 s61, s4, 90 * 128")
        k.e("s_add_u32 s60, s60, s61")
        k.e("v_lshlrev_b32 v18, 7, v0")
        k.e("v_add_u32 v18, s60, v18")
        k.e("v_add_u32 v19, 8192, v18")
        k.vm("buffer_load_dword v1, v18, %s, 0 offen" % sr(SX, 4), "touch")
        k.e("s_mov_b64 exec, 0x3ffffff")
        k.vm("buffer_load_dword v1, v19, %s, 0 offen" % sr(SX, 4), "touch")
        k.e("s_mov_b64 exec, -1")
        k.e("s_mul_i32 s60, s4, 14")
        k.e("v_add_u32 v18, s60, v0")
        k.e("v_mul_u32_u24 v19, 10923, v18")
        k.e("v_lshrrev_b32 v19, 16, v19")
        k.e("v_mul_u32_u24 v20, 6, v19")
        k.e("v_sub_u32 v18, v18, v20")
        k.e("v_lshrrev_b32 v20, 1, v18")
        k.e("v_mul_u32_u24 v20, 1152, v20")
        k.e("v_and_b32 v18, 1, v18")
        k.e("v_lshlrev_b32 v18, 7, v18")
        k.e("s_mul_i32 s60, s10, 18")
        k.e("v_add_u32 v19, s60, v19")
        k.e("v_mul_u32_u24 v19, 3456, v19")
        k.e("s_mul_i32 s60, s9, 144")
        k.e("s_and_b32 s60, s60, 0xffffff80")
        k.e("v_add3_u32 v18, v18, v19, v20")
        k.e("v_add_u32 v18, s60, v18")
        k.e("s_mov_b64 exec, 0x3fff")
        k.vm("buffer_load_dword v1, v18, %s, 0 offen" % sr(SW, 4), "touch")
        k.e("s_mov_b64 exec, -1")
    touch(k, 96, P_WO, D * D * 2, 2048, 8, 18, 1)
    if "notcode" not in EXP:
        k.e("s_getpc_b64 s[88:89]")
        k.label("L_qkv_pc")
        k.e("s_add_u32 s88, s88, ffn_kernel-L_qkv_pc")
        k.e("s_addc_u32 s89, s89, 0")
        touch(k, 96, 88, 63232, 64, 8, 18, 1)
    CX = 144
    lab_cs3 = k.newlab("cs3")
    k.e("s_mul_i32 s13, s2, 3")
    k.e("s_add_u32 s13, s13, s4")
    k.e("s_sub_u32 s13, s13, 5")
    k.e("s_mul_i32 s14, s13, 3641")
    k.e("s_lshr_b32 s14, s14, 16")
    k.e("s_mul_i32 s15, s14, 18")
    k.e("s_sub_u32 s15, s13, s15")
    k.e("s_lshl_b32 s60, s4, 5")
    k.e("s_add_u32 s61, s60, 160")
    k.e("s_add_u32 s62, s60, 320")
    k.e("s_sub_u32 s60, s4, 5")
    k.e("s_lshl_b32 s60, s60, 6")
    k.e("s_add_u32 s63, s60, 32")
    k.e("s_min_u32 s63, s63, 128")
    k.e("s_cmp_lt_u32 s4, 5")
    k.e("s_cselect_b32 s11, s61, s60")
    k.e("s_cselect_b32 s12, s62, s63")
    k.e("s_cselect_b32 s66, 8192, 0")
    k.e("s_cselect_b32 s67, 16384, 0")
    k.e("s_cselect_b32 s68, 160, 0")
    k.e("s_cselect_b32 s69, 320, 0")
    vB0, vB1, vA, vS = 20, 25, 30, 33
    swap23_lane_rowpos(k, 8, 0, 18, 19)
    k.e("v_bfe_u32 v9, v8, 1, 2")
    k.e("v_and_b32 v10, 1, v8")
    k.e("v_lshlrev_b32 v8, 8, v8")
    k.e("v_and_b32 v11, 3, v0")
    k.e("v_lshlrev_b32 v11, 3, v11")
    k.e("s_and_b32 s65, s65, 127")
    for (vd, sreg, sreb, ssub) in ((vB0, 11, 66, 68), (vB1, 12, 67, 69)):
        k.e("s_sub_u32 s60, s%d, s%d" % (sreg, ssub))
        k.e("s_add_u32 s60, s60, s65")
        k.e("v_add_u32 v18, s60, v11")
        k.e("v_bfe_u32 v19, v18, 7, 1")
        k.e("v_xor_b32 v19, v19, v10")
        k.e("v_lshlrev_b32 v19, 7, v19")
        k.e("v_bfe_u32 v12, v18, 5, 2")
        k.e("v_xor_b32 v12, v12, v9")
        k.e("v_lshlrev_b32 v12, 5, v12")
        k.e("v_and_b32 v18, 31, v18")
        k.e("v_add3_u32 v18, v18, v19, v12")
        k.e("v_add3_u32 v%d, v18, v8, s%d" % (vd, sreb))
    k.e("v_lshlrev_b32 v%d, 4, v0" % vA)
    k.e("v_add_u32 v%d, %d, v%d" % (vA, XB, vA))
    k.e("v_add_u32 v%d, s%d, v%d" % (vS, sMX, vA))
    for b in range(1, NW):
        for v in (vB0, vB1):
            k.e("v_add_u32 v%d, %d, v%d" % (v + b, b * WS_, v))
    for b in range(1, NX):
        for v in (vA, vS):
            k.e("v_add_u32 v%d, %d, v%d" % (v + b, b * XS_, v))
    ONES = 36
    for r in range(4):
        k.e("v_mov_b32 v%d, 0x3f803f80" % (ONES + r))
    ACC = 40
    acc = lambda sl, mi: ACC + (sl * 6 + mi) * 4
    SACC = 88
    AF = [[96 + 4 * mi for mi in range(6)], [120 + 4 * mi for mi in range(6)]]
    BF = [[216, 220], [224, 228]]
    lab_q = k.newlab("qpath")
    lab_post = k.newlab("post")
    k.e("s_cmp_ge_u32 s4, 5")
    k.e("s_cbranch_scc1 %s" % lab_q)
    for path in range(2):
        if path == 1:
            k.e("s_branch %s" % lab_post)
            k.label(lab_q)
        k.lq, k.vq = [], []
        mis = [0, 1, 2, 3, 4] if path == 0 else [1, 2, 3, 4]
        k.vq = [("dma", 0)] * 3 + [("dma", 1)] * 3 + [("dma", 2)] * 3 + [("dma", 3)] * 3 + ["z"] * (3 if "notouchall" in EXP else (4 if "tfirst" in EXP else (6 if "notcode" in EXP else 7)))
        def rdl(s):
            xs, kk = divmod(s, 2)
            out = []
            for sl in range(2):
                for j in range(2):
                    out.append("ds_read_b64_tr_b16 %s, v%d offset:%d" % (vr(BF[s % 2][sl] + 2 * j, 2), (vB0, vB1)[sl] + s % NW, j * 2048))
            for mi in mis:
                out.append("ds_read_b128 %s, v%d offset:%d" % (vr(AF[s % 2][mi], 4), vA + xs % NX, (mi * 2 + kk) * 1024))
            if path == 0:
                out.append("ds_read_b128 %s, v%d offset:%d" % (vr(AF[s % 2][5], 4), vS + xs % NX, kk * 1024))
            return out
        if path == 0 and "k1fine" not in EXP:
            stamp(k, 1)
        k.wait_vm(("dma", 0))
        k.e("s_barrier")
        for x in rdl(0):
            k.lds(x, ("f", 0))
        for s in range(18):
            k.c("---- step %d" % s)
            if STAMP and "k1fine" in EXP and path == 0 and s in (1, 6):
                k.e("s_memtime s[%d:%d]" % ((72, 73) if s == 1 else (74, 75)))
            groups = []
            reads = []
            if s + 1 < 18:
                k.wait_vm(("dma", s + 1))
                k.e("s_barrier")
                if path == 0 and s % 2 == 0 and s // 2 + 2 < 9:
                    groups += dmaX(s // 2 + 2)
                if s + NW - 1 < 18:
                    groups += dmaW(s + NW - 1)
                reads = rdl(s + 1)
            if False:
                groups.append([("buffer_load_dwordx4 %s, v7, %s, s88 offen" % (vr(CX + 4 * s, 4), sr(SG, 4)), "cs"),
                               ("s_add_u32 s88, s88, 9216", None)])
            k.wait_lds(("f", s))
            mf = []
            for sl in range(2):
                for mi in mis + [5]:
                    a = acc(sl, mi)
                    cc = "0" if s == 0 else vr(a, 4)
                    bop = vr(AF[s % 2][mi], 4) if mi < 5 else vr(ONES, 4)
                    mf.append("v_mfma_f32_16x16x32_bf16 %s, %s, %s, %s" % (vr(a, 4), vr(BF[s % 2][sl], 4), bop, cc))
            if path == 0:
                sf = vr(AF[s % 2][5], 4)
                mf.append("v_mfma_f32_16x16x32_bf16 %s, %s, %s, %s" % (vr(SACC, 4), vr(ONES, 4), sf, "0" if s == 0 else vr(SACC, 4)))
                mf.append("v_mfma_f32_16x16x32_bf16 %s, %s, %s, %s" % (vr(SACC + 4, 4), sf, sf, "0" if s == 0 else vr(SACC + 4, 4)))
            for n, m in enumerate(mf):
                k.e(m)
                if n < len(reads):
                    k.lds(reads[n], ("f", s + 1))
                g0 = len(mf) - len(groups)
                if n >= g0:
                    issue_groups(k, [groups[n - g0]])
    k.label(lab_post)
    k.lq, k.vq = [], []
    if "tmid" in EXP:
        touch(k, 96, P_WG, D * F * 2, 2048, 8, 2, 1)
        touch(k, 96, P_WU, D * F * 2, 2048, 8, 2, 1)
        k.vq = []
    if "k1fine" in EXP:
        k.e("s_waitcnt lgkmcnt(0)")
        stamp(k, 3)
        stamp_flush(k, 6)
        k.e("s_mov_b64 exec, -1")
    else:
        stamp(k, 2)
    k.e("s_nop 7")
    k.e("s_nop 7")
    k.e("s_barrier")
    k.e("v_and_b32 v18, 3, v0")
    k.e("v_cmp_eq_u32 vcc, 1, v18")
    k.e("v_mov_b32 v19, v%d" % (SACC + 4))
    k.e("s_nop 0")
    k.e("v_cndmask_b32 v19, v19, v%d, vcc" % (SACC + 5))
    k.e("v_cmp_eq_u32 vcc, 2, v18")
    k.e("s_nop 1")
    k.e("v_cndmask_b32 v19, v19, v%d, vcc" % (SACC + 6))
    k.e("v_cmp_eq_u32 vcc, 3, v18")
    k.e("s_nop 1")
    k.e("v_cndmask_b32 v19, v19, v%d, vcc" % (SACC + 7))
    k.e("s_mov_b32 s60, 0x%x" % f2u(1.0 / 576.0))
    k.e("s_mov_b32 s61, 0x%x" % f2u(1e-5))
    k.e("v_mul_f32 v8, s60, v%d" % SACC)
    k.e("v_mul_f32 v19, s60, v19")
    k.e("v_fma_f32 v19, -v8, v8, v19")
    k.e("v_max_f32 v19, 0, v19")
    k.e("v_add_f32 v19, s61, v19")
    k.e("v_rsq_f32 v9, v19")
    k.e("v_sub_f32 v8, 0, v8")
    k.e("v_lshrrev_b32 v18, 2, v16")
    k.e("v_cmp_eq_u32 vcc, v18, v17")
    k.e("s_lshl_b32 s60, s4, 7")
    k.e("v_lshlrev_b32 v18, 3, v16")
    k.e("v_add_u32 v18, s60, v18")
    k.e("v_add_u32 v18, %d, v18" % STO)
    k.e("s_and_saveexec_b64 s[60:61], vcc")
    k.e("ds_write_b64 v18, v[8:9]")
    k.e("s_mov_b64 exec, -1")
    k.e("s_waitcnt lgkmcnt(0)")
    k.e("s_barrier")
    k.e("v_lshlrev_b32 v18, 3, v16")
    k.e("v_add_u32 v18, %d, v18" % STO)
    for mi in range(5):
        k.lds("ds_read_b64 %s, v18 offset:%d" % (vr(96 + 2 * mi, 2), mi * 128), "st")
    for sl, sreg in ((0, 11), (1, 12)):
        k.e("s_lshl_b32 s60, s%d, 1" % sreg)
        k.e("v_mul_u32_u24 v18, %d, v16" % QP)
        k.e("v_lshlrev_b32 v19, 4, v17")
        k.e("v_add3_u32 v%d, v18, v19, s60" % (8 + sl))
    k.wait_lds("st")
    for sl in range(2):
        cw = acc(sl, 5)
        for mi in range(5):
            a = acc(sl, mi)
            for r in range(4):
                k.e("v_fma_f32 v%d, v%d, v%d, v%d" % (a + r, 96 + 2 * mi, cw + r, a + r))
            for r in range(4):
                k.e("v_mul_f32 v%d, v%d, v%d" % (a + r, 97 + 2 * mi, a + r))
            k.e("v_cvt_pk_bf16_f32 v18, v%d, v%d" % (a, a + 1))
            k.e("v_cvt_pk_bf16_f32 v19, v%d, v%d" % (a + 2, a + 3))
            k.e("v_lshlrev_b32 v%d, 16, v18" % a)
            k.e("v_and_b32 v%d, 0xffff0000, v18" % (a + 1))
            k.e("v_lshlrev_b32 v%d, 16, v19" % (a + 2))
            k.e("v_and_b32 v%d, 0xffff0000, v19" % (a + 3))
            k.lds("ds_write_b128 v%d, %s offset:%d" % (8 + sl, vr(a, 4), mi * 16 * QP))
    k.wait_lds_all()
    k.e("s_barrier")
    k.e("v_lshrrev_b32 v18, 3, v0")
    k.e("s_lshl_b32 s60, s4, 3")
    k.e("v_add_u32 v18, s60, v18")
    k.e("v_bfe_u32 v19, v0, 1, 2")
    k.e("v_and_b32 v26, 1, v0")
    k.e("v_mul_u32_u24 v20, %d, v18" % QP)
    k.e("v_mul_u32_u24 v21, 72, v19")
    k.e("v_add_u32 v20, v20, v21")
    k.e("v_mul_u32_u24 v21, %d, v26" % (8 * QP))
    k.e("v_sub_u32 v27, v20, v21")
    k.e("v_add_u32 v27, %d, v27" % (10 * QP))
    Q = 32
    KV = 52
    L = 124
    O = 128
    for d in range(9):
        k.lds("ds_read_b64 %s, v20 offset:%d" % (vr(Q + 2 * d, 2), 16 * QP + d * 8), "q")
    seq = [("k", j) for j in range(4)] + [("v", j) for j in range(4)]

    def rdkv(n):
        kind, j = seq[n]
        col = 320 if kind == "k" else 640
        for d in range(9):
            k.lds("ds_read_b64 %s, v27 offset:%d" % (vr(KV + (n % 4) * 18 + 2 * d, 2), (3 - j) * 2 * QP + col + d * 8), seq[n])
    rdkv(0)
    rdkv(1)
    rdkv(2)
    for j in range(4):
        rdkv(j + 3)
        k.wait_lds(("k", j))
        b = KV + j * 18
        k.e("v_mul_f32 v%d, v%d, v%d" % (L + j, Q, b))
        k.e("v_mul_f32 v24, v%d, v%d" % (Q + 1, b + 1))
        for d in range(2, 18, 2):
            k.e("v_fmac_f32 v%d, v%d, v%d" % (L + j, Q + d, b + d))
            k.e("v_fmac_f32 v24, v%d, v%d" % (Q + d + 1, b + d + 1))
        k.e("v_add_f32 v%d, v%d, v24" % (L + j, L + j))
    rdkv(7)
    k.e("s_mov_b32 s60, 0x%x" % f2u(18 ** -0.5))
    k.e("s_lshl_b32 s61, s10, 6")
    k.e("v_add_u32 v22, s61, v18")
    k.e("v_lshlrev_b32 v25, 3, v26")
    k.e("v_sub_u32 v25, v22, v25")
    k.e("v_mov_b32 v23, 0x%x" % f2u(-1e9))
    for j in range(4):
        k.e("v_mul_f32 v%d, s60, v%d" % (L + j, L + j))
    for j in range(4):
        k.e("v_cmp_le_i32 vcc, %d, v25" % (2 * j))
        k.e("s_nop 1")
        k.e("v_cndmask_b32 v%d, v23, v%d, vcc" % (L + j, L + j))
    k.e("v_max3_f32 v24, v%d, v%d, v%d" % (L, L + 1, L + 2))
    k.e("v_max_f32 v24, v24, v%d" % (L + 3))
    k.e("s_nop 1")
    k.e("v_max_f32 v24, v24, v24 quad_perm:[1,0,3,2] row_mask:0xf bank_mask:0xf")
    k.e("s_mov_b32 s60, 0x%x" % f2u(1.4426950408889634))
    for j in range(4):
        k.e("v_sub_f32 v%d, v%d, v24" % (L + j, L + j))
    for j in range(4):
        k.e("v_mul_f32 v%d, s60, v%d" % (L + j, L + j))
    for j in range(4):
        k.e("v_exp_f32 v%d, v%d" % (L + j, L + j))
    k.e("s_nop 0")
    k.e("v_add_f32 v24, v%d, v%d" % (L, L + 1))
    k.e("v_add_f32 v25, v%d, v%d" % (L + 2, L + 3))
    k.e("v_add_f32 v24, v24, v25")
    k.e("s_nop 1")
    k.e("v_add_f32 v24, v24, v24 quad_perm:[1,0,3,2] row_mask:0xf bank_mask:0xf")
    k.e("v_rcp_f32 v24, v24")
    k.e("s_nop 0")
    for j in range(4):
        k.e("v_mul_f32 v%d, v%d, v24" % (L + j, L + j))
    for j in range(4):
        k.wait_lds(("v", j))
        b = KV + j * 18
        for d in range(18):
            if j == 0:
                k.e("v_mul_f32 v%d, v%d, v%d" % (O + d, L, b + d))
            else:
                k.e("v_fmac_f32 v%d, v%d, v%d" % (O + d, L + j, b + d))
    k.e("s_nop 1")
    for d in range(18):
        k.e("v_add_f32 v%d, v%d, v%d quad_perm:[1,0,3,2] row_mask:0xf bank_mask:0xf" % (KV + d, O + d, O + d))
    for d in range(9):
        k.e("v_cvt_pk_bf16_f32 v%d, v%d, v%d" % (Q + d, KV + 2 * d, KV + 2 * d + 1))
    k.e("v_cmp_eq_u32 vcc, 1, v26")
    k.e("v_lshrrev_b32 v23, 4, v22")
    k.e("v_mul_u32_u24 v23, 18432, v23")
    k.e("v_and_b32 v24, 15, v22")
    k.e("v_lshlrev_b32 v24, 4, v24")
    k.e("v_add_u32 v23, v23, v24")
    k.e("v_mul_u32_u24 v21, 18, v19")
    k.e("s_mul_i32 s60, s9, 72")
    k.e("v_add_u32 v21, s60, v21")
    k.e("v_lshlrev_b32 v24, 3, v26")
    k.e("v_add_u32 v21, v21, v24")
    for d in range(5):
        k.e("v_cndmask_b32 v%d, v%d, v%d, vcc" % (O + d, Q + d, Q + d + 4))
        k.e("v_add_u32 v24, %d, v21" % (2 * d))
        k.e("v_lshrrev_b32 v25, 3, v24")
        k.e("v_lshlrev_b32 v25, 8, v25")
        k.e("v_and_b32 v24, 7, v24")
        k.e("v_lshlrev_b32 v24, 1, v24")
        k.e("v_add3_u32 v%d, v23, v24, v25" % (O + 8 + d))
        k.e("buffer_store_dword v%d, v%d, %s, 0 offen" % (O + d, O + 8 + d, sr(SO, 4)))
    if "tend" in EXP:
        k.e("s_mov_b64 exec, -1")
        touch(k, 96, P_WG, D * F * 2, 2048, 8, 18, 1)
        touch(k, 96, P_WU, D * F * 2, 2048, 8, 18, 1)
    if "k1fine" not in EXP:
        stamp(k, 3)
        stamp_flush(k, 6)
    k.label(lab_cs3)
    footer(k)
    return k, 256


def main():
    ks = [
        (gen_k1, 512, 5 * 24576 + 3 * 10240, 232),
        (gen_k2, 512, 4 * 40960, 256),
    ]
    hdr = open("sequential_preLN__sliding_local_dilated__geglu_ffn__prompt.s.ref").read().split("\n")
    out = []
    for line in hdr:
        if line.startswith("; Override") or line.startswith("; grid=") or line.startswith("; @launch"):
            continue
        if not line.startswith(";"):
            break
        out.append(line)
    body = []
    desc = []
    for fn, block, lds, nv in ks:
        k, nwg = fn()
        name = k.name + "_kernel"
        out.append("; @launch kernel=%s grid=(%d,1,1) block=(%d,1,1) lds=%d" % (name, nwg, block, lds))
        body += [".globl %s" % name, ".p2align 8", ".type %s,@function" % name, "%s:" % name] + k.L
        desc += [".p2align 6", ".amdhsa_kernel %s" % name,
                 "  .amdhsa_next_free_vgpr %d" % nv, "  .amdhsa_next_free_sgpr 102",
                 "  .amdhsa_accum_offset %d" % nv,
                 "  .amdhsa_group_segment_fixed_size 0", "  .amdhsa_kernarg_size 80",
                 "  .amdhsa_user_sgpr_count 2", "  .amdhsa_user_sgpr_kernarg_segment_ptr 1",
                 "  .amdhsa_system_sgpr_workgroup_id_x 1", ".end_amdhsa_kernel"]
    out += ['.amdgcn_target "amdgcn-amd-amdhsa--gfx950"', ".text"] + body + ['.section .rodata,"a"'] + desc
    path = sys.argv[1] if len(sys.argv) > 1 else "sequential_preLN__sliding_local_dilated__geglu_ffn__prompt.s"
    open(path, "w").write("\n".join(out) + "\n")


main()
```

```python
import sys, struct

S, D, F = 2048, 576, 4608
O_OFF = 0x0000000
H_OFF = 0x0400000
ST_OFF = 0x0800000
CP_OFF = 0x0A00000
CS_OFF = 0x0860000
FLG_OFF = 0x0880000
ACT_OFF = 0x1000000
PART_OFF = 0x3000000


def f2u(x):
    return struct.unpack("<I", struct.pack("<f", x))[0]


EXP = __import__("os").environ.get("EXP", "")
FFN_TAIL_BYTES = 55296


class K:
    def __init__(s, name):
        s.name = name
        s.L = []
        s.lq = []
        s.vq = []
        s.nlab = 0

    def e(s, t):
        if "nomfma" in EXP and t.startswith("v_mfma"):
            return
        if "noldsrd" in EXP and (t.startswith("ds_read_b128") or t.startswith("ds_read_b64_tr")):
            return
        if "nodma" in EXP and t.endswith(" lds"):
            return
        if "nox" in EXP and t.endswith(" lds") and "s[36:39]" in t and s.name == "qkv":
            return
        if "now" in EXP and t.endswith(" lds") and "s[40:43]" in t and s.name == "qkv":
            return
        s.L.append("    " + t)

    def c(s, t):
        s.L.append("    ; " + t)

    def label(s, n):
        s.L.append(n + ":")

    def newlab(s, base):
        s.nlab += 1
        return "L_%s_%s_%d" % (s.name, base, s.nlab)

    def lds(s, t, tag=None):
        s.e(t)
        s.lq.append(tag)

    def vm(s, t, tag=None):
        s.e(t)
        s.vq.append(tag)

    def _need(s, q, tag):
        idx = -1
        for i, x in enumerate(q):
            if x == tag:
                idx = i
        return idx

    def wait_lds(s, tag):
        idx = s._need(s.lq, tag)
        if idx < 0:
            return
        n = len(s.lq) - idx - 1
        n = min(n, 15)
        s.e("s_waitcnt lgkmcnt(%d)" % n)
        s.lq = s.lq[len(s.lq) - n:] if n else []

    def wait_vm(s, tag):
        idx = s._need(s.vq, tag)
        if idx < 0:
            return
        n = len(s.vq) - idx - 1
        n = min(n, 63)
        s.e("s_waitcnt vmcnt(%d)" % n)
        s.vq = s.vq[len(s.vq) - n:] if n else []

    def wait_all(s):
        s.e("s_waitcnt vmcnt(0) lgkmcnt(0)")
        s.lq = []
        s.vq = []

    def wait_lds_all(s):
        s.e("s_waitcnt lgkmcnt(0)")
        s.lq = []

    def wait_vm_all(s):
        s.e("s_waitcnt vmcnt(0)")
        s.vq = []


STAMP = int(__import__("os").environ.get("STAMP", "0"))


def stamp(k, idx):
    if STAMP:
        k.e("s_memtime s[%d:%d]" % (70 + 2 * idx, 71 + 2 * idx))
        if idx in (0, 3):
            k.e("s_memrealtime s[%d:%d]" % (78 + (2 if idx else 0), 79 + (2 if idx else 0)))
        k.e("s_waitcnt lgkmcnt(0)")
        k.lq = []


def stamp_flush(k, n):
    if STAMP == 2:
        slot = getattr(k, "stamp_slot", 0)
        lab = k.newlab("nost")
        k.e("s_cmp_lg_u32 s2, 5")
        k.e("s_cbranch_scc1 %s" % lab)
        k.e("s_cmp_lg_u32 s4, 0")
        k.e("s_cbranch_scc1 %s" % lab)
        if not slot:
            k.e("s_add_u32 s92, s%d, 512" % P_DBG)
            k.e("s_addc_u32 s93, s%d, 0" % (P_DBG + 1))
        else:
            k.e("s_mov_b32 s92, s%d" % P_DBG)
            k.e("s_mov_b32 s93, s%d" % (P_DBG + 1))
        k.e("s_mov_b32 s94, 256")
        k.e("s_mov_b32 s95, 0x00020000")
        k.e("v_mov_b32 v1, 0")
        k.e("s_mov_b64 exec, 1")
        for i, r in enumerate((78, 80)):
            k.e("v_mov_b32 v2, s%d" % r)
            k.e("buffer_store_dword v2, v1, s[92:95], 0 offen offset:%d" % (8 * slot + 4 * i))
        k.label(lab)
        return
    if STAMP:
        lab = k.newlab("nost")
        k.e("s_and_b32 s90, s2, 127")
        k.e("s_cmp_lg_u32 s90, 5")
        k.e("s_cbranch_scc1 %s" % lab)
        k.e("s_cmp_lg_u32 s4, 0")
        k.e("s_cbranch_scc1 %s" % lab)
        srd(k, 92, P_WS, 0x900000 + 512 * getattr(k, "stamp_slot", 0), 256)
        k.e("s_lshr_b32 s90, s2, 7")
        k.e("s_lshl_b32 s90, s90, 6")
        k.e("v_mov_b32 v1, s90")
        k.e("s_mov_b64 exec, 1")
        for i in range(n):
            k.e("v_mov_b32 v2, s%d" % (70 + 2 * i))
            k.e("buffer_store_dword v2, v1, s[92:95], 0 offen offset:%d" % (4 * i))
        k.label(lab)


def vr(b, n):
    return "v[%d:%d]" % (b, b + n - 1)


def sr(b, n):
    return "s[%d:%d]" % (b, b + n - 1)


P_X, P_WQKV, P_WO, P_BX, P_WG, P_WU, P_WD, P_OUT, P_DBG, P_WS = 16, 18, 20, 22, 24, 26, 28, 30, 32, 34


def header(k, nwg):
    k.e("s_cmp_ge_u32 s2, %d" % nwg)
    k.e("s_cbranch_scc1 L_%s_end" % k.name)
    k.e("s_load_dwordx16 s[16:31], s[0:1], 0")
    k.e("s_load_dwordx4 s[32:35], s[0:1], 64")
    k.e("v_lshrrev_b32 v1, 6, v0")
    k.e("v_and_b32 v0, 63, v0")
    k.e("s_nop 0")
    k.e("v_readfirstlane_b32 s4, v1")
    k.e("s_waitcnt lgkmcnt(0)")


def srd(k, d, ptr, off, nbytes):
    if off:
        k.e("s_add_u32 s%d, s%d, 0x%x" % (d, ptr, off))
        k.e("s_addc_u32 s%d, s%d, 0" % (d + 1, ptr + 1))
    else:
        k.e("s_mov_b32 s%d, s%d" % (d, ptr))
        k.e("s_mov_b32 s%d, s%d" % (d + 1, ptr + 1))
    k.e("s_mov_b32 s%d, 0x%x" % (d + 2, nbytes))
    k.e("s_mov_b32 s%d, 0x00020000" % (d + 3))


def footer(k):
    k.label("L_%s_end" % k.name)
    k.e("s_endpgm")


def swap23_lane_rowpos(k, vdst, vlane, vt, vt2):
    k.e("v_lshrrev_b32 v%d, 5, v%d" % (vt, vlane))
    k.e("v_lshlrev_b32 v%d, 4, v%d" % (vdst, vt))
    k.e("v_bfe_u32 v%d, v%d, 4, 1" % (vt, vlane))
    k.e("v_lshlrev_b32 v%d, 2, v%d" % (vt, vt))
    k.e("v_add_u32 v%d, v%d, v%d" % (vdst, vdst, vt))
    k.e("v_bfe_u32 v%d, v%d, 2, 2" % (vt2, vlane))
    k.e("v_add_u32 v%d, v%d, v%d" % (vdst, vdst, vt2))


def swap23(k, vdst, vp, vt, vt2):
    k.e("v_and_b32 v%d, 0x33, v%d" % (vdst, vp))
    k.e("v_bfe_u32 v%d, v%d, 2, 1" % (vt, vp))
    k.e("v_lshlrev_b32 v%d, 3, v%d" % (vt, vt))
    k.e("v_bfe_u32 v%d, v%d, 3, 1" % (vt2, vp))
    k.e("v_lshlrev_b32 v%d, 2, v%d" % (vt2, vt2))
    k.e("v_or3_b32 v%d, v%d, v%d, v%d" % (vdst, vdst, vt, vt2))


def gemm_core(k, nst, nbuf, MI, acc, afr, bring, PD, a_rd, b_rd, dma, zero_init, NJ=9, sub=1, extra=None):
    RB = len(bring)
    nm = MI * NJ
    nsteps = nst * sub

    def rdB(t):
        sp, nj = divmod(t, NJ)
        if sp >= nsteps:
            return []
        st, kk = divmod(sp, sub)
        slot = bring[t % RB]
        out = []
        for j in range(2):
            v, off = b_rd(st % nbuf, nj, j, kk) if sub > 1 else b_rd(st % nbuf, nj, j)
            out.append(("ds_read_b64_tr_b16 %s, v%d offset:%d" % (vr(slot + 2 * j, 2), v, off), ("B", t)))
        return out

    def rdA(sp, i):
        if sp >= nsteps:
            return []
        st, kk = divmod(sp, sub)
        v, off = a_rd(st % nbuf, i, kk) if sub > 1 else a_rd(st % nbuf, i)
        return [("ds_read_b128 %s, v%d offset:%d" % (vr(afr[sp % 2][i], 4), v, off), ("A", sp))]

    k.wait_vm(("dma", 0))
    k.e("s_barrier")
    for i in range(MI):
        for (t, tag) in rdA(0, i):
            k.lds(t, tag)
    for t in range(PD):
        for (x, tag) in rdB(t):
            k.lds(x, tag)
    for s in range(nsteps):
        k.c("---- step %d" % s)
        groups = []
        st = s // sub
        if (s + 1) % sub == 0 and st + 1 < nst:
            k.wait_vm(("dma", st + 1))
            k.e("s_barrier")
            if st + nbuf - 1 < nst:
                groups = dma(st + nbuf - 1)
        ev = {}

        def add(idx, fn):
            ev.setdefault(min(idx, nm - 1), []).append(fn)
        for nj in range(NJ):
            t = s * NJ + nj
            add(nj * MI, (lambda tt: (lambda: [k.lds(x, tag) for (x, tag) in rdB(tt)]))(t + PD))
        for i in range(MI):
            add((2 + i) * MI + min(1, MI - 1), (lambda ii: (lambda: [k.lds(x, tag) for (x, tag) in rdA(s + 1, ii)]))(i))
        for gi, g in enumerate(groups):
            def mk(g):
                def f():
                    for (x, tag) in g:
                        if tag is None:
                            k.e(x)
                        else:
                            k.vm(x, tag)
                return f
            add((gi + (3 if "dmalate" in EXP else 0)) * MI + min(2, MI - 1), mk(g))
        for nj in range(NJ):
            t = s * NJ + nj
            if nj == 0:
                k.wait_lds(("A", s))
            k.wait_lds(("B", t))
            for i in range(MI):
                a = acc(i, nj)
                cc = "0" if (zero_init and s == 0) else vr(a, 4)
                k.e("v_mfma_f32_16x16x32_bf16 %s, %s, %s, %s" % (vr(a, 4), vr(bring[t % RB], 4), vr(afr[s % 2][i], 4), cc))
                for fn in ev.get(nj * MI + i, []):
                    fn()
            if extra:
                extra(s, nj, bring[t % RB])


def fl_lane(k, vdst, vt):
    k.e("v_lshrrev_b32 v%d, 1, v17" % vt)
    k.e("v_lshlrev_b32 v%d, 8, v%d" % (vdst, vt))
    k.e("v_lshlrev_b32 v%d, 4, v16" % vt)
    k.e("v_add_u32 v%d, v%d, v%d" % (vdst, vdst, vt))
    k.e("v_and_b32 v%d, 1, v17" % vt)
    k.e("v_lshlrev_b32 v%d, 3, v%d" % (vt, vt))
    k.e("v_add_u32 v%d, v%d, v%d" % (vdst, vdst, vt))


def b_dma_addr(k, vdst, sL0, iofs, NL, spitch, scol, reg_row=0, reg_col=0):
    k.e("v_lshrrev_b32 v18, 3, v0")
    k.e("v_add_u32 v18, s%d, v18" % sL0)
    if iofs:
        k.e("v_add_u32 v18, %d, v18" % iofs)
    if NL == 3:
        k.e("v_mul_u32_u24 v19, 21846, v18")
        k.e("v_lshrrev_b32 v19, 16, v19")
        k.e("v_mul_u32_u24 v20, 3, v19")
        k.e("v_sub_u32 v18, v18, v20")
    else:
        k.e("v_lshrrev_b32 v19, 1, v18")
        k.e("v_xor_b32 v18, v18, v19")
        k.e("v_and_b32 v18, 1, v18")
    k.e("v_lshlrev_b32 v18, 7, v18")
    k.e("v_bfe_u32 v20, v19, 1, 2")
    k.e("v_bfe_u32 v21, v0, 1, 2")
    k.e("v_xor_b32 v20, v20, v21")
    k.e("v_lshlrev_b32 v20, 5, v20")
    k.e("v_and_b32 v21, 1, v0")
    k.e("v_lshlrev_b32 v21, 4, v21")
    k.e("v_add3_u32 v18, v18, v20, v21")
    k.e("v_lshrrev_b32 v23, 5, v19")
    k.e("v_and_b32 v19, 31, v19")
    swap23(k, 20, 19, 21, 22)
    if reg_row:
        k.e("v_mul_u32_u24 v21, %d, v23" % reg_row)
        k.e("v_add_u32 v20, v20, v21")
    k.e("v_mul_lo_u32 v20, v20, s%d" % spitch)
    if reg_col:
        k.e("v_mul_u32_u24 v23, %d, v23" % reg_col)
        k.e("v_add_u32 v18, v18, v23")
    k.e("v_add3_u32 v%d, v20, v18, s%d" % (vdst, scol))


def b_rd_addr3(k, vq, sn0p, sbase):
    swap23_lane_rowpos(k, 18, 0, 19, 20)
    k.e("v_bfe_u32 v19, v18, 1, 2")
    k.e("v_mul_u32_u24 v18, 384, v18")
    k.e("v_and_b32 v20, 3, v0")
    k.e("v_lshlrev_b32 v20, 3, v20")
    k.e("v_add3_u32 v18, v18, v20, s%d" % sbase)
    for q in range(4):
        k.e("s_add_u32 s60, s%d, %d" % (sn0p, q))
        k.e("s_and_b32 s61, s60, 3")
        k.e("s_lshr_b32 s60, s60, 2")
        k.e("s_lshl_b32 s60, s60, 7")
        k.e("v_xor_b32 v20, s61, v19")
        k.e("v_lshlrev_b32 v20, 5, v20")
        k.e("v_add3_u32 v%d, v18, v20, s60" % (vq + q))


def touch(k, ssrd, ptr, nbytes, nwaves_total, wpw, vtmp, vdst):
    if "notouchall" in EXP:
        return
    nlines = nbytes // 128
    per = (nlines + nwaves_total - 1) // nwaves_total
    assert per <= 64
    srd(k, ssrd, ptr, 0, nbytes)
    k.e("s_mul_i32 s60, s2, %d" % wpw)
    k.e("s_add_u32 s60, s60, s4")
    k.e("s_mul_i32 s60, s60, %d" % per)
    k.e("v_add_u32 v%d, s60, v0" % vtmp)
    k.e("v_lshlrev_b32 v%d, 7, v%d" % (vtmp, vtmp))
    if per < 64:
        m = (1 << per) - 1
        k.e("s_mov_b32 exec_lo, 0x%x" % (m & 0xffffffff))
        k.e("s_mov_b32 exec_hi, 0x%x" % (m >> 32))
    k.vm("buffer_load_dword v%d, v%d, %s, 0 offen" % (vdst, vtmp, sr(ssrd, 4)), "touch")
    k.e("s_mov_b64 exec, -1")


def touch_code(k, label, lab_pc, nbytes, lines_per_wave, wave_base, nw):
    k.e("s_getpc_b64 s[88:89]")
    k.label(lab_pc)
    k.e("s_add_u32 s96, s88, %s-%s" % (label, lab_pc))
    k.e("s_addc_u32 s97, s89, -1" if False else "s_addc_u32 s97, s89, 0")
    k.e("s_mov_b32 s98, %d" % nbytes)
    k.e("s_mov_b32 s99, 0x00020000")
    k.e("s_lshr_b32 s60, s2, 3")
    k.e("s_mul_i32 s60, s60, %d" % nw)
    k.e("s_add_u32 s60, s60, s4")
    k.e("s_sub_u32 s60, s60, %d" % wave_base)
    k.e("s_mul_i32 s60, s60, %d" % lines_per_wave)
    k.e("v_add_u32 v18, s60, v0")
    k.e("v_lshlrev_b32 v18, 7, v18")
    k.e("s_mov_b64 exec, 0x%x" % ((1 << lines_per_wave) - 1))
    k.vm("buffer_load_dword v1, v18, s[96:99], 0 offen", "touch")
    k.e("s_mov_b64 exec, -1")


def issue_groups(k, groups):
    for g in groups:
        for (x, tag) in g:
            if tag is None:
                k.e(x)
            else:
                k.vm(x, tag)


def gen_k3(k):
    k.label("L_ffn_p3start")
    SB = 40960
    NBUF = 4
    k.stamp_slot = 2
    stamp(k, 0)
    SA, SBd, SST, SCS, SO = 36, 40, 44, 48, 52
    sKA, sKB, sMA, sMB = 56, 57, 58, 59
    k.e("s_and_b32 s60, s2, 7")
    k.e("s_lshr_b32 s61, s2, 3")
    k.e("s_and_b32 s62, s61, 3")
    k.e("s_lshl_b32 s60, s60, 2")
    k.e("s_add_u32 s9, s60, s62")
    k.e("s_lshr_b32 s61, s61, 2")
    k.e("s_lshl_b32 s7, s61, 8")
    k.e("s_mul_i32 s8, s9, 144")
    k.e("s_and_b32 s5, s4, 3")
    k.e("s_lshr_b32 s6, s4, 2")
    srd(k, SA, P_WS, H_OFF, S * D * 2)
    k.e("s_cmp_lt_u32 s4, 4")
    k.e("s_cselect_b32 s%d, s%d, s%d" % (SBd, P_WG, P_WU))
    k.e("s_cselect_b32 s%d, s%d, s%d" % (SBd + 1, P_WG + 1, P_WU + 1))
    k.e("s_mov_b32 s%d, 0x%x" % (SBd + 2, D * F * 2))
    k.e("s_mov_b32 s%d, 0x00020000" % (SBd + 3))
    srd(k, SST, P_WS, ST_OFF, S * 32)
    srd(k, SO, P_WS, ACT_OFF, S * F * 2)
    vOA0, vOA1, vOB = 2, 3, 4
    vA, vB = 8, 24
    vR, vM = 40, 44
    ACC = 96
    afr = [[48 + 4 * i for i in range(4)], [64 + 4 * i for i in range(4)]]
    bring = [80, 84, 88, 92]
    k.e("v_and_b32 v16, 15, v0")
    k.e("v_lshrrev_b32 v17, 4, v0")
    k.e("s_lshr_b32 s60, s7, 4")
    k.e("s_lshl_b32 s61, s4, 1")
    k.e("s_add_u32 s60, s60, s61")
    k.e("s_mul_i32 s60, s60, 18432")
    k.e("v_lshlrev_b32 v19, 4, v0")
    k.e("v_add_u32 v%d, s60, v19" % vOA0)
    k.e("v_add_u32 v%d, 18432, v%d" % (vOA1, vOA0))
    k.e("s_and_b32 s60, s4, 3")
    k.e("s_mul_i32 s68, s60, 24")
    k.e("s_lshl_b32 s62, s8, 1")
    k.e("s_and_b32 s62, s62, 0xffffff80")
    k.e("s_movk_i32 s63, 9216")
    for i in range(3):
        b_dma_addr(k, vOB + i, 68, 8 * i, 3, 63, 62)
    k.e("s_mov_b32 s%d, 0" % sKA)
    k.e("s_mov_b32 s%d, 0" % sKB)
    k.e("s_lshl_b32 s%d, s4, 11" % sMA)
    k.e("s_mul_i32 s%d, s4, 3072" % sMB)
    k.e("s_add_u32 s%d, s%d, 16384" % (sMB, sMB))

    def dmaA(st):
        b = (st % NBUF) * SB
        tag = ("dma", st)
        g = []
        for i in range(2):
            x = [("s_add_u32 m0, s%d, %d" % (sMA, b + i * 1024), None), ("s_nop 0", None),
                 ("buffer_load_dwordx4 v%d, %s, s%d offen sc1 lds" % (vOA0 + i, sr(SA, 4), sKA), tag)]
            if i == 1:
                x.append(("s_add_u32 s%d, s%d, 1024" % (sKA, sKA), None))
            g.append(x)
        return g

    def dmaB(st):
        b = (st % NBUF) * SB
        tag = ("dma", st)
        g = []
        for i in range(3):
            x = [("s_add_u32 m0, s%d, %d" % (sMB, b + i * 1024), None), ("s_nop 0", None)]
            x.append(("buffer_load_dwordx4 v%d, %s, s%d offen lds" % (vOB + i, sr(SBd, 4), sKB), tag))
            if i == 2:
                x.append(("s_add_u32 s%d, s%d, %d" % (sKB, sKB, 32 * 9216), None))
            g.append(x)
        return g

    def dma(st):
        return dmaA(st) + dmaB(st)
    for st in range(NBUF - 1):
        issue_groups(k, dmaB(st))
    srd(k, 64, P_WS, FLG_OFF + 32768 + 1024, 1024)
    k.e("s_lshr_b32 s60, s7, 3")
    k.e("v_and_b32 v18, 31, v0")
    k.e("v_add_u32 v18, s60, v18")
    k.e("v_lshlrev_b32 v18, 2, v18")
    srd(k, 84, P_WS, FLG_OFF + 32768 + 2048, 2048)
    k.e("v_lshlrev_b32 v20, 5, v0")
    lab_p0 = k.newlab("pollAll")
    lab_g0 = k.newlab("goAll")
    k.e("s_cmp_lg_u32 s4, 0")
    k.e("s_cbranch_scc1 %s" % lab_g0)
    k.label(lab_p0)
    k.e("buffer_load_dwordx4 v[48:51], v20, s[84:87], 0 offen sc1")
    k.e("buffer_load_dwordx4 v[52:55], v20, s[84:87], 0 offen offset:16 sc1")
    k.e("s_waitcnt vmcnt(0)")
    for q in range(4):
        k.e("v_xor_b32 v%d, s100, v%d" % (48 + 2 * q, 48 + 2 * q))
        k.e("v_xor_b32 v%d, s101, v%d" % (49 + 2 * q, 49 + 2 * q))
    k.e("v_or3_b32 v48, v48, v49, v50")
    k.e("v_or3_b32 v48, v48, v51, v52")
    k.e("v_or3_b32 v48, v48, v53, v54")
    k.e("v_or_b32 v48, v48, v55")
    k.e("v_cmp_ne_u32 vcc, 0, v48")
    k.e("s_nop 1")
    k.e("s_cmp_eq_u64 vcc, 0")
    k.e("s_cbranch_scc1 %s" % lab_g0)
    k.e("s_sleep 2")
    k.e("s_branch %s" % lab_p0)
    k.label(lab_g0)
    k.e("s_barrier")
    lab_p = k.newlab("pollH")
    lab_g = k.newlab("goH")
    k.label(lab_p)
    k.e("buffer_load_dword v19, v18, s[64:67], 0 offen sc1")
    k.e("s_waitcnt vmcnt(0)")
    k.e("v_cmp_ne_u32 vcc, 1, v19")
    k.e("s_nop 1")
    k.e("s_cmp_eq_u64 vcc, 0")
    k.e("s_cbranch_scc1 %s" % lab_g)
    k.e("s_sleep %d" % (0 if "sleep0" in EXP else 2))
    k.e("s_branch %s" % lab_p)
    k.label(lab_g)
    k.vq = []
    k.e("s_lshl_b32 s60, s5, 6")
    k.e("s_add_u32 s60, s60, s7")
    k.e("v_add_u32 v18, s60, v16")
    k.e("v_lshlrev_b32 v18, 5, v18")
    for i in range(4):
        for h in range(2):
            k.vm("buffer_load_dwordx4 %s, v18, %s, 0 offen offset:%d" % (vr(ACC + i * 8 + h * 4, 4), sr(SST, 4), i * 512 + h * 16) + " sc1", "st")
    for st in range(NBUF - 1):
        issue_groups(k, dmaA(st))
    if "notouchwd" not in EXP:
        touch(k, 64, P_WD, F * D * 2, 2048, 8, 18, 1)
    k.e("s_lshl_b32 s60, s5, 12")
    k.e("v_lshlrev_b32 v18, 4, v0")
    k.e("v_add_u32 v%d, s60, v18" % vA)
    k.e("v_add_u32 v%d, %d, v%d" % (vA + 1, 2 * SB, vA))
    k.e("s_bfe_u32 s62, s8, 0x20004")
    k.e("s_mul_i32 s63, s6, 5")
    k.e("s_add_u32 s62, s62, s63")
    k.e("s_movk_i32 s63, 16384")
    b_rd_addr3(k, vB, 62, 63)
    for q in range(4):
        k.e("v_add_u32 v%d, %d, v%d" % (vB + 4 + q, 2 * SB, vB + q))
    k.e("v_lshrrev_b32 v18, 1, v17")
    k.e("v_lshlrev_b32 v14, 8, v18")
    k.e("v_lshlrev_b32 v18, 4, v16")
    k.e("v_add_u32 v14, v14, v18")
    k.e("v_and_b32 v18, 1, v17")
    k.e("v_mul_u32_u24 v15, 147456, v18")
    k.e("v_add_u32 v15, v15, v14")
    k.e("v_lshlrev_b32 v18, 9, v18")
    k.e("v_add_u32 v14, v14, v18")
    k.e("s_lshr_b32 s60, s7, 4")
    k.e("s_lshl_b32 s61, s5, 2")
    k.e("s_add_u32 s60, s60, s61")
    k.e("s_mul_i32 s60, s60, 147456")
    k.e("s_mul_i32 s61, s9, 9")
    k.e("s_mul_i32 s62, s6, 5")
    k.e("s_add_u32 s61, s61, s62")
    k.e("s_lshl_b32 s61, s61, 9")
    k.e("s_add_u32 s60, s60, s61")
    k.e("v_add_u32 v14, s60, v14")
    k.e("v_add_u32 v15, s60, v15")
    if "tact" in EXP:
        for it in range(2):
            k.e("v_add_u32 v18, %d, v0" % (64 * it))
            k.e("v_mul_u32_u24 v19, 3277, v18")
            k.e("v_lshrrev_b32 v19, 16, v19")
            k.e("v_mul_u32_u24 v20, 20, v19")
            k.e("v_sub_u32 v18, v18, v20")
            k.e("s_lshl_b32 s61, s6, 2")
            k.e("s_sub_u32 s61, 20, s61")
            k.e("v_cmp_gt_u32 vcc, s61, v18")
            k.e("v_lshlrev_b32 v18, 7, v18")
            k.e("v_mul_u32_u24 v19, 147456, v19")
            k.e("v_add3_u32 v18, v18, v19, s60")
            if it:
                k.e("s_and_b64 vcc, vcc, 0xffff")
            k.e("s_mov_b64 exec, vcc")
            k.vm("buffer_load_dword v1, v18, %s, 0 offen" % sr(SO, 4), "touch")
            k.e("s_mov_b64 exec, -1")
    k.wait_vm("st")
    k.e("s_mov_b32 s60, 0x%x" % f2u(1.0 / 576.0))
    k.e("s_mov_b32 s61, 0x%x" % f2u(1e-5))
    for i in range(4):
        b = ACC + i * 8
        k.e("v_add_f32 v18, v%d, v%d" % (b, b + 2))
        k.e("v_add_f32 v19, v%d, v%d" % (b + 4, b + 6))
        k.e("v_add_f32 v20, v%d, v%d" % (b + 1, b + 3))
        k.e("v_add_f32 v21, v%d, v%d" % (b + 5, b + 7))
        k.e("v_add_f32 v18, v18, v19")
        k.e("v_add_f32 v20, v20, v21")
        k.e("v_mul_f32 v18, s60, v18")
        k.e("v_mul_f32 v20, s60, v20")
        k.e("v_fma_f32 v20, -v18, v18, v20")
        k.e("v_max_f32 v20, 0, v20")
        k.e("v_add_f32 v20, s61, v20")
        k.e("v_rsq_f32 v%d, v20" % (vR + i))
        k.e("v_sub_f32 v%d, 0, v18" % (vM + i))
    lab1 = k.newlab("wn1")
    lab_done = k.newlab("done")
    k.e("s_cmp_eq_u32 s6, 1")
    k.e("s_cbranch_scc1 %s" % lab1)
    st_l, st_v = list(k.lq), list(k.vq)
    c1 = -2.0 * 0.7978845608028654 * 1.4426950408889634
    for wn in range(2):
        NF = 5 if wn == 0 else 4
        NJ = 2 * NF
        if wn == 1:
            k.e("s_branch %s" % lab_done)
            k.label(lab1)
            k.lq, k.vq = list(st_l), list(st_v)
        if ("prio%d" % wn) in EXP:
            k.e("s_setprio 1")
        acc = lambda i, c: ACC + (i * NJ + c) * 4
        CW = {0: 32, 1: 36, 8: 10, 9: 16}
        ONES = 20
        for r in range(4):
            k.e("v_mov_b32 v%d, 0x3f803f80" % (ONES + r))
        prevb = [None]

        def cwreg(c):
            return CW[(c & 1) + 8 * (c >> 3)]

        def extra(s_, c, breg):
            if c & 1 == 0:
                prevb[0] = breg
                return
            lab = k.newlab("cw")
            k.e("s_cmp_eq_u32 s5, %d" % ((c >> 1) & 3))
            k.e("s_cbranch_scc0 %s" % lab)
            for cc, br in ((c - 1, prevb[0]), (c, breg)):
                k.e("v_mfma_f32_16x16x32_bf16 %s, %s, %s, %s" % (vr(cwreg(cc), 4), vr(br, 4), vr(ONES, 4), "0" if s_ == 0 else vr(cwreg(cc), 4)))
            k.label(lab)

        def a_rd(buf, i):
            return vA + (buf >> 1), (buf & 1) * SB + i * 1024

        def b_rd(buf, c, j):
            f = c >> 1
            return vB + 4 * (buf >> 1) + (f & 3), (buf & 1) * SB + (c & 1) * 12288 + j * 3072 + (f >> 2) * 128
        if wn == 0:
            stamp(k, 1)
        gemm_core(k, 18, NBUF, 4, acc, afr, bring, 2, a_rd, b_rd, dma, True, NJ=NJ, extra=extra)
        if wn == 0:
            stamp(k, 2)
        k.c("---- epilogue")
        k.e("s_nop 7")
        k.e("s_barrier")
        k.e("v_lshlrev_b32 v1, 4, v0")
        k.e("v_add_u32 v1, %d, v1" % (wn * 10240))
        for c in range(0, NJ, 2):
            lab = k.newlab("cww")
            k.e("s_cmp_eq_u32 s5, %d" % ((c >> 1) & 3))
            k.e("s_cbranch_scc0 %s" % lab)
            k.e("ds_write_b128 v1, %s offset:%d" % (vr(cwreg(c), 4), c * 1024))
            k.e("ds_write_b128 v1, %s offset:%d" % (vr(cwreg(c + 1), 4), c * 1024 + 1024))
            k.label(lab)
        k.e("s_waitcnt lgkmcnt(0)")
        k.e("s_barrier")
        CSR = 48
        for c in range(NJ):
            k.e("ds_read_b128 %s, v1 offset:%d" % (vr(CSR + 4 * c, 4), c * 1024))
        k.e("s_waitcnt lgkmcnt(0)")
        k.lq = []
        k.e("v_mov_b32 v20, 1.0")
        k.e("v_mov_b32 v21, 1.0")
        k.e("s_mov_b32 s60, 0x%x" % f2u(c1))
        k.e("s_mov_b32 s61, 0x%x" % f2u(c1 * 0.044715))
        k.e("s_mov_b32 s62, 0")
        k.e("s_nop 7")
        for i in range(4):
            k.e("v_mul_f32 v22, s60, v%d" % (vR + i))
            k.e("v_mul_f32 v26, v%d, v%d" % (vR + i, vR + i))
            k.e("v_mul_f32 v24, s61, v%d" % (vR + i))
            k.e("v_mul_f32 v24, v24, v26")
            k.e("v_mov_b32 v23, v22")
            k.e("v_mov_b32 v25, v24")
            k.e("v_mov_b32 v27, v26")
            k.e("v_mov_b32 v36, v%d" % (vM + i))
            k.e("v_mov_b32 v37, v%d" % (vM + i))
            for f in range(NF):
                G, U = acc(i, 2 * f), acc(i, 2 * f + 1)
                T, P = 28, 32
                for h in range(2):
                    k.e("v_pk_fma_f32 %s, %s, v[36:37], %s" % (vr(G + 2 * h, 2), vr(CSR + 8 * f + 2 * h, 2), vr(G + 2 * h, 2)))
                    k.e("v_pk_fma_f32 %s, %s, v[36:37], %s" % (vr(U + 2 * h, 2), vr(CSR + 8 * f + 4 + 2 * h, 2), vr(U + 2 * h, 2)))
                for h in range(2):
                    k.e("v_pk_mul_f32 %s, %s, %s" % (vr(T + 2 * h, 2), vr(G + 2 * h, 2), vr(G + 2 * h, 2)))
                for h in range(2):
                    k.e("v_pk_fma_f32 %s, %s, v[24:25], v[22:23]" % (vr(T + 2 * h, 2), vr(T + 2 * h, 2)))
                for h in range(2):
                    k.e("v_pk_mul_f32 %s, %s, %s" % (vr(T + 2 * h, 2), vr(T + 2 * h, 2), vr(G + 2 * h, 2)))
                for r in range(4):
                    k.e("v_exp_f32 v%d, v%d" % (T + r, T + r))
                for h in range(2):
                    k.e("v_pk_mul_f32 %s, %s, %s" % (vr(P + 2 * h, 2), vr(G + 2 * h, 2), vr(U + 2 * h, 2)))
                for h in range(2):
                    k.e("v_pk_add_f32 %s, %s, v[20:21]" % (vr(T + 2 * h, 2), vr(T + 2 * h, 2)))
                for r in range(4):
                    k.e("v_rcp_f32 v%d, v%d" % (T + r, T + r))
                for h in range(2):
                    k.e("v_pk_mul_f32 %s, %s, v[26:27]" % (vr(P + 2 * h, 2), vr(P + 2 * h, 2)))
                for h in range(2):
                    k.e("v_pk_mul_f32 %s, %s, %s" % (vr(P + 2 * h, 2), vr(P + 2 * h, 2), vr(T + 2 * h, 2)))
                if f < 4:
                    R = acc(i, 2 * (f & ~1)) + 2 * (f & 1)
                else:
                    R = acc(i & ~1, 8) + 2 * (i & 1)
                k.e("v_cvt_pk_bf16_f32 v%d, v%d, v%d" % (R, P, P + 1))
                k.e("v_cvt_pk_bf16_f32 v%d, v%d, v%d" % (R + 1, P + 2, P + 3))
                if (f < 4 and f & 1) or (f == 4 and i & 1):
                    B0 = R - 2
                    k.e("s_nop 1")
                    k.e("v_permlane16_swap_b32 v%d, v%d" % (B0, B0 + 2))
                    k.e("v_permlane16_swap_b32 v%d, v%d" % (B0 + 1, B0 + 3))
                    if f < 4:
                        k.vm("buffer_store_dwordx4 %s, v14, %s, s62 offen offset:%d sc1" % (vr(B0, 4), sr(SO, 4), (f - 1) * 512))
                    else:
                        k.e("s_sub_u32 s63, s62, 147456")
                        k.vm("buffer_store_dwordx4 %s, v15, %s, s63 offen offset:%d sc1" % (vr(B0, 4), sr(SO, 4), 4 * 512))
            k.e("s_add_u32 s62, s62, 147456")
    k.label(lab_done)
    if "prio" in EXP:
        k.e("s_setprio 0")
    srd(k, 64, P_WS, FLG_OFF + 32768, 1024)
    k.e("s_lshr_b32 s60, s7, 8")
    k.e("s_lshl_b32 s60, s60, 5")
    k.e("s_add_u32 s60, s60, s9")
    k.e("s_lshl_b32 s60, s60, 2")
    k.e("v_mov_b32 v1, s60")
    k.e("v_mov_b32 v2, 1")
    k.e("s_waitcnt vmcnt(0)")
    k.e("s_barrier")
    lab_nf = k.newlab("nf")
    k.e("s_cmp_lg_u32 s4, 0")
    k.e("s_cbranch_scc1 %s" % lab_nf)
    k.e("s_mov_b64 exec, 1")
    k.e("buffer_store_dword v2, v1, s[64:67], 0 offen sc1")
    k.e("s_mov_b64 exec, -1")
    k.label(lab_nf)
    k.lq, k.vq = [], []
    stamp(k, 3)
    stamp_flush(k, 6)
    k.e("s_mov_b64 exec, -1")
    return gen_k4(k)


def gen_k4(k):
    SB = 40960
    NBUF = 4
    k.stamp_slot = 3
    stamp(k, 0)
    SA, SBd, SP, SO, SH, SD = 36, 40, 44, 48, 52, 64
    sKA, sKB, sMA, sMB = 56, 57, 58, 59
    k.e("s_and_b32 s9, s2, 3")
    k.e("s_bfe_u32 s60, s2, 0x10002")
    k.e("s_lshr_b32 s61, s2, 3")
    k.e("s_lshr_b32 s62, s61, 2")
    k.e("s_lshl_b32 s60, s60, 3")
    k.e("s_add_u32 s60, s60, s62")
    k.e("s_lshl_b32 s7, s60, 7")
    k.e("s_and_b32 s61, s61, 3")
    k.e("s_mul_i32 s8, s61, 144")
    k.e("s_lshl_b32 s10, s60, 2")
    k.e("s_add_u32 s10, s10, s61")
    k.e("s_and_b32 s11, s4, 3")
    k.e("s_lshr_b32 s5, s11, 1")
    k.e("s_and_b32 s6, s11, 1")
    k.e("v_and_b32 v16, 15, v0")
    k.e("v_lshrrev_b32 v17, 4, v0")
    lab_comp = k.newlab("comp")
    k.e("s_cmp_lt_u32 s4, 4")
    k.e("s_cbranch_scc1 %s" % lab_comp)
    srd(k, SA, P_WS, ACT_OFF, S * F * 2)
    srd(k, SBd, P_WD, 0, F * D * 2)
    vOA, vOB = 2, 8
    k.e("s_lshr_b32 s60, s7, 4")
    k.e("s_lshl_b32 s61, s11, 1")
    k.e("s_add_u32 s60, s60, s61")
    k.e("s_mul_i32 s60, s60, 147456")
    k.e("s_mul_i32 s61, s9, 36864")
    k.e("s_add_u32 s60, s60, s61")
    k.e("v_lshlrev_b32 v19, 4, v0")
    k.e("v_add_u32 v%d, s60, v19" % vOA)
    k.e("v_add_u32 v%d, 1024, v%d" % (vOA + 1, vOA))
    k.e("v_add_u32 v%d, %d, v%d" % (vOA + 2, 147456, vOA))
    k.e("v_add_u32 v%d, %d, v%d" % (vOA + 3, 147456 + 1024, vOA))
    k.e("s_mul_i32 s64, s11, 48")
    k.e("s_lshl_b32 s62, s8, 1")
    k.e("s_and_b32 s62, s62, 0xffffff80")
    k.e("s_mul_i32 s61, s9, 1152 * 1152")
    k.e("s_add_u32 s62, s62, s61")
    k.e("s_movk_i32 s63, 1152")
    for i in range(6):
        b_dma_addr(k, vOB + i, 64, 8 * i, 3, 63, 62, reg_row=32)
    k.e("s_mov_b32 s%d, 0" % sKA)
    k.e("s_mov_b32 s%d, 0" % sKB)
    k.e("s_lshl_b32 s%d, s11, 12" % sMA)
    k.e("s_mul_i32 s%d, s11, 6144" % sMB)
    k.e("s_add_u32 s%d, s%d, 16384" % (sMB, sMB))

    def dmaA(st):
        b = (st % NBUF) * SB
        tag = ("dma", st)
        g = []
        for i in range(4):
            x = [("s_add_u32 m0, s%d, %d" % (sMA, b + i * 1024), None), ("s_nop 0", None),
                 ("buffer_load_dwordx4 v%d, %s, s%d offen sc1 lds" % (vOA + i, sr(SA, 4), sKA), tag)]
            if i == 3:
                x.append(("s_add_u32 s%d, s%d, 2048" % (sKA, sKA), None))
            g.append(x)
        return g

    def dmaB(st):
        b = (st % NBUF) * SB
        tag = ("dma", st)
        g = []
        for i in range(6):
            x = [("s_add_u32 m0, s%d, %d" % (sMB, b + i * 1024), None), ("s_nop 0", None)]
            x.append(("buffer_load_dwordx4 v%d, %s, s%d offen lds" % (vOB + i, sr(SBd, 4), sKB), tag))
            if i == 5:
                x.append(("s_add_u32 s%d, s%d, %d" % (sKB, sKB, 64 * 1152), None))
            g.append(x)
        return g

    def dma(st):
        return dmaA(st) + dmaB(st)
    for st in range(NBUF - 1):
        issue_groups(k, dmaB(st))
    srd(k, 84, P_WS, FLG_OFF + 32768, 1024)
    k.e("s_lshr_b32 s60, s7, 8")
    k.e("s_lshl_b32 s60, s60, 7")
    k.e("s_lshl_b32 s61, s9, 5")
    k.e("s_add_u32 s60, s60, s61")
    k.e("v_mov_b32 v20, s60")
    lab_p = k.newlab("pollA")
    lab_g = k.newlab("goA")
    k.label(lab_p)
    k.e("buffer_load_dwordx4 v[24:27], v20, s[84:87], 0 offen sc1")
    k.e("buffer_load_dwordx4 v[28:31], v20, s[84:87], 0 offen offset:16 sc1")
    k.e("s_waitcnt vmcnt(0)")
    k.e("v_add3_u32 v24, v24, v25, v26")
    k.e("v_add3_u32 v24, v24, v27, v28")
    k.e("v_add3_u32 v24, v24, v29, v30")
    k.e("v_add_u32 v24, v24, v31")
    k.e("s_nop 0")
    k.e("v_readfirstlane_b32 s61, v24")
    k.e("s_cmp_ge_u32 s61, 8")
    k.e("s_cbranch_scc1 %s" % lab_g)
    k.e("s_sleep %d" % (0 if "sleep0" in EXP else 2))
    k.e("s_branch %s" % lab_p)
    k.label(lab_g)
    k.vq = []
    for st in range(NBUF - 1):
        issue_groups(k, dmaA(st))
    k.wait_vm(("dma", 0))
    k.e("s_barrier")
    for s_ in range(17):
        k.wait_vm(("dma", s_ + 1))
        k.e("s_barrier")
        if s_ + NBUF - 1 < 18:
            issue_groups(k, dma(s_ + NBUF - 1))
    k.e("s_endpgm")
    k.label(lab_comp)
    k.lq, k.vq = [], []
    srd(k, SP, P_WS, PART_OFF, 64 * 16 * 18432)
    srd(k, SO, P_OUT, 0, S * D * 2)
    srd(k, SH, P_WS, H_OFF, S * D * 2)
    srd(k, SD, P_WS, FLG_OFF, 256 * 128)
    vA, vB = 2, 24
    ACC = 112
    afr = [[48, 52], [56, 60]]
    bring = [64 + 4 * q for q in range(8)]
    acc = lambda i, nj: ACC + (i * 9 + nj) * 4
    k.e("s_lshl_b32 s60, s4, 12")
    k.e("v_lshlrev_b32 v18, 4, v0")
    k.e("v_add_u32 v%d, s60, v18" % vA)
    for b_ in range(1, 4):
        k.e("v_add_u32 v%d, %d, v%d" % (vA + b_, b_ * SB, vA))
    k.e("s_bfe_u32 s62, s8, 0x20004")
    k.e("s_movk_i32 s63, 16384")
    b_rd_addr3(k, vB, 62, 63)
    for b_ in range(1, 4):
        for q in range(4):
            k.e("v_add_u32 v%d, %d, v%d" % (vB + 4 * b_ + q, b_ * SB, vB + q))

    def a_rd(buf, i, kk):
        return vA + buf, i * 2048 + kk * 1024

    def b_rd(buf, nj, j, kk):
        return vB + 4 * buf + (nj & 3), kk * 12288 + j * 3072 + (nj >> 2) * 128
    gemm_core(k, 18, NBUF, 2, acc, afr, bring, 6, a_rd, b_rd, lambda st: [], True, sub=2)
    stamp(k, 1)
    k.c("---- epilogue: cross-workgroup reduction")
    k.e("v_lshlrev_b32 v18, 4, v0")
    k.e("s_lshl_b32 s60, s10, 2")
    k.e("s_add_u32 s60, s60, s9")
    k.e("s_lshl_b32 s60, s60, 2")
    k.e("s_add_u32 s60, s60, s4")
    k.e("s_mul_i32 s60, s60, 9216")
    k.e("v_add_u32 v21, s60, v18")
    k.e("s_lshl_b32 s60, s10, 2")
    k.e("s_add_u32 s61, s60, s4")
    k.e("s_lshl_b32 s61, s61, 7")
    k.e("s_lshl_b32 s62, s9, 2")
    k.e("s_add_u32 s61, s61, s62")
    k.e("v_mov_b32 v23, s61")
    k.e("s_add_u32 s60, s60, s9")
    k.e("s_lshl_b32 s60, s60, 7")
    k.e("v_mov_b32 v26, s60")
    k.e("v_mov_b32 v24, 1")
    k.e("s_nop 7")
    k.e("s_barrier")
    lab_own = k.newlab("own")
    lab_j = k.newlab("j")
    k.e("s_cmp_eq_u32 s4, s9")
    k.e("s_cbranch_scc1 %s" % lab_own)
    for t in range(9):
        a = ACC + 8 * t
        for d in range(4):
            k.e("v_cvt_pk_bf16_f32 v%d, v%d, v%d" % (a + d, a + 2 * d, a + 2 * d + 1))
        sreg = "0"
        off = t * 1024
        if off >= 4096:
            k.e("s_movk_i32 s61, %d" % (off & ~4095))
            sreg = "s61"
        k.e("buffer_store_dwordx4 %s, v21, %s, %s offen offset:%d sc1" % (vr(a, 4), sr(SP, 4), sreg, off & 4095))
    k.e("s_barrier")
    k.e("s_branch %s" % lab_j)
    k.label(lab_own)
    for t in range(18):
        k.e("ds_write_b128 v18, %s offset:%d" % (vr(ACC + 4 * t, 4), t * 1024))
    k.e("s_waitcnt lgkmcnt(0)")
    k.e("s_barrier")
    k.e("s_branch L_%s_end" % k.name)
    k.label(lab_j)
    k.e("s_sub_u32 s62, s4, s9")
    k.e("s_sub_u32 s62, s62, 1")
    k.e("s_and_b32 s62, s62, 3")
    k.e("s_mul_i32 s63, s62, 6144")
    k.e("v_add_u32 v22, s63, v18")
    OWN = 48
    for t in range(6):
        k.lds("ds_read_b128 %s, v22 offset:%d" % (vr(OWN + 4 * t, 4), t * 1024), "own")
    k.e("s_lshl_b32 s60, s9, 5")
    k.e("s_add_u32 s60, s60, s7")
    k.e("v_add_u32 v19, s60, v16")
    k.e("v_mul_u32_u24 v19, 1152, v19")
    k.e("v_lshlrev_b32 v20, 3, v17")
    k.e("s_lshl_b32 s60, s8, 1")
    k.e("v_add3_u32 v19, v19, v20, s60")
    fl_lane(k, 44, 45)
    k.e("s_lshr_b32 s60, s7, 4")
    k.e("s_lshl_b32 s61, s9, 1")
    k.e("s_add_u32 s60, s60, s61")
    k.e("s_mul_i32 s60, s60, 18432")
    k.e("s_lshl_b32 s61, s8, 5")
    k.e("s_add_u32 s60, s60, s61")
    k.e("v_add_u32 v44, s60, v44")
    k.e("s_waitcnt vmcnt(0)")
    k.e("s_mov_b64 exec, 1")
    k.e("buffer_store_dword v24, v23, %s, 0 offen sc1" % sr(SD, 4))
    k.e("s_mov_b64 exec, -1")
    k.e("s_mul_i32 s62, s62, 6")
    HR = 96
    for t in range(6):
        k.e("s_add_u32 s60, s62, %d" % t)
        k.e("s_cmp_ge_u32 s60, 9")
        k.e("s_cselect_b32 s61, %d, 0" % (16 * 1152 - 9 * 32))
        k.e("s_cselect_b32 s69, %d, 0" % (18432 - 9 * 512))
        k.e("s_lshl_b32 s68, s60, 9")
        k.e("s_add_u32 s68, s68, s69")
        k.e("s_lshl_b32 s60, s60, 5")
        k.e("s_add_u32 s%d, s60, s61" % (84 + t))
        k.e("buffer_load_dwordx2 %s, v44, %s, s68 offen sc1" % (vr(HR + 2 * t, 2), sr(SH, 4)))
    stamp(k, 2)
    lab_poll = k.newlab("poll")
    lab_go = k.newlab("go")
    k.label(lab_poll)
    k.e("buffer_load_dwordx4 v[28:31], v26, %s, 0 offen sc1" % sr(SD, 4))
    k.e("s_waitcnt vmcnt(0)")
    k.e("v_add_u32 v28, v28, v29")
    k.e("v_add3_u32 v28, v28, v30, v31")
    k.e("s_nop 0")
    k.e("v_readfirstlane_b32 s61, v28")
    k.e("s_cmp_ge_u32 s61, 3")
    k.e("s_cbranch_scc1 %s" % lab_go)
    k.e("s_sleep 1")
    k.e("s_branch %s" % lab_poll)
    k.label(lab_go)
    if STAMP:
        k.e("s_memtime s[82:83]")
        k.e("s_waitcnt lgkmcnt(0)")
        k.lq = []
    k.e("s_lshl_b32 s60, s10, 4")
    k.e("s_add_u32 s60, s60, s9")
    k.e("s_mul_i32 s60, s60, 9216")
    k.e("s_lshr_b32 s63, s63, 1")
    k.e("s_add_u32 s60, s60, s63")
    k.e("v_add_u32 v21, s60, v18")
    k.vq = []
    for o in range(1, 4):
        k.e("s_add_u32 s61, s9, %d" % o)
        k.e("s_and_b32 s61, s61, 3")
        k.e("s_mul_i32 s61, s61, %d" % (4 * 9216))
        for t in range(3):
            k.vm("buffer_load_dwordx4 %s, v21, %s, s61 offen offset:%d sc1" % (vr(ACC + 12 * (o - 1) + 4 * t, 4), sr(SP, 4), t * 1024), ("p", o, t))
    k.wait_lds("own")
    for t in range(6):
        a = OWN + 4 * t
        for d in range(2):
            k.e("v_lshlrev_b32 v42, 16, v%d" % (HR + 2 * t + d))
            k.e("v_and_b32 v43, 0xffff0000, v%d" % (HR + 2 * t + d))
            k.e("v_add_f32 v%d, v%d, v42" % (a + 2 * d, a + 2 * d))
            k.e("v_add_f32 v%d, v%d, v43" % (a + 2 * d + 1, a + 2 * d + 1))
    for o in range(1, 4):
        for t in range(6):
            a = OWN + 4 * t
            k.wait_vm(("p", o, t >> 1))
            for d in range(2):
                x = ACC + 12 * (o - 1) + 2 * t + d
                k.e("v_lshlrev_b32 v42, 16, v%d" % x)
                k.e("v_and_b32 v43, 0xffff0000, v%d" % x)
                k.e("v_add_f32 v%d, v%d, v42" % (a + 2 * d, a + 2 * d))
                k.e("v_add_f32 v%d, v%d, v43" % (a + 2 * d + 1, a + 2 * d + 1))
            if o == 3:
                k.e("v_cvt_pk_bf16_f32 v%d, v%d, v%d" % (HR + 2 * t, a, a + 1))
                k.e("v_cvt_pk_bf16_f32 v%d, v%d, v%d" % (HR + 1 + 2 * t, a + 2, a + 3))
                k.vm("buffer_store_dwordx2 %s, v19, %s, s%d offen" % (vr(HR + 2 * t, 2), sr(SO, 4), 84 + t))
    stamp(k, 3)
    stamp_flush(k, 7)
    footer(k)
    return k, 256


def gen_k5():
    k = K("red")
    nwg = S * D // 8 // 256
    k.e("s_cmp_ge_u32 s2, %d" % nwg)
    k.e("s_cbranch_scc1 L_%s_end" % k.name)
    k.e("s_load_dwordx16 s[16:31], s[0:1], 0")
    k.e("s_load_dwordx4 s[32:35], s[0:1], 64")
    k.e("s_lshl_b32 s3, s2, 8")
    k.e("v_add_u32 v1, s3, v0")
    k.e("v_lshlrev_b32 v2, 4, v1")
    k.e("v_lshlrev_b32 v3, 5, v1")
    k.e("s_waitcnt lgkmcnt(0)")
    srd(k, 36, P_WS, H_OFF, S * D * 2)
    srd(k, 40, P_WS, PART_OFF, 4 * S * D * 4)
    srd(k, 44, P_OUT, 0, S * D * 2)
    k.e("buffer_load_dwordx4 v[4:7], v2, s[36:39], 0 offen")
    for p in range(4):
        k.e("s_mov_b32 s48, 0x%x" % (p * S * D * 4))
        k.e("buffer_load_dwordx4 %s, v3, s[40:43], s48 offen" % vr(8 + p * 8, 4))
        k.e("buffer_load_dwordx4 %s, v3, s[40:43], s48 offen offset:16" % vr(12 + p * 8, 4))
    k.e("s_waitcnt vmcnt(0)")
    for r in range(8):
        k.e("v_add_f32 v%d, v%d, v%d" % (8 + r, 8 + r, 16 + r))
        k.e("v_add_f32 v%d, v%d, v%d" % (24 + r, 24 + r, 32 + r))
    for r in range(8):
        k.e("v_add_f32 v%d, v%d, v%d" % (8 + r, 8 + r, 24 + r))
    for d in range(4):
        k.e("v_lshlrev_b32 v40, 16, v%d" % (4 + d))
        k.e("v_and_b32 v41, 0xffff0000, v%d" % (4 + d))
        k.e("v_add_f32 v%d, v%d, v40" % (8 + 2 * d, 8 + 2 * d))
        k.e("v_add_f32 v%d, v%d, v41" % (9 + 2 * d, 9 + 2 * d))
    for d in range(4):
        k.e("v_cvt_pk_bf16_f32 v%d, v%d, v%d" % (4 + d, 8 + 2 * d, 9 + 2 * d))
    k.e("buffer_store_dwordx4 v[4:7], v2, s[44:47], 0 offen")
    footer(k)
    return k, nwg


def gen_k2(k):
    k.label("L_mega_p2start")
    k.stamp_slot = 1
    SB = 4096 + 24576
    NBUF = 5
    stamp(k, 0)
    SA, SBd, SX, SH, SST, SCP, SCS = 36, 40, 44, 48, 52, 64, 96
    sKA, sKB, sMA, sMB = 56, 57, 58, 59
    k.e("s_and_b32 s9, s2, 3")
    k.e("s_lshr_b32 s60, s2, 2")
    k.e("s_lshl_b32 s7, s60, 5")
    k.e("s_mul_i32 s8, s9, 144")
    k.e("s_lshr_b32 s5, s4, 1")
    k.e("s_and_b32 s6, s4, 1")
    srd(k, SA, P_WS, O_OFF, S * D * 2)
    srd(k, SBd, P_WO, 0, D * D * 2)
    srd(k, SX, P_X, 0, S * D * 2)
    srd(k, SH, P_WS, H_OFF, S * D * 2)
    srd(k, SST, P_WS, ST_OFF, S * 32)
    lab_idle = k.newlab("idle")
    lab_p2done = k.newlab("p2done")
    k.e("s_cmp_ge_u32 s4, 4")
    k.e("s_cbranch_scc1 %s" % lab_idle)
    vOA, vOB = 2, 8
    vA, vB = 24, 28
    ACC = 112
    afr = [[48], [52]]
    bring = [56, 60, 64, 68, 72, 76]
    acc = lambda i, nj: ACC + nj * 4
    XR = 80
    CPR = 184
    k.e("v_and_b32 v16, 15, v0")
    k.e("v_lshrrev_b32 v17, 4, v0")
    k.e("s_lshl_b32 s60, s5, 4")
    k.e("s_add_u32 s60, s60, s7")
    k.e("v_add_u32 v31, s60, v16")
    k.e("s_movk_i32 s63, 1152")
    k.e("v_mul_lo_u32 v18, v31, s63")
    k.e("v_lshlrev_b32 v19, 3, v17")
    k.e("s_lshl_b32 s62, s8, 1")
    k.e("v_add3_u32 v32, v18, v19, s62")
    for nj in range(9):
        k.vm("buffer_load_dwordx2 %s, v32, %s, 0 offen offset:%d" % (vr(XR + 2 * nj, 2), sr(SX, 4), nj * 32), "x")
    k.e("s_lshr_b32 s60, s7, 4")
    k.e("s_add_u32 s60, s60, s5")
    k.e("s_mul_i32 s60, s60, 18432")
    k.e("s_lshl_b32 s61, s6, 10")
    k.e("s_add_u32 s61, s60, s61")
    k.e("v_lshlrev_b32 v19, 4, v0")
    k.e("v_add_u32 v%d, s61, v19" % vOA)
    fl_lane(k, 37, 18)
    k.e("s_lshl_b32 s61, s8, 5")
    k.e("s_add_u32 s60, s60, s61")
    k.e("v_add_u32 v37, s60, v37")
    k.e("s_mul_i32 s88, s4, 48")
    k.e("s_lshl_b32 s62, s8, 1")
    k.e("s_and_b32 s62, s62, 0xffffff80")
    k.e("s_movk_i32 s63, 1152")
    for i in range(6):
        b_dma_addr(k, vOB + i, 88, 8 * i, 3, 63, 62, reg_row=32)
    k.e("s_mov_b32 s%d, 0" % sKA)
    k.e("s_mov_b32 s%d, 0" % sKB)
    k.e("s_lshl_b32 s%d, s4, 10" % sMA)
    k.e("s_mul_i32 s%d, s4, 6144" % sMB)
    k.e("s_add_u32 s%d, s%d, 4096" % (sMB, sMB))

    def dmaA(st):
        b = (st % NBUF) * SB
        return [[("s_add_u32 m0, s%d, %d" % (sMA, b), None), ("s_nop 0", None),
                 ("buffer_load_dwordx4 v%d, %s, s%d offen sc1 lds" % (vOA, sr(SA, 4), sKA), ("dma", st)),
                 ("s_add_u32 s%d, s%d, 2048" % (sKA, sKA), None)]]

    def dmaB(st):
        b = (st % NBUF) * SB
        tag = ("dma", st)
        g = []
        for i in range(6):
            x = [("s_add_u32 m0, s%d, %d" % (sMB, b + i * 1024), None), ("s_nop 0", None)]
            x.append(("buffer_load_dwordx4 v%d, %s, s%d offen lds" % (vOB + i, sr(SBd, 4), sKB), tag))
            if i == 5:
                x.append(("s_add_u32 s%d, s%d, %d" % (sKB, sKB, 64 * 1152), None))
            g.append(x)
        return g

    def dma(st):
        return dmaA(st) + dmaB(st)
    for st in range(NBUF - 1):
        issue_groups(k, dmaB(st))
    srd(k, 64, P_WS, FLG_OFF + 32768 + 2048, 2048)
    k.e("s_lshr_b32 s60, s2, 3")
    k.e("s_lshl_b32 s60, s60, 6")
    k.e("v_and_b32 v18, 7, v0")
    k.e("v_lshlrev_b32 v18, 3, v18")
    k.e("v_add_u32 v18, s60, v18")
    lab_p = k.newlab("pollO")
    lab_g = k.newlab("goO")
    k.e("s_cmp_lg_u32 s4, 0")
    k.e("s_cbranch_scc1 %s" % lab_g)
    k.label(lab_p)
    k.e("buffer_load_dwordx2 v[20:21], v18, s[64:67], 0 offen sc1")
    k.e("s_waitcnt vmcnt(0)")
    k.e("v_xor_b32 v20, s100, v20")
    k.e("v_xor_b32 v21, s101, v21")
    k.e("v_or_b32 v20, v20, v21")
    k.e("v_cmp_ne_u32 vcc, 0, v20")
    k.e("s_nop 1")
    k.e("s_cmp_eq_u64 vcc, 0")
    k.e("s_cbranch_scc1 %s" % lab_g)
    k.e("s_sleep 1")
    k.e("s_branch %s" % lab_p)
    k.label(lab_g)
    k.e("s_barrier")
    for st in range(NBUF - 1):
        issue_groups(k, dmaA(st))
    k.e("v_lshlrev_b32 v18, 4, v0")
    k.e("v_add_u32 v%d, s%d, v18" % (vA, sMA))
    for q in range(1, 3):
        k.e("v_add_u32 v%d, %d, v%d" % (vA + q, 2 * SB * q, vA))
    vB = 100
    k.e("s_bfe_u32 s62, s8, 0x20004")
    k.e("s_mul_i32 s63, s6, 12288")
    k.e("s_add_u32 s63, s63, 4096")
    b_rd_addr3(k, vB, 62, 63)
    for b_ in range(1, 3):
        for q in range(4):
            k.e("v_add_u32 v%d, %d, v%d" % (vB + 4 * b_ + q, 2 * b_ * SB, vB + q))

    def a_rd(buf, i):
        return vA + (buf >> 1), (buf & 1) * SB

    def b_rd(buf, nj, j):
        return vB + 4 * (buf >> 1) + (nj & 3), (buf & 1) * SB + j * 3072 + (nj >> 2) * 128
    stamp(k, 1)
    gemm_core(k, 9, NBUF, 1, acc, afr, bring, 4, a_rd, b_rd, dma, True)
    stamp(k, 2)
    k.c("---- epilogue")
    k.e("s_nop 7")
    k.e("s_nop 7")
    k.e("s_barrier")
    k.wait_vm("x")
    k.e("s_mul_i32 s60, s5, 9216")
    k.e("v_lshlrev_b32 v18, 4, v0")
    k.e("v_add_u32 v19, s60, v18")
    lab_recv = k.newlab("recv")
    k.e("s_cmp_eq_u32 s6, 0")
    k.e("s_cbranch_scc1 %s" % lab_recv)
    for nj in range(9):
        k.lds("ds_write_b128 v19, %s offset:%d" % (vr(acc(0, nj), 4), nj * 1024))
    k.wait_lds_all()
    k.e("s_barrier")
    k.e("s_branch %s" % lab_p2done)
    k.label(lab_recv)
    k.e("s_barrier")
    R = 48
    RX = 148
    for nj in range(9):
        k.lds("ds_read_b128 %s, v19 offset:%d" % (vr(RX + nj * 4, 4), nj * 1024), ("x", nj))
    k.e("v_mov_b32 v40, 0")
    k.e("v_mov_b32 v41, 0")
    for nj in range(9):
        k.wait_lds(("x", nj))
        a = acc(0, nj)
        for r in range(4):
            k.e("v_add_f32 v%d, v%d, v%d" % (a + r, a + r, RX + nj * 4 + r))
        for d in range(2):
            k.e("v_lshlrev_b32 v42, 16, v%d" % (XR + 2 * nj + d))
            k.e("v_and_b32 v43, 0xffff0000, v%d" % (XR + 2 * nj + d))
            k.e("v_add_f32 v%d, v%d, v42" % (a + 2 * d, a + 2 * d))
            k.e("v_add_f32 v%d, v%d, v43" % (a + 2 * d + 1, a + 2 * d + 1))
        k.e("v_cvt_pk_bf16_f32 v%d, v%d, v%d" % (XR + 2 * nj, a, a + 1))
        k.e("v_cvt_pk_bf16_f32 v%d, v%d, v%d" % (XR + 2 * nj + 1, a + 2, a + 3))
        if nj == 8:
            k.e("s_movk_i32 s60, 4096")
        k.vm("buffer_store_dwordx2 %s, v37, %s, %s offen offset:%d" % (vr(XR + 2 * nj, 2), sr(SH, 4), "s60" if nj == 8 else "0", (nj * 512) & 4095) + " sc1")
        for d in range(2):
            k.e("v_lshlrev_b32 v42, 16, v%d" % (XR + 2 * nj + d))
            k.e("v_and_b32 v43, 0xffff0000, v%d" % (XR + 2 * nj + d))
            k.e("v_add_f32 v40, v40, v42")
            k.e("v_fmac_f32 v41, v42, v42")
            k.e("v_add_f32 v40, v40, v43")
            k.e("v_fmac_f32 v41, v43, v43")
    k.e("v_xor_b32 v44, 16, v0")
    k.e("v_lshlrev_b32 v44, 2, v44")
    k.e("v_xor_b32 v45, 32, v0")
    k.e("v_lshlrev_b32 v45, 2, v45")
    for a in (44, 45):
        k.e("ds_bpermute_b32 v42, v%d, v40" % a)
        k.e("ds_bpermute_b32 v43, v%d, v41" % a)
        k.e("s_waitcnt lgkmcnt(0)")
        k.e("v_add_f32 v40, v40, v42")
        k.e("v_add_f32 v41, v41, v43")
    k.e("v_lshlrev_b32 v42, 5, v31")
    k.e("s_lshl_b32 s60, s9, 3")
    k.e("v_add_u32 v42, s60, v42")
    k.e("s_mov_b64 exec, 0xffff")
    k.e("buffer_store_dwordx2 v[40:41], v42, %s, 0 offen sc1" % sr(SST, 4))
    k.e("s_mov_b64 exec, -1")
    stamp(k, 3)
    stamp_flush(k, 6)
    k.e("s_mov_b64 exec, -1")
    k.e("s_branch %s" % lab_p2done)
    k.label(lab_idle)
    if "tself" in EXP:
        touch_code(k, "L_ffn_p3start", "L_ffn_pc", FFN_TAIL_BYTES, 4, 4, 4)
    if "tidle" in EXP:
        k.e("s_sub_u32 s4, s4, 4")
        touch(k, 96, P_WG, D * F * 2, 1024, 4, 18, 1)
        touch(k, 96, P_WU, D * F * 2, 1024, 4, 18, 1)
        k.e("s_add_u32 s4, s4, 4")
    for _ in range(12):
        k.e("s_barrier")
    k.label(lab_p2done)
    srd(k, 64, P_WS, FLG_OFF + 32768 + 1024, 1024)
    k.e("s_lshl_b32 s60, s2, 2")
    k.e("v_mov_b32 v1, s60")
    k.e("v_mov_b32 v2, 1")
    k.e("s_waitcnt vmcnt(0) lgkmcnt(0)")
    k.e("s_barrier")
    lab_nf = k.newlab("nf")
    k.e("s_cmp_lg_u32 s4, 0")
    k.e("s_cbranch_scc1 %s" % lab_nf)
    k.e("s_mov_b64 exec, 1")
    k.e("buffer_store_dword v2, v1, s[64:67], 0 offen sc1")
    k.e("s_mov_b64 exec, -1")
    k.label(lab_nf)
    k.lq, k.vq = [], []
    return gen_k3(k)


def gen_k1():
    k = K("mega")
    WS_, NW = 24576, 5
    XS_, NX = 10240, 3
    XB = WS_ * NW
    QP = 976
    STO = 80 * QP
    header(k, 256)
    if "tk1" in EXP:
        touch_code(k, "L_qkv_pc0", "L_qkv_pc0", 13568, 1, 0, 8)
    stamp(k, 0)
    SX, SW, SO, SG, SCP = 36, 40, 44, 48, 52
    sKW, sKX, sMW, sMX = 56, 57, 58, 59
    lab_nn = k.newlab("nn")
    k.e("s_or_b32 s60, s2, s4")
    k.e("s_cmp_lg_u32 s60, 0")
    k.e("s_cbranch_scc1 %s" % lab_nn)
    k.e("s_memrealtime s[100:101]")
    srd(k, 64, P_DBG, 0, 256)
    k.e("s_waitcnt lgkmcnt(0)")
    k.e("s_or_b32 s60, s100, 1")
    k.e("s_xor_b32 s61, s101, 0x5bd1e995")
    k.e("v_mov_b32 v2, s60")
    k.e("v_mov_b32 v3, s61")
    k.e("v_mov_b32 v1, 0")
    k.e("s_mov_b64 exec, 1")
    k.e("buffer_store_dwordx2 v[2:3], v1, s[64:67], 0 offen sc1")
    k.e("s_mov_b64 exec, -1")
    k.e("s_waitcnt vmcnt(0)")
    k.label(lab_nn)
    k.e("s_and_b32 s9, s2, 7")
    k.e("s_lshr_b32 s10, s2, 3")
    srd(k, SX, P_X, 0, S * D * 2)
    srd(k, SW, P_WQKV, 0, D * 3 * D * 2)
    srd(k, SO, P_WS, O_OFF, S * D * 2)
    if "tfirst" in EXP:
        touch(k, 96, P_X, S * D * 2, 2048, 8, 18, 1)
        touch(k, 96, P_WQKV, D * 3 * D * 2, 2048, 8, 18, 1)
    k.e("v_and_b32 v16, 15, v0")
    k.e("v_lshrrev_b32 v17, 4, v0")
    vO = 2
    k.e("s_mul_i32 s64, s4, 24")
    k.e("s_mul_i32 s65, s9, 144")
    k.e("s_and_b32 s62, s65, 0xffffff80")
    k.e("s_movk_i32 s63, 3456")
    for t in range(3):
        b_dma_addr(k, vO + t, 64, 8 * t, 2, 63, 62, reg_col=1152)
    k.e("s_lshl_b32 s60, s10, 6")
    k.e("s_lshl_b32 s61, s4, 4")
    k.e("s_add_u32 s60, s60, s61")
    k.e("s_sub_u32 s60, s60, 16")
    k.e("v_add_u32 v18, s60, v16")
    k.e("s_movk_i32 s63, 1152")
    k.e("v_mul_lo_u32 v18, v18, s63")
    k.e("v_lshlrev_b32 v19, 4, v17")
    k.e("v_add_u32 v%d, v18, v19" % (vO + 3))
    k.e("v_add_u32 v%d, 64, v%d" % (vO + 4, vO + 3))
    k.e("s_mov_b32 s%d, 0" % sKW)
    k.e("s_mov_b32 s%d, 0" % sKX)
    k.e("s_mul_i32 s%d, s4, 3072" % sMW)
    k.e("s_lshl_b32 s%d, s4, 11" % sMX)

    def dmaW(st):
        b = (st % NW) * WS_
        g = []
        for t in range(3):
            x = [("s_add_u32 m0, s%d, %d" % (sMW, b + t * 1024), None), ("s_nop 0", None),
                 ("buffer_load_dwordx4 v%d, %s, s%d offen lds" % (vO + t, sr(SW, 4), sKW), ("dma", st))]
            if t == 2:
                x.append(("s_add_u32 s%d, s%d, %d" % (sKW, sKW, 32 * 3456), None))
            g.append(x)
        return g

    def dmaX(xs):
        b = XB + (xs % NX) * XS_
        g = []
        for t in range(2):
            x = [("s_add_u32 m0, s%d, %d" % (sMX, b + t * 1024), None), ("s_nop 0", None),
                 ("buffer_load_dwordx4 v%d, %s, s%d offen lds" % (vO + 3 + t, sr(SX, 4), sKX), ("dma", 2 * xs))]
            if t == 1:
                x.append(("s_add_u32 s%d, s%d, 128" % (sKX, sKX), None))
            g.append(x)
        return g
    lab_nx = k.newlab("nx")
    k.e("s_cmp_ge_u32 s4, 5")
    k.e("s_cbranch_scc1 %s" % lab_nx)
    issue_groups(k, dmaX(0) + dmaX(1))
    k.label(lab_nx)
    issue_groups(k, dmaW(0) + dmaW(1) + dmaW(2) + dmaW(3))
    if "tfirst" in EXP:
        pass
    elif "newtouch" not in EXP:
        touch(k, 96, P_WQKV, D * 3 * D * 2, 2048, 8, 18, 1)
        touch(k, 96, P_X, S * D * 2, 2048, 8, 18, 1)
    else:
        k.e("s_lshl_b32 s60, s10, 6")
        k.e("s_sub_u32 s60, s60, 16")
        k.e("s_mul_i32 s60, s60, 1152")
        k.e("s_mul_i32 s61, s4, 90 * 128")
        k.e("s_add_u32 s60, s60, s61")
        k.e("v_lshlrev_b32 v18, 7, v0")
        k.e("v_add_u32 v18, s60, v18")
        k.e("v_add_u32 v19, 8192, v18")
        k.vm("buffer_load_dword v1, v18, %s, 0 offen" % sr(SX, 4), "touch")
        k.e("s_mov_b64 exec, 0x3ffffff")
        k.vm("buffer_load_dword v1, v19, %s, 0 offen" % sr(SX, 4), "touch")
        k.e("s_mov_b64 exec, -1")
        k.e("s_mul_i32 s60, s4, 14")
        k.e("v_add_u32 v18, s60, v0")
        k.e("v_mul_u32_u24 v19, 10923, v18")
        k.e("v_lshrrev_b32 v19, 16, v19")
        k.e("v_mul_u32_u24 v20, 6, v19")
        k.e("v_sub_u32 v18, v18, v20")
        k.e("v_lshrrev_b32 v20, 1, v18")
        k.e("v_mul_u32_u24 v20, 1152, v20")
        k.e("v_and_b32 v18, 1, v18")
        k.e("v_lshlrev_b32 v18, 7, v18")
        k.e("s_mul_i32 s60, s10, 18")
        k.e("v_add_u32 v19, s60, v19")
        k.e("v_mul_u32_u24 v19, 3456, v19")
        k.e("s_mul_i32 s60, s9, 144")
        k.e("s_and_b32 s60, s60, 0xffffff80")
        k.e("v_add3_u32 v18, v18, v19, v20")
        k.e("v_add_u32 v18, s60, v18")
        k.e("s_mov_b64 exec, 0x3fff")
        k.vm("buffer_load_dword v1, v18, %s, 0 offen" % sr(SW, 4), "touch")
        k.e("s_mov_b64 exec, -1")
    touch(k, 96, P_WO, D * D * 2, 2048, 8, 18, 1)
    if "notcode" not in EXP:
        k.e("s_getpc_b64 s[88:89]")
        k.label("L_qkv_pc")
        k.e("s_add_u32 s88, s88, L_mega_p2start-L_qkv_pc")
        k.e("s_addc_u32 s89, s89, 0")
        touch(k, 96, 88, 63232, 64, 8, 18, 1)
    CX = 144
    lab_cs3 = k.newlab("cs3")
    k.e("s_mul_i32 s13, s2, 3")
    k.e("s_add_u32 s13, s13, s4")
    k.e("s_sub_u32 s13, s13, 5")
    k.e("s_mul_i32 s14, s13, 3641")
    k.e("s_lshr_b32 s14, s14, 16")
    k.e("s_mul_i32 s15, s14, 18")
    k.e("s_sub_u32 s15, s13, s15")
    k.e("s_lshl_b32 s60, s4, 5")
    k.e("s_add_u32 s61, s60, 160")
    k.e("s_add_u32 s62, s60, 320")
    k.e("s_sub_u32 s60, s4, 5")
    k.e("s_lshl_b32 s60, s60, 6")
    k.e("s_add_u32 s63, s60, 32")
    k.e("s_min_u32 s63, s63, 128")
    k.e("s_cmp_lt_u32 s4, 5")
    k.e("s_cselect_b32 s11, s61, s60")
    k.e("s_cselect_b32 s12, s62, s63")
    k.e("s_cselect_b32 s66, 8192, 0")
    k.e("s_cselect_b32 s67, 16384, 0")
    k.e("s_cselect_b32 s68, 160, 0")
    k.e("s_cselect_b32 s69, 320, 0")
    vB0, vB1, vA, vS = 20, 25, 30, 33
    swap23_lane_rowpos(k, 8, 0, 18, 19)
    k.e("v_bfe_u32 v9, v8, 1, 2")
    k.e("v_and_b32 v10, 1, v8")
    k.e("v_lshlrev_b32 v8, 8, v8")
    k.e("v_and_b32 v11, 3, v0")
    k.e("v_lshlrev_b32 v11, 3, v11")
    k.e("s_and_b32 s65, s65, 127")
    for (vd, sreg, sreb, ssub) in ((vB0, 11, 66, 68), (vB1, 12, 67, 69)):
        k.e("s_sub_u32 s60, s%d, s%d" % (sreg, ssub))
        k.e("s_add_u32 s60, s60, s65")
        k.e("v_add_u32 v18, s60, v11")
        k.e("v_bfe_u32 v19, v18, 7, 1")
        k.e("v_xor_b32 v19, v19, v10")
        k.e("v_lshlrev_b32 v19, 7, v19")
        k.e("v_bfe_u32 v12, v18, 5, 2")
        k.e("v_xor_b32 v12, v12, v9")
        k.e("v_lshlrev_b32 v12, 5, v12")
        k.e("v_and_b32 v18, 31, v18")
        k.e("v_add3_u32 v18, v18, v19, v12")
        k.e("v_add3_u32 v%d, v18, v8, s%d" % (vd, sreb))
    k.e("v_lshlrev_b32 v%d, 4, v0" % vA)
    k.e("v_add_u32 v%d, %d, v%d" % (vA, XB, vA))
    k.e("v_add_u32 v%d, s%d, v%d" % (vS, sMX, vA))
    for b in range(1, NW):
        for v in (vB0, vB1):
            k.e("v_add_u32 v%d, %d, v%d" % (v + b, b * WS_, v))
    for b in range(1, NX):
        for v in (vA, vS):
            k.e("v_add_u32 v%d, %d, v%d" % (v + b, b * XS_, v))
    ONES = 36
    for r in range(4):
        k.e("v_mov_b32 v%d, 0x3f803f80" % (ONES + r))
    ACC = 40
    acc = lambda sl, mi: ACC + (sl * 6 + mi) * 4
    SACC = 88
    AF = [[96 + 4 * mi for mi in range(6)], [120 + 4 * mi for mi in range(6)]]
    BF = [[216, 220], [224, 228]]
    lab_q = k.newlab("qpath")
    lab_post = k.newlab("post")
    k.e("s_cmp_ge_u32 s4, 5")
    k.e("s_cbranch_scc1 %s" % lab_q)
    for path in range(2):
        if path == 1:
            k.e("s_branch %s" % lab_post)
            k.label(lab_q)
        k.lq, k.vq = [], []
        mis = [0, 1, 2, 3, 4] if path == 0 else [1, 2, 3, 4]
        k.vq = [("dma", 0)] * 3 + [("dma", 1)] * 3 + [("dma", 2)] * 3 + [("dma", 3)] * 3 + ["z"] * (3 if "notcode" in EXP else 4)
        def rdl(s):
            xs, kk = divmod(s, 2)
            out = []
            for sl in range(2):
                for j in range(2):
                    out.append("ds_read_b64_tr_b16 %s, v%d offset:%d" % (vr(BF[s % 2][sl] + 2 * j, 2), (vB0, vB1)[sl] + s % NW, j * 2048))
            for mi in mis:
                out.append("ds_read_b128 %s, v%d offset:%d" % (vr(AF[s % 2][mi], 4), vA + xs % NX, (mi * 2 + kk) * 1024))
            if path == 0:
                out.append("ds_read_b128 %s, v%d offset:%d" % (vr(AF[s % 2][5], 4), vS + xs % NX, kk * 1024))
            return out
        if path == 0 and "k1fine" not in EXP:
            stamp(k, 1)
        k.wait_vm(("dma", 0))
        k.e("s_barrier")
        for x in rdl(0):
            k.lds(x, ("f", 0))
        for s in range(18):
            k.c("---- step %d" % s)
            if STAMP and "k1fine" in EXP and path == 0 and s in (1, 6):
                k.e("s_memtime s[%d:%d]" % ((72, 73) if s == 1 else (74, 75)))
            groups = []
            reads = []
            if s + 1 < 18:
                k.wait_vm(("dma", s + 1))
                k.e("s_barrier")
                if path == 0 and s % 2 == 0 and s // 2 + 2 < 9:
                    groups += dmaX(s // 2 + 2)
                if s + NW - 1 < 18:
                    groups += dmaW(s + NW - 1)
                reads = rdl(s + 1)
            if False:
                groups.append([("buffer_load_dwordx4 %s, v7, %s, s88 offen" % (vr(CX + 4 * s, 4), sr(SG, 4)), "cs"),
                               ("s_add_u32 s88, s88, 9216", None)])
            k.wait_lds(("f", s))
            mf = []
            for sl in range(2):
                for mi in mis + [5]:
                    a = acc(sl, mi)
                    cc = "0" if s == 0 else vr(a, 4)
                    bop = vr(AF[s % 2][mi], 4) if mi < 5 else vr(ONES, 4)
                    mf.append("v_mfma_f32_16x16x32_bf16 %s, %s, %s, %s" % (vr(a, 4), vr(BF[s % 2][sl], 4), bop, cc))
            if path == 0:
                sf = vr(AF[s % 2][5], 4)
                mf.append("v_mfma_f32_16x16x32_bf16 %s, %s, %s, %s" % (vr(SACC, 4), vr(ONES, 4), sf, "0" if s == 0 else vr(SACC, 4)))
                mf.append("v_mfma_f32_16x16x32_bf16 %s, %s, %s, %s" % (vr(SACC + 4, 4), sf, sf, "0" if s == 0 else vr(SACC + 4, 4)))
            for n, m in enumerate(mf):
                k.e(m)
                if n < len(reads):
                    k.lds(reads[n], ("f", s + 1))
                g0 = len(mf) - len(groups)
                if n >= g0:
                    issue_groups(k, [groups[n - g0]])
    k.label(lab_post)
    k.lq, k.vq = [], []
    lab_nz = k.newlab("nz")
    k.e("s_cmp_lg_u32 s4, 7")
    k.e("s_cbranch_scc1 %s" % lab_nz)
    srd(k, 84, P_WS, FLG_OFF, 32768 + 2048)
    k.e("s_lshl_b32 s60, s2, 7")
    k.e("v_mov_b32 v2, s60")
    k.e("s_lshl_b32 s60, s2, 2")
    k.e("s_add_u32 s60, s60, 32768")
    k.e("v_mov_b32 v3, s60")
    for r in range(4):
        k.e("v_mov_b32 v%d, 0" % (4 + r))
    k.e("s_mov_b64 exec, 1")
    k.e("buffer_store_dwordx4 v[4:7], v2, s[84:87], 0 offen sc1")
    k.e("buffer_store_dword v4, v3, s[84:87], 0 offen sc1")
    k.e("buffer_store_dword v4, v3, s[84:87], 0 offen offset:1024 sc1")
    k.e("s_mov_b64 exec, -1")
    k.e("s_nop 1")
    k.label(lab_nz)
    if "tmid" in EXP:
        touch(k, 96, P_WG, D * F * 2, 2048, 8, 2, 1)
        touch(k, 96, P_WU, D * F * 2, 2048, 8, 2, 1)
        k.vq = []
    if "k1fine" in EXP:
        k.e("s_waitcnt lgkmcnt(0)")
        stamp(k, 3)
        stamp_flush(k, 6)
        k.e("s_mov_b64 exec, -1")
    else:
        stamp(k, 2)
    k.e("s_nop 7")
    k.e("s_nop 7")
    k.e("s_barrier")
    k.e("v_and_b32 v18, 3, v0")
    k.e("v_cmp_eq_u32 vcc, 1, v18")
    k.e("v_mov_b32 v19, v%d" % (SACC + 4))
    k.e("s_nop 0")
    k.e("v_cndmask_b32 v19, v19, v%d, vcc" % (SACC + 5))
    k.e("v_cmp_eq_u32 vcc, 2, v18")
    k.e("s_nop 1")
    k.e("v_cndmask_b32 v19, v19, v%d, vcc" % (SACC + 6))
    k.e("v_cmp_eq_u32 vcc, 3, v18")
    k.e("s_nop 1")
    k.e("v_cndmask_b32 v19, v19, v%d, vcc" % (SACC + 7))
    k.e("s_mov_b32 s60, 0x%x" % f2u(1.0 / 576.0))
    k.e("s_mov_b32 s61, 0x%x" % f2u(1e-5))
    k.e("v_mul_f32 v8, s60, v%d" % SACC)
    k.e("v_mul_f32 v19, s60, v19")
    k.e("v_fma_f32 v19, -v8, v8, v19")
    k.e("v_max_f32 v19, 0, v19")
    k.e("v_add_f32 v19, s61, v19")
    k.e("v_rsq_f32 v9, v19")
    k.e("v_sub_f32 v8, 0, v8")
    k.e("v_lshrrev_b32 v18, 2, v16")
    k.e("v_cmp_eq_u32 vcc, v18, v17")
    k.e("s_lshl_b32 s60, s4, 7")
    k.e("v_lshlrev_b32 v18, 3, v16")
    k.e("v_add_u32 v18, s60, v18")
    k.e("v_add_u32 v18, %d, v18" % STO)
    k.e("s_and_saveexec_b64 s[60:61], vcc")
    k.e("ds_write_b64 v18, v[8:9]")
    k.e("s_mov_b64 exec, -1")
    k.e("s_waitcnt lgkmcnt(0)")
    k.e("s_barrier")
    k.e("v_lshlrev_b32 v18, 3, v16")
    k.e("v_add_u32 v18, %d, v18" % STO)
    for mi in range(5):
        k.lds("ds_read_b64 %s, v18 offset:%d" % (vr(96 + 2 * mi, 2), mi * 128), "st")
    for sl, sreg in ((0, 11), (1, 12)):
        k.e("s_lshl_b32 s60, s%d, 1" % sreg)
        k.e("v_mul_u32_u24 v18, %d, v16" % QP)
        k.e("v_lshlrev_b32 v19, 4, v17")
        k.e("v_add3_u32 v%d, v18, v19, s60" % (8 + sl))
    k.wait_lds("st")
    for sl in range(2):
        cw = acc(sl, 5)
        for mi in range(5):
            a = acc(sl, mi)
            for r in range(4):
                k.e("v_fma_f32 v%d, v%d, v%d, v%d" % (a + r, 96 + 2 * mi, cw + r, a + r))
            for r in range(4):
                k.e("v_mul_f32 v%d, v%d, v%d" % (a + r, 97 + 2 * mi, a + r))
            k.e("v_cvt_pk_bf16_f32 v18, v%d, v%d" % (a, a + 1))
            k.e("v_cvt_pk_bf16_f32 v19, v%d, v%d" % (a + 2, a + 3))
            k.e("v_lshlrev_b32 v%d, 16, v18" % a)
            k.e("v_and_b32 v%d, 0xffff0000, v18" % (a + 1))
            k.e("v_lshlrev_b32 v%d, 16, v19" % (a + 2))
            k.e("v_and_b32 v%d, 0xffff0000, v19" % (a + 3))
            k.lds("ds_write_b128 v%d, %s offset:%d" % (8 + sl, vr(a, 4), mi * 16 * QP))
    k.wait_lds_all()
    k.e("s_barrier")
    k.e("v_lshrrev_b32 v18, 3, v0")
    k.e("s_lshl_b32 s60, s4, 3")
    k.e("v_add_u32 v18, s60, v18")
    k.e("v_bfe_u32 v19, v0, 1, 2")
    k.e("v_and_b32 v26, 1, v0")
    k.e("v_mul_u32_u24 v20, %d, v18" % QP)
    k.e("v_mul_u32_u24 v21, 72, v19")
    k.e("v_add_u32 v20, v20, v21")
    k.e("v_mul_u32_u24 v21, %d, v26" % (8 * QP))
    k.e("v_sub_u32 v27, v20, v21")
    k.e("v_add_u32 v27, %d, v27" % (10 * QP))
    Q = 32
    KV = 52
    L = 124
    O = 128
    for d in range(9):
        k.lds("ds_read_b64 %s, v20 offset:%d" % (vr(Q + 2 * d, 2), 16 * QP + d * 8), "q")
    seq = [("k", j) for j in range(4)] + [("v", j) for j in range(4)]

    def rdkv(n):
        kind, j = seq[n]
        col = 320 if kind == "k" else 640
        for d in range(9):
            k.lds("ds_read_b64 %s, v27 offset:%d" % (vr(KV + (n % 4) * 18 + 2 * d, 2), (3 - j) * 2 * QP + col + d * 8), seq[n])
    rdkv(0)
    rdkv(1)
    rdkv(2)
    for j in range(4):
        rdkv(j + 3)
        k.wait_lds(("k", j))
        b = KV + j * 18
        k.e("v_mul_f32 v%d, v%d, v%d" % (L + j, Q, b))
        k.e("v_mul_f32 v24, v%d, v%d" % (Q + 1, b + 1))
        for d in range(2, 18, 2):
            k.e("v_fmac_f32 v%d, v%d, v%d" % (L + j, Q + d, b + d))
            k.e("v_fmac_f32 v24, v%d, v%d" % (Q + d + 1, b + d + 1))
        k.e("v_add_f32 v%d, v%d, v24" % (L + j, L + j))
    rdkv(7)
    k.e("s_mov_b32 s60, 0x%x" % f2u(18 ** -0.5))
    k.e("s_lshl_b32 s61, s10, 6")
    k.e("v_add_u32 v22, s61, v18")
    k.e("v_lshlrev_b32 v25, 3, v26")
    k.e("v_sub_u32 v25, v22, v25")
    k.e("v_mov_b32 v23, 0x%x" % f2u(-1e9))
    for j in range(4):
        k.e("v_mul_f32 v%d, s60, v%d" % (L + j, L + j))
    for j in range(4):
        k.e("v_cmp_le_i32 vcc, %d, v25" % (2 * j))
        k.e("s_nop 1")
        k.e("v_cndmask_b32 v%d, v23, v%d, vcc" % (L + j, L + j))
    k.e("v_max3_f32 v24, v%d, v%d, v%d" % (L, L + 1, L + 2))
    k.e("v_max_f32 v24, v24, v%d" % (L + 3))
    k.e("s_nop 1")
    k.e("v_max_f32 v24, v24, v24 quad_perm:[1,0,3,2] row_mask:0xf bank_mask:0xf")
    k.e("s_mov_b32 s60, 0x%x" % f2u(1.4426950408889634))
    for j in range(4):
        k.e("v_sub_f32 v%d, v%d, v24" % (L + j, L + j))
    for j in range(4):
        k.e("v_mul_f32 v%d, s60, v%d" % (L + j, L + j))
    for j in range(4):
        k.e("v_exp_f32 v%d, v%d" % (L + j, L + j))
    k.e("s_nop 0")
    k.e("v_add_f32 v24, v%d, v%d" % (L, L + 1))
    k.e("v_add_f32 v25, v%d, v%d" % (L + 2, L + 3))
    k.e("v_add_f32 v24, v24, v25")
    k.e("s_nop 1")
    k.e("v_add_f32 v24, v24, v24 quad_perm:[1,0,3,2] row_mask:0xf bank_mask:0xf")
    k.e("v_rcp_f32 v24, v24")
    k.e("s_nop 0")
    for j in range(4):
        k.e("v_mul_f32 v%d, v%d, v24" % (L + j, L + j))
    for j in range(4):
        k.wait_lds(("v", j))
        b = KV + j * 18
        for d in range(18):
            if j == 0:
                k.e("v_mul_f32 v%d, v%d, v%d" % (O + d, L, b + d))
            else:
                k.e("v_fmac_f32 v%d, v%d, v%d" % (O + d, L + j, b + d))
    k.e("s_nop 1")
    for d in range(18):
        k.e("v_add_f32 v%d, v%d, v%d quad_perm:[1,0,3,2] row_mask:0xf bank_mask:0xf" % (KV + d, O + d, O + d))
    for d in range(9):
        k.e("v_cvt_pk_bf16_f32 v%d, v%d, v%d" % (Q + d, KV + 2 * d, KV + 2 * d + 1))
    k.e("v_cmp_eq_u32 vcc, 1, v26")
    k.e("v_lshrrev_b32 v23, 4, v22")
    k.e("v_mul_u32_u24 v23, 18432, v23")
    k.e("v_and_b32 v24, 15, v22")
    k.e("v_lshlrev_b32 v24, 4, v24")
    k.e("v_add_u32 v23, v23, v24")
    k.e("v_mul_u32_u24 v21, 18, v19")
    k.e("s_mul_i32 s60, s9, 72")
    k.e("v_add_u32 v21, s60, v21")
    k.e("v_lshlrev_b32 v24, 3, v26")
    k.e("v_add_u32 v21, v21, v24")
    for d in range(5):
        k.e("v_cndmask_b32 v%d, v%d, v%d, vcc" % (O + d, Q + d, Q + d + 4))
        k.e("v_add_u32 v24, %d, v21" % (2 * d))
        k.e("v_lshrrev_b32 v25, 3, v24")
        k.e("v_lshlrev_b32 v25, 8, v25")
        k.e("v_and_b32 v24, 7, v24")
        k.e("v_lshlrev_b32 v24, 1, v24")
        k.e("v_add3_u32 v%d, v23, v24, v25" % (O + 8 + d))
        k.e("buffer_store_dword v%d, v%d, %s, 0 offen sc1" % (O + d, O + 8 + d, sr(SO, 4)))
    if "tend" in EXP:
        k.e("s_mov_b64 exec, -1")
        touch(k, 96, P_WG, D * F * 2, 2048, 8, 18, 1)
        touch(k, 96, P_WU, D * F * 2, 2048, 8, 18, 1)
    if "k1fine" not in EXP:
        stamp(k, 3)
        stamp_flush(k, 6)
    k.label(lab_cs3)
    k.e("s_mov_b64 exec, -1")
    srd(k, 64, P_DBG, 0, 256)
    srd(k, 84, P_WS, FLG_OFF + 32768 + 2048, 2048)
    k.e("v_mov_b32 v1, 0")
    lab_nf = k.newlab("nf")
    lab_tp = k.newlab("tokpoll")
    lab_nt = k.newlab("notok")
    k.e("s_cmp_lg_u32 s4, 0")
    k.e("s_cbranch_scc1 %s" % lab_nt)
    k.label(lab_tp)
    k.e("buffer_load_dwordx2 v[2:3], v1, s[64:67], 0 offen sc1")
    k.e("s_waitcnt vmcnt(0)")
    k.e("v_readfirstlane_b32 s100, v2")
    k.e("v_readfirstlane_b32 s101, v3")
    k.e("s_cmp_eq_u32 s100, 0")
    k.e("s_cbranch_scc1 %s" % lab_tp)
    k.label(lab_nt)
    k.e("s_lshl_b32 s60, s2, 3")
    k.e("v_mov_b32 v1, s60")
    k.e("s_waitcnt vmcnt(0) lgkmcnt(0)")
    k.e("s_barrier")
    k.e("s_cmp_lg_u32 s4, 0")
    k.e("s_cbranch_scc1 %s" % lab_nf)
    k.e("s_mov_b64 exec, 1")
    k.e("buffer_store_dwordx2 v[2:3], v1, s[84:87], 0 offen sc1")
    k.e("s_mov_b64 exec, -1")
    k.label(lab_nf)
    k.lq, k.vq = [], []
    return gen_k2(k)


def main():
    ks = [
        (gen_k1, 512, 4 * 40960, 256),
    ]
    hdr = open("sequential_preLN__sliding_local_dilated__geglu_ffn__prompt.s.ref").read().split("\n")
    out = []
    for line in hdr:
        if line.startswith("; Override") or line.startswith("; grid=") or line.startswith("; @launch"):
            continue
        if not line.startswith(";"):
            break
        out.append(line)
    body = []
    desc = []
    for fn, block, lds, nv in ks:
        k, nwg = fn()
        name = k.name + "_kernel"
        out.append("; @launch kernel=%s grid=(%d,1,1) block=(%d,1,1) lds=%d" % (name, nwg, block, lds))
        body += [".globl %s" % name, ".p2align 8", ".type %s,@function" % name, "%s:" % name] + k.L
        desc += [".p2align 6", ".amdhsa_kernel %s" % name,
                 "  .amdhsa_next_free_vgpr %d" % nv, "  .amdhsa_next_free_sgpr 102",
                 "  .amdhsa_accum_offset %d" % nv,
                 "  .amdhsa_group_segment_fixed_size 0", "  .amdhsa_kernarg_size 80",
                 "  .amdhsa_user_sgpr_count 2", "  .amdhsa_user_sgpr_kernarg_segment_ptr 1",
                 "  .amdhsa_system_sgpr_workgroup_id_x 1", ".end_amdhsa_kernel"]
    out += ['.amdgcn_target "amdgcn-amd-amdhsa--gfx950"', ".text"] + body + ['.section .rodata,"a"'] + desc
    path = sys.argv[1] if len(sys.argv) > 1 else "sequential_preLN__sliding_local_dilated__geglu_ffn__prompt.s"
    open(path, "w").write("\n".join(out) + "\n")


main()
```
